```python
import torch

def _softmax(x, axis=-1):
    return torch.softmax(x, dim=axis)
def _gelu(x):
    return torch.nn.functional.gelu(x, approximate="tanh")
def _silu(x):
    return torch.nn.functional.silu(x)
def _sigmoid(x):
    return torch.sigmoid(x)
def _layernorm(x, axis=-1, eps=1e-5):
    m = x.mean(dim=axis, keepdim=True)
    v = x.var(dim=axis, keepdim=True, unbiased=False)
    return (x - m) / torch.sqrt(v + eps)
def _scatter_add(tgt, idx, src, axis=0):
    return tgt.clone().index_add_(axis, idx, src)
def _segment_sum(src, seg, n):
    out = torch.zeros((n,) + src.shape[1:], dtype=src.dtype)
    return out.index_add_(0, seg, src)
def _pad(x, pw):
    flat = tuple(v for pair in reversed(pw) for v in pair)
    return torch.nn.functional.pad(x, flat)

kernel_name = 'gated_mix__mha_block__sliding_local_dilated__prompt'

def setup_inputs():

    _w = (lambda a: (lambda t: t.to(torch.bfloat16) if t.is_floating_point() else t)(torch.as_tensor(a)))
    def _A_setup():
        B, S, D, H = 1, 2048, 448, 16
        return {
            "x": _w((lambda *s: torch.randn(*s, dtype=torch.bfloat16) * 0.05)(B, S, D)),
            "wqkv": _w((lambda *s: torch.randn(*s, dtype=torch.bfloat16) * 1.6)(D, 3 * D)),
            "wo": _w((lambda *s: torch.randn(*s, dtype=torch.bfloat16) * 0.1)(D, D)),
        }
    _A_in = _A_setup()

    def _B_setup():
        B, S, D = 1, 2048, 448
        return {
            "x": _w((lambda *s: torch.randn(*s, dtype=torch.bfloat16) * 0.05)(B, S, D)),
            "wqkv": _w((lambda *s: torch.randn(*s, dtype=torch.bfloat16) * 1.6)(D, 3 * D)),
            "wo": _w((lambda *s: torch.randn(*s, dtype=torch.bfloat16) * 0.05)(D, D)),
        }
    _B_in = _B_setup()

    return {
        "A_x": _A_in["x"],
        "A_wqkv": _A_in["wqkv"],
        "A_wo": _A_in["wo"],
        "B_x": _B_in["x"],
        "B_wqkv": _B_in["wqkv"],
        "B_wo": _B_in["wo"],
        "gate_w": _w((lambda *s: torch.randn(*s, dtype=torch.bfloat16) * 0.05)(448) * 16.0),
    }

def reference(A_x, A_wqkv, A_wo, B_x, B_wqkv, B_wo, gate_w):
    def _A_ref(x, wqkv, wo):
        B, S, D = x.shape
        H = 16
        Dh = D // H
        qkv = (lambda x, *d: x.permute(*d))((x @ wqkv).reshape(B, S, 3, H, Dh), 2, 0, 3, 1, 4)
        q, k, v = qkv[0], qkv[1], qkv[2]
        scores = torch.einsum("bhqd,bhkd->bhqk", q, k) * (Dh ** -0.5)
        p = _softmax(scores, axis=-1)
        o = torch.einsum("bhqk,bhkd->bhqd", p, v)
        return (lambda x, *d: x.permute(*d))(o, 0, 2, 1, 3).reshape(B, S, D) @ wo

    def _B_ref(x, wqkv, wo):
        B, S, D = x.shape
        H = 16; Dh = D // H
        W, dil = 8, 2
        qkv = (lambda x, *d: x.permute(*d))((x @ wqkv).reshape(B, S, 3, H, Dh), 2, 0, 3, 1, 4)
        q, k, v = qkv[0], qkv[1], qkv[2]
        scale = Dh ** -0.5
        pos = torch.arange(S)
        off = torch.arange(W) * dil
        idx = pos[:, None] - off[None, :]
        mask = idx >= 0
        idx_c = torch.where(mask, idx, 0).reshape(-1)
        kg = k[:, :, idx_c, :].reshape(B, H, S, W, Dh)
        vg = v[:, :, idx_c, :].reshape(B, H, S, W, Dh)
        logits = torch.einsum("bhsd,bhswd->bhsw", q, kg) * scale
        logits = torch.where(mask[None, None, :, :], logits, -1e9)
        attn = _softmax(logits, axis=-1)
        o = torch.einsum("bhsw,bhswd->bhsd", attn, vg)
        return (lambda x, *d: x.permute(*d))(o, 0, 2, 1, 3).reshape(B, S, D) @ wo

    x = A_x
    g = _sigmoid((x * gate_w).sum(-1, keepdims=True))
    a = _A_ref(x, A_wqkv, A_wo)
    b = _B_ref(x, B_wqkv, B_wo)
    return g * a + (1 - g) * b
```

```python
import re

TRANS = ("v_exp_f32", "v_log_f32", "v_rcp_f32", "v_rsq_f32", "v_sqrt_f32", "v_sin_f32", "v_cos_f32",
         "v_exp_f16", "v_rcp_iflag_f32")

_reg_re = re.compile(r"\b([vas])(\d+)\b|\b([vas])\[(\d+):(\d+)\]|\b(vcc|exec|m0|scc|vcc_lo|vcc_hi|exec_lo|exec_hi)\b")


def regs_of(op):
    out = set()
    for m in _reg_re.finditer(op):
        if m.group(1):
            out.add(m.group(1) + m.group(2))
        elif m.group(3):
            for i in range(int(m.group(4)), int(m.group(5)) + 1):
                out.add(m.group(3) + str(i))
        else:
            g = m.group(6)
            if g.startswith("vcc"):
                out.add("vcc")
            elif g.startswith("exec"):
                out.add("exec")
            else:
                out.add(g)
    return out


def split_ops(rest):
    ops, depth, cur = [], 0, ""
    for ch in rest:
        if ch == "[":
            depth += 1
        elif ch == "]":
            depth -= 1
        if ch == "," and depth == 0:
            ops.append(cur.strip())
            cur = ""
        else:
            cur += ch
    if cur.strip():
        ops.append(cur.strip())
    return ops


class Ins:
    __slots__ = ("text", "mn", "kind", "rd", "wr", "A", "B", "C", "D", "passes", "dpp", "states", "stdata", "ldsdma")

    def __init__(self, text):
        self.text = text
        t = text.split(";")[0].strip()
        parts = t.split(None, 1)
        mn = parts[0]
        rest = parts[1] if len(parts) > 1 else ""
        self.mn = mn
        ops = split_ops(rest)
        self.rd, self.wr = set(), set()
        self.A = self.B = self.C = self.D = None
        self.passes = 0
        self.dpp = False
        self.states = 1
        self.stdata = set()
        self.ldsdma = False
        R = regs_of
        if mn.startswith("v_mfma"):
            self.kind = "mfma"
            self.D, self.A, self.B = R(ops[0]), R(ops[1]), R(ops[2])
            self.C = R(ops[3].split()[0])
            self.rd = self.A | self.B | self.C
            self.wr = set(self.D)
            self.passes = 8 if "32x32x16" in mn else 4
        elif mn.startswith("v_"):
            self.kind = "trans" if mn.split("_e")[0] in TRANS or mn in TRANS else "valu"
            if mn.startswith("v_cmp"):
                self.wr = R(ops[0])
                for o in ops[1:]:
                    self.rd |= R(o)
            elif mn.startswith("v_permlane32_swap") or mn.startswith("v_permlane16_swap") or mn.startswith("v_swap"):
                self.wr = R(ops[0]) | R(ops[1])
                self.rd = set(self.wr)
                self.kind = "permlane"
            elif mn.startswith("v_readfirstlane") or mn.startswith("v_readlane"):
                self.wr = R(ops[0])
                for o in ops[1:]:
                    self.rd |= R(o)
                self.kind = "readlane"
            elif mn.startswith("v_add_co") or mn.startswith("v_addc_co") or mn.startswith("v_sub_co"):
                self.wr = R(ops[0]) | R(ops[1])
                for o in ops[2:]:
                    self.rd |= R(o)
            else:
                self.wr = R(ops[0])
                for o in ops[1:]:
                    self.rd |= R(o)
                if mn.startswith("v_fmac") or mn.startswith("v_dot2c") or mn.startswith("v_pk_fmac") or "UNUSED_PRESERVE" in t:
                    self.rd |= self.wr
                if mn.startswith("v_cndmask") and len(ops) == 3:
                    self.rd.add("vcc")
            if "row_" in t or "quad_perm" in t or "wave_" in t or "_dpp" in mn:
                self.dpp = True
                self.rd |= self.wr
        elif mn.startswith("ds_"):
            self.kind = "ds"
            if mn.startswith("ds_read") or mn.startswith("ds_bpermute") or mn.startswith("ds_swizzle") or mn.startswith("ds_permute"):
                self.wr = R(ops[0])
                for o in ops[1:]:
                    self.rd |= R(o.split(" offset")[0])
            else:
                for o in ops:
                    self.rd |= R(o.split(" offset")[0])
        elif mn.startswith("buffer_") or mn.startswith("global_"):
            self.kind = "vmem"
            toks = t.split()
            if mn.startswith("buffer_load"):
                if "lds" in toks:
                    self.ldsdma = True
                    for o in ops:
                        self.rd |= R(o.split(" off")[0])
                    self.rd.add("m0")
                else:
                    self.wr = R(ops[0])
                    for o in ops[1:]:
                        self.rd |= R(o.split(" off")[0])
            elif mn.startswith("buffer_store") or mn.startswith("buffer_atomic"):
                for o in ops:
                    self.rd |= R(o.split(" off")[0])
                if "x4" in mn or "x3" in mn:
                    self.stdata = R(ops[0])
            else:
                for o in ops:
                    self.rd |= R(o)
                if mn.startswith("global_load"):
                    self.wr = R(ops[0])
                    self.rd -= self.wr
        elif mn == "s_nop":
            self.kind = "nop"
            self.states = int(ops[0], 0) + 1
        elif mn.startswith("s_"):
            self.kind = "salu"
            if mn.startswith("s_cmp") or mn.startswith("s_cbranch") or mn in ("s_branch", "s_barrier", "s_waitcnt", "s_endpgm", "s_setprio", "s_sleep"):
                for o in ops:
                    self.rd |= R(o)
            else:
                self.wr = R(ops[0]) if ops else set()
                for o in ops[1:]:
                    self.rd |= R(o)
                if "saveexec" in mn:
                    self.wr.add("exec")
        else:
            raise ValueError("unknown instruction " + text)


def is_valu(i):
    return i.kind in ("valu", "trans", "permlane", "readlane")


def need(p, c):
    n = 0
    vg = lambda s: {r for r in s if r[0] in "va" and r not in ("vcc",)}
    sg = lambda s: {r for r in s if r[0] == "s" or r == "vcc"}
    if is_valu(p):
        pw = vg(p.wr)
        if pw:
            if c.kind == "mfma" and pw & c.rd:
                n = max(n, 2)
            if c.kind == "permlane" and pw & c.rd:
                n = max(n, 2)
            if c.dpp and pw & c.rd:
                n = max(n, 2)
            if c.kind == "readlane" and pw & c.rd:
                n = max(n, 1)
            if p.kind == "trans" and is_valu(c) and c.kind != "trans" and pw & c.rd:
                n = max(n, 1)
            if ("sdwa" in p.mn or "op_sel" in p.text) and is_valu(c) and pw & (c.rd | c.wr):
                n = max(n, 1)
        ps = sg(p.wr)
        if ps:
            if (is_valu(c) or c.kind == "mfma") and ps & c.rd:
                n = max(n, 4 if c.kind == "readlane" else 2)
            if c.kind == "vmem" and ps & c.rd:
                n = max(n, 5)
            if c.kind == "salu" and ps & c.rd:
                n = max(n, 1)
    if p.kind == "mfma":
        big = 12 if p.passes == 8 else 8
        over = 10 if p.passes == 8 else 6
        war = 7 if p.passes == 8 else 3
        if c.kind == "mfma":
            if p.D & (c.A | c.B):
                n = max(n, big)
            if p.D & c.C and not (p.D == c.C and p.passes == c.passes):
                n = max(n, over)
            if p.D & c.D and not (p.D == c.C and p.passes == c.passes):
                n = max(n, over)
        else:
            if p.D & (c.rd | c.wr):
                n = max(n, big)
            if is_valu(c) and p.C & c.wr:
                n = max(n, war)
    if p.kind == "salu" and "m0" in p.wr and c.ldsdma:
        n = max(n, 1)
    if p.stdata and (p.stdata & c.wr):
        n = max(n, 2)
    return n


class Asm:
    def __init__(self):
        self.items = []

    def raw(self, s):
        self.items.append(s)

    def label(self, name):
        self.items.append(name + ":")

    def __call__(self, text):
        for ln in text.strip().split("\n"):
            ln = ln.strip()
            if not ln:
                continue
            if ln.startswith(";"):
                self.items.append("    " + ln)
            elif ln.endswith(":"):
                self.items.append(ln)
            else:
                self.items.append(Ins(ln))

    def render(self, window=24):
        out = []
        hist = []
        nn = 0
        for it in self.items:
            if isinstance(it, str):
                out.append(it)
                continue
            dist = 0
            pad = 0
            for p in reversed(hist[-window:]):
                req = need(p, it)
                if req > dist:
                    pad = max(pad, req - dist)
                dist += p.states
                if dist >= 20:
                    break
            while pad > 0:
                k = min(pad, 16)
                nop = Ins("s_nop %d" % (k - 1))
                hist.append(nop)
                out.append("    " + nop.text + "    ; hazard pad")
                nn += 1
                pad -= k
            hist.append(it)
            out.append("    " + it.text)
            if it.mn in ("s_branch", "s_endpgm"):
                hist = []
        self.n_pads = nn
        return "\n".join(out) + "\n"
```

```python
import math
import struct
import sys
import os

sys.path.insert(0, os.path.dirname(os.path.abspath(__file__)))
from asmlib import Asm

NAME = "gated_mix__mha_block__sliding_local_dilated__prompt"

WS_QA = 0x000000
WS_KVA = 0x200000
BR_STRIDE = 0x600000
WS_OA = 0xC00000
WS_OB = 0xE00000
WS_G = 0x1000000
WS_USED = 0x1002000

X_BYTES = 2048 * 448 * 2
W_BYTES = 448 * 1344 * 2
WO_BYTES = 448 * 448 * 2
OUT_BYTES = 2048 * 448 * 2


def f32bits(x):
    return struct.unpack("<I", struct.pack("<f", x))[0]


SCALE_F32 = struct.unpack("<f", struct.pack("<f", 28 ** -0.5))[0]
QSCALE = f32bits(SCALE_F32 * math.log2(math.e))
NEG_BIG = f32bits(-1.0e30)


class VmQ:
    def __init__(self):
        self.q = []

    def push(self, tag):
        self.q.append(tag)

    def wait_for(self, tag):
        idx = max([i for i, t in enumerate(self.q) if t == tag], default=-1)
        if idx < 0:
            return None
        n = len(self.q) - 1 - idx
        self.q = self.q[idx + 1:]
        return min(n, 63)


def srd(a, base, pair, nbytes):
    a(f"""
    s_mov_b32 s{base}, s{pair}
    s_and_b32 s{base+1}, s{pair+1}, 0xffff
    s_mov_b32 s{base+2}, {nbytes}
    s_mov_b32 s{base+3}, 0x20000
    """)


def vr(b, n):
    return f"v[{b}:{b+n-1}]"


def ar(b, n):
    return f"a[{b}:{b+n-1}]"


def gen_k1(a, cfg):
    a.raw(".p2align 8")
    a.raw(".type k1_proj_kernel,@function")
    a.label("k1_proj_kernel")
    a("""
    s_cmp_ge_u32 s2, 256
    s_cbranch_scc1 K1_END
    s_load_dwordx4 s[4:7], s[0:1], 0
    s_load_dwordx2 s[24:25], s[0:1], 32
    s_load_dwordx2 s[26:27], s[0:1], 48
    s_load_dwordx2 s[28:29], s[0:1], 72
    v_lshrrev_b32 v1, 6, v0
    v_and_b32 v0, 63, v0
    v_readfirstlane_b32 s30, v1
    s_and_b32 s31, s2, 7
    s_lshr_b32 s32, s2, 3
    """)
    if cfg.get("k1map", 0) == 0:
        a("""
        s_and_b32 s33, s31, 1
        s_lshl_b32 s33, s33, 3
        s_and_b32 s35, s32, 7
        s_add_u32 s33, s33, s35
        s_lshr_b32 s34, s31, 1
        s_lshl_b32 s34, s34, 2
        s_lshr_b32 s35, s32, 3
        s_add_u32 s34, s34, s35
        """)
    else:
        a("""
        s_and_b32 s33, s32, 15
        s_lshr_b32 s34, s32, 4
        s_lshl_b32 s34, s34, 3
        s_add_u32 s34, s34, s31
        """)
    a("""
    s_lshr_b32 s35, s34, 3
    s_and_b32 s36, s34, 7
    s_waitcnt lgkmcnt(0)
    """)
    srd(a, 8, 4, X_BYTES)
    a("""
    s_cmp_eq_u32 s35, 0
    s_cselect_b32 s12, s6, s24
    s_cselect_b32 s13, s7, s25
    s_and_b32 s13, s13, 0xffff
    s_mov_b32 s14, %d
    s_mov_b32 s15, 0x20000
    """ % W_BYTES)
    srd(a, 16, 28, WS_USED)
    srd(a, 20, 26, 896)
    a("""
    s_cmp_ge_u32 s30, 4
    s_cbranch_scc1 K1_LOADER
    """)
    ACC = 64
    FR = 16
    XA = 4
    WA = 8
    a("""
    s_lshr_b32 s37, s30, 1          ; rp
    s_and_b32 s38, s30, 1           ; e
    v_and_b32 v1, 31, v0            ; r
    v_lshrrev_b32 v2, 5, v0         ; hf
    v_bfe_u32 v3, v0, 1, 3          ; f=(r>>1)&7
    v_xor_b32 v3, v3, v2            ; hf^f
    s_lshl_b32 s39, s37, 13         ; rp*64*128
    v_lshlrev_b32 v10, 7, v1
    v_add_u32 v10, s39, v10         ; (64rp + r)*128
    """)
    for sp in range(4):
        a(f"""
        v_xor_b32 v11, {2*sp}, v3
        v_lshl_add_u32 v{XA+sp}, v11, 4, v10
        """)
    a("""
    v_and_b32 v11, 3, v0            ; i&3
    v_lshlrev_b32 v11, 3, v11       ; 8*(i&3)
    v_bfe_u32 v12, v0, 4, 1         ; g
    v_lshl_add_u32 v11, v12, 5, v11 ; +32g
    s_mul_i32 s39, s38, 56
    v_add_u32 v11, s39, v11         ; +56e
    v_bfe_u32 v12, v0, 3, 1         ; (i>>3)&1
    v_lshlrev_b32 v12, 6, v12
    v_xor_b32 v11, v11, v12
    v_bfe_u32 v12, v0, 2, 2         ; i>>2
    v_lshl_add_u32 v12, v2, 3, v12  ; 8hf + (i>>2)
    v_lshl_add_u32 v11, v12, 7, v11
    v_add_u32 v8, 0x10000, v11
    v_add_u32 v9, 0x1c000, v11
    """)

    def reads(s):
        c, sp = divmod(s, 4)
        slot = c % 4
        b = FR + 20 * (s % 2)
        a(f"ds_read_b128 {vr(b,4)}, v{XA+sp} offset:{slot*16384}")
        a(f"ds_read_b128 {vr(b+4,4)}, v{XA+sp} offset:{slot*16384+4096}")
        wa = WA + (slot >> 1)
        for part in range(3):
            for u in range(2):
                off = (slot & 1) * 24576 + part * 8192 + (16 * sp + 4 * u) * 128
                a(f"ds_read_b64_tr_b16 {vr(b+8+4*part+2*u,2)}, v{wa} offset:{off}")

    def mfmas(s):
        b = FR + 20 * (s % 2)
        X = [vr(b, 4), vr(b + 4, 4)]
        W = [vr(b + 8 + 4 * p, 4) for p in range(3)]
        for rho in range(2):
            for p in range(3):
                d = vr(ACC + 16 * (2 * p + rho), 16)
                c = "0" if s == 0 else d
                if p < 2:
                    a(f"v_mfma_f32_32x32x16_bf16 {d}, {W[p]}, {X[rho]}, {c}")
                else:
                    a(f"v_mfma_f32_32x32x16_bf16 {d}, {X[rho]}, {W[p]}, {c}")

    a("s_barrier")
    reads(0)
    for s in range(28):
        if s + 1 < 28:
            if (s + 1) % 4 == 0:
                a("s_waitcnt lgkmcnt(0)")
                a("s_barrier")
                reads(s + 1)
            else:
                reads(s + 1)
                a("s_waitcnt lgkmcnt(8)")
        else:
            a("s_waitcnt lgkmcnt(0)")
        mfmas(s)
    a(f"""
    s_lshl_b32 s39, s36, 1
    s_add_u32 s39, s39, s38         ; h
    s_mul_i32 s40, s35, {BR_STRIDE}
    s_lshl_b32 s41, s33, 2
    s_lshl_b32 s42, s37, 1
    s_add_u32 s41, s41, s42
    s_lshl_b32 s42, s39, 17
    s_add_u32 s42, s42, s40
    s_lshl_b32 s43, s41, 11
    s_add_u32 s42, s42, s43         ; Q soffset
    s_lshl_b32 s43, s39, 18
    s_add_u32 s43, s43, s40
    s_lshl_b32 s44, s41, 12
    s_add_u32 s43, s43, s44
    s_add_u32 s43, s43, {WS_KVA}
    s_add_u32 s44, s43, 4096
    s_mov_b32 s45, {QSCALE}
    v_lshlrev_b32 v1, 4, v0         ; lane*16
    """)
    PK = 16
    for rho in range(2):
        d = ACC + 16 * rho
        for r in range(16):
            a(f"v_mul_f32 v{d+r}, s45, v{d+r}")
    for tile in range(6):
        d = ACC + 16 * tile
        for r in range(8):
            a(f"v_cvt_pk_bf16_f32 v{PK+8*tile+r}, v{d+2*r}, v{d+2*r+1}")
    a("s_mov_b32 exec_lo, 0")
    for rho in range(2):
        a(f"v_mov_b32 v{PK+8*rho+6}, 0")
        a(f"v_mov_b32 v{PK+8*rho+7}, 0")
        a(f"v_mov_b32 v{PK+8*(2+rho)+6}, 0x3f80")
        a(f"v_mov_b32 v{PK+8*(2+rho)+7}, 0")
    a("s_mov_b32 exec_lo, 0x10000000")
    a("s_mov_b32 exec_hi, 0x10000000")
    for rho in range(2):
        for r in range(8):
            a(f"v_mov_b32 v{PK+8*(4+rho)+r}, 0x3f803f80")
    a("s_mov_b64 exec, -1")
    for rho in range(2):
        for f in range(2):
            a(f"buffer_store_dwordx4 {vr(PK+8*rho+4*f,4)}, v1, s[16:19], s42 offen offset:{rho*2048+f*1024}")
    for rho in range(2):
        so = "s43" if rho == 0 else "s44"
        for f in range(2):
            a(f"buffer_store_dwordx4 {vr(PK+8*(2+rho)+4*f,4)}, v1, s[16:19], {so} offen offset:{f*1024}")
            a(f"buffer_store_dwordx4 {vr(PK+8*(4+rho)+4*f,4)}, v1, s[16:19], {so} offen offset:{2048+f*1024}")
    a("s_endpgm")

    a.label("K1_LOADER")
    a("""
    s_sub_u32 s37, s30, 4           ; j
    v_lshrrev_b32 v1, 3, v0
    v_and_b32 v2, 7, v0             ; p
    v_lshrrev_b32 v3, 4, v0         ; lane>>4
    v_xor_b32 v4, v2, v3
    v_lshlrev_b32 v4, 4, v4
    s_movk_i32 s38, 896
    v_mad_u32_u24 v5, v1, s38, v4
    v_xor_b32 v6, 64, v5
    v_and_b32 v3, 1, v3
    v_lshlrev_b32 v3, 2, v3
    v_xor_b32 v4, v2, v3
    v_lshlrev_b32 v4, 4, v4
    s_movk_i32 s38, 2688
    v_mad_u32_u24 v7, v1, s38, v4   ; W voff
    s_lshl_b32 s40, s33, 7
    s_lshl_b32 s41, s37, 5
    s_add_u32 s40, s40, s41
    s_mul_i32 s40, s40, 896
    s_mul_i32 s41, s36, 112
    s_mul_i32 s42, s37, 43008
    s_add_u32 s41, s41, s42         ; W base
    s_lshl_b32 s42, s37, 12
    s_lshl_b32 s43, s37, 11
    s_add_u32 s43, s43, 0x10000
    """)
    q = VmQ()
    a("""
    s_lshl_b32 s46, s33, 7
    s_lshl_b32 s47, s34, 3
    s_add_u32 s46, s46, s47
    s_lshl_b32 s47, s37, 1
    s_add_u32 s46, s46, s47
    s_mul_i32 s47, s46, 896
    s_add_u32 s48, s47, 896
    v_lshlrev_b32 v8, 4, v0
    """)
    for r in range(12):
        a(f"v_mov_b32 v{16+r}, 0")
    a("""
    s_mov_b32 exec_hi, 0x00ffffff
    buffer_load_dwordx4 v[16:19], v8, s[8:11], s47 offen
    buffer_load_dwordx4 v[20:23], v8, s[8:11], s48 offen
    buffer_load_dwordx4 v[24:27], v8, s[20:23], 0 offen
    s_mov_b64 exec, -1
    """)
    for _ in range(3):
        q.push("gate")

    def issue(c):
        slot = c % 4
        for i in range(4):
            a(f"s_add_u32 s44, s40, {8*i*896 + 128*c}")
            a(f"s_add_u32 m0, s42, {slot*16384 + 8*i*128}")
            a(f"buffer_load_dwordx4 v{5 + (i & 1)}, s[8:11], s44 offen lds")
            q.push(("c", c))
        for part in range(3):
            for ii in range(2):
                a(f"s_add_u32 s44, s41, {part*896 + (64*c + 8*ii)*2688}")
                a(f"s_add_u32 m0, s43, {slot*24576 + part*8192 + 8*ii*128}")
                a(f"buffer_load_dwordx4 v7, s[12:15], s44 offen lds")
                q.push(("c", c))

    for c in range(4):
        issue(c)
    a(f"s_waitcnt vmcnt({q.wait_for('gate')})")
    a("""
    v_mov_b32 v28, 0
    v_mov_b32 v29, 0
    """)
    for r in range(4):
        a(f"v_dot2_f32_bf16 v28, v{16+r}, v{24+r}, v28")
        a(f"v_dot2_f32_bf16 v29, v{20+r}, v{24+r}, v29")
    a("s_nop 2")
    for sh in (1, 2, 4, 8):
        a(f"v_add_f32_dpp v28, v28, v28 row_shr:{sh} row_mask:0xf bank_mask:0xf bound_ctrl:0")
        a(f"v_add_f32_dpp v29, v29, v29 row_shr:{sh} row_mask:0xf bank_mask:0xf bound_ctrl:0")
    a("v_add_f32_dpp v28, v28, v28 row_bcast:15 row_mask:0xa bank_mask:0xf")
    a("v_add_f32_dpp v29, v29, v29 row_bcast:15 row_mask:0xa bank_mask:0xf")
    a("v_add_f32_dpp v28, v28, v28 row_bcast:31 row_mask:0xc bank_mask:0xf")
    a("v_add_f32_dpp v29, v29, v29 row_bcast:31 row_mask:0xc bank_mask:0xf")
    a(f"""
    v_cvt_pk_bf16_f32 v30, v28, v29
    v_lshlrev_b32 v28, 16, v30
    v_and_b32 v29, 0xffff0000, v30
    v_mul_f32 v28, {f32bits(-math.log2(math.e))}, v28
    v_mul_f32 v29, {f32bits(-math.log2(math.e))}, v29
    v_exp_f32 v28, v28
    v_exp_f32 v29, v29
    v_add_f32 v28, 1.0, v28
    v_add_f32 v29, 1.0, v29
    v_rcp_f32 v28, v28
    v_rcp_f32 v29, v29
    v_cvt_pk_bf16_f32 v30, v28, v29
    v_lshlrev_b32 v28, 16, v30
    v_and_b32 v29, 0xffff0000, v30
    s_lshl_b32 s47, s46, 2
    s_add_u32 s47, s47, {WS_G}
    v_mov_b32 v31, 0
    s_mov_b32 exec_lo, 0
    s_mov_b32 exec_hi, 0x80000000
    buffer_store_dwordx2 v[28:29], v31, s[16:19], s47 offen
    s_mov_b64 exec, -1
    """)
    q.push("gst")
    for c in range(7):
        a(f"s_waitcnt vmcnt({q.wait_for(('c', c))})")
        a("s_barrier")
        if c >= 1 and c + 3 < 7:
            issue(c + 3)
    a.label("K1_END")
    a("s_endpgm")


def finalize_o(a, O, T, voff, soff, q=None):
    a(f"""
    v_mov_b32 v{T}, v{O+12}
    v_mov_b32 v{T+1}, v{O+12}
    v_permlane32_swap_b32 v{T}, v{T+1}
    v_rcp_f32 v{T}, v{T+1}
    """)
    for r in range(16):
        a(f"v_mul_f32 v{O+r}, v{T}, v{O+r}")
    for r in range(8):
        a(f"v_cvt_pk_bf16_f32 v{T+2+r}, v{O+2*r}, v{O+2*r+1}")
    for i in range(4):
        if i == 3:
            a("s_mov_b32 exec_hi, 0")
        a(f"buffer_store_dwordx2 {vr(T+2+2*i,2)}, v{voff}, s[8:11], {soff} offen offset:{512*i}")
        if q is not None:
            q.push("ost")
    a("s_mov_b64 exec, -1")


def lane_mask(fn):
    m = 0
    for l in range(64):
        if fn(l):
            m |= 1 << l
    return m


def gen_k2(a, cfg):
    a.raw(".p2align 8")
    a.raw(".type k2_attn_kernel,@function")
    a.label("k2_attn_kernel")
    Q, O, S, P, NM, T = 16, 48, 112, 144, 152, 156
    LQ, LK, LKP, LV, LVP = 176, 184, 192, 200, 208
    a("""
    s_cmp_ge_u32 s2, 256
    s_cbranch_scc1 K2_END
    s_load_dwordx2 s[4:5], s[0:1], 72
    v_lshrrev_b32 v1, 6, v0
    v_and_b32 v0, 63, v0
    v_readfirstlane_b32 s30, v1     ; w
    s_and_b32 s31, s2, 7
    s_lshl_b32 s31, s31, 1
    s_bfe_u32 s32, s2, 0x10003
    s_add_u32 s31, s31, s32         ; h
    s_lshr_b32 s32, s2, 4           ; qb
    v_lshlrev_b32 v1, 4, v0         ; lane*16
    s_waitcnt lgkmcnt(0)
    """)
    srd(a, 8, 4, WS_USED)
    q = VmQ()
    a(f"""
    s_lshl_b32 s33, s32, 2
    s_add_u32 s33, s33, s30
    s_lshl_b32 s34, s31, 17
    s_lshl_b32 s35, s33, 11
    s_add_u32 s34, s34, s35
    s_add_u32 s34, s34, {BR_STRIDE + WS_QA}
    s_lshl_b32 s35, s31, 18
    s_lshl_b32 s36, s33, 12
    s_add_u32 s35, s35, s36
    s_add_u32 s35, s35, {BR_STRIDE + WS_KVA}
    s_sub_u32 s36, s35, 4096
    """)
    for f in range(2):
        a(f"buffer_load_dwordx4 {vr(LQ+4*f,4)}, v1, s[8:11], s34 offen offset:{1024*f}")
        q.push("L")
    for f in range(2):
        a(f"buffer_load_dwordx4 {vr(LK+4*f,4)}, v1, s[8:11], s35 offen offset:{1024*f}")
        q.push("L")
    for f in range(2):
        a(f"buffer_load_dwordx4 {vr(LKP+4*f,4)}, v1, s[8:11], s36 offen offset:{1024*f}")
        q.push("L")
    for f in range(2):
        a(f"buffer_load_dwordx4 {vr(LV+4*f,4)}, v1, s[8:11], s35 offen offset:{2048+1024*f}")
        q.push("LV")
    a(f"buffer_load_dwordx4 {vr(LVP,4)}, v1, s[8:11], s36 offen offset:3072")
    q.push("LV")
    a(f"""
    s_lshl_b32 s37, s31, 17
    s_lshl_b32 s38, s32, 13
    s_add_u32 s37, s37, s38
    s_add_u32 s38, s37, 4096
    s_lshl_b32 s39, s31, 18
    s_lshl_b32 s40, s30, 16
    s_add_u32 s39, s39, s40
    s_add_u32 s39, s39, {WS_KVA}
    s_mov_b32 s41, s39
    """)
    for j in range(4):
        for f in range(2):
            so = "s37" if j < 2 else "s38"
            a(f"buffer_load_dwordx4 {vr(Q+8*j+4*f,4)}, v1, s[8:11], {so} offen offset:{(j&1)*2048+1024*f}")
            q.push("Q")

    def load_tile(t):
        for part in range(4):
            a(f"buffer_load_dwordx4 {ar(16*t+4*part,4)}, v1, s[8:11], s41 offen offset:{1024*part}")
            q.push(("K", t) if part < 2 else ("V", t))
        a("s_add_u32 s41, s41, 4096")

    NPRE = 11
    for t in range(NPRE):
        load_tile(t)

    a("""
    v_and_b32 v2, 31, v0
    v_lshlrev_b32 v2, 4, v2
    v_lshrrev_b32 v3, 5, v0         ; hf
    s_and_b32 s42, s31, 1           ; e
    s_cmp_eq_u32 s42, 0
    s_cselect_b32 s43, 8, 504
    s_cselect_b32 s44, 0, 1544      ; base
    v_mad_u32_u24 v2, v3, s43, v2
    v_add_u32 v2, s44, v2
    s_lshr_b32 s42, s31, 1
    s_mul_i32 s42, s42, 3584        ; 7a*512
    s_mul_i32 s43, s33, 28672
    s_add_u32 s42, s42, s43
    """)
    a(f"s_add_u32 s43, s42, {WS_OB}")
    a(f"s_add_u32 s42, s42, {WS_OA}")
    a(f"""
    s_cmp_eq_u32 s33, 0
    s_cselect_b32 s45, 0, -1
    v_mov_b32 v4, {NEG_BIG}
    """)
    Sd, Sp = S, S + 16
    a(f"s_waitcnt vmcnt({q.wait_for('L')})")
    a(f"v_mfma_f32_32x32x16_bf16 {vr(Sd,16)}, {vr(LK,4)}, {vr(LQ,4)}, 0")
    a(f"v_mfma_f32_32x32x16_bf16 {vr(Sp,16)}, {vr(LKP,4)}, {vr(LQ,4)}, 0")
    a(f"v_mfma_f32_32x32x16_bf16 {vr(Sd,16)}, {vr(LK+4,4)}, {vr(LQ+4,4)}, {vr(Sd,16)}")
    a(f"v_mfma_f32_32x32x16_bf16 {vr(Sp,16)}, {vr(LKP+4,4)}, {vr(LQ+4,4)}, {vr(Sp,16)}")
    regs = []
    k = 0
    for r in range(16):
        m = lane_mask(lambda l: (((l & 31) - ((r & 3) + 8 * (r >> 2) + 4 * (l >> 5))) & ~14) == 0)
        sp = 46 + 2 * (k % 8)
        k += 1
        a(f"s_mov_b32 s{sp}, {m & 0xffffffff:#x}")
        a(f"s_mov_b32 s{sp+1}, {m >> 32:#x}")
        a(f"v_cndmask_b32 v{Sd+r}, v4, v{Sd+r}, s[{sp}:{sp+1}]")
        regs.append(Sd + r)
    for r in range(8, 16):
        m = lane_mask(lambda l: ((32 + (l & 31) - ((r & 3) + 8 * (r >> 2) + 4 * (l >> 5))) & ~14) == 0)
        sp = 46 + 2 * (k % 8)
        k += 1
        a(f"s_and_b32 s{sp}, s45, {m & 0xffffffff:#x}")
        a(f"s_and_b32 s{sp+1}, s45, {m >> 32:#x}")
        a(f"v_cndmask_b32 v{Sp+r}, v4, v{Sp+r}, s[{sp}:{sp+1}]")
        regs.append(Sp + r)

    def max_tree(regs, dst, tmp):
        h = len(regs) // 2
        for (rs, d) in ((regs[:h], dst), (regs[h:], tmp)):
            a(f"v_max3_f32 v{d}, v{rs[0]}, v{rs[1]}, v{rs[2]}")
            i = 3
            while i + 1 < len(rs):
                a(f"v_max3_f32 v{d}, v{d}, v{rs[i]}, v{rs[i+1]}")
                i += 2
            if i < len(rs):
                a(f"v_max_f32 v{d}, v{d}, v{rs[i]}")
        a(f"v_max_f32 v{dst}, v{dst}, v{tmp}")
        a(f"v_mov_b32 v{tmp}, v{dst}")
        a(f"v_permlane32_swap_b32 v{dst}, v{tmp}")
        a(f"v_max_f32 v{dst}, v{dst}, v{tmp}")

    max_tree(regs, T, T + 1)
    for r in regs:
        a(f"v_sub_f32 v{r}, v{r}, v{T}")
    for r in regs:
        a(f"v_exp_f32 v{r}, v{r}")
    for r in range(8):
        a(f"v_cvt_pk_bf16_f32 v{P+r}, v{Sd+2*r}, v{Sd+2*r+1}")
    for r in range(4):
        a(f"v_cvt_pk_bf16_f32 v{T+4+r}, v{Sp+8+2*r}, v{Sp+9+2*r}")
    a(f"s_waitcnt vmcnt({q.wait_for('LV')})")
    a(f"v_mfma_f32_32x32x16_bf16 {vr(O,16)}, {vr(LV,4)}, {vr(P,4)}, 0")
    a(f"v_mfma_f32_32x32x16_bf16 {vr(O,16)}, {vr(LV+4,4)}, {vr(P+4,4)}, {vr(O,16)}")
    a(f"v_mfma_f32_32x32x16_bf16 {vr(O,16)}, {vr(LVP,4)}, {vr(T+4,4)}, {vr(O,16)}")
    a(f"s_waitcnt vmcnt({q.wait_for(('K', 0))})")
    for t in range(NPRE, 16):
        load_tile(t)

    def qk(u, buf):
        t, j = divmod(u, 4)
        d = vr(S + 16 * buf, 16)
        return (f"v_mfma_f32_32x32x16_bf16 {d}, {ar(16*t,4)}, {vr(Q+8*j,4)}, 0",
                f"v_mfma_f32_32x32x16_bf16 {d}, {ar(16*t+4,4)}, {vr(Q+8*j+4,4)}, {d}")

    m0, m1 = qk(0, 0)
    a(m0)
    a(m1)
    m0, m1 = qk(1, 1)
    a(m0)
    a(m1)
    finalize_o(a, O, T + 8, 2, "s43", q)
    for j in range(4):
        buf = j & 1
        max_tree([S + 16 * buf + r for r in range(16)], T, T + 1)
        if j + 2 < 4:
            m0, m1 = qk(j + 2, buf)
            a(m0)
            a(m1)
        a(f"v_cvt_pk_bf16_f32 v{T+1}, -v{T}, 0")
        a(f"v_lshlrev_b32 v{NM+j}, 16, v{T+1}")
        a("s_mov_b32 exec_lo, 0")
        a(f"v_mov_b32 v{Q+8*j+6}, v{T+1}")
        a("s_mov_b32 exec_lo, -1")
    m0, m1 = qk(0, 0)
    a(m0)
    a(m1)

    def pv(u, half):
        t, j = divmod(u, 4)
        d = vr(O + 16 * j, 16)
        c = "0" if (t == 0 and half == 0) else d
        return f"v_mfma_f32_32x32x16_bf16 {d}, {ar(16*t+8+4*half,4)}, {vr(P+4*half,4)}, {c}"

    for u in range(64):
        sb = S + 16 * (u & 1)
        slots = [None] * 4
        pre = [None] * 4
        if u + 1 < 64:
            slots[0], slots[1] = qk(u + 1, (u + 1) & 1)
            if (u + 1) % 4 == 0:
                n = q.wait_for(("K", (u + 1) // 4))
                if n is not None:
                    pre[0] = f"s_waitcnt vmcnt({n})"
        if u >= 1:
            slots[2] = pv(u - 1, 1)
        slots[3] = pv(u, 0)
        if u % 4 == 0:
            n = q.wait_for(("V", u // 4))
            if n is not None:
                pre[3] = f"s_waitcnt vmcnt({n})"
        for g in range(4):
            r = 4 * g
            a(f"v_exp_f32 v{sb+r}, v{sb+r}")
            a(f"v_exp_f32 v{sb+r+1}, v{sb+r+1}")
            if pre[g]:
                a(pre[g])
            if slots[g]:
                a(slots[g])
            a(f"v_exp_f32 v{sb+r+2}, v{sb+r+2}")
            a(f"v_exp_f32 v{sb+r+3}, v{sb+r+3}")
            a(f"v_cvt_pk_bf16_f32 v{P+2*g}, v{sb+r}, v{sb+r+1}")
            a(f"v_cvt_pk_bf16_f32 v{P+2*g+1}, v{sb+r+2}, v{sb+r+3}")
    a(pv(63, 1))
    a(f"""
    s_mov_b32 s46, {f32bits(2.0**-30)}
    s_mov_b32 s47, {f32bits(2.0**30)}
    s_mov_b64 s[48:49], -1
    """)
    for j in range(4):
        a(f"v_cmp_lt_f32 vcc, s46, v{O+16*j+12}")
        a("s_and_b64 s[48:49], s[48:49], vcc")
        a(f"v_cmp_gt_f32 vcc, s47, v{O+16*j+12}")
        a("s_and_b64 s[48:49], s[48:49], vcc")
    a("""
    s_cmp_eq_u32 s49, -1
    s_cbranch_scc0 K2_FALLBACK
    """)
    a.label("K2_COMBINE")
    a("""
    s_nop 15
    s_lshl_b32 s46, s30, 14
    v_add_u32 v5, s46, v1           ; w*16384 + lane*16
    s_lshl_b32 s46, s30, 10
    v_lshlrev_b32 v6, 2, v0
    v_add_u32 v6, s46, v6
    v_add_u32 v6, 0x10000, v6       ; m slot
    """)
    for j in range(4):
        a(f"s_cmp_eq_u32 s30, {j}")
        a(f"s_cbranch_scc1 K2_SKIPW{j}")
        for qd in range(4):
            a(f"ds_write_b128 v5, {vr(O+16*j+4*qd,4)} offset:{j*4096+qd*1024}")
        a(f"ds_write_b32 v6, v{NM+j} offset:{j*256}")
        a.label(f"K2_SKIPW{j}")
    for j in range(4):
        a(f"s_cmp_lg_u32 s30, {j}")
        a(f"s_cbranch_scc1 K2_SKIPM{j}")
        for r in range(16):
            a(f"v_mov_b32 v{S+r}, v{O+16*j+r}")
        a(f"v_mov_b32 v{T}, v{NM+j}")
        a.label(f"K2_SKIPM{j}")
    a("""
    s_waitcnt lgkmcnt(0)
    s_barrier
    s_lshl_b32 s46, s30, 12
    v_add_u32 v5, s46, v1
    s_lshl_b32 s46, s30, 8
    v_lshlrev_b32 v6, 2, v0
    v_add_u32 v6, s46, v6
    v_add_u32 v6, 0x10000, v6
    """)
    for k in range(1, 4):
        a(f"""
        s_add_u32 s46, s30, {k}
        s_and_b32 s46, s46, 3
        s_lshl_b32 s47, s46, 14
        v_add_u32 v7, s47, v5
        s_lshl_b32 s47, s46, 10
        v_add_u32 v8, s47, v6
        ds_read_b32 v{T+k}, v8
        """)
        for qd in range(4):
            a(f"ds_read_b128 {vr(O+16*(k-1)+4*qd,4)}, v7 offset:{qd*1024}")
    a(f"""
    s_waitcnt lgkmcnt(0)
    v_min3_f32 v{T+4}, v{T}, v{T+1}, v{T+2}
    v_min_f32 v{T+4}, v{T+4}, v{T+3}
    """)
    for k in range(4):
        a(f"v_sub_f32 v{T+k}, v{T+4}, v{T+k}")
    for k in range(4):
        a(f"v_exp_f32 v{T+k}, v{T+k}")
    for r in range(16):
        a(f"v_mul_f32 v{S+r}, v{T}, v{S+r}")
    for k in range(1, 4):
        for r in range(16):
            a(f"v_fmac_f32 v{S+r}, v{T+k}, v{O+16*(k-1)+r}")
    finalize_o(a, S, T + 8, 2, "s42")
    a.label("K2_END")
    a("s_endpgm")

    a.label("K2_FALLBACK")
    a("s_nop 15")
    a("s_mov_b32 exec_lo, 0")
    for j in range(4):
        a(f"v_mov_b32 v{Q+8*j+6}, 0")
    a("s_mov_b32 exec_lo, -1")
    for j in range(4):
        a(f"v_mov_b32 v{NM+j}, {f32bits(3.0e38)}")
        for r in range(16):
            a(f"v_mov_b32 v{O+16*j+r}, 0")
    a("s_mov_b32 s46, 0")
    a.label("K2_FB_LOOP")
    for part in range(4):
        a(f"buffer_load_dwordx4 {vr(LK+4*part,4)}, v1, s[8:11], s39 offen offset:{1024*part}")
    a("s_waitcnt vmcnt(0)")
    for j in range(4):
        d = vr(S, 16)
        a(f"v_mfma_f32_32x32x16_bf16 {d}, {vr(LK,4)}, {vr(Q+8*j,4)}, 0")
        a(f"v_mfma_f32_32x32x16_bf16 {d}, {vr(LK+4,4)}, {vr(Q+8*j+4,4)}, {d}")
        max_tree([S + r for r in range(16)], T, T + 1)
        a(f"v_min_f32 v{T+1}, v{NM+j}, -v{T}")
        a(f"v_sub_f32 v{T+2}, v{T+1}, v{NM+j}")
        a(f"v_exp_f32 v{T+2}, v{T+2}")
        a(f"v_mov_b32 v{NM+j}, v{T+1}")
        for r in range(16):
            a(f"v_add_f32 v{S+r}, v{S+r}, v{T+1}")
        for r in range(16):
            a(f"v_exp_f32 v{S+r}, v{S+r}")
        for r in range(16):
            a(f"v_mul_f32 v{O+16*j+r}, v{T+2}, v{O+16*j+r}")
        for r in range(8):
            a(f"v_cvt_pk_bf16_f32 v{P+r}, v{S+2*r}, v{S+2*r+1}")
        o = vr(O + 16 * j, 16)
        a(f"v_mfma_f32_32x32x16_bf16 {o}, {vr(LK+8,4)}, {vr(P,4)}, {o}")
        a(f"v_mfma_f32_32x32x16_bf16 {o}, {vr(LK+12,4)}, {vr(P+4,4)}, {o}")
    a("""
    s_nop 15
    s_add_u32 s39, s39, 4096
    s_add_u32 s46, s46, 1
    s_cmp_lt_u32 s46, 16
    s_cbranch_scc1 K2_FB_LOOP
    s_branch K2_COMBINE
    """)


def gen_k3(a, cfg):
    a.raw(".p2align 8")
    a.raw(".type k3_out_kernel,@function")
    a.label("k3_out_kernel")
    a("""
    s_cmp_ge_u32 s2, 224
    s_cbranch_scc1 K3_END
    s_load_dwordx2 s[4:5], s[0:1], 16
    s_load_dwordx2 s[6:7], s[0:1], 40
    s_load_dwordx2 s[24:25], s[0:1], 56
    s_load_dwordx2 s[26:27], s[0:1], 72
    v_lshrrev_b32 v1, 6, v0
    v_and_b32 v0, 63, v0
    v_readfirstlane_b32 s30, v1     ; w
    s_and_b32 s31, s2, 7
    s_lshr_b32 s32, s2, 3           ; idx 0..27
    s_cmp_ge_u32 s32, 14
    s_cselect_b32 s33, 1, 0
    s_cselect_b32 s34, 14, 0
    s_sub_u32 s34, s32, s34         ; cb
    s_lshl_b32 s31, s31, 1
    s_add_u32 s33, s33, s31         ; rb
    v_lshlrev_b32 v1, 4, v0         ; lane*16
    v_lshrrev_b32 v2, 2, v0
    v_and_b32 v3, 3, v0
    v_lshlrev_b32 v3, 4, v3
    s_movk_i32 s35, 896
    v_mad_u32_u24 v2, v2, s35, v3
    s_waitcnt lgkmcnt(0)
    """)
    srd(a, 8, 4, WO_BYTES)
    srd(a, 12, 6, WO_BYTES)
    srd(a, 16, 24, OUT_BYTES)
    srd(a, 20, 26, WS_USED)
    a("""
    s_lshl_b32 s35, s34, 6
    s_mul_i32 s36, s30, 100352      ; w*7*16*896
    s_add_u32 s35, s35, s36
    s_mul_i32 s36, s30, 7168
    s_lshl_b32 s37, s33, 2
    s_add_u32 s37, s37, s30         ; t
    s_mul_i32 s38, s37, 28672
    """)
    q = VmQ()
    for br in range(2):
        for i in range(7):
            a(f"s_add_u32 s40, s35, {16*i*896}")
            a(f"s_add_u32 m0, s36, {br*28672 + i*1024}")
            a(f"buffer_load_dwordx4 v2, s[{8+4*br}:{11+4*br}], s40 offen lds")
            q.push(("w", br))
        if br == 0:
            a(f"""
            s_lshl_b32 s39, s37, 7
            s_add_u32 s39, s39, {WS_G}
            v_and_b32 v4, 31, v0
            v_lshlrev_b32 v5, 2, v4
            buffer_load_dword v6, v5, s[20:23], s39 offen
            """)
            q.push("g")
        for s in range(28):
            if s % 4 == 0:
                a(f"s_add_u32 s41, s38, {(WS_OA if br == 0 else WS_OB) + s*1024}")
            a(f"buffer_load_dwordx4 {ar(112*br+4*s,4)}, v1, s[20:23], s41 offen offset:{(s%4)*1024}")
            q.push(("o", br, s))
    a("""
    v_and_b32 v7, 3, v0
    v_lshlrev_b32 v7, 3, v7
    v_bfe_u32 v8, v0, 4, 1
    v_lshl_add_u32 v7, v8, 5, v7
    v_bfe_u32 v8, v0, 2, 2
    v_lshrrev_b32 v9, 5, v0         ; hf
    v_lshl_add_u32 v8, v9, 3, v8
    v_lshl_add_u32 v7, v8, 6, v7
    """)
    ACC = 16
    WF = 48
    NB = 4

    def reads(br, s):
        b = WF + 4 * ((28 * br + s) % NB)
        for u in range(2):
            a(f"ds_read_b64_tr_b16 {vr(b+2*u,2)}, v7 offset:{br*28672 + (16*s+4*u)*64}")

    for br in range(2):
        a(f"s_waitcnt vmcnt({q.wait_for(('w', br))})")
        a("s_barrier")
        for s in range(NB - 1):
            reads(br, s)
        for s in range(28):
            if s + NB - 1 < 28:
                reads(br, s + NB - 1)
                a(f"s_waitcnt vmcnt({q.wait_for(('o', br, s))}) lgkmcnt({2*(NB-1)})")
            else:
                a(f"s_waitcnt vmcnt({q.wait_for(('o', br, s))}) lgkmcnt({2*(27-s)})")
            b = WF + 4 * ((28 * br + s) % NB)
            d = vr(ACC + 16 * br, 16)
            c = "0" if s == 0 else d
            a(f"v_mfma_f32_32x32x16_bf16 {d}, {vr(b,4)}, {ar(112*br+4*s,4)}, {c}")
    a("""
    v_sub_f32 v8, 1.0, v6
    v_cvt_pk_bf16_f32 v8, v8, v8
    v_lshlrev_b32 v8, 16, v8        ; bf16(1-g)
    s_lshl_b32 s39, s37, 5
    v_add_u32 v4, s39, v4           ; row
    s_movk_i32 s39, 896
    v_mul_lo_u32 v4, v4, s39
    v_lshl_add_u32 v4, v9, 4, v4    ; + hf*16
    s_lshl_b32 s39, s34, 6
    """)
    for r in range(16):
        a(f"v_mul_f32 v{ACC+16+r}, v8, v{ACC+16+r}")
    for r in range(16):
        a(f"v_fma_f32 v{ACC+r}, v6, v{ACC+r}, v{ACC+16+r}")
    for r in range(8):
        a(f"v_cvt_pk_bf16_f32 v{WF+r}, v{ACC+2*r}, v{ACC+2*r+1}")
    for pr in range(2):
        b = WF + 4 * pr
        a(f"v_permlane32_swap_b32 v{b}, v{b+2}")
        a(f"v_permlane32_swap_b32 v{b+1}, v{b+3}")
        a(f"buffer_store_dwordx4 {vr(b,4)}, v4, s[16:19], s39 offen offset:{32*pr}")
    a.label("K3_END")
    a("s_endpgm")


def kd(name, vgpr, accum, sgpr=64):
    return f""".p2align 6
.amdhsa_kernel {name}
  .amdhsa_next_free_vgpr {vgpr}
  .amdhsa_next_free_sgpr {sgpr}
  .amdhsa_accum_offset {accum}
  .amdhsa_group_segment_fixed_size 0
  .amdhsa_kernarg_size 80
  .amdhsa_user_sgpr_count 2
  .amdhsa_user_sgpr_kernarg_segment_ptr 1
  .amdhsa_system_sgpr_workgroup_id_x 1
.end_amdhsa_kernel
"""


def build(cfg):
    a = Asm()
    gen_k1(a, cfg)
    gen_k2(a, cfg)
    gen_k3(a, cfg)
    body = a.render()
    head = f"""; {NAME}: three launches (projections -> attention -> output projection + gated mix)
; @launch kernel=k1_proj_kernel grid=(256,1,1) block=(512,1,1) lds=163840
; @launch kernel=k2_attn_kernel grid=(256,1,1) block=(256,1,1) lds=69632
; @launch kernel=k3_out_kernel grid=(224,1,1) block=(256,1,1) lds=57344
.amdgcn_target "amdgcn-amd-amdhsa--gfx950"
.text
.globl k1_proj_kernel
.globl k2_attn_kernel
.globl k3_out_kernel
"""
    tail = '.section .rodata,"a"\n' + kd("k1_proj_kernel", 160, 160) + kd("k2_attn_kernel", 512, 256) + kd("k3_out_kernel", 288, 64)
    return head + body + tail, a.n_pads


if __name__ == "__main__":
    cfg = {}
    out = f"cdna_kernels/{NAME}.s"
    for arg in sys.argv[1:]:
        if arg.startswith("-o="):
            out = arg[3:]
        else:
            k, v = arg.split("=")
            cfg[k] = int(v)
    s, n = build(cfg)
    open(out, "w").write(s)
    print("wrote", out, len(s), "bytes;", n, "hazard pads")
```

```python
import math
import struct
import sys
import os

sys.path.insert(0, os.path.dirname(os.path.abspath(__file__)))
from asmlib import Asm

NAME = "gated_mix__mha_block__sliding_local_dilated__prompt"

WS_QA = 0x000000
WS_KVA = 0x200000
BR_STRIDE = 0x600000
WS_OA = 0xC00000
WS_OB = 0xE00000
WS_G = 0x1000000
WS_USED = 0x1002000

X_BYTES = 2048 * 448 * 2
W_BYTES = 448 * 1344 * 2
WO_BYTES = 448 * 448 * 2
OUT_BYTES = 2048 * 448 * 2


def f32bits(x):
    return struct.unpack("<I", struct.pack("<f", x))[0]


SCALE_F32 = struct.unpack("<f", struct.pack("<f", 28 ** -0.5))[0]
QSCALE = f32bits(SCALE_F32 * math.log2(math.e))
NEG_BIG = f32bits(-1.0e30)


class VmQ:
    def __init__(self):
        self.q = []

    def push(self, tag):
        self.q.append(tag)

    def wait_for(self, tag):
        idx = max([i for i, t in enumerate(self.q) if t == tag], default=-1)
        if idx < 0:
            return None
        n = len(self.q) - 1 - idx
        self.q = self.q[idx + 1:]
        return min(n, 63)


def srd(a, base, pair, nbytes):
    a(f"""
    s_mov_b32 s{base}, s{pair}
    s_and_b32 s{base+1}, s{pair+1}, 0xffff
    s_mov_b32 s{base+2}, {nbytes}
    s_mov_b32 s{base+3}, 0x20000
    """)


def stamp(a, cfg, idx, cond_wg=None):
    if not cfg.get("stamps"):
        return
    a(f"""
    s_memtime s[{64+4*idx}:{65+4*idx}]
    s_memrealtime s[{66+4*idx}:{67+4*idx}]
    """)


def stamp_flush(a, cfg, n, tag):
    if not cfg.get("stamps"):
        return
    kidx = {"K1": 0, "K2": 1, "K3": 2}[tag]
    a(f"""
    s_cmp_lg_u32 s30, 0
    s_cbranch_scc1 STAMP_SKIP_{tag}
    s_load_dwordx2 s[96:97], s[0:1], 72
    s_waitcnt lgkmcnt(0)
    s_mov_b32 s92, s96
    s_and_b32 s93, s97, 0xffff
    s_mov_b32 s94, 0x2100000
    s_mov_b32 s95, 0x20000
    s_lshl_b32 s96, s2, 7
    s_add_u32 s96, s96, {0x2000000 + kidx * 0x10000}
    v_mov_b32 v3, 0
    s_getreg_b32 s97, hwreg(HW_REG_XCC_ID)
    v_mov_b32 v4, s97
    buffer_store_dword v4, v3, s[92:95], s96 offen offset:120
    s_getreg_b32 s97, hwreg(HW_REG_HW_ID)
    v_mov_b32 v4, s97
    buffer_store_dword v4, v3, s[92:95], s96 offen offset:124
    """)
    for i in range(4 * n):
        a(f"v_mov_b32 v4, s{64+i}")
        a(f"buffer_store_dword v4, v3, s[92:95], s96 offen offset:{4*i}")
    a.label(f"STAMP_SKIP_{tag}")


def vr(b, n):
    return f"v[{b}:{b+n-1}]"


def ar(b, n):
    return f"a[{b}:{b+n-1}]"


def gen_k1(a, cfg):
    a.raw(".p2align 8")
    a.raw(".type k1_proj_kernel,@function")
    a.label("k1_proj_kernel")
    a("""
    s_cmp_ge_u32 s2, 256
    s_cbranch_scc1 K1_END
    """)
    stamp(a, cfg, 0)
    a("""
    s_load_dwordx4 s[4:7], s[0:1], 0
    s_load_dwordx2 s[24:25], s[0:1], 32
    s_load_dwordx2 s[26:27], s[0:1], 48
    s_load_dwordx2 s[28:29], s[0:1], 72
    v_lshrrev_b32 v1, 6, v0
    v_and_b32 v0, 63, v0
    v_readfirstlane_b32 s30, v1
    s_and_b32 s31, s2, 7
    s_lshr_b32 s32, s2, 3
    """)
    if cfg.get("k1map", 0) == 0:
        a("""
        s_and_b32 s33, s31, 1
        s_lshl_b32 s33, s33, 3
        s_and_b32 s35, s32, 7
        s_add_u32 s33, s33, s35
        s_lshr_b32 s34, s31, 1
        s_lshl_b32 s34, s34, 2
        s_lshr_b32 s35, s32, 3
        s_add_u32 s34, s34, s35
        """)
    else:
        a("""
        s_and_b32 s33, s32, 15
        s_lshr_b32 s34, s32, 4
        s_lshl_b32 s34, s34, 3
        s_add_u32 s34, s34, s31
        """)
    a("""
    s_lshr_b32 s35, s34, 3
    s_and_b32 s36, s34, 7
    s_waitcnt lgkmcnt(0)
    """)
    srd(a, 8, 4, X_BYTES)
    a("""
    s_cmp_eq_u32 s35, 0
    s_cselect_b32 s12, s6, s24
    s_cselect_b32 s13, s7, s25
    s_and_b32 s13, s13, 0xffff
    s_mov_b32 s14, %d
    s_mov_b32 s15, 0x20000
    """ % W_BYTES)
    srd(a, 16, 28, WS_USED)
    srd(a, 20, 26, 896)
    a("""
    s_cmp_ge_u32 s30, 4
    s_cbranch_scc1 K1_LOADER
    """)
    ACC = 64
    FR = 16
    XA = 4
    WA = 8
    a("""
    s_lshr_b32 s37, s30, 1          ; rp
    s_and_b32 s38, s30, 1           ; e
    v_and_b32 v1, 31, v0            ; r
    v_lshrrev_b32 v2, 5, v0         ; hf
    v_bfe_u32 v3, v0, 1, 3          ; f=(r>>1)&7
    v_xor_b32 v3, v3, v2            ; hf^f
    s_lshl_b32 s39, s37, 13         ; rp*64*128
    v_lshlrev_b32 v10, 7, v1
    v_add_u32 v10, s39, v10         ; (64rp + r)*128
    """)
    for sp in range(4):
        a(f"""
        v_xor_b32 v11, {2*sp}, v3
        v_lshl_add_u32 v{XA+sp}, v11, 4, v10
        """)
    a("""
    v_and_b32 v11, 3, v0            ; i&3
    v_lshlrev_b32 v11, 3, v11       ; 8*(i&3)
    v_bfe_u32 v12, v0, 4, 1         ; g
    v_lshl_add_u32 v11, v12, 5, v11 ; +32g
    s_mul_i32 s39, s38, 56
    v_add_u32 v11, s39, v11         ; +56e
    v_bfe_u32 v12, v0, 3, 1         ; (i>>3)&1
    v_lshlrev_b32 v12, 6, v12
    v_xor_b32 v11, v11, v12
    v_bfe_u32 v12, v0, 2, 2         ; i>>2
    v_lshl_add_u32 v12, v2, 3, v12  ; 8hf + (i>>2)
    v_lshl_add_u32 v11, v12, 7, v11
    v_add_u32 v8, 0x10000, v11
    v_add_u32 v9, 0x1c000, v11
    """)

    def reads(s):
        c, sp = divmod(s, 4)
        slot = c % 4
        b = FR + 20 * (s % 2)
        a(f"ds_read_b128 {vr(b,4)}, v{XA+sp} offset:{slot*16384}")
        a(f"ds_read_b128 {vr(b+4,4)}, v{XA+sp} offset:{slot*16384+4096}")
        wa = WA + (slot >> 1)
        for part in range(3):
            for u in range(2):
                off = (slot & 1) * 24576 + part * 8192 + (16 * sp + 4 * u) * 128
                a(f"ds_read_b64_tr_b16 {vr(b+8+4*part+2*u,2)}, v{wa} offset:{off}")

    def mfmas(s):
        b = FR + 20 * (s % 2)
        X = [vr(b, 4), vr(b + 4, 4)]
        W = [vr(b + 8 + 4 * p, 4) for p in range(3)]
        for rho in range(2):
            for p in range(3):
                d = vr(ACC + 16 * (2 * p + rho), 16)
                c = "0" if s == 0 else d
                if p < 2:
                    a(f"v_mfma_f32_32x32x16_bf16 {d}, {W[p]}, {X[rho]}, {c}")
                else:
                    a(f"v_mfma_f32_32x32x16_bf16 {d}, {X[rho]}, {W[p]}, {c}")

    a("s_barrier")
    stamp(a, cfg, 1)
    reads(0)
    for s in range(28):
        if s + 1 < 28:
            if (s + 1) % 4 == 0:
                a("s_waitcnt lgkmcnt(0)")
                a("s_barrier")
                reads(s + 1)
            else:
                reads(s + 1)
                a("s_waitcnt lgkmcnt(8)")
        else:
            a("s_waitcnt lgkmcnt(0)")
        mfmas(s)
    stamp(a, cfg, 2)
    a(f"""
    s_lshl_b32 s39, s36, 1
    s_add_u32 s39, s39, s38         ; h
    s_mul_i32 s40, s35, {BR_STRIDE}
    s_lshl_b32 s41, s33, 2
    s_lshl_b32 s42, s37, 1
    s_add_u32 s41, s41, s42
    s_lshl_b32 s42, s39, 17
    s_add_u32 s42, s42, s40
    s_lshl_b32 s43, s41, 11
    s_add_u32 s42, s42, s43         ; Q soffset
    s_lshl_b32 s43, s39, 18
    s_add_u32 s43, s43, s40
    s_lshl_b32 s44, s41, 12
    s_add_u32 s43, s43, s44
    s_add_u32 s43, s43, {WS_KVA}
    s_add_u32 s44, s43, 4096
    s_mov_b32 s45, {QSCALE}
    v_lshlrev_b32 v1, 4, v0         ; lane*16
    """)
    PK = 16
    for rho in range(2):
        d = ACC + 16 * rho
        for r in range(16):
            a(f"v_mul_f32 v{d+r}, s45, v{d+r}")
    for tile in range(6):
        d = ACC + 16 * tile
        for r in range(8):
            a(f"v_cvt_pk_bf16_f32 v{PK+8*tile+r}, v{d+2*r}, v{d+2*r+1}")
    a("s_mov_b32 exec_lo, 0")
    for rho in range(2):
        a(f"v_mov_b32 v{PK+8*rho+6}, 0")
        a(f"v_mov_b32 v{PK+8*rho+7}, 0")
        a(f"v_mov_b32 v{PK+8*(2+rho)+6}, 0x3f80")
        a(f"v_mov_b32 v{PK+8*(2+rho)+7}, 0")
    a("s_mov_b32 exec_lo, 0x10000000")
    a("s_mov_b32 exec_hi, 0x10000000")
    for rho in range(2):
        for r in range(8):
            a(f"v_mov_b32 v{PK+8*(4+rho)+r}, 0x3f803f80")
    a("s_mov_b64 exec, -1")
    for rho in range(2):
        for f in range(2):
            a(f"buffer_store_dwordx4 {vr(PK+8*rho+4*f,4)}, v1, s[16:19], s42 offen offset:{rho*2048+f*1024}")
    for rho in range(2):
        so = "s43" if rho == 0 else "s44"
        for f in range(2):
            a(f"buffer_store_dwordx4 {vr(PK+8*(2+rho)+4*f,4)}, v1, s[16:19], {so} offen offset:{f*1024}")
            a(f"buffer_store_dwordx4 {vr(PK+8*(4+rho)+4*f,4)}, v1, s[16:19], {so} offen offset:{2048+f*1024}")
    if cfg.get("stamps"):
        a("s_waitcnt vmcnt(0)")
    stamp(a, cfg, 3)
    stamp_flush(a, cfg, 4, "K1")
    a("s_endpgm")

    a.label("K1_LOADER")
    a("""
    s_sub_u32 s37, s30, 4           ; j
    v_lshrrev_b32 v1, 3, v0
    v_and_b32 v2, 7, v0             ; p
    v_lshrrev_b32 v3, 4, v0         ; lane>>4
    v_xor_b32 v4, v2, v3
    v_lshlrev_b32 v4, 4, v4
    s_movk_i32 s38, 896
    v_mad_u32_u24 v5, v1, s38, v4
    v_xor_b32 v6, 64, v5
    v_and_b32 v3, 1, v3
    v_lshlrev_b32 v3, 2, v3
    v_xor_b32 v4, v2, v3
    v_lshlrev_b32 v4, 4, v4
    s_movk_i32 s38, 2688
    v_mad_u32_u24 v7, v1, s38, v4   ; W voff
    s_lshl_b32 s40, s33, 7
    s_lshl_b32 s41, s37, 5
    s_add_u32 s40, s40, s41
    s_mul_i32 s40, s40, 896
    s_mul_i32 s41, s36, 112
    s_mul_i32 s42, s37, 43008
    s_add_u32 s41, s41, s42         ; W base
    s_lshl_b32 s42, s37, 12
    s_lshl_b32 s43, s37, 11
    s_add_u32 s43, s43, 0x10000
    """)
    q = VmQ()

    def issue(c):
        slot = c % 4
        for i in range(4):
            a(f"s_add_u32 s44, s40, {8*i*896 + 128*c}")
            a(f"s_add_u32 m0, s42, {slot*16384 + 8*i*128}")
            a(f"buffer_load_dwordx4 v{5 + (i & 1)}, s[8:11], s44 offen lds")
            q.push(("c", c))
        for part in range(3):
            for ii in range(2):
                a(f"s_add_u32 s44, s41, {part*896 + (64*c + 8*ii)*2688}")
                a(f"s_add_u32 m0, s43, {slot*24576 + part*8192 + 8*ii*128}")
                a(f"buffer_load_dwordx4 v7, s[12:15], s44 offen lds")
                q.push(("c", c))

    AH = cfg.get("k1ahead", 2)
    for c in range(AH):
        issue(c)
    for c in range(7):
        a(f"s_waitcnt vmcnt({q.wait_for(('c', c))})")
        a("s_barrier")
        if c + AH < 7:
            issue(c + AH)
        if c + AH == 6:
            a("""
            s_lshl_b32 s46, s33, 7
            s_lshl_b32 s47, s34, 3
            s_add_u32 s46, s46, s47
            s_lshl_b32 s47, s37, 1
            s_add_u32 s46, s46, s47
            s_mul_i32 s47, s46, 896
            s_add_u32 s48, s47, 896
            v_lshlrev_b32 v8, 4, v0
            """)
            for r in range(12):
                a(f"v_mov_b32 v{16+r}, 0")
            a("""
            s_mov_b32 exec_hi, 0x00ffffff
            buffer_load_dwordx4 v[16:19], v8, s[8:11], s47 offen
            buffer_load_dwordx4 v[20:23], v8, s[8:11], s48 offen
            buffer_load_dwordx4 v[24:27], v8, s[20:23], 0 offen
            s_mov_b64 exec, -1
            """)
            for _ in range(3):
                q.push("gate")
    a(f"s_waitcnt vmcnt(0)")
    a("""
    v_mov_b32 v28, 0
    v_mov_b32 v29, 0
    """)
    for r in range(4):
        a(f"v_dot2_f32_bf16 v28, v{16+r}, v{24+r}, v28")
        a(f"v_dot2_f32_bf16 v29, v{20+r}, v{24+r}, v29")
    a("s_nop 2")
    for sh in (1, 2, 4, 8):
        a(f"v_add_f32_dpp v28, v28, v28 row_shr:{sh} row_mask:0xf bank_mask:0xf bound_ctrl:0")
        a(f"v_add_f32_dpp v29, v29, v29 row_shr:{sh} row_mask:0xf bank_mask:0xf bound_ctrl:0")
    a("v_add_f32_dpp v28, v28, v28 row_bcast:15 row_mask:0xa bank_mask:0xf")
    a("v_add_f32_dpp v29, v29, v29 row_bcast:15 row_mask:0xa bank_mask:0xf")
    a("v_add_f32_dpp v28, v28, v28 row_bcast:31 row_mask:0xc bank_mask:0xf")
    a("v_add_f32_dpp v29, v29, v29 row_bcast:31 row_mask:0xc bank_mask:0xf")
    a(f"""
    v_cvt_pk_bf16_f32 v30, v28, v29
    v_lshlrev_b32 v28, 16, v30
    v_and_b32 v29, 0xffff0000, v30
    v_mul_f32 v28, {f32bits(-math.log2(math.e))}, v28
    v_mul_f32 v29, {f32bits(-math.log2(math.e))}, v29
    v_exp_f32 v28, v28
    v_exp_f32 v29, v29
    v_add_f32 v28, 1.0, v28
    v_add_f32 v29, 1.0, v29
    v_rcp_f32 v28, v28
    v_rcp_f32 v29, v29
    v_cvt_pk_bf16_f32 v30, v28, v29
    v_lshlrev_b32 v28, 16, v30
    v_and_b32 v29, 0xffff0000, v30
    s_lshl_b32 s47, s46, 2
    s_add_u32 s47, s47, {WS_G}
    v_mov_b32 v31, 0
    s_mov_b32 exec_lo, 0
    s_mov_b32 exec_hi, 0x80000000
    buffer_store_dwordx2 v[28:29], v31, s[16:19], s47 offen
    s_mov_b64 exec, -1
    """)
    a.label("K1_END")
    a("s_endpgm")


def finalize_o(a, O, T, voff, soff, q=None):
    a(f"""
    v_mov_b32 v{T}, v{O+12}
    v_mov_b32 v{T+1}, v{O+12}
    v_permlane32_swap_b32 v{T}, v{T+1}
    v_rcp_f32 v{T}, v{T+1}
    """)
    for r in range(16):
        a(f"v_mul_f32 v{O+r}, v{T}, v{O+r}")
    for r in range(8):
        a(f"v_cvt_pk_bf16_f32 v{T+2+r}, v{O+2*r}, v{O+2*r+1}")
    for i in range(4):
        if i == 3:
            a("s_mov_b32 exec_hi, 0")
        a(f"buffer_store_dwordx2 {vr(T+2+2*i,2)}, v{voff}, s[8:11], {soff} offen offset:{512*i}")
        if q is not None:
            q.push("ost")
    a("s_mov_b64 exec, -1")


def lane_mask(fn):
    m = 0
    for l in range(64):
        if fn(l):
            m |= 1 << l
    return m


def gen_k2(a, cfg):
    a.raw(".p2align 8")
    a.raw(".type k2_attn_kernel,@function")
    a.label("k2_attn_kernel")
    Q, O, S, P, NM, T = 16, 48, 112, 144, 152, 156
    LQ, LK, LKP, LV, LVP = 176, 184, 192, 200, 208
    a("""
    s_cmp_ge_u32 s2, 256
    s_cbranch_scc1 K2_END
    """)
    stamp(a, cfg, 0)
    a("""
    s_load_dwordx2 s[4:5], s[0:1], 72
    v_lshrrev_b32 v1, 6, v0
    v_and_b32 v0, 63, v0
    v_readfirstlane_b32 s30, v1     ; w
    s_and_b32 s31, s2, 7
    s_lshl_b32 s31, s31, 1
    s_bfe_u32 s32, s2, 0x10003
    s_add_u32 s31, s31, s32         ; h
    s_lshr_b32 s32, s2, 4           ; qb
    v_lshlrev_b32 v1, 4, v0         ; lane*16
    s_waitcnt lgkmcnt(0)
    """)
    srd(a, 8, 4, WS_USED)
    q = VmQ()
    a(f"""
    s_lshl_b32 s33, s32, 2
    s_add_u32 s33, s33, s30
    s_lshl_b32 s34, s31, 17
    s_lshl_b32 s35, s33, 11
    s_add_u32 s34, s34, s35
    s_add_u32 s34, s34, {BR_STRIDE + WS_QA}
    s_lshl_b32 s35, s31, 18
    s_lshl_b32 s36, s33, 12
    s_add_u32 s35, s35, s36
    s_add_u32 s35, s35, {BR_STRIDE + WS_KVA}
    s_sub_u32 s36, s35, 4096
    """)
    for f in range(2):
        a(f"buffer_load_dwordx4 {vr(LQ+4*f,4)}, v1, s[8:11], s34 offen offset:{1024*f}")
        q.push("L")
    for f in range(2):
        a(f"buffer_load_dwordx4 {vr(LK+4*f,4)}, v1, s[8:11], s35 offen offset:{1024*f}")
        q.push("L")
    for f in range(2):
        a(f"buffer_load_dwordx4 {vr(LKP+4*f,4)}, v1, s[8:11], s36 offen offset:{1024*f}")
        q.push("L")
    for f in range(2):
        a(f"buffer_load_dwordx4 {vr(LV+4*f,4)}, v1, s[8:11], s35 offen offset:{2048+1024*f}")
        q.push("LV")
    a(f"buffer_load_dwordx4 {vr(LVP,4)}, v1, s[8:11], s36 offen offset:3072")
    q.push("LV")
    a(f"""
    s_lshl_b32 s37, s31, 17
    s_lshl_b32 s38, s32, 13
    s_add_u32 s37, s37, s38
    s_add_u32 s38, s37, 4096
    s_lshl_b32 s39, s31, 18
    s_lshl_b32 s40, s30, 16
    s_add_u32 s39, s39, s40
    s_add_u32 s39, s39, {WS_KVA}
    s_mov_b32 s41, s39
    """)
    for j in range(4):
        for f in range(2):
            so = "s37" if j < 2 else "s38"
            a(f"buffer_load_dwordx4 {vr(Q+8*j+4*f,4)}, v1, s[8:11], {so} offen offset:{(j&1)*2048+1024*f}")
            q.push("Q")

    def load_part(t, part):
        a(f"buffer_load_dwordx4 {ar(16*t+4*part,4)}, v1, s[8:11], s41 offen offset:{1024*part}")
        q.push(("K", t) if part < 2 else ("V", t))
        if part == 3:
            a("s_add_u32 s41, s41, 4096")

    def load_tile(t):
        for part in range(4):
            load_part(t, part)

    NPRE = cfg.get('k2pre', 3)
    for t in range(NPRE):
        load_tile(t)

    a("""
    v_and_b32 v2, 31, v0
    v_lshlrev_b32 v2, 4, v2
    v_lshrrev_b32 v3, 5, v0         ; hf
    s_and_b32 s42, s31, 1           ; e
    s_cmp_eq_u32 s42, 0
    s_cselect_b32 s43, 8, 504
    s_cselect_b32 s44, 0, 1544      ; base
    v_mad_u32_u24 v2, v3, s43, v2
    v_add_u32 v2, s44, v2
    s_lshr_b32 s42, s31, 1
    s_mul_i32 s42, s42, 3584        ; 7a*512
    s_mul_i32 s43, s33, 28672
    s_add_u32 s42, s42, s43
    """)
    a(f"s_add_u32 s43, s42, {WS_OB}")
    a(f"s_add_u32 s42, s42, {WS_OA}")
    a(f"""
    s_cmp_eq_u32 s33, 0
    s_cselect_b32 s45, 0, -1
    v_mov_b32 v4, {NEG_BIG}
    """)
    Sd, Sp = S, S + 16
    a(f"s_waitcnt vmcnt({q.wait_for('L')})")
    stamp(a, cfg, 1)
    a(f"v_mfma_f32_32x32x16_bf16 {vr(Sd,16)}, {vr(LK,4)}, {vr(LQ,4)}, 0")
    a(f"v_mfma_f32_32x32x16_bf16 {vr(Sp,16)}, {vr(LKP,4)}, {vr(LQ,4)}, 0")
    a(f"v_mfma_f32_32x32x16_bf16 {vr(Sd,16)}, {vr(LK+4,4)}, {vr(LQ+4,4)}, {vr(Sd,16)}")
    a(f"v_mfma_f32_32x32x16_bf16 {vr(Sp,16)}, {vr(LKP+4,4)}, {vr(LQ+4,4)}, {vr(Sp,16)}")
    regs = []
    k = 0
    for r in range(16):
        m = lane_mask(lambda l: (((l & 31) - ((r & 3) + 8 * (r >> 2) + 4 * (l >> 5))) & ~14) == 0)
        sp = 46 + 2 * (k % 8)
        k += 1
        a(f"s_mov_b32 s{sp}, {m & 0xffffffff:#x}")
        a(f"s_mov_b32 s{sp+1}, {m >> 32:#x}")
        a(f"v_cndmask_b32 v{Sd+r}, v4, v{Sd+r}, s[{sp}:{sp+1}]")
        regs.append(Sd + r)
    for r in range(8, 16):
        m = lane_mask(lambda l: ((32 + (l & 31) - ((r & 3) + 8 * (r >> 2) + 4 * (l >> 5))) & ~14) == 0)
        sp = 46 + 2 * (k % 8)
        k += 1
        a(f"s_and_b32 s{sp}, s45, {m & 0xffffffff:#x}")
        a(f"s_and_b32 s{sp+1}, s45, {m >> 32:#x}")
        a(f"v_cndmask_b32 v{Sp+r}, v4, v{Sp+r}, s[{sp}:{sp+1}]")
        regs.append(Sp + r)

    def max_tree(regs, dst, tmp):
        h = len(regs) // 2
        for (rs, d) in ((regs[:h], dst), (regs[h:], tmp)):
            a(f"v_max3_f32 v{d}, v{rs[0]}, v{rs[1]}, v{rs[2]}")
            i = 3
            while i + 1 < len(rs):
                a(f"v_max3_f32 v{d}, v{d}, v{rs[i]}, v{rs[i+1]}")
                i += 2
            if i < len(rs):
                a(f"v_max_f32 v{d}, v{d}, v{rs[i]}")
        a(f"v_max_f32 v{dst}, v{dst}, v{tmp}")
        a(f"v_mov_b32 v{tmp}, v{dst}")
        a(f"v_permlane32_swap_b32 v{dst}, v{tmp}")
        a(f"v_max_f32 v{dst}, v{dst}, v{tmp}")

    max_tree(regs, T, T + 1)
    for r in regs:
        a(f"v_sub_f32 v{r}, v{r}, v{T}")
    for r in regs:
        a(f"v_exp_f32 v{r}, v{r}")
    for r in range(8):
        a(f"v_cvt_pk_bf16_f32 v{P+r}, v{Sd+2*r}, v{Sd+2*r+1}")
    for r in range(4):
        a(f"v_cvt_pk_bf16_f32 v{T+4+r}, v{Sp+8+2*r}, v{Sp+9+2*r}")
    a(f"s_waitcnt vmcnt({q.wait_for('LV')})")
    a(f"v_mfma_f32_32x32x16_bf16 {vr(O,16)}, {vr(LV,4)}, {vr(P,4)}, 0")
    a(f"v_mfma_f32_32x32x16_bf16 {vr(O,16)}, {vr(LV+4,4)}, {vr(P+4,4)}, {vr(O,16)}")
    a(f"v_mfma_f32_32x32x16_bf16 {vr(O,16)}, {vr(LVP,4)}, {vr(T+4,4)}, {vr(O,16)}")
    a(f"s_waitcnt vmcnt({q.wait_for(('K', 0))})")

    def qk(u, buf):
        t, j = divmod(u, 4)
        d = vr(S + 16 * buf, 16)
        return (f"v_mfma_f32_32x32x16_bf16 {d}, {ar(16*t,4)}, {vr(Q+8*j,4)}, 0",
                f"v_mfma_f32_32x32x16_bf16 {d}, {ar(16*t+4,4)}, {vr(Q+8*j+4,4)}, {d}")

    m0, m1 = qk(0, 0)
    a(m0)
    a(m1)
    m0, m1 = qk(1, 1)
    a(m0)
    a(m1)
    finalize_o(a, O, T + 8, 2, "s43", q)
    for j in range(4):
        buf = j & 1
        max_tree([S + 16 * buf + r for r in range(16)], T, T + 1)
        if j + 2 < 4:
            m0, m1 = qk(j + 2, buf)
            a(m0)
            a(m1)
        a(f"v_cvt_pk_bf16_f32 v{T+1}, -v{T}, 0")
        a(f"v_lshlrev_b32 v{NM+j}, 16, v{T+1}")
        a("s_mov_b32 exec_lo, 0")
        a(f"v_mov_b32 v{Q+8*j+6}, v{T+1}")
        a("s_mov_b32 exec_lo, -1")
    stamp(a, cfg, 2)
    m0, m1 = qk(0, 0)
    a(m0)
    a(m1)

    def pv(u, half):
        t, j = divmod(u, 4)
        d = vr(O + 16 * j, 16)
        c = "0" if (t == 0 and half == 0) else d
        return f"v_mfma_f32_32x32x16_bf16 {d}, {ar(16*t+8+4*half,4)}, {vr(P+4*half,4)}, {c}"

    for u in range(64):
        sb = S + 16 * (u & 1)
        slots = [None] * 4
        pre = [None] * 4
        if u + 1 < 64:
            slots[0], slots[1] = qk(u + 1, (u + 1) & 1)
            if (u + 1) % 4 == 0:
                pre[0] = ("K", (u + 1) // 4)
        if u >= 1:
            slots[2] = pv(u - 1, 1)
        slots[3] = pv(u, 0)
        if u % 4 == 0:
            pre[3] = ("V", u // 4)
        for g in range(4):
            r = 4 * g
            a(f"v_exp_f32 v{sb+r}, v{sb+r}")
            if g == 1 and u // 4 + NPRE < 16:
                load_part(u // 4 + NPRE, u % 4)
            a(f"v_exp_f32 v{sb+r+1}, v{sb+r+1}")
            if pre[g]:
                n = q.wait_for(pre[g])
                if n is not None:
                    a(f"s_waitcnt vmcnt({n})")
            if slots[g]:
                a(slots[g])
            a(f"v_exp_f32 v{sb+r+2}, v{sb+r+2}")
            a(f"v_exp_f32 v{sb+r+3}, v{sb+r+3}")
            a(f"v_cvt_pk_bf16_f32 v{P+2*g}, v{sb+r}, v{sb+r+1}")
            a(f"v_cvt_pk_bf16_f32 v{P+2*g+1}, v{sb+r+2}, v{sb+r+3}")
    a(pv(63, 1))
    stamp(a, cfg, 3)
    a(f"""
    s_mov_b32 s46, {f32bits(2.0**-30)}
    s_mov_b32 s47, {f32bits(2.0**30)}
    s_mov_b64 s[48:49], -1
    """)
    for j in range(4):
        a(f"v_cmp_lt_f32 vcc, s46, v{O+16*j+12}")
        a("s_and_b64 s[48:49], s[48:49], vcc")
        a(f"v_cmp_gt_f32 vcc, s47, v{O+16*j+12}")
        a("s_and_b64 s[48:49], s[48:49], vcc")
    a("""
    s_cmp_eq_u32 s49, -1
    s_cbranch_scc0 K2_FALLBACK
    """)
    a.label("K2_COMBINE")
    a("""
    s_nop 15
    s_lshl_b32 s46, s30, 14
    v_add_u32 v5, s46, v1           ; w*16384 + lane*16
    s_lshl_b32 s46, s30, 10
    v_lshlrev_b32 v6, 2, v0
    v_add_u32 v6, s46, v6
    v_add_u32 v6, 0x10000, v6       ; m slot
    """)
    for j in range(4):
        a(f"s_cmp_eq_u32 s30, {j}")
        a(f"s_cbranch_scc1 K2_SKIPW{j}")
        for qd in range(4):
            a(f"ds_write_b128 v5, {vr(O+16*j+4*qd,4)} offset:{j*4096+qd*1024}")
        a(f"ds_write_b32 v6, v{NM+j} offset:{j*256}")
        a.label(f"K2_SKIPW{j}")
    for j in range(4):
        a(f"s_cmp_lg_u32 s30, {j}")
        a(f"s_cbranch_scc1 K2_SKIPM{j}")
        for r in range(16):
            a(f"v_mov_b32 v{S+r}, v{O+16*j+r}")
        a(f"v_mov_b32 v{T}, v{NM+j}")
        a.label(f"K2_SKIPM{j}")
    a("""
    s_waitcnt lgkmcnt(0)
    s_barrier
    s_lshl_b32 s46, s30, 12
    v_add_u32 v5, s46, v1
    s_lshl_b32 s46, s30, 8
    v_lshlrev_b32 v6, 2, v0
    v_add_u32 v6, s46, v6
    v_add_u32 v6, 0x10000, v6
    """)
    for k in range(1, 4):
        a(f"""
        s_add_u32 s46, s30, {k}
        s_and_b32 s46, s46, 3
        s_lshl_b32 s47, s46, 14
        v_add_u32 v7, s47, v5
        s_lshl_b32 s47, s46, 10
        v_add_u32 v8, s47, v6
        ds_read_b32 v{T+k}, v8
        """)
        for qd in range(4):
            a(f"ds_read_b128 {vr(O+16*(k-1)+4*qd,4)}, v7 offset:{qd*1024}")
    a(f"""
    s_waitcnt lgkmcnt(0)
    v_min3_f32 v{T+4}, v{T}, v{T+1}, v{T+2}
    v_min_f32 v{T+4}, v{T+4}, v{T+3}
    """)
    for k in range(4):
        a(f"v_sub_f32 v{T+k}, v{T+4}, v{T+k}")
    for k in range(4):
        a(f"v_exp_f32 v{T+k}, v{T+k}")
    for r in range(16):
        a(f"v_mul_f32 v{S+r}, v{T}, v{S+r}")
    for k in range(1, 4):
        for r in range(16):
            a(f"v_fmac_f32 v{S+r}, v{T+k}, v{O+16*(k-1)+r}")
    finalize_o(a, S, T + 8, 2, "s42")
    if cfg.get("stamps"):
        a("s_waitcnt vmcnt(0)")
    stamp(a, cfg, 4)
    stamp_flush(a, cfg, 5, "K2")
    a.label("K2_END")
    a("s_endpgm")

    a.label("K2_FALLBACK")
    a("s_nop 15")
    a("s_mov_b32 exec_lo, 0")
    for j in range(4):
        a(f"v_mov_b32 v{Q+8*j+6}, 0")
    a("s_mov_b32 exec_lo, -1")
    for j in range(4):
        a(f"v_mov_b32 v{NM+j}, {f32bits(3.0e38)}")
        for r in range(16):
            a(f"v_mov_b32 v{O+16*j+r}, 0")
    a("s_mov_b32 s46, 0")
    a.label("K2_FB_LOOP")
    for part in range(4):
        a(f"buffer_load_dwordx4 {vr(LK+4*part,4)}, v1, s[8:11], s39 offen offset:{1024*part}")
    a("s_waitcnt vmcnt(0)")
    for j in range(4):
        d = vr(S, 16)
        a(f"v_mfma_f32_32x32x16_bf16 {d}, {vr(LK,4)}, {vr(Q+8*j,4)}, 0")
        a(f"v_mfma_f32_32x32x16_bf16 {d}, {vr(LK+4,4)}, {vr(Q+8*j+4,4)}, {d}")
        max_tree([S + r for r in range(16)], T, T + 1)
        a(f"v_min_f32 v{T+1}, v{NM+j}, -v{T}")
        a(f"v_sub_f32 v{T+2}, v{T+1}, v{NM+j}")
        a(f"v_exp_f32 v{T+2}, v{T+2}")
        a(f"v_mov_b32 v{NM+j}, v{T+1}")
        for r in range(16):
            a(f"v_add_f32 v{S+r}, v{S+r}, v{T+1}")
        for r in range(16):
            a(f"v_exp_f32 v{S+r}, v{S+r}")
        for r in range(16):
            a(f"v_mul_f32 v{O+16*j+r}, v{T+2}, v{O+16*j+r}")
        for r in range(8):
            a(f"v_cvt_pk_bf16_f32 v{P+r}, v{S+2*r}, v{S+2*r+1}")
        o = vr(O + 16 * j, 16)
        a(f"v_mfma_f32_32x32x16_bf16 {o}, {vr(LK+8,4)}, {vr(P,4)}, {o}")
        a(f"v_mfma_f32_32x32x16_bf16 {o}, {vr(LK+12,4)}, {vr(P+4,4)}, {o}")
    a("""
    s_nop 15
    s_add_u32 s39, s39, 4096
    s_add_u32 s46, s46, 1
    s_cmp_lt_u32 s46, 16
    s_cbranch_scc1 K2_FB_LOOP
    s_branch K2_COMBINE
    """)


def gen_k3(a, cfg):
    a.raw(".p2align 8")
    a.raw(".type k3_out_kernel,@function")
    a.label("k3_out_kernel")
    a("""
    s_cmp_ge_u32 s2, 224
    s_cbranch_scc1 K3_END
    """)
    stamp(a, cfg, 0)
    a("""
    s_load_dwordx2 s[4:5], s[0:1], 16
    s_load_dwordx2 s[6:7], s[0:1], 40
    s_load_dwordx2 s[24:25], s[0:1], 56
    s_load_dwordx2 s[26:27], s[0:1], 72
    v_lshrrev_b32 v1, 6, v0
    v_and_b32 v0, 63, v0
    v_readfirstlane_b32 s30, v1     ; w
    s_and_b32 s31, s2, 7
    s_lshr_b32 s32, s2, 3           ; idx 0..27
    s_cmp_ge_u32 s32, 14
    s_cselect_b32 s33, 1, 0
    s_cselect_b32 s34, 14, 0
    s_sub_u32 s34, s32, s34         ; cb
    s_lshl_b32 s31, s31, 1
    s_add_u32 s33, s33, s31         ; rb
    v_lshlrev_b32 v1, 4, v0         ; lane*16
    v_lshrrev_b32 v2, 2, v0
    v_and_b32 v3, 3, v0
    v_lshlrev_b32 v3, 4, v3
    s_movk_i32 s35, 896
    v_mad_u32_u24 v2, v2, s35, v3
    s_waitcnt lgkmcnt(0)
    """)
    srd(a, 8, 4, WO_BYTES)
    srd(a, 12, 6, WO_BYTES)
    srd(a, 16, 24, OUT_BYTES)
    srd(a, 20, 26, WS_USED)
    a("""
    s_lshl_b32 s35, s34, 6
    s_mul_i32 s36, s30, 100352      ; w*7*16*896
    s_add_u32 s35, s35, s36
    s_mul_i32 s36, s30, 7168
    s_lshl_b32 s37, s33, 2
    s_add_u32 s37, s37, s30         ; t
    s_mul_i32 s38, s37, 28672
    """)
    q = VmQ()

    def wo_dma(br):
        for i in range(7):
            a(f"s_add_u32 s40, s35, {16*i*896}")
            a(f"s_add_u32 m0, s36, {br*28672 + i*1024}")
            a(f"buffer_load_dwordx4 v2, s[{8+4*br}:{11+4*br}], s40 offen lds")
            q.push(("w", br))

    def o_load(n):
        br, s = divmod(n, 28)
        if s % 4 == 0:
            a(f"s_add_u32 s41, s38, {(WS_OA if br == 0 else WS_OB) + s*1024}")
        a(f"buffer_load_dwordx4 {ar(112*br+4*s,4)}, v1, s[20:23], s41 offen offset:{(s%4)*1024}")
        q.push(("o", br, s))

    OD = cfg.get("k3depth", 12)
    wo_dma(0)
    for n in range(OD):
        o_load(n)
    wo_dma(1)
    a(f"""
    s_lshl_b32 s39, s37, 7
    s_add_u32 s39, s39, {WS_G}
    v_and_b32 v4, 31, v0
    v_lshlrev_b32 v5, 2, v4
    buffer_load_dword v6, v5, s[20:23], s39 offen
    """)
    q.push("g")
    a("""
    v_and_b32 v7, 3, v0
    v_lshlrev_b32 v7, 3, v7
    v_bfe_u32 v8, v0, 4, 1
    v_lshl_add_u32 v7, v8, 5, v7
    v_bfe_u32 v8, v0, 2, 2
    v_lshrrev_b32 v9, 5, v0         ; hf
    v_lshl_add_u32 v8, v9, 3, v8
    v_lshl_add_u32 v7, v8, 6, v7
    """)
    ACC = 16
    WF = 48
    NB = 4

    def reads(br, s):
        b = WF + 4 * ((28 * br + s) % NB)
        for u in range(2):
            a(f"ds_read_b64_tr_b16 {vr(b+2*u,2)}, v7 offset:{br*28672 + (16*s+4*u)*64}")

    for br in range(2):
        n = q.wait_for(('w', br))
        if n is not None:
            a(f"s_waitcnt vmcnt({n})")
        a("s_barrier")
        stamp(a, cfg, 1 + br)
        for s in range(NB - 1):
            reads(br, s)
        for s in range(28):
            if 28 * br + s + OD < 56:
                o_load(28 * br + s + OD)
            if s + NB - 1 < 28:
                reads(br, s + NB - 1)
                a(f"s_waitcnt vmcnt({q.wait_for(('o', br, s))}) lgkmcnt({2*(NB-1)})")
            else:
                a(f"s_waitcnt vmcnt({q.wait_for(('o', br, s))}) lgkmcnt({2*(27-s)})")
            b = WF + 4 * ((28 * br + s) % NB)
            d = vr(ACC + 16 * br, 16)
            c = "0" if s == 0 else d
            a(f"v_mfma_f32_32x32x16_bf16 {d}, {vr(b,4)}, {ar(112*br+4*s,4)}, {c}")
    a("""
    v_sub_f32 v8, 1.0, v6
    v_cvt_pk_bf16_f32 v8, v8, v8
    v_lshlrev_b32 v8, 16, v8        ; bf16(1-g)
    s_lshl_b32 s39, s37, 5
    v_add_u32 v4, s39, v4           ; row
    s_movk_i32 s39, 896
    v_mul_lo_u32 v4, v4, s39
    v_lshl_add_u32 v4, v9, 4, v4    ; + hf*16
    s_lshl_b32 s39, s34, 6
    """)
    for r in range(16):
        a(f"v_mul_f32 v{ACC+16+r}, v8, v{ACC+16+r}")
    for r in range(16):
        a(f"v_fma_f32 v{ACC+r}, v6, v{ACC+r}, v{ACC+16+r}")
    for r in range(8):
        a(f"v_cvt_pk_bf16_f32 v{WF+r}, v{ACC+2*r}, v{ACC+2*r+1}")
    for pr in range(2):
        b = WF + 4 * pr
        a(f"v_permlane32_swap_b32 v{b}, v{b+2}")
        a(f"v_permlane32_swap_b32 v{b+1}, v{b+3}")
        a(f"buffer_store_dwordx4 {vr(b,4)}, v4, s[16:19], s39 offen offset:{32*pr}")
    if cfg.get("stamps"):
        a("s_waitcnt vmcnt(0)")
    stamp(a, cfg, 3)
    stamp_flush(a, cfg, 4, "K3")
    a.label("K3_END")
    a("s_endpgm")


def kd(name, vgpr, accum, sgpr=100):
    return f""".p2align 6
.amdhsa_kernel {name}
  .amdhsa_next_free_vgpr {vgpr}
  .amdhsa_next_free_sgpr {sgpr}
  .amdhsa_accum_offset {accum}
  .amdhsa_group_segment_fixed_size 0
  .amdhsa_kernarg_size 80
  .amdhsa_user_sgpr_count 2
  .amdhsa_user_sgpr_kernarg_segment_ptr 1
  .amdhsa_system_sgpr_workgroup_id_x 1
.end_amdhsa_kernel
"""


def build(cfg):
    a = Asm()
    gen_k1(a, cfg)
    gen_k2(a, cfg)
    gen_k3(a, cfg)
    body = a.render()
    head = f"""; {NAME}: three launches (projections -> attention -> output projection + gated mix)
; @launch kernel=k1_proj_kernel grid=(256,1,1) block=(512,1,1) lds=163840
; @launch kernel=k2_attn_kernel grid=(256,1,1) block=(256,1,1) lds=69632
; @launch kernel=k3_out_kernel grid=(224,1,1) block=(256,1,1) lds=57344
.amdgcn_target "amdgcn-amd-amdhsa--gfx950"
.text
.globl k1_proj_kernel
.globl k2_attn_kernel
.globl k3_out_kernel
"""
    tail = '.section .rodata,"a"\n' + kd("k1_proj_kernel", 160, 160) + kd("k2_attn_kernel", 512, 256) + kd("k3_out_kernel", 288, 64)
    return head + body + tail, a.n_pads


if __name__ == "__main__":
    cfg = {}
    out = f"cdna_kernels/{NAME}.s"
    for arg in sys.argv[1:]:
        if arg.startswith("-o="):
            out = arg[3:]
        else:
            k, v = arg.split("=")
            cfg[k] = int(v)
    s, n = build(cfg)
    open(out, "w").write(s)
    print("wrote", out, len(s), "bytes;", n, "hazard pads")
```

```python
import math
import struct
import sys
import os

sys.path.insert(0, os.path.dirname(os.path.abspath(__file__)))
from asmlib import Asm

NAME = "gated_mix__mha_block__sliding_local_dilated__prompt"

TS = 28672
WS_Q = 0x000000
WS_K = 0x200000
WS_V = 0x400000
BR = 0x600000
WS_OA = 0xC00000
WS_OB = 0xE00000
WS_G = 0x1000000
WS_F = 0x1010000
WS_USED = 0x1020000
WS_DIAG = 0x2000000

X_BYTES = 2048 * 448 * 2
W_BYTES = 448 * 1344 * 2
WO_BYTES = 448 * 448 * 2

R1 = 0
R2 = 57344
R3 = 106496
LDS_BYTES = 163840
SLOT_TS = (8, 0, 16)
SPIN_MAX = 40000
LSC = ''


def f32bits(x):
    return struct.unpack("<I", struct.pack("<f", x))[0]


SCALE_F32 = struct.unpack("<f", struct.pack("<f", 28 ** -0.5))[0]
QSCALE = f32bits(SCALE_F32 * math.log2(math.e))
NEG_BIG = f32bits(-1.0e30)
NLOG2E = f32bits(-math.log2(math.e))

S_X, S_WA, S_WB, S_WS, S_WOA, S_WOB, S_OUT, S_DBG, S_GATE = 4, 8, 12, 16, 20, 24, 28, 32, 36
sW, sXCD, sIDX, sRB, sCG, sH, sQB, sRB3, sCB3, sNONCE = 40, 41, 42, 43, 44, 45, 46, 47, 48, 49


def sr(b):
    return f"s[{b}:{b+3}]"


class VmQ:
    def __init__(self):
        self.q = []

    def push(self, tag):
        self.q.append(tag)

    def wait_for(self, tag):
        idx = max([i for i, t in enumerate(self.q) if t == tag], default=-1)
        if idx < 0:
            return None
        n = len(self.q) - 1 - idx
        self.q = self.q[idx + 1:]
        return min(n, 63)

    def clear(self):
        self.q = []


def vr(b, n):
    return f"v[{b}:{b+n-1}]"


def ar(b, n):
    return f"a[{b}:{b+n-1}]"


def lane_mask(fn):
    m = 0
    for l in range(64):
        if fn(l):
            m |= 1 << l
    return m


class Gen:
    def __init__(self, cfg):
        self.cfg = cfg
        self.a = Asm()
        self.nlab = 0
        self.stnames = {}

    def lab(self, p):
        self.nlab += 1
        return f"{p}_{self.nlab}"

    def stamp(self, idx, name=None):
        if not self.cfg.get("stamps"):
            return
        if name is not None:
            role = idx
            lst = self.stnames.setdefault(role, ["start"])
            idx = len(lst)
            lst.append(name)
            assert idx < 14
        self.a(f"""
        s_memtime s[{64+2*idx}:{65+2*idx}]
        """)
        if idx == 0:
            self.a("s_memrealtime s[98:99]")

    def stamp_flush(self, n, role):
        if not self.cfg.get("stamps"):
            return
        a = self.a
        skip = self.lab("STSKIP")
        a(f"""
        s_memrealtime s[96:97]
        s_cmp_lg_u32 s{sW}, {4*role}
        s_cbranch_scc1 {skip}
        s_waitcnt lgkmcnt(0)
        s_mov_b32 s{S_WS+2}, 0x2100000
        s_lshl_b32 s50, s2, 8
        s_add_u32 s50, s50, {WS_DIAG + role*128}
        v_mov_b32 v3, 0
        """)
        for i in range(2 * n):
            a(f"v_mov_b32 v4, s{64+i}")
            a(f"buffer_store_dword v4, v3, {sr(S_WS)}, s50 offen offset:{4*i}")
        for i, s in enumerate((98, 99, 96, 97)):
            a(f"v_mov_b32 v4, s{s}")
            a(f"buffer_store_dword v4, v3, {sr(S_WS)}, s50 offen offset:{112+4*i}")
        a.label(skip)

    def publish(self, off_sgpr_expr_lines, only_wave=4, t0=12, t1=13, balance=False):
        a = self.a
        skip, end = self.lab("PUB"), self.lab("PUBE")
        a(off_sgpr_expr_lines)
        a(f"""
        v_mov_b32 v{t0}, 0
        v_mov_b32 v{t1}, s{sNONCE}
        s_mov_b64 exec, 1
        s_cmp_lg_u32 s{sW}, {only_wave}
        s_cbranch_scc1 {skip}
        buffer_store_dword v{t1}, v{t0}, {sr(S_WS)}, s50 offen sc1
        """)
        if balance:
            a(f"s_branch {end}")
        a.label(skip)
        if balance:
            a(f"buffer_load_dword v{t1}, v{t0}, {sr(S_GATE)}, 0 offen")
            a.label(end)
        a("s_mov_b64 exec, -1")

    def poll_all(self, foff):
        a = self.a
        loop, done = self.lab("POLL"), self.lab("POLLD")
        a(f"""
        s_waitcnt vmcnt(0)
        s_cmp_lg_u32 s{sW}, 4
        s_cbranch_scc1 {done}
        s_mov_b32 s50, {WS_F + foff}
        s_mov_b32 s92, {WS_F + foff + 4096}
        s_mov_b32 s93, {WS_F + foff + 8192}
        s_mov_b32 s94, {WS_F + foff + 12288}
        v_lshlrev_b32 v11, 6, v0
        s_mov_b32 s51, 0
        """)
        a.label(loop)
        a(f"""
        buffer_load_dword v12, v11, {sr(S_WS)}, s50 offen sc1
        buffer_load_dword v13, v11, {sr(S_WS)}, s92 offen sc1
        buffer_load_dword v14, v11, {sr(S_WS)}, s93 offen sc1
        buffer_load_dword v15, v11, {sr(S_WS)}, s94 offen sc1
        s_waitcnt vmcnt(0)
        v_cmp_eq_u32 s[52:53], s{sNONCE}, v12
        v_cmp_eq_u32 s[54:55], s{sNONCE}, v13
        s_and_b64 s[52:53], s[52:53], s[54:55]
        v_cmp_eq_u32 s[54:55], s{sNONCE}, v14
        s_and_b64 s[52:53], s[52:53], s[54:55]
        v_cmp_eq_u32 s[54:55], s{sNONCE}, v15
        s_and_b64 s[52:53], s[52:53], s[54:55]
        s_cmp_eq_u64 s[52:53], -1
        s_cbranch_scc1 {done}
        s_sleep {self.cfg.get("sleep", 4)}
        s_add_u32 s51, s51, 1
        s_cmp_lt_u32 s51, {SPIN_MAX}
        s_cbranch_scc1 {loop}
        """)
        a.label(done)

    def poll16(self, foff):
        a = self.a
        loop, done = self.lab("POLL"), self.lab("POLLD")
        a(f"""
        s_waitcnt vmcnt(0)
        s_cmp_lg_u32 s{sW}, 4
        s_cbranch_scc1 {done}
        s_cmp_ge_u32 s{sIDX}, 28
        s_cbranch_scc1 {done}
        s_lshr_b32 s50, s{sRB3}, 1
        s_lshl_b32 s50, s50, 10
        s_add_u32 s50, s50, {WS_F + foff}
        s_mov_b32 s51, 0
        v_and_b32 v13, 15, v0
        v_lshlrev_b32 v13, 6, v13
        """)
        a.label(loop)
        a(f"""
        buffer_load_dword v12, v13, {sr(S_WS)}, s50 offen sc1
        s_waitcnt vmcnt(0)
        v_cmp_eq_u32 s[52:53], s{sNONCE}, v12
        s_cmp_eq_u64 s[52:53], -1
        s_cbranch_scc1 {done}
        s_sleep {self.cfg.get("sleep", 4)}
        s_add_u32 s51, s51, 1
        s_cmp_lt_u32 s51, {SPIN_MAX}
        s_cbranch_scc1 {loop}
        """)
        a.label(done)

    def get_nonce(self):
        a = self.a
        loop, done, skip = self.lab("NON"), self.lab("NOND"), self.lab("NONS")
        a(f"""
        v_mov_b32 v12, 0
        s_cmp_lg_u32 s2, 0
        s_cbranch_scc1 {skip}
        s_cmp_lg_u32 s{sW}, 4
        s_cbranch_scc1 {skip}
        s_memrealtime s[50:51]
        s_waitcnt lgkmcnt(0)
        s_or_b32 s50, s50, 1
        v_mov_b32 v13, s50
        s_mov_b64 exec, 1
        buffer_store_dword v13, v12, {sr(S_DBG)}, 0 offen sc1
        s_mov_b64 exec, -1
        """)
        a.label(skip)

    def read_nonce(self, early=None, t0=12, t1=13):
        a = self.a
        loop, done = self.lab("NON"), self.lab("NOND")
        if early is not None:
            a(f"""
            v_readfirstlane_b32 s{sNONCE}, v{early}
            s_cmp_lg_u32 s{sNONCE}, 0
            s_cbranch_scc1 {done}
            """)
        a(f"""
        v_mov_b32 v{t0}, 0
        s_mov_b32 s51, 0
        """)
        a.label(loop)
        a(f"""
        buffer_load_dword v{t1}, v{t0}, {sr(S_DBG)}, 0 offen sc1
        s_waitcnt vmcnt(0)
        v_readfirstlane_b32 s{sNONCE}, v{t1}
        s_cmp_lg_u32 s{sNONCE}, 0
        s_cbranch_scc1 {done}
        s_sleep {self.cfg.get("sleep", 4)}
        s_add_u32 s51, s51, 1
        s_cmp_lt_u32 s51, {SPIN_MAX}
        s_cbranch_scc1 {loop}
        """)
        a.label(done)

    def max_tree(self, regs, dst, tmp):
        a = self.a
        h = len(regs) // 2
        for (rs, d) in ((regs[:h], dst), (regs[h:], tmp)):
            a(f"v_max3_f32 v{d}, v{rs[0]}, v{rs[1]}, v{rs[2]}")
            i = 3
            while i + 1 < len(rs):
                a(f"v_max3_f32 v{d}, v{d}, v{rs[i]}, v{rs[i+1]}")
                i += 2
            if i < len(rs):
                a(f"v_max_f32 v{d}, v{d}, v{rs[i]}")
        a(f"v_max_f32 v{dst}, v{dst}, v{tmp}")
        a(f"v_mov_b32 v{tmp}, v{dst}")
        a(f"v_permlane32_swap_b32 v{dst}, v{tmp}")
        a(f"v_max_f32 v{dst}, v{dst}, v{tmp}")

    def o_voff(self, dst, tmp):
        self.a(f"""
        v_and_b32 v{dst}, 31, v0
        v_lshlrev_b32 v{dst}, 4, v{dst}
        v_lshrrev_b32 v{tmp}, 5, v0
        s_and_b32 s50, s{sH}, 1
        s_cmp_eq_u32 s50, 0
        s_cselect_b32 s51, 8, 504
        s_cselect_b32 s50, 0, 1544
        v_mad_u32_u24 v{dst}, v{tmp}, s51, v{dst}
        v_add_u32 v{dst}, s50, v{dst}
        s_lshr_b32 s50, s{sH}, 1
        s_mul_i32 s50, s50, 3584
        v_add_u32 v{dst}, s50, v{dst}
        """)

    def finalize_o(self, O, T, voff, soff, q=None):
        a = self.a
        a(f"""
        v_mov_b32 v{T}, v{O+12}
        v_mov_b32 v{T+1}, v{O+12}
        v_permlane32_swap_b32 v{T}, v{T+1}
        v_rcp_f32 v{T}, v{T+1}
        """)
        for r in range(16):
            a(f"v_mul_f32 v{O+r}, v{T}, v{O+r}")
        for r in range(8):
            a(f"v_cvt_pk_bf16_f32 v{T+2+r}, v{O+2*r}, v{O+2*r+1}")
        for i in range(4):
            if i == 3:
                a("s_mov_b32 exec_hi, 0")
            a(f"buffer_store_dwordx2 {vr(T+2+2*i,2)}, v{voff}, {sr(S_WS)}, {soff} offen offset:{512*i} sc1")
            if q is not None:
                q.push("ost")
        a("s_mov_b64 exec, -1")

    def load_qk_frag(self, dst, voff, soff, q=None, tag=None, pfx="v"):
        a = self.a
        for i in range(4):
            if i == 3:
                a("s_mov_b32 exec_hi, 0")
            a(f"buffer_load_dwordx2 {pfx}[{dst+2*i}:{dst+2*i+1}], v{voff}, {sr(S_WS)}, {soff} offen offset:{512*i}{LSC}")
            if q is not None:
                q.push(tag)
        a("s_mov_b32 exec_hi, -1")

    def build(self):
        a, cfg = self.a, self.cfg
        a.raw(".p2align 8")
        a.raw(f".type {NAME}_kernel,@function")
        a.label(f"{NAME}_kernel")
        a("""
        s_cmp_ge_u32 s2, 256
        s_cbranch_scc1 K_END
        """)
        self.stamp(0)
        a(f"""
        s_load_dwordx4 s[52:55], s[0:1], 0
        s_load_dwordx2 s[56:57], s[0:1], 16
        s_load_dwordx4 s[60:63], s[0:1], 32
        v_lshrrev_b32 v1, 6, v0
        v_and_b32 v0, 63, v0
        v_readfirstlane_b32 s{sW}, v1
        s_and_b32 s{sXCD}, s2, 7
        s_lshr_b32 s{sIDX}, s2, 3
        v_lshlrev_b32 v1, 4, v0
        s_waitcnt lgkmcnt(0)
        """)

        def srd(base, pair, nbytes):
            a(f"""
            s_mov_b32 s{base}, s{pair}
            s_and_b32 s{base+1}, s{pair+1}, 0xffff
            s_mov_b32 s{base+2}, {nbytes}
            s_mov_b32 s{base+3}, 0x20000
            """)
        srd(S_X, 52, X_BYTES)
        srd(S_WA, 54, W_BYTES)
        srd(S_WOA, 56, WO_BYTES)
        srd(S_WB, 60, W_BYTES)
        srd(S_WOB, 62, WO_BYTES)
        a("""
        s_load_dwordx4 s[52:55], s[0:1], 48
        s_load_dwordx4 s[56:59], s[0:1], 64
        """)
        a(f"""
        s_lshl_b32 s{sH}, s{sXCD}, 1
        s_and_b32 s50, s{sIDX}, 1
        s_add_u32 s{sH}, s{sH}, s50
        s_lshr_b32 s{sQB}, s2, 4
        s_lshl_b32 s{sRB3}, s{sXCD}, 2
        s_and_b32 s50, s{sIDX}, 3
        s_add_u32 s{sRB3}, s{sRB3}, s50
        s_lshr_b32 s{sCB3}, s{sIDX}, 2
        s_lshr_b32 s50, s{sXCD}, 1
        s_lshl_b32 s50, s50, 3          ; 8p
        s_and_b32 s51, s{sXCD}, 1       ; s
        s_and_b32 s{sRB}, s{sIDX}, 7
        s_add_u32 s{sRB}, s{sRB}, s50
        s_lshr_b32 s{sCG}, s{sIDX}, 3
        s_lshl_b32 s61, s51, 2
        s_add_u32 s{sCG}, s{sCG}, s61
        s_sub_u32 s62, s{sIDX}, 24
        s_add_u32 s62, s62, s61
        s_add_u32 s62, s62, s50
        s_cmp_ge_u32 s{sIDX}, 24
        s_cselect_b32 s{sRB}, s62, s{sRB}
        s_cselect_b32 s{sCG}, 3, s{sCG}
        s_waitcnt lgkmcnt(0)
        """)
        srd(S_GATE, 52, 896)
        srd(S_OUT, 54, X_BYTES)
        srd(S_DBG, 56, 256)
        srd(S_WS, 58, WS_USED)
        a(f"""
        s_cmp_ge_u32 s{sIDX}, 28
        s_cbranch_scc1 GATE_WG
        s_cmp_ge_u32 s{sW}, 4
        s_cbranch_scc1 HELPER
        """)
        self.compute_p1()
        self.compute_attn()
        self.helper_p1()
        self.helper_attn()
        self.gate_wg()
        self.fallback()
        a.label("K_END")
        a("s_endpgm")
        return a.render()

    def compute_p1(self):
        a, cfg = self.a, self.cfg
        ACC = [64, 112]
        FR = 16
        XA, WA = 4, 8
        PK = 160
        a(f"""
        s_and_b32 s56, s{sW}, 1         ; rho
        s_lshr_b32 s57, s{sW}, 1        ; c
        v_and_b32 v2, 31, v0            ; r
        v_lshrrev_b32 v3, 5, v0         ; hf
        v_bfe_u32 v10, v0, 1, 3
        v_xor_b32 v10, v10, v3
        s_lshl_b32 s50, s56, 12
        v_lshlrev_b32 v11, 7, v2
        v_add_u32 v11, s50, v11
        """)
        for sp in range(4):
            a(f"v_xor_b32 v12, {2*sp}, v10")
            a(f"v_lshl_add_u32 v{XA+sp}, v12, 4, v11")
        a(f"""
        v_and_b32 v11, 3, v0
        v_lshlrev_b32 v11, 3, v11
        v_bfe_u32 v12, v0, 4, 1
        v_lshl_add_u32 v11, v12, 5, v11
        s_lshl_b32 s50, s57, 6
        v_add_u32 v11, s50, v11
        v_bfe_u32 v12, v0, 3, 1
        v_lshlrev_b32 v12, 6, v12
        v_xor_b32 v11, v11, v12
        v_bfe_u32 v12, v0, 2, 2
        v_lshl_add_u32 v12, v3, 3, v12
        v_lshl_add_u32 v11, v12, 7, v11
        v_add_u32 v{WA}, {R2}, v11
        v_add_u32 v{WA+1}, {R2+49152}, v11
        v_lshlrev_b32 v10, 3, v2
        v_lshl_add_u32 v10, v3, 8, v10
        v_lshlrev_b32 v11, 4, v2
        s_movk_i32 s50, 7168
        v_mad_u32_u24 v11, v3, s50, v11 ; v11 = hf*7168 + (l&31)*16  (V)
        s_lshl_b32 s58, s{sRB}, 1
        s_add_u32 s58, s58, s56         ; t
        s_mul_i32 s58, s58, {TS}
        s_lshl_b32 s59, s{sCG}, 12
        s_lshl_b32 s50, s57, 11
        s_add_u32 s59, s59, s50
        s_add_u32 s59, s59, s58
        s_lshl_b32 s60, s{sCG}, 10
        s_lshl_b32 s50, s57, 9
        s_add_u32 s60, s60, s50
        s_add_u32 s60, s60, s58         ; V soffset
        s_mov_b32 s61, {QSCALE}
        """)

        def reads(s):
            cc, sp = divmod(s, 4)
            slot = (cc + 2) % 4
            b = FR + 16 * (s % 2)
            out = [f"ds_read_b128 {vr(b,4)}, v{XA+sp} offset:{(cc % 7)*8192}"]
            wa = WA + (slot >> 1)
            for part in range(3):
                for u in range(2):
                    off = (slot & 1) * 24576 + part * 8192 + (16 * sp + 4 * u) * 128
                    out.append(f"ds_read_b64_tr_b16 {vr(b+4+4*part+2*u,2)}, v{wa} offset:{off}")
            return out

        def mfmas(s):
            b = FR + 16 * (s % 2)
            X = vr(b, 4)
            out = []
            for p in range(3):
                W = vr(b + 4 + 4 * p, 4)
                d = vr(ACC[s // 28] + 16 * p, 16)
                c = "0" if s % 28 == 0 else d
                if p < 2:
                    out.append(f"v_mfma_f32_32x32x16_bf16 {d}, {W}, {X}, {c}")
                else:
                    out.append(f"v_mfma_f32_32x32x16_bf16 {d}, {X}, {W}, {c}")
            return out

        def epilogue(br):
            acc = ACC[br]
            out = []
            for r in range(16):
                out.append(f"v_mul_f32 v{acc+r}, s61, v{acc+r}")
            for tile in range(3):
                for r in range(8):
                    out.append(f"v_cvt_pk_bf16_f32 v{PK+8*tile+r}, v{acc+16*tile+2*r}, v{acc+16*tile+2*r+1}")
                if tile < 2:
                    out.append(f"s_add_u32 s50, s59, {br*BR + (WS_Q if tile == 0 else WS_K)}")
                    for gi in range(4):
                        out.append(f"buffer_store_dwordx2 {vr(PK+8*tile+2*gi,2)}, v10, {sr(S_WS)}, s50 offen offset:{512*gi} sc1")
                else:
                    for f in range(2):
                        out.append(f"s_add_u32 s50, s60, {br*BR + WS_V + f*14336}")
                        out.append(f"buffer_store_dwordx4 {vr(PK+16+4*f,4)}, v11, {sr(S_WS)}, s50 offen sc1")
            return out

        epiA = epilogue(0)
        FB = cfg.get("flag1_bar", 9)
        a("s_barrier")
        self.stamp(0, "c0")
        for x in reads(0):
            a(x)
        self.qfetch = None
        for s in range(56):
            nxt = reads(s + 1) if s + 1 < 56 else []
            if s + 1 < 56 and (s + 1) % 4 == 0:
                cc = (s + 1) // 4
                if cc == FB:
                    a("s_waitcnt vmcnt(0) lgkmcnt(0)")
                else:
                    a("s_waitcnt lgkmcnt(0)")
                a("s_barrier")
                if cc == FB:
                    self.read_nonce(early=190, t0=188, t1=189)
                    self.publish(f"""
                    s_lshl_b32 s50, s2, 6
                    s_add_u32 s50, s50, {WS_F}
                    """, only_wave=0, t0=188, t1=189)
                if cc == 6:
                    a("v_mov_b32 v188, 0")
                    a(f"buffer_load_dword v190, v188, {sr(S_DBG)}, 0 offen sc1")
                if cc in (7, 9, 11):
                    self.stamp(0, f"c{cc}")
                first = True
            else:
                first = False
            mf = mfmas(s)
            if first:
                fill = list(nxt)
            else:
                for x in nxt:
                    a(x)
                a(f"s_waitcnt lgkmcnt({len(nxt)})")
                fill = []
            extra = []
            if 29 <= s and epiA:
                n = cfg.get("epi_rate", 9)
                extra, epiA = epiA[:n], epiA[n:]
            fill = fill + extra
            k = (len(fill) + 2) // 3
            for i, m in enumerate(mf):
                a(m)
                for x in fill[i * k:(i + 1) * k]:
                    a(x)
        assert not epiA
        self.stamp(0, "c14")
        if FB == 14:
            a("s_waitcnt vmcnt(0)")
            a("s_barrier")
            self.read_nonce(early=190, t0=188, t1=189)
            self.publish(f"""
            s_lshl_b32 s50, s2, 6
            s_add_u32 s50, s50, {WS_F}
            """, only_wave=0, t0=188, t1=189)
            self.stamp(0, "pub1")
        for x in epilogue(1):
            a(x)
        a("s_waitcnt lgkmcnt(0)")
        a("s_barrier")
        self.stamp(0, "T1")

    def attn_setup_and_q(self):
        a = self.a
        Q = 192
        a(f"""
        v_and_b32 v224, 31, v0
        v_lshrrev_b32 v225, 5, v0
        v_lshlrev_b32 v224, 3, v224
        v_lshl_add_u32 v224, v225, 8, v224
        s_lshl_b32 s50, s{sQB}, 2
        s_mul_i32 s50, s50, {TS}
        s_mul_i32 s51, s{sH}, 1792
        s_add_u32 s50, s50, s51
        """)
        for j in range(4):
            a(f"v_mov_b32 v{Q+8*j+6}, 0")
            a(f"v_mov_b32 v{Q+8*j+7}, 0")
        for j in range(4):
            self.load_qk_frag(Q + 8 * j, 224, "s50")
            if j < 3:
                a(f"s_add_u32 s50, s50, {TS}")

    def compute_attn(self):
        a, cfg = self.a, self.cfg
        Q, O, S, P, NM, T, KV = 192, 48, 112, 144, 152, 156, 16
        KA, VA = 226, 232
        self.regs = dict(Q=Q, O=O, S=S, P=P, NM=NM, T=T, KV=KV)
        a.label("ATT_C_ENTRY")
        self.attn_setup_and_q()
        a(f"s_lshl_b32 s50, s{sW}, 13")
        for sl in range(3):
            for kk in range(2):
                a(f"v_add_u32 v{KA+2*sl+kk}, s50, v224")
                a(f"v_add_u32 v{KA+2*sl+kk}, {R2 + (SLOT_TS[sl]+kk)*4096}, v{KA+2*sl+kk}")
        a(f"""
        v_add_u32 v{VA}, s50, v1
        v_add_u32 v{VA+1}, {R2 + 65536 + 2048}, v{VA}
        v_add_u32 v{VA}, {R2 + 2048}, v{VA}
        """)
        self.o_voff(2, 3)
        a(f"""
        s_lshl_b32 s56, s{sQB}, 2
        s_add_u32 s56, s56, s{sW}
        s_mul_i32 s56, s56, {TS}
        s_add_u32 s56, s56, {WS_OA}
        """)

        def kv_reads(t):
            k, kk = divmod(t, 2)
            sl = k % 3
            b = KV + 16 * (t % 2)
            ts = SLOT_TS[sl] + kk
            out = []
            for f in range(2):
                out.append(f"ds_read2_b64 {vr(b+4*f,4)}, v{KA+2*sl+kk} offset0:{128*f} offset1:{128*f+64}")
            for f in range(2):
                vb, off = (VA, ts * 4096) if ts < 16 else (VA + 1, (ts - 16) * 4096)
                out.append(f"ds_read_b128 {vr(b+8+4*f,4)}, v{vb} offset:{off + 1024*f}")
            return out

        def qk(u, buf):
            t, j = divmod(u, 4)
            b = KV + 16 * (t % 2)
            d = vr(S + 16 * buf, 16)
            return (f"v_mfma_f32_32x32x16_bf16 {d}, {vr(b,4)}, {vr(Q+8*j,4)}, 0",
                    f"v_mfma_f32_32x32x16_bf16 {d}, {vr(b+4,4)}, {vr(Q+8*j+4,4)}, {d}")

        def pv(u, half):
            t, j = divmod(u, 4)
            b = KV + 16 * (t % 2)
            d = vr(O + 16 * j, 16)
            c = "0" if (t == 0 and half == 0) else d
            return f"v_mfma_f32_32x32x16_bf16 {d}, {vr(b+8+4*half,4)}, {vr(P+4*half,4)}, {c}"

        a("s_waitcnt vmcnt(0)")
        self.stamp(0, "preS0")
        a("s_barrier")
        self.stamp(0, "S0")
        self.publish(f"""
        s_lshl_b32 s50, s2, 6
        s_add_u32 s50, s50, {WS_F + 0x4000}
        """, only_wave=0, t0=188, t1=189)
        F2B = -1
        for x in kv_reads(0):
            a(x)
        a("s_waitcnt lgkmcnt(0)")
        scr = [S, S + 16, O, O + 16]
        for j in range(4):
            d = vr(scr[j], 16)
            a(f"v_mfma_f32_32x32x16_bf16 {d}, {vr(KV,4)}, {vr(Q+8*j,4)}, 0")
            a(f"v_mfma_f32_32x32x16_bf16 {d}, {vr(KV+4,4)}, {vr(Q+8*j+4,4)}, {d}")
        for j in range(4):
            self.max_tree([scr[j] + r for r in range(16)], T + 2 * j, T + 2 * j + 1)
        for j in range(4):
            a(f"v_cvt_pk_bf16_f32 v{T+2*j+1}, -v{T+2*j}, 0")
        a("s_mov_b32 exec_lo, 0")
        for j in range(4):
            a(f"v_mov_b32 v{Q+8*j+6}, v{T+2*j+1}")
        a("s_mov_b32 exec_lo, -1")
        for j in range(4):
            a(f"v_lshlrev_b32 v{NM+j}, 16, v{T+2*j+1}")
        self.stamp(0, "att0")
        m0, m1 = qk(0, 0)
        a(m0)
        a(m1)
        for u in range(64):
            t, j = divmod(u, 4)
            sb = S + 16 * (u & 1)
            slots = [None] * 4
            post = [[] for _ in range(4)]
            if u + 1 < 64:
                slots[0], slots[1] = qk(u + 1, (u + 1) & 1)
            if u >= 1:
                slots[2] = pv(u - 1, 1)
            slots[3] = pv(u, 0)
            if t + 1 < 16:
                rd = kv_reads(t + 1)
                if j == 0 and t % 2 == 1:
                    if t == 2 * F2B - 1:
                        post[2].append("s_waitcnt vmcnt(0)")
                    post[2].append("s_barrier")
                    if t == 2 * F2B - 1:
                        post[2].append("PUB2")
                if j == 0:
                    post[3].append(rd[0])
                if j == 1:
                    post[0].append(rd[1])
                    post[1].append(rd[2])
                    post[2].append(rd[3])
                if j == 2:
                    post[3].append("s_waitcnt lgkmcnt(0)")
            for g in range(4):
                r = 4 * g
                a(f"v_exp_f32 v{sb+r}, v{sb+r}")
                a(f"v_exp_f32 v{sb+r+1}, v{sb+r+1}")
                if slots[g]:
                    a(slots[g])
                for x in post[g]:
                    if x == "PUB2":
                        self.publish(f"""
                        s_lshl_b32 s50, s2, 6
                        s_add_u32 s50, s50, {WS_F + 0x4000}
                        """, only_wave=0, t0=188, t1=189)
                    else:
                        a(x)
                a(f"v_exp_f32 v{sb+r+2}, v{sb+r+2}")
                a(f"v_exp_f32 v{sb+r+3}, v{sb+r+3}")
                a(f"v_cvt_pk_bf16_f32 v{P+2*g}, v{sb+r}, v{sb+r+1}")
                a(f"v_cvt_pk_bf16_f32 v{P+2*g+1}, v{sb+r+2}, v{sb+r+3}")
        a(pv(63, 1))
        self.stamp(0, "attE")
        a(f"""
        s_mov_b32 s50, {f32bits(2.0**-30)}
        s_mov_b32 s51, {f32bits(2.0**30)}
        s_mov_b64 s[52:53], -1
        """)
        for j in range(4):
            a(f"v_cmp_lt_f32 vcc, s50, v{O+16*j+12}")
            a("s_and_b64 s[52:53], s[52:53], vcc")
            a(f"v_cmp_gt_f32 vcc, s51, v{O+16*j+12}")
            a("s_and_b64 s[52:53], s[52:53], vcc")
        a("""
        s_cmp_eq_u32 s53, -1
        s_cbranch_scc0 FALLBACK
        """)
        a.label("COMBINE")
        a("s_nop 15")
        a("s_mov_b32 exec_lo, 0")
        for j in range(4):
            a(f"v_mov_b32 v{O+16*j+13}, v{NM+j}")
        a("s_mov_b32 exec_lo, -1")
        a("s_barrier")
        self.stamp(0, "C0")
        for w in range(4):
            lab_next = self.lab("CW")
            a(f"s_cmp_lg_u32 s{sW}, {w}")
            a(f"s_cbranch_scc1 {lab_next}")
            a(f"v_add_u32 v5, {R2}, v1")
            for j in range(4):
                if j == w:
                    continue
                k = (w - j - 1) & 3
                for qd in range(4):
                    a(f"ds_write_b128 v5, {vr(O+16*j+4*qd,4)} offset:{j*12288 + k*4096 + qd*1024}")
            a("s_waitcnt lgkmcnt(0)")
            a("s_barrier")
            own = O + 16 * w
            oth = [O + 16 * j for j in range(4) if j != w]
            for k in range(3):
                for qd in range(4):
                    a(f"ds_read_b128 {vr(oth[k]+4*qd,4)}, v5 offset:{w*12288 + k*4096 + qd*1024}")
            srcs = [own] + oth
            a("s_waitcnt lgkmcnt(0)")
            for k in range(4):
                a(f"v_mov_b32 v{T+2*k}, v{srcs[k]+13}")
                a(f"v_mov_b32 v{T+2*k+1}, v{srcs[k]+13}")
            for k in range(4):
                a(f"v_permlane32_swap_b32 v{T+2*k}, v{T+2*k+1}")
            a(f"v_min3_f32 v{T}, v{T+1}, v{T+3}, v{T+5}")
            a(f"v_min_f32 v{T}, v{T}, v{T+7}")
            for k in range(4):
                a(f"v_sub_f32 v{T+2*k+1}, v{T}, v{T+2*k+1}")
            for k in range(4):
                a(f"v_exp_f32 v{T+2*k+1}, v{T+2*k+1}")
            for r in range(16):
                a(f"v_mul_f32 v{own+r}, v{T+1}, v{own+r}")
            for k in range(1, 4):
                for r in range(16):
                    a(f"v_fmac_f32 v{own+r}, v{T+2*k+1}, v{srcs[k]+r}")
            self.finalize_o(own, T + 8, 2, "s56")
            a("s_branch C_FIN")
            a.label(lab_next)
        a.label("C_FIN")
        a("s_waitcnt vmcnt(0)")
        a("s_barrier")
        self.publish(f"""
        s_lshl_b32 s50, s{sQB}, 4
        s_add_u32 s50, s50, s{sH}
        s_lshl_b32 s50, s50, 6
        s_add_u32 s50, s50, {WS_F + 0x8000}
        """, only_wave=0, t0=188, t1=189)
        self.stamp(0, "C2")
        self.stamp_flush(14, 0)
        a("s_endpgm")

    def fallback(self):
        a = self.a
        R = self.regs
        Q, O, S, P, NM, T, KV = R["Q"], R["O"], R["S"], R["P"], R["NM"], R["T"], R["KV"]
        a.label("FALLBACK")
        a("s_nop 15")
        a(f"""
        v_and_b32 v5, 31, v0
        v_lshrrev_b32 v6, 5, v0
        v_lshlrev_b32 v5, 4, v5
        s_movk_i32 s50, 7168
        v_mad_u32_u24 v5, v6, s50, v5          ; V voffset
        s_lshl_b32 s57, s{sW}, 4
        s_mul_i32 s57, s57, {TS}
        s_mul_i32 s50, s{sH}, 1792
        s_add_u32 s58, s57, s50
        s_add_u32 s58, s58, {WS_K}
        s_mul_i32 s50, s{sH}, 448
        s_add_u32 s59, s57, s50
        s_add_u32 s59, s59, {WS_V}
        s_mov_b32 exec_lo, 0
        """)
        for j in range(4):
            a(f"v_mov_b32 v{Q+8*j+6}, 0")
        a(f"v_mov_b32 v{KV+6}, 0")
        a(f"v_mov_b32 v{KV+7}, 0")
        a("s_mov_b32 exec_lo, -1")
        for r in range(8):
            a(f"v_mov_b32 v{KV+8+r}, 0")
        a("s_mov_b32 exec_lo, 0x10000000")
        a("s_mov_b32 exec_hi, 0x10000000")
        for r in range(8):
            a(f"v_mov_b32 v{KV+8+r}, 0x3f803f80")
        a("s_mov_b64 exec, -1")
        for j in range(4):
            a(f"v_mov_b32 v{NM+j}, {f32bits(3.0e38)}")
            for r in range(16):
                a(f"v_mov_b32 v{O+16*j+r}, 0")
        a("s_mov_b32 s57, 0")
        a.label("FB_LOOP")
        self.load_qk_frag(KV, 224, "s58")
        a(f"""
        s_add_u32 s50, s59, 14336
        s_mov_b32 exec_lo, 0x0fffffff
        s_mov_b32 exec_hi, 0x0fffffff
        buffer_load_dwordx4 {vr(KV+8,4)}, v5, {sr(S_WS)}, s59 offen{LSC}
        buffer_load_dwordx4 {vr(KV+12,4)}, v5, {sr(S_WS)}, s50 offen{LSC}
        s_mov_b64 exec, -1
        s_waitcnt vmcnt(0)
        """)
        for j in range(4):
            d = vr(S, 16)
            a(f"v_mfma_f32_32x32x16_bf16 {d}, {vr(KV,4)}, {vr(Q+8*j,4)}, 0")
            a(f"v_mfma_f32_32x32x16_bf16 {d}, {vr(KV+4,4)}, {vr(Q+8*j+4,4)}, {d}")
            self.max_tree([S + r for r in range(16)], T, T + 1)
            a(f"v_min_f32 v{T+1}, v{NM+j}, -v{T}")
            a(f"v_sub_f32 v{T+2}, v{T+1}, v{NM+j}")
            a(f"v_exp_f32 v{T+2}, v{T+2}")
            a(f"v_mov_b32 v{NM+j}, v{T+1}")
            for r in range(16):
                a(f"v_add_f32 v{S+r}, v{S+r}, v{T+1}")
            for r in range(16):
                a(f"v_exp_f32 v{S+r}, v{S+r}")
            for r in range(16):
                a(f"v_mul_f32 v{O+16*j+r}, v{T+2}, v{O+16*j+r}")
            for r in range(8):
                a(f"v_cvt_pk_bf16_f32 v{P+r}, v{S+2*r}, v{S+2*r+1}")
            o = vr(O + 16 * j, 16)
            a(f"v_mfma_f32_32x32x16_bf16 {o}, {vr(KV+8,4)}, {vr(P,4)}, {o}")
            a(f"v_mfma_f32_32x32x16_bf16 {o}, {vr(KV+12,4)}, {vr(P+4,4)}, {o}")
        a(f"""
        s_nop 15
        s_add_u32 s58, s58, {TS}
        s_add_u32 s59, s59, {TS}
        s_add_u32 s57, s57, 1
        s_cmp_lt_u32 s57, 16
        s_cbranch_scc1 FB_LOOP
        s_branch COMBINE
        """)

    def helper_p1(self):
        a, cfg = self.a, self.cfg
        a.label("HELPER")
        a(f"s_setprio {cfg.get('hprio', 3)}")
        self.get_nonce()
        a(f"""
        s_sub_u32 s56, s{sW}, 4         ; j
        v_lshrrev_b32 v2, 3, v0
        v_and_b32 v3, 7, v0
        v_lshrrev_b32 v4, 4, v0
        v_xor_b32 v8, v3, v4
        v_lshlrev_b32 v8, 4, v8
        s_movk_i32 s50, 896
        v_mad_u32_u24 v5, v2, s50, v8
        v_xor_b32 v6, 64, v5
        v_and_b32 v4, 1, v4
        v_lshlrev_b32 v4, 2, v4
        v_xor_b32 v8, v3, v4
        v_lshlrev_b32 v8, 4, v8
        s_movk_i32 s50, 2688
        v_mad_u32_u24 v7, v2, s50, v8   ; W voff
        s_lshl_b32 s57, s{sRB}, 6
        s_lshl_b32 s50, s56, 4
        s_add_u32 s57, s57, s50
        s_mul_i32 s57, s57, 896
        s_lshl_b32 s58, s{sCG}, 7
        s_mul_i32 s50, s56, 43008
        s_add_u32 s58, s58, s50         ; W base
        s_lshl_b32 s59, s56, 11
        """)
        q = VmQ()
        self.hq = q

        def issue(cc):
            br, c = divmod(cc, 7)
            slot = (cc + 2) % 4
            if br == 0:
                for i in range(2):
                    a(f"s_add_u32 s50, s57, {8*i*896 + 128*c}")
                    a(f"s_add_u32 m0, s59, {R1 + c*8192 + 8*i*128}")
                    a(f"buffer_load_dwordx4 v{5+i}, {sr(S_X)}, s50 offen lds")
                    q.push(("c", cc))
            for part in range(3):
                for ii in range(2):
                    a(f"s_add_u32 s50, s58, {part*896 + (64*c + 8*ii)*2688}")
                    a(f"s_add_u32 m0, s59, {R2 + slot*24576 + part*8192 + 8*ii*128}")
                    a(f"buffer_load_dwordx4 v7, {sr(S_WA if br == 0 else S_WB)}, s50 offen lds")
                    q.push(("c", cc))

        AH = cfg.get("ahead", 3)
        FB = cfg.get("flag1_bar", 9)
        for cc in range(AH):
            issue(cc)
        for cc in range(14):
            n = q.wait_for(("c", cc))
            if n is not None:
                a(f"s_waitcnt vmcnt({n})")
            a("s_barrier")
            if cc + AH < 14:
                issue(cc + AH)
            if cc == 8:
                a(f"v_mov_b32 v12, 0")
                a(f"buffer_load_dword v14, v12, {sr(S_DBG)}, 0 offen sc1")
                q.push("non")
        if FB == 14:
            a("s_barrier")
        self.stamp(1, "poll1")
        a("s_waitcnt vmcnt(0)")
        self.read_nonce(early=14)
        self.poll_all(0)
        self.stamp(1, "got1")
        q.clear()
        a("s_barrier")

    def helper_attn(self):
        a, cfg = self.a, self.cfg
        q = self.hq
        a.label("ATT_H_ENTRY")
        VMASK = "s_mov_b32 exec_lo, 0x0fffffff\ns_mov_b32 exec_hi, 0x0fffffff"
        a(f"""
        s_sub_u32 s56, s{sW}, 4         ; j
        v_and_b32 v2, 31, v0
        v_lshrrev_b32 v3, 5, v0
        v_lshlrev_b32 v4, 4, v2
        s_movk_i32 s50, 7168
        v_mad_u32_u24 v4, v3, s50, v4   ; v4 = V voffset
        v_lshlrev_b32 v5, 3, v2
        v_lshl_add_u32 v5, v3, 8, v5
        s_lshl_b32 s57, s56, 4
        s_mul_i32 s57, s57, {TS}
        s_mul_i32 s50, s{sH}, 1792
        s_add_u32 s58, s57, s50
        s_add_u32 s58, s58, {WS_K}      ; K stream
        s_mul_i32 s50, s{sH}, 448
        s_add_u32 s59, s57, s50
        s_add_u32 s59, s59, {WS_V}      ; V stream
        s_lshl_b32 s60, s56, 13         ; j*8192 lds
        v_lshlrev_b32 v6, 3, v0
        v_add_u32 v6, s60, v6
        v_add_u32 v6, {R2 + 1792}, v6
        v_mov_b32 v8, 0x3f80
        v_mov_b32 v9, 0
        v_and_b32 v7, 3, v0
        v_cmp_eq_u32 vcc, 0, v7
        v_mov_b32 v16, 0
        v_mov_b32 v17, 0x3f803f80
        v_cndmask_b32 v16, v16, v17, vcc
        v_mov_b32 v17, v16
        v_mov_b32 v18, v16
        v_mov_b32 v19, v16
        v_bfe_u32 v10, v0, 2, 1         ; hf
        v_lshl_add_u32 v7, v10, 5, v7
        v_bfe_u32 v10, v0, 3, 1         ; f
        v_lshl_add_u32 v7, v10, 6, v7
        v_lshlrev_b32 v7, 4, v7
        v_add_u32 v7, s60, v7
        v_add_u32 v7, {R2 + 2048 + 448}, v7
        """)

        def stage(k):
            sl = k % 3
            for kk in range(2):
                base = R2 + (SLOT_TS[sl] + kk) * 4096
                off = (SLOT_TS[sl] + kk) * 4096
                if k < 3:
                    vb6, vb7, o = 6, 7, off
                    if off > 60000:
                        a(f"v_add_u32 v10, {off}, v6")
                        a(f"v_add_u32 v11, {off}, v7")
                        vb6, vb7, o = 10, 11, 0
                    a("s_mov_b32 exec_hi, 0")
                    a(f"ds_write_b64 v{vb6}, v[8:9] offset:{o}")
                    a("s_mov_b32 exec_lo, 0xffff")
                    a(f"ds_write_b128 v{vb7}, v[16:19] offset:{o}")
                    a("s_mov_b64 exec, -1")
                tt = 2 * k + kk
                a(f"s_add_u32 s50, s58, {tt*TS}")
                a(f"s_add_u32 m0, s60, {base}")
                a(f"buffer_load_dwordx4 v1, {sr(S_WS)}, s50 offen{LSC} lds")
                a("s_mov_b32 exec_hi, 0xffff")
                a(f"buffer_load_dwordx4 v1, {sr(S_WS)}, s50 offen offset:1024{LSC} lds")
                a(VMASK)
                for f in range(2):
                    a(f"s_add_u32 s50, s59, {tt*TS + f*14336}")
                    a(f"s_add_u32 m0, s60, {base + 2048 + 1024*f}")
                    a(f"buffer_load_dwordx4 v4, {sr(S_WS)}, s50 offen{LSC} lds")
                a("s_mov_b64 exec, -1")
                for _ in range(4):
                    q.push(("s", k))

        def bar(k):
            n = q.wait_for(("s", k))
            if n is not None:
                a(f"s_waitcnt vmcnt({n}) lgkmcnt(0)")
            else:
                a("s_waitcnt lgkmcnt(0)")
            a("s_barrier")

        def wo_dma(srd_, region, tag):
            a(f"""
            v_lshrrev_b32 v10, 3, v0
            v_and_b32 v11, 7, v0
            v_bfe_u32 v12, v0, 4, 1
            v_lshlrev_b32 v12, 2, v12
            v_xor_b32 v11, v11, v12
            v_lshlrev_b32 v11, 4, v11
            s_movk_i32 s50, 896
            v_mad_u32_u24 v10, v10, s50, v11
            s_mul_i32 s51, s56, 100352
            s_lshl_b32 s50, s{sCB3}, 7
            s_add_u32 s51, s51, s50
            s_mul_i32 s52, s56, 14336
            """)
            for i in range(14):
                a(f"s_add_u32 s50, s51, {8*i*896}")
                a(f"s_add_u32 m0, s52, {region + i*1024}")
                a(f"buffer_load_dwordx4 v10, {sr(srd_)}, s50 offen lds")
                q.push(tag)

        skip3 = lambda name: (f"s_cmp_ge_u32 s{sIDX}, 28\ns_cbranch_scc1 {name}")

        stage(0)
        stage(1)
        bar(0)
        self.stamp(1, "S0")
        stage(2)
        wo_dma(S_WOB, R1, "woB")
        bar(1)
        stage(3)
        self.stamp(1, "poll2")
        self.poll_all(0x4000)
        q.clear()
        self.stamp(1, "got2")
        a("s_barrier")
        stage(4)
        self.local_attn_loads(q)
        bar(3)
        stage(5)
        self.local_attn(q)
        self.stamp(1, "Ldone")
        bar(4)
        stage(6)
        a(f"s_waitcnt vmcnt({q.wait_for('ost')})")
        a("s_barrier")
        self.publish(f"""
        s_lshl_b32 s50, s{sQB}, 4
        s_add_u32 s50, s50, s{sH}
        s_lshl_b32 s50, s50, 6
        s_add_u32 s50, s50, {WS_F + 0xC000}
        """, balance=True)
        q.push("pub")
        stage(7)
        bar(6)
        self.out_gemm_setup()
        self.poll16(0xC000)
        q.clear()
        self.stamp(1, "got4")
        a("s_barrier")
        self.stamp(1, "S7")
        self.out_gemm_loads(1, q)
        wo_dma(S_WOA, R3, "woA")
        a(f"s_waitcnt vmcnt(0)")
        q.clear()
        self.stamp(1, "preC0")
        a("s_barrier")
        a("s_barrier")
        a("s_barrier")
        a(skip3("H_DONE"))
        self.stamp(1, "C2")
        self.out_gemm(1, R1, q, loads=False)
        self.stamp(1, "bdone")
        self.poll16(0x8000)
        a("s_barrier")
        self.stamp(1, "got3")
        q.clear()
        self.out_gemm(0, R3, q)
        self.out_epilogue()
        a.label("H_DONE")
        if cfg.get("stamps"):
            a("s_waitcnt vmcnt(0)")
        self.stamp(1, "end")
        self.stamp_flush(14, 1)
        a("s_endpgm")

    def local_attn_loads(self, q):
        a = self.a
        LQ, LK, LKP, LV, LVP = 20, 28, 36, 44, 52
        a(f"""
        s_lshl_b32 s61, s{sQB}, 2
        s_add_u32 s61, s61, s56         ; tB
        s_mul_i32 s62, s61, {TS}
        s_sub_u32 s63, s62, {TS}
        s_cmp_eq_u32 s61, 0
        s_cselect_b32 s63, s62, s63
        s_cselect_b32 s55, 0, -1
        s_mul_i32 s54, s{sH}, 1792
        s_add_u32 s50, s62, s54
        s_add_u32 s50, s50, {BR + WS_Q}
        """)
        for r in (LQ + 6, LQ + 7, LK + 6, LK + 7, LKP + 6, LKP + 7):
            a(f"v_mov_b32 v{r}, 0")
        for r in range(12):
            a(f"v_mov_b32 v{LV+r}, 0")
        a("s_mov_b32 exec_lo, 0x10000000")
        a("s_mov_b32 exec_hi, 0x10000000")
        for r in range(12):
            a(f"v_mov_b32 v{LV+r}, 0x3f803f80")
        a("s_mov_b64 exec, -1")
        self.load_qk_frag(LQ, 5, "s50", q, "L")
        a(f"s_add_u32 s50, s50, {WS_K - WS_Q}")
        self.load_qk_frag(LK, 5, "s50", q, "L")
        a(f"s_add_u32 s50, s63, s54")
        a(f"s_add_u32 s50, s50, {BR + WS_K}")
        self.load_qk_frag(LKP, 5, "s50", q, "L")
        a(f"""
        s_mul_i32 s54, s{sH}, 448
        s_add_u32 s50, s62, s54
        s_add_u32 s50, s50, {BR + WS_V}
        s_add_u32 s51, s50, 14336
        s_add_u32 s52, s63, s54
        s_add_u32 s52, s52, {BR + WS_V + 14336}
        s_mov_b32 exec_lo, 0x0fffffff
        s_mov_b32 exec_hi, 0x0fffffff
        buffer_load_dwordx4 {vr(LV,4)}, v4, {sr(S_WS)}, s50 offen{LSC}
        buffer_load_dwordx4 {vr(LV+4,4)}, v4, {sr(S_WS)}, s51 offen{LSC}
        buffer_load_dwordx4 {vr(LVP,4)}, v4, {sr(S_WS)}, s52 offen{LSC}
        s_mov_b64 exec, -1
        v_mov_b32 v15, {NEG_BIG}
        s_add_u32 s62, s62, {WS_OB}
        """)
        for _ in range(3):
            q.push("L")
        self.o_voff(14, 13)

    def local_attn(self, q):
        a = self.a
        LQ, LK, LKP, LV, LVP = 20, 28, 36, 44, 52
        Sd, Sp, P, T, O = 64, 80, 96, 104, 124
        n = q.wait_for("L")
        if n is not None:
            a(f"s_waitcnt vmcnt({n})")
        a(f"v_mfma_f32_32x32x16_bf16 {vr(Sd,16)}, {vr(LK,4)}, {vr(LQ,4)}, 0")
        a(f"v_mfma_f32_32x32x16_bf16 {vr(Sp,16)}, {vr(LKP,4)}, {vr(LQ,4)}, 0")
        a(f"v_mfma_f32_32x32x16_bf16 {vr(Sd,16)}, {vr(LK+4,4)}, {vr(LQ+4,4)}, {vr(Sd,16)}")
        a(f"v_mfma_f32_32x32x16_bf16 {vr(Sp,16)}, {vr(LKP+4,4)}, {vr(LQ+4,4)}, {vr(Sp,16)}")
        regs = []
        for r in range(16):
            m = lane_mask(lambda l: (((l & 31) - ((r & 3) + 8 * (r >> 2) + 4 * (l >> 5))) & ~14) == 0)
            sp = 50 + 2 * (r & 1)
            a(f"s_mov_b32 s{sp}, {m & 0xffffffff:#x}")
            a(f"s_mov_b32 s{sp+1}, {m >> 32:#x}")
            a(f"v_cndmask_b32 v{Sd+r}, v15, v{Sd+r}, s[{sp}:{sp+1}]")
            regs.append(Sd + r)
        for r in range(8, 16):
            m = lane_mask(lambda l: ((32 + (l & 31) - ((r & 3) + 8 * (r >> 2) + 4 * (l >> 5))) & ~14) == 0)
            sp = 50 + 2 * (r & 1)
            a(f"s_and_b32 s{sp}, s55, {m & 0xffffffff:#x}")
            a(f"s_and_b32 s{sp+1}, s55, {m >> 32:#x}")
            a(f"v_cndmask_b32 v{Sp+r}, v15, v{Sp+r}, s[{sp}:{sp+1}]")
            regs.append(Sp + r)
        self.max_tree(regs, T, T + 1)
        for r in regs:
            a(f"v_sub_f32 v{r}, v{r}, v{T}")
        for r in regs:
            a(f"v_exp_f32 v{r}, v{r}")
        for r in range(8):
            a(f"v_cvt_pk_bf16_f32 v{P+r}, v{Sd+2*r}, v{Sd+2*r+1}")
        for r in range(4):
            a(f"v_cvt_pk_bf16_f32 v{T+4+r}, v{Sp+8+2*r}, v{Sp+9+2*r}")
        a(f"v_mfma_f32_32x32x16_bf16 {vr(O,16)}, {vr(LV,4)}, {vr(P,4)}, 0")
        a(f"v_mfma_f32_32x32x16_bf16 {vr(O,16)}, {vr(LV+4,4)}, {vr(P+4,4)}, {vr(O,16)}")
        a(f"v_mfma_f32_32x32x16_bf16 {vr(O,16)}, {vr(LVP,4)}, {vr(T+4,4)}, {vr(O,16)}")
        self.finalize_o(O, T + 8, 14, "s62", q)

    def out_gemm_setup(self):
        a = self.a
        a(f"""
        s_and_b32 s62, s56, 1
        s_lshr_b32 s63, s56, 1
        v_and_b32 v20, 3, v0
        v_lshlrev_b32 v20, 3, v20
        v_bfe_u32 v21, v0, 4, 1
        v_lshl_add_u32 v20, v21, 5, v20
        s_lshl_b32 s50, s63, 6
        v_add_u32 v20, s50, v20
        v_bfe_u32 v21, v0, 3, 1
        v_lshlrev_b32 v21, 6, v21
        v_xor_b32 v20, v20, v21
        v_bfe_u32 v21, v0, 2, 2
        v_lshl_add_u32 v21, v3, 3, v21
        v_lshl_add_u32 v20, v21, 7, v20
        v_add_u32 v21, {R3}, v20
        s_lshl_b32 s61, s{sRB3}, 1
        s_add_u32 s61, s61, s62         ; q tile
        s_lshl_b32 s50, s61, 7
        s_add_u32 s50, s50, {WS_G}
        v_lshlrev_b32 v22, 2, v2
        buffer_load_dword v23, v22, {sr(S_WS)}, s50 offen{LSC}
        s_mul_i32 s61, s61, {TS}
        """)

    def out_gemm_loads(self, br, q):
        a = self.a
        OF = 144
        for s in range(28):
            if s % 4 == 0:
                a(f"s_add_u32 s50, s61, {(WS_OA if br == 0 else WS_OB) + s*1024}")
            a(f"buffer_load_dwordx4 {vr(OF+4*s,4)}, v1, {sr(S_WS)}, s50 offen offset:{(s%4)*1024}{LSC}")
            q.push(("o", s))

    def out_gemm(self, br, region, q, loads=True):
        a = self.a
        ACC = 64 + 16 * br
        OF = 144
        WF, NB = 32, 4
        areg = 20 if region == R1 else 21
        if loads:
            self.out_gemm_loads(br, q)

        def reads(s):
            b = WF + 4 * (s % NB)
            for u in range(2):
                a(f"ds_read_b64_tr_b16 {vr(b+2*u,2)}, v{areg} offset:{(16*s+4*u)*128}")

        for s in range(NB - 1):
            reads(s)
        for s in range(28):
            if s + NB - 1 < 28:
                reads(s + NB - 1)
                lg = 2 * (NB - 1)
            else:
                lg = 2 * (27 - s)
            n = q.wait_for(('o', s))
            a(f"s_waitcnt lgkmcnt({lg})" if n is None else f"s_waitcnt vmcnt({n}) lgkmcnt({lg})")
            b = WF + 4 * (s % NB)
            d = vr(ACC, 16)
            c = "0" if s == 0 else d
            a(f"v_mfma_f32_32x32x16_bf16 {d}, {vr(b,4)}, {vr(OF+4*s,4)}, {c}")

    def out_epilogue(self):
        a = self.a
        A, B, W = 64, 80, 32
        a(f"""
        v_sub_f32 v24, 1.0, v23
        v_cvt_pk_bf16_f32 v24, v24, v24
        v_lshlrev_b32 v24, 16, v24
        s_lshl_b32 s50, s{sRB3}, 6
        s_lshl_b32 s51, s62, 5
        s_add_u32 s50, s50, s51
        v_add_u32 v25, s50, v2
        s_movk_i32 s50, 896
        v_mul_lo_u32 v25, v25, s50
        v_lshl_add_u32 v25, v3, 4, v25
        s_lshl_b32 s50, s{sCB3}, 7
        s_lshl_b32 s51, s63, 6
        s_add_u32 s50, s50, s51
        """)
        for r in range(16):
            a(f"v_mul_f32 v{B+r}, v24, v{B+r}")
        for r in range(16):
            a(f"v_fma_f32 v{A+r}, v23, v{A+r}, v{B+r}")
        for r in range(8):
            a(f"v_cvt_pk_bf16_f32 v{W+r}, v{A+2*r}, v{A+2*r+1}")
        for pr in range(2):
            b = W + 4 * pr
            a(f"v_permlane32_swap_b32 v{b}, v{b+2}")
            a(f"v_permlane32_swap_b32 v{b+1}, v{b+3}")
            a(f"buffer_store_dwordx4 {vr(b,4)}, v25, {sr(S_OUT)}, s50 offen offset:{32*pr}")

    def gate_wg(self):
        a = self.a
        a.label("GATE_WG")
        a(f"""
        s_cmp_ge_u32 s{sW}, 4
        s_cbranch_scc1 GATE_H
        s_lshl_b32 s56, s{sXCD}, 2
        s_add_u32 s56, s56, s{sIDX}
        s_sub_u32 s56, s56, 28
        s_lshl_b32 s56, s56, 6
        s_lshl_b32 s50, s{sW}, 4
        s_add_u32 s56, s56, s50
        s_mul_i32 s57, s56, 896
        """)
        NR = 16
        GW = 16 + 4 * NR
        for r in range(4 * NR + 4):
            a(f"v_mov_b32 v{16+r}, 0")
        a("s_mov_b32 exec_hi, 0x00ffffff")
        a(f"buffer_load_dwordx4 {vr(GW,4)}, v1, {sr(S_GATE)}, 0 offen")
        for i in range(NR):
            a(f"s_add_u32 s50, s57, {896*i}")
            a(f"buffer_load_dwordx4 {vr(16+4*i,4)}, v1, {sr(S_X)}, s50 offen")
        a("s_mov_b64 exec, -1")
        Z = GW + 4
        for i in range(NR):
            a(f"v_mov_b32 v{Z+i}, 0")
        a("s_waitcnt vmcnt(0)")
        for r in range(4):
            for i in range(NR):
                a(f"v_dot2_f32_bf16 v{Z+i}, v{16+4*i+r}, v{GW+r}, v{Z+i}")
        a("s_nop 2")
        for sh in (1, 2, 4, 8):
            for i in range(NR):
                a(f"v_add_f32_dpp v{Z+i}, v{Z+i}, v{Z+i} row_shr:{sh} row_mask:0xf bank_mask:0xf bound_ctrl:0")
        for i in range(NR):
            a(f"v_add_f32_dpp v{Z+i}, v{Z+i}, v{Z+i} row_bcast:15 row_mask:0xa bank_mask:0xf")
        for i in range(NR):
            a(f"v_add_f32_dpp v{Z+i}, v{Z+i}, v{Z+i} row_bcast:31 row_mask:0xc bank_mask:0xf")

        def round_pairs():
            for i in range(0, NR, 2):
                a(f"v_cvt_pk_bf16_f32 v16, v{Z+i}, v{Z+i+1}")
                a(f"v_lshlrev_b32 v{Z+i}, 16, v16")
                a(f"v_and_b32 v{Z+i+1}, 0xffff0000, v16")
        round_pairs()
        for i in range(NR):
            a(f"v_mul_f32 v{Z+i}, {NLOG2E}, v{Z+i}")
        for i in range(NR):
            a(f"v_exp_f32 v{Z+i}, v{Z+i}")
        for i in range(NR):
            a(f"v_add_f32 v{Z+i}, 1.0, v{Z+i}")
        for i in range(NR):
            a(f"v_rcp_f32 v{Z+i}, v{Z+i}")
        round_pairs()
        a(f"""
        s_lshl_b32 s50, s56, 2
        s_add_u32 s50, s50, {WS_G}
        v_mov_b32 v16, 0
        s_mov_b32 exec_lo, 0
        s_mov_b32 exec_hi, 0x80000000
        """)
        for i in range(NR // 4):
            a(f"buffer_store_dwordx4 {vr(Z+4*i,4)}, v16, {sr(S_WS)}, s50 offen offset:{16*i} sc1")
        a("""
        s_mov_b64 exec, -1
        s_waitcnt vmcnt(0)
        s_barrier
        """)
        self.read_nonce(t0=188, t1=189)
        self.publish(f"""
        s_lshl_b32 s50, s2, 6
        s_add_u32 s50, s50, {WS_F}
        """, only_wave=0, t0=188, t1=189)
        a("""
        s_barrier
        s_branch ATT_C_ENTRY
        """)
        a.label("GATE_H")
        a(f"s_setprio {self.cfg.get('hprio', 3)}")
        if not self.cfg.get("l2pf", 0):
            a("s_barrier")
        if self.cfg.get("l2pf", 0):
            a(f"""
            s_sub_u32 s56, s{sIDX}, 28
            s_lshl_b32 s56, s56, 2
            s_add_u32 s56, s56, s{sW}
            s_sub_u32 s56, s56, 4           ; pw 0..15
            s_lshr_b32 s50, s{sXCD}, 1
            s_mul_i32 s57, s50, {512*896}
            s_mul_i32 s50, s56, 28672
            s_add_u32 s57, s57, s50         ; x slice
            v_and_b32 v2, 31, v0
            v_lshlrev_b32 v2, 4, v2
            v_lshrrev_b32 v3, 5, v0
            s_movk_i32 s50, 896
            v_mad_u32_u24 v4, v3, s50, v2   ; (r0,p0),(r0,p1)
            v_add_u32 v5, 1792, v4          ; (r0,p2),(r1,p0)
            v_add_u32 v6, 3584, v4          ; (r1,p1),(r1,p2)
            s_and_b32 s50, s{sXCD}, 1
            s_mul_i32 s58, s50, 384
            s_mul_i32 s50, s56, 5376
            s_add_u32 s58, s58, s50
            s_lshl_b32 s59, s56, 10
            """)
            n = [0]

            def dst():
                n[0] += 1
                return vr(16 + 4 * (n[0] % 32), 4)
            for i in range(28):
                if i % 4 == 0:
                    a(f"s_add_u32 s50, s57, {i*1024}")
                a(f"buffer_load_dwordx4 {dst()}, v1, {sr(S_X)}, s50 offen offset:{(i%4)*1024}")
            for sw in (S_WA, S_WB):
                for i in range(14):
                    a(f"s_add_u32 s50, s58, {i*16*5376}")
                    for k in range(3):
                        a(f"buffer_load_dwordx4 {dst()}, v{4+k}, {sr(sw)}, s50 offen")
                if sw == S_WA:
                    a("s_barrier")
            for sw in (S_WOB, S_WOA):
                for i in range(25):
                    a(f"s_add_u32 s50, s59, {i*16384}")
                    a(f"buffer_load_dwordx4 {dst()}, v1, {sr(sw)}, s50 offen")
        self.read_nonce()
        self.poll_all(0)
        a("""
        s_barrier
        s_branch ATT_H_ENTRY
        """)


def build(cfg):
    g = Gen(cfg)
    body = g.build()
    head = f"""; {NAME}: one persistent launch (projections -> attention -> output projection + gated mix)
; @launch grid=(256,1,1) block=(512,1,1) lds={LDS_BYTES}
.amdgcn_target "amdgcn-amd-amdhsa--gfx950"
.text
.globl {NAME}_kernel
"""
    tail = f""".section .rodata,"a"
.p2align 6
.amdhsa_kernel {NAME}_kernel
  .amdhsa_next_free_vgpr 256
  .amdhsa_next_free_sgpr 100
  .amdhsa_accum_offset {256}
  .amdhsa_group_segment_fixed_size 0
  .amdhsa_kernarg_size 80
  .amdhsa_user_sgpr_count 2
  .amdhsa_user_sgpr_kernarg_segment_ptr 1
  .amdhsa_system_sgpr_workgroup_id_x 1
.end_amdhsa_kernel
"""
    if cfg.get("stamps"):
        head = "; STAMPS " + repr(g.stnames) + "\n" + head
    return head + body + tail, g.a.n_pads


if __name__ == "__main__":
    cfg = {}
    out = f"cdna_kernels/{NAME}.s"
    for arg in sys.argv[1:]:
        if arg.startswith("-o="):
            out = arg[3:]
        else:
            k, v = arg.split("=")
            cfg[k] = int(v)
    s, n = build(cfg)
    open(out, "w").write(s)
    print("wrote", out, len(s), "bytes;", n, "hazard pads")
```

```python
import math
import struct
import sys
import os

sys.path.insert(0, os.path.dirname(os.path.abspath(__file__)))
from asmlib import Asm

NAME = "gated_mix__mha_block__sliding_local_dilated__prompt"

TS = 28672
WS_Q = 0x000000
WS_K = 0x200000
WS_V = 0x400000
BR = 0x600000
WS_OA = 0xC00000
WS_OB = 0xE00000
WS_G = 0x1000000
WS_F = 0x1010000
WS_USED = 0x1030000
WS_DIAG = 0x2000000

X_BYTES = 2048 * 448 * 2
W_BYTES = 448 * 1344 * 2
WO_BYTES = 448 * 448 * 2

R1 = 0
R2 = 57344
R3 = 106496
LDS_BYTES = 163840
CB = R2 + 32768
QL = 155648
OAL = R2
SLOT_TS = (8, 0, 16)
SPIN_MAX = 40000
LSC = ''


def f32bits(x):
    return struct.unpack("<I", struct.pack("<f", x))[0]


SCALE_F32 = struct.unpack("<f", struct.pack("<f", 28 ** -0.5))[0]
QSCALE = f32bits(SCALE_F32 * math.log2(math.e))
NEG_BIG = f32bits(-1.0e30)
NLOG2E = f32bits(-math.log2(math.e))

S_X, S_WA, S_WB, S_WS, S_WOA, S_WOB, S_OUT, S_DBG, S_GATE = 4, 8, 12, 16, 20, 24, 28, 32, 36
KA0 = 68
sW, sXCD, sIDX, sRB, sCG, sH, sQB, sRB3, sCB3, sNONCE = 40, 41, 42, 43, 44, 45, 46, 47, 48, 49


def sr(b):
    return f"s[{b}:{b+3}]"


class VmQ:
    def __init__(self):
        self.q = []

    def push(self, tag):
        self.q.append(tag)

    def wait_for(self, tag):
        idx = max([i for i, t in enumerate(self.q) if t == tag], default=-1)
        if idx < 0:
            return None
        n = len(self.q) - 1 - idx
        self.q = self.q[idx + 1:]
        return min(n, 63)

    def clear(self):
        self.q = []


def vr(b, n):
    return f"v[{b}:{b+n-1}]"


def ar(b, n):
    return f"a[{b}:{b+n-1}]"


def lane_mask(fn):
    m = 0
    for l in range(64):
        if fn(l):
            m |= 1 << l
    return m


class Gen:
    def __init__(self, cfg):
        self.cfg = cfg
        self.a = Asm()
        self.nlab = 0
        self.stnames = {}

    def lab(self, p):
        self.nlab += 1
        return f"{p}_{self.nlab}"

    def stamp(self, idx, name=None):
        if not self.cfg.get("stamps"):
            return
        if name is not None:
            role = idx
            lst = self.stnames.setdefault(role, ["start"])
            idx = len(lst)
            lst.append(name)
            assert idx < 14
        self.a(f"""
        s_memtime s[{64+2*idx}:{65+2*idx}]
        """)
        if idx == 0:
            self.a("s_memrealtime s[98:99]")

    def stamp_flush(self, n, role):
        if not self.cfg.get("stamps"):
            return
        a = self.a
        skip = self.lab("STSKIP")
        a(f"""
        s_memrealtime s[96:97]
        s_cmp_lg_u32 s{sW}, {4*role}
        s_cbranch_scc1 {skip}
        s_waitcnt lgkmcnt(0)
        s_mov_b32 s{S_WS+2}, 0x2100000
        s_lshl_b32 s50, s2, 8
        s_add_u32 s50, s50, {WS_DIAG + role*128}
        v_mov_b32 v3, 0
        """)
        for i in range(2 * n):
            a(f"v_mov_b32 v4, s{64+i}")
            a(f"buffer_store_dword v4, v3, {sr(S_WS)}, s50 offen offset:{4*i}")
        for i, s in enumerate((98, 99, 96, 97)):
            a(f"v_mov_b32 v4, s{s}")
            a(f"buffer_store_dword v4, v3, {sr(S_WS)}, s50 offen offset:{112+4*i}")
        a.label(skip)

    def publish(self, off_sgpr_expr_lines, only_wave=4, t0=12, t1=13, balance=False):
        a = self.a
        skip, end = self.lab("PUB"), self.lab("PUBE")
        a(off_sgpr_expr_lines)
        a(f"""
        v_mov_b32 v{t0}, 0
        v_mov_b32 v{t1}, s{sNONCE}
        s_mov_b64 exec, 1
        s_cmp_lg_u32 s{sW}, {only_wave}
        s_cbranch_scc1 {skip}
        buffer_store_dword v{t1}, v{t0}, {sr(S_WS)}, s50 offen sc1
        """)
        if balance:
            a(f"s_branch {end}")
        a.label(skip)
        if balance:
            a(f"buffer_load_dword v{t1}, v{t0}, {sr(S_GATE)}, 0 offen")
            a.label(end)
        a("s_mov_b64 exec, -1")

    def poll_all(self, foff):
        a = self.a
        loop, done = self.lab("POLL"), self.lab("POLLD")
        a(f"""
        s_waitcnt vmcnt(0)
        s_cmp_lg_u32 s{sW}, 4
        s_cbranch_scc1 {done}
        s_mov_b32 s50, {WS_F + foff}
        s_mov_b32 s92, {WS_F + foff + 4096}
        s_mov_b32 s93, {WS_F + foff + 8192}
        s_mov_b32 s94, {WS_F + foff + 12288}
        v_lshlrev_b32 v11, 6, v0
        s_mov_b32 s51, 0
        """)
        a.label(loop)
        a(f"""
        buffer_load_dword v12, v11, {sr(S_WS)}, s50 offen sc1
        buffer_load_dword v13, v11, {sr(S_WS)}, s92 offen sc1
        buffer_load_dword v14, v11, {sr(S_WS)}, s93 offen sc1
        buffer_load_dword v15, v11, {sr(S_WS)}, s94 offen sc1
        s_waitcnt vmcnt(0)
        v_cmp_eq_u32 s[52:53], s{sNONCE}, v12
        v_cmp_eq_u32 s[54:55], s{sNONCE}, v13
        s_and_b64 s[52:53], s[52:53], s[54:55]
        v_cmp_eq_u32 s[54:55], s{sNONCE}, v14
        s_and_b64 s[52:53], s[52:53], s[54:55]
        v_cmp_eq_u32 s[54:55], s{sNONCE}, v15
        s_and_b64 s[52:53], s[52:53], s[54:55]
        s_cmp_eq_u64 s[52:53], -1
        s_cbranch_scc1 {done}
        s_sleep {self.cfg.get("sleep", 4)}
        s_add_u32 s51, s51, 1
        s_cmp_lt_u32 s51, {SPIN_MAX}
        s_cbranch_scc1 {loop}
        """)
        a.label(done)

    def poll_issue(self, kind, foff, q):
        a = self.a
        if kind == "all":
            a("v_lshlrev_b32 v11, 6, v0")
            for i in range(4):
                a(f"s_mov_b32 s50, {WS_F + foff + 4096*i}")
                a(f"buffer_load_dword v{140+i}, v11, {sr(S_WS)}, s50 offen sc1")
                q.push("poll")
        else:
            a(f"""
            s_lshr_b32 s50, s{sRB3}, 1
            s_lshl_b32 s50, s50, 10
            s_add_u32 s50, s50, {WS_F + foff}
            v_and_b32 v11, 15, v0
            v_lshlrev_b32 v11, 6, v11
            buffer_load_dword v140, v11, {sr(S_WS)}, s50 offen sc1
            """)
            q.push("poll")

    def poll_check(self, kind, foff):
        a = self.a
        ok = self.lab("PCK")
        a(f"v_cmp_eq_u32 s[52:53], s{sNONCE}, v140")
        if kind == "all":
            for i in range(1, 4):
                a(f"v_cmp_eq_u32 s[54:55], s{sNONCE}, v{140+i}")
                a("s_and_b64 s[52:53], s[52:53], s[54:55]")
        a("s_cmp_eq_u64 s[52:53], -1")
        a(f"s_cbranch_scc1 {ok}")
        if kind == "all":
            self.poll_all(foff)
        else:
            self.poll16(foff)
        a.label(ok)

    def poll16(self, foff, everyone=False):
        a = self.a
        loop, done = self.lab("POLL"), self.lab("POLLD")
        a(f"""
        s_waitcnt vmcnt(0)
        s_cmp_lg_u32 s{sW}, {"s%d" % sW if everyone else 4}
        s_cbranch_scc1 {done}
        s_cmp_ge_u32 s{sIDX}, 28
        s_cbranch_scc1 {done}
        s_lshr_b32 s50, s{sRB3}, 1
        s_lshl_b32 s50, s50, 10
        s_add_u32 s50, s50, {WS_F + foff}
        s_mov_b32 s51, 0
        v_and_b32 v13, 15, v0
        v_lshlrev_b32 v13, 6, v13
        """)
        a.label(loop)
        a(f"""
        buffer_load_dword v12, v13, {sr(S_WS)}, s50 offen sc1
        s_waitcnt vmcnt(0)
        v_cmp_eq_u32 s[52:53], s{sNONCE}, v12
        s_cmp_eq_u64 s[52:53], -1
        s_cbranch_scc1 {done}
        s_sleep {self.cfg.get("sleep", 4)}
        s_add_u32 s51, s51, 1
        s_cmp_lt_u32 s51, {SPIN_MAX}
        s_cbranch_scc1 {loop}
        """)
        a.label(done)

    def get_nonce(self):
        a = self.a
        loop, done, skip = self.lab("NON"), self.lab("NOND"), self.lab("NONS")
        a(f"""
        v_mov_b32 v12, 0
        s_cmp_lg_u32 s2, 0
        s_cbranch_scc1 {skip}
        s_cmp_lg_u32 s{sW}, 4
        s_cbranch_scc1 {skip}
        s_memrealtime s[50:51]
        s_waitcnt lgkmcnt(0)
        s_or_b32 s50, s50, 1
        v_mov_b32 v13, s50
        s_mov_b64 exec, 1
        buffer_store_dword v13, v12, {sr(S_DBG)}, 0 offen sc1
        s_mov_b64 exec, -1
        """)
        a.label(skip)

    def read_nonce(self, early=None, t0=12, t1=13):
        a = self.a
        loop, done = self.lab("NON"), self.lab("NOND")
        if early is not None:
            a(f"""
            v_readfirstlane_b32 s{sNONCE}, v{early}
            s_cmp_lg_u32 s{sNONCE}, 0
            s_cbranch_scc1 {done}
            """)
        a(f"""
        v_mov_b32 v{t0}, 0
        s_mov_b32 s51, 0
        """)
        a.label(loop)
        a(f"""
        buffer_load_dword v{t1}, v{t0}, {sr(S_DBG)}, 0 offen sc1
        s_waitcnt vmcnt(0)
        v_readfirstlane_b32 s{sNONCE}, v{t1}
        s_cmp_lg_u32 s{sNONCE}, 0
        s_cbranch_scc1 {done}
        s_sleep {self.cfg.get("sleep", 4)}
        s_add_u32 s51, s51, 1
        s_cmp_lt_u32 s51, {SPIN_MAX}
        s_cbranch_scc1 {loop}
        """)
        a.label(done)

    def max_tree(self, regs, dst, tmp):
        a = self.a
        h = len(regs) // 2
        for (rs, d) in ((regs[:h], dst), (regs[h:], tmp)):
            a(f"v_max3_f32 v{d}, v{rs[0]}, v{rs[1]}, v{rs[2]}")
            i = 3
            while i + 1 < len(rs):
                a(f"v_max3_f32 v{d}, v{d}, v{rs[i]}, v{rs[i+1]}")
                i += 2
            if i < len(rs):
                a(f"v_max_f32 v{d}, v{d}, v{rs[i]}")
        a(f"v_max_f32 v{dst}, v{dst}, v{tmp}")
        a(f"v_mov_b32 v{tmp}, v{dst}")
        a(f"v_permlane32_swap_b32 v{dst}, v{tmp}")
        a(f"v_max_f32 v{dst}, v{dst}, v{tmp}")

    def o_voff(self, dst, tmp):
        self.a(f"""
        v_and_b32 v{dst}, 31, v0
        v_lshlrev_b32 v{dst}, 4, v{dst}
        v_lshrrev_b32 v{tmp}, 5, v0
        s_and_b32 s50, s{sH}, 1
        s_cmp_eq_u32 s50, 0
        s_cselect_b32 s51, 8, 504
        s_cselect_b32 s50, 0, 1544
        v_mad_u32_u24 v{dst}, v{tmp}, s51, v{dst}
        v_add_u32 v{dst}, s50, v{dst}
        s_lshr_b32 s50, s{sH}, 1
        s_mul_i32 s50, s50, 3584
        v_add_u32 v{dst}, s50, v{dst}
        """)

    def finalize_o(self, O, T, voff, soff, q=None):
        a = self.a
        a(f"""
        v_mov_b32 v{T}, v{O+12}
        v_mov_b32 v{T+1}, v{O+12}
        v_permlane32_swap_b32 v{T}, v{T+1}
        v_rcp_f32 v{T}, v{T+1}
        """)
        for r in range(16):
            a(f"v_mul_f32 v{O+r}, v{T}, v{O+r}")
        for r in range(8):
            a(f"v_cvt_pk_bf16_f32 v{T+2+r}, v{O+2*r}, v{O+2*r+1}")
        for i in range(4):
            if i == 3:
                a("s_mov_b32 exec_hi, 0")
            a(f"buffer_store_dwordx2 {vr(T+2+2*i,2)}, v{voff}, {sr(S_WS)}, {soff} offen offset:{512*i} sc1")
            if q is not None:
                q.push("ost")
        a("s_mov_b64 exec, -1")

    def load_qk_frag(self, dst, voff, soff, q=None, tag=None, pfx="v"):
        a = self.a
        for i in range(4):
            if i == 3:
                a("s_mov_b32 exec_hi, 0")
            a(f"buffer_load_dwordx2 {pfx}[{dst+2*i}:{dst+2*i+1}], v{voff}, {sr(S_WS)}, {soff} offen offset:{512*i}{LSC}")
            if q is not None:
                q.push(tag)
        a("s_mov_b32 exec_hi, -1")

    def srd(self, base, pair, nbytes):
        self.a(f"""
        s_mov_b32 s{base}, s{pair}
        s_and_b32 s{base+1}, s{pair+1}, 0xffff
        s_mov_b32 s{base+2}, {nbytes}
        s_mov_b32 s{base+3}, 0x20000
        """)

    def srds_first(self):
        self.a("s_waitcnt lgkmcnt(0)")
        self.srd(S_X, KA0, X_BYTES)
        self.srd(S_WA, KA0 + 2, W_BYTES)

    def srds_rest(self):
        self.srd(S_WOA, KA0 + 4, WO_BYTES)
        self.srd(S_WB, KA0 + 8, W_BYTES)
        self.srd(S_WOB, KA0 + 10, WO_BYTES)
        self.srd(S_GATE, KA0 + 12, 896)
        self.srd(S_OUT, KA0 + 14, X_BYTES)
        self.srd(S_DBG, KA0 + 16, 256)
        self.srd(S_WS, KA0 + 18, WS_USED)
        self.a(f"""
        s_lshl_b32 s{sH}, s{sXCD}, 1
        s_and_b32 s50, s{sIDX}, 1
        s_add_u32 s{sH}, s{sH}, s50
        s_lshr_b32 s{sQB}, s2, 4
        s_lshl_b32 s{sRB3}, s{sXCD}, 2
        s_and_b32 s50, s{sIDX}, 3
        s_add_u32 s{sRB3}, s{sRB3}, s50
        s_lshr_b32 s{sCB3}, s{sIDX}, 2
        """)

    def build(self):
        a, cfg = self.a, self.cfg
        a.raw(".p2align 8")
        a.raw(f".type {NAME}_kernel,@function")
        a.label(f"{NAME}_kernel")
        a("""
        s_cmp_ge_u32 s2, 256
        s_cbranch_scc1 K_END
        """)
        self.stamp(0)
        a(f"""
        s_load_dwordx16 s[{KA0}:{KA0+15}], s[0:1], 0
        s_load_dwordx4 s[{KA0+16}:{KA0+19}], s[0:1], 64
        v_lshrrev_b32 v1, 6, v0
        v_and_b32 v0, 63, v0
        v_readfirstlane_b32 s{sW}, v1
        s_and_b32 s{sXCD}, s2, 7
        s_lshr_b32 s{sIDX}, s2, 3
        v_lshlrev_b32 v1, 4, v0
        s_lshr_b32 s50, s{sXCD}, 1
        s_lshl_b32 s50, s50, 3          ; 8p
        s_and_b32 s51, s{sXCD}, 1       ; s
        s_and_b32 s{sRB}, s{sIDX}, 7
        s_add_u32 s{sRB}, s{sRB}, s50
        s_lshr_b32 s{sCG}, s{sIDX}, 3
        s_lshl_b32 s61, s51, 2
        s_add_u32 s{sCG}, s{sCG}, s61
        s_sub_u32 s62, s{sIDX}, 24
        s_add_u32 s62, s62, s61
        s_add_u32 s62, s62, s50
        s_cmp_ge_u32 s{sIDX}, 24
        s_cselect_b32 s{sRB}, s62, s{sRB}
        s_cselect_b32 s{sCG}, 3, s{sCG}
        """)
        a(f"""
        s_cmp_lt_u32 s{sW}, 4
        s_cbranch_scc1 COMPUTE
        s_cmp_ge_u32 s{sIDX}, 28
        s_cbranch_scc1 GATE_H
        """)
        self.helper_p1()
        self.helper_attn()
        a.label("COMPUTE")
        self.srds_first()
        self.srds_rest()
        if cfg.get("codepf", 1):
            a(f"""
            s_getpc_b64 s[52:53]
            """)
            a.label("PCREF")
            a(f"""
            s_sub_u32 s52, s52, PCREF-{NAME}_kernel
            s_subb_u32 s53, s53, 0
            s_and_b32 s53, s53, 0xffff
            s_mov_b32 s54, K_CODE_END-{NAME}_kernel
            s_mov_b32 s55, 0x20000
            s_lshl_b32 s50, s{sIDX}, 2
            s_add_u32 s50, s50, s{sW}
            s_lshl_b32 s50, s50, 10
            buffer_load_dwordx4 v[240:243], v1, s[52:55], s50 offen
            """)
        a(f"""
        s_cmp_ge_u32 s{sIDX}, 28
        s_cbranch_scc1 GATE_WG
        """)
        self.compute_p1()
        self.compute_attn()
        self.gate_wg()
        self.fallback()
        a.label("K_END")
        a("s_endpgm")
        a.label("K_CODE_END")
        return a.render()

    def p1_plan(self):
        order = self.cfg.get("order", 1)
        steps = []
        if order == 1:
            for c in range(7):
                steps.append(([(0, 1), (0, 2)], [c]))
            for cs in ([0, 1], [2, 3], [4, 5], [6]):
                steps.append(([(0, 0)], cs))
            for c in range(7):
                steps.append(([(1, 0), (1, 1), (1, 2)], [c]))
        else:
            for br in range(2):
                for c in range(7):
                    steps.append(([(br, 0), (br, 1), (br, 2)], [c]))
        u = 0
        units = []
        for pcs, cs in steps:
            m = {}
            for c in cs:
                for pc in pcs:
                    m[(pc, c)] = u % 12
                    u += 1
            units.append(m)
        LIM = self.cfg.get("inflight", 8)
        sched = {i: [] for i in range(-1, len(steps))}
        nxt, used = 0, 0
        size = [len(m) for m in units]
        for b in range(-1, len(steps)):
            live = sum(size[max(b, 0):nxt])
            ahead = sum(size[b + 1:nxt])
            while nxt < len(steps) and live + size[nxt] <= 12 and ahead + size[nxt] <= LIM:
                sched[b].append(nxt)
                live += size[nxt]
                ahead += size[nxt]
                nxt += 1
        assert nxt == len(steps)
        return steps, units, sched

    def compute_p1(self):
        a, cfg = self.a, self.cfg
        ACC = [64, 112]
        FR = 16
        XA, WA = 4, 8
        PK = 160
        a(f"""
        s_and_b32 s56, s{sW}, 1         ; rho
        s_lshr_b32 s57, s{sW}, 1        ; c
        v_and_b32 v2, 31, v0            ; r
        v_lshrrev_b32 v3, 5, v0         ; hf
        v_bfe_u32 v10, v0, 1, 3
        v_xor_b32 v10, v10, v3
        s_lshl_b32 s50, s56, 12
        v_lshlrev_b32 v11, 7, v2
        v_add_u32 v11, s50, v11
        """)
        for sp in range(4):
            a(f"v_xor_b32 v12, {2*sp}, v10")
            a(f"v_lshl_add_u32 v{XA+sp}, v12, 4, v11")
        a(f"""
        v_and_b32 v11, 3, v0
        v_lshlrev_b32 v11, 3, v11
        v_bfe_u32 v12, v0, 4, 1
        v_lshl_add_u32 v11, v12, 5, v11
        s_lshl_b32 s50, s57, 6
        v_add_u32 v11, s50, v11
        v_bfe_u32 v12, v0, 3, 1
        v_lshlrev_b32 v12, 6, v12
        v_xor_b32 v11, v11, v12
        v_bfe_u32 v12, v0, 2, 2
        v_lshl_add_u32 v12, v3, 3, v12
        v_lshl_add_u32 v11, v12, 7, v11
        v_add_u32 v{WA}, {R2}, v11
        v_add_u32 v{WA+1}, {R2+49152}, v11
        v_lshlrev_b32 v10, 3, v2
        v_lshl_add_u32 v10, v3, 8, v10
        v_lshlrev_b32 v11, 4, v2
        s_movk_i32 s50, 7168
        v_mad_u32_u24 v11, v3, s50, v11 ; v11 = hf*7168 + (l&31)*16  (V)
        s_lshl_b32 s58, s{sRB}, 1
        s_add_u32 s58, s58, s56         ; t
        s_mul_i32 s58, s58, {TS}
        s_lshl_b32 s59, s{sCG}, 12
        s_lshl_b32 s50, s57, 11
        s_add_u32 s59, s59, s50
        s_add_u32 s59, s59, s58
        s_lshl_b32 s60, s{sCG}, 10
        s_lshl_b32 s50, s57, 9
        s_add_u32 s60, s60, s50
        s_add_u32 s60, s60, s58         ; V soffset
        s_mov_b32 s61, {QSCALE}
        """)

        steps, units, sched = self.p1_plan()
        ACCR = {(0, 0): 64, (0, 1): 80, (0, 2): 96, (1, 0): 112, (1, 1): 128, (1, 2): 144}
        ks = []
        for j, (pcs, cs) in enumerate(steps):
            for c in cs:
                for sp in range(4):
                    ks.append((j, c, sp, c == cs[0] and sp == 0))
        NK = len(ks)

        def reads(n):
            j, c, sp, _ = ks[n]
            b = FR + 16 * (n % 2)
            out = [f"ds_read_b128 {vr(b,4)}, v{XA+sp} offset:{c*8192}"]
            for i, pc in enumerate(steps[j][0]):
                un = units[j][(pc, c)]
                for u in range(2):
                    off = (un % 6) * 8192 + (16 * sp + 4 * u) * 128
                    out.append(f"ds_read_b64_tr_b16 {vr(b+4+4*i+2*u,2)}, v{WA + un // 6} offset:{off}")
            return out

        def mfmas(n):
            j, c, sp, _ = ks[n]
            b = FR + 16 * (n % 2)
            X = vr(b, 4)
            out = []
            for i, pc in enumerate(steps[j][0]):
                W = vr(b + 4 + 4 * i, 4)
                d = vr(ACCR[pc], 16)
                cin = "0" if (c == 0 and sp == 0) else d
                if pc[1] < 2:
                    out.append(f"v_mfma_f32_32x32x16_bf16 {d}, {W}, {X}, {cin}")
                else:
                    out.append(f"v_mfma_f32_32x32x16_bf16 {d}, {X}, {W}, {cin}")
            return out

        def epilogue(pc):
            br, tile = pc
            acc = ACCR[pc]
            out = []
            if tile == 0:
                for r in range(16):
                    out.append(f"v_mul_f32 v{acc+r}, s61, v{acc+r}")
            for r in range(8):
                out.append(f"v_cvt_pk_bf16_f32 v{PK+8*tile+r}, v{acc+2*r}, v{acc+2*r+1}")
            if tile < 2:
                out.append(f"s_add_u32 s50, s59, {br*BR + (WS_Q if tile == 0 else WS_K)}")
                for gi in range(4):
                    out.append(f"buffer_store_dwordx2 {vr(PK+8*tile+2*gi,2)}, v10, {sr(S_WS)}, s50 offen offset:{512*gi} sc1")
            else:
                for f in range(2):
                    out.append(f"s_add_u32 s50, s60, {br*BR + WS_V + f*14336}")
                    out.append(f"buffer_store_dwordx4 {vr(PK+16+4*f,4)}, v11, {sr(S_WS)}, s50 offen sc1")
            return out

        FB = cfg.get("flag1_bar", 13)
        pend = []
        a("s_barrier")
        self.stamp(0, "c0")
        for x in reads(0):
            a(x)
        for n in range(NK):
            j = ks[n][0]
            nxt = reads(n + 1) if n + 1 < NK else []
            first = n + 1 < NK and ks[n + 1][3]
            if first:
                jb = ks[n + 1][0]
                if jb == FB:
                    assert not pend
                    a("s_waitcnt vmcnt(0) lgkmcnt(0)")
                else:
                    a("s_waitcnt lgkmcnt(0)")
                a("s_barrier")
                if jb == FB:
                    self.read_nonce(early=190, t0=188, t1=189)
                    self.publish(f"""
                    s_lshl_b32 s50, s2, 6
                    s_add_u32 s50, s50, {WS_F}
                    """, only_wave=0, t0=188, t1=189)
                    self.stamp(0, "pub1")
                if jb == 6:
                    a("v_mov_b32 v188, 0")
                    a(f"buffer_load_dword v190, v188, {sr(S_DBG)}, 0 offen sc1")
                if jb in (7, 11):
                    self.stamp(0, f"b{jb}")
                fill = list(nxt)
            else:
                for x in nxt:
                    a(x)
                a(f"s_waitcnt lgkmcnt({len(nxt)})")
                fill = []
            mf = mfmas(n)
            if n >= 1 and steps[ks[n - 1][0]][0] != steps[j][0]:
                for pc in sorted(steps[ks[n - 1][0]][0], key=lambda p: -p[1]):
                    pend += epilogue(pc)
                hold = True
            else:
                hold = False
            extra = []
            if pend and not hold:
                k = cfg.get("epi_rate", 6) * len(mf)
                extra, pend = pend[:k], pend[k:]
            fill = fill + extra
            k = (len(fill) + len(mf) - 1) // len(mf)
            for i, m in enumerate(mf):
                a(m)
                for x in fill[i * k:(i + 1) * k]:
                    a(x)
        assert not pend
        self.stamp(0, "c14")
        for pc in steps[-1][0]:
            for x in epilogue(pc):
                a(x)
        a("s_waitcnt lgkmcnt(0)")
        a("s_barrier")
        self.stamp(0, "T1")

    def attn_setup_and_q(self):
        a = self.a
        Q = 192
        a(f"""
        v_and_b32 v224, 31, v0
        v_lshrrev_b32 v225, 5, v0
        v_lshlrev_b32 v224, 3, v224
        v_lshl_add_u32 v224, v225, 8, v224
        v_add_u32 v225, {QL}, v224
        """)

    def compute_attn(self):
        a, cfg = self.a, self.cfg
        Q, O, S, P, NM, T, KV = 192, 48, 112, 144, 152, 156, 16
        KA, VA = 226, 232
        self.regs = dict(Q=Q, O=O, S=S, P=P, NM=NM, T=T, KV=KV)
        a.label("ATT_C_ENTRY")
        self.attn_setup_and_q()
        a(f"s_lshl_b32 s50, s{sW}, 13")
        for sl in range(3):
            for kk in range(2):
                a(f"v_add_u32 v{KA+2*sl+kk}, s50, v224")
                a(f"v_add_u32 v{KA+2*sl+kk}, {R2 + (SLOT_TS[sl]+kk)*4096}, v{KA+2*sl+kk}")
        a(f"""
        v_add_u32 v{VA}, s50, v1
        v_add_u32 v{VA+1}, {R2 + 65536 + 2048}, v{VA}
        v_add_u32 v{VA}, {R2 + 2048}, v{VA}
        """)
        self.o_voff(2, 3)
        a(f"""
        s_lshl_b32 s56, s{sQB}, 2
        s_add_u32 s56, s56, s{sW}
        s_mul_i32 s56, s56, {TS}
        s_add_u32 s56, s56, {WS_OA}
        """)

        def kv_reads(t):
            k, kk = divmod(t, 2)
            sl = k % 3
            b = KV + 16 * (t % 2)
            ts = SLOT_TS[sl] + kk
            out = []
            for f in range(2):
                out.append(f"ds_read2_b64 {vr(b+4*f,4)}, v{KA+2*sl+kk} offset0:{128*f} offset1:{128*f+64}")
            for f in range(2):
                vb, off = (VA, ts * 4096) if ts < 16 else (VA + 1, (ts - 16) * 4096)
                out.append(f"ds_read_b128 {vr(b+8+4*f,4)}, v{vb} offset:{off + 1024*f}")
            return out

        def qk(u, buf):
            t, j = divmod(u, 4)
            b = KV + 16 * (t % 2)
            d = vr(S + 16 * buf, 16)
            return (f"v_mfma_f32_32x32x16_bf16 {d}, {vr(b,4)}, {vr(Q+8*j,4)}, 0",
                    f"v_mfma_f32_32x32x16_bf16 {d}, {vr(b+4,4)}, {vr(Q+8*j+4,4)}, {d}")

        def pv(u, half):
            t, j = divmod(u, 4)
            b = KV + 16 * (t % 2)
            d = vr(O + 16 * j, 16)
            c = "0" if (t == 0 and half == 0) else d
            return f"v_mfma_f32_32x32x16_bf16 {d}, {vr(b+8+4*half,4)}, {vr(P+4*half,4)}, {c}"

        def part_write(j):
            out = ["s_mov_b32 exec_lo, 0", f"v_mov_b32 v{O+16*j+13}, v{NM+j}", "s_mov_b32 exec_lo, -1"]
            for qd in range(4):
                out.append(f"ds_write_b128 v{PW}, {vr(O+16*j+4*qd,4)} offset:{j*4096 + qd*1024}")
            return out
        self.part_write = part_write
        PW = 234
        a(f"s_lshl_b32 s50, s{sW}, 14")
        a(f"v_add_u32 v{PW}, s50, v1")
        a(f"v_add_u32 v{PW}, {CB}, v{PW}")
        a("s_waitcnt vmcnt(0)")
        self.stamp(0, "preS0")
        a("s_barrier")
        self.stamp(0, "S0")
        self.publish(f"""
        s_lshl_b32 s50, s2, 6
        s_add_u32 s50, s50, {WS_F + 0x4000}
        """, only_wave=0, t0=188, t1=189)
        F2B = -1
        a(f"v_add_u32 v3, 4096, v225")
        for j in range(4):
            for f in range(2):
                o0 = (j & 1) * 256 + 128 * f
                if o0 + 64 > 255:
                    a(f"v_add_u32 v4, {j*2048}, v225")
                    a(f"ds_read2_b64 {vr(Q+8*j+4*f,4)}, v4 offset0:{128*f} offset1:{128*f+64}")
                else:
                    a(f"ds_read2_b64 {vr(Q+8*j+4*f,4)}, v{225 if j < 2 else 3} offset0:{o0} offset1:{o0+64}")
        for x in kv_reads(0):
            a(x)
        a("s_waitcnt lgkmcnt(0)")
        a("s_mov_b32 exec_lo, 0")
        for j in range(4):
            a(f"v_mov_b32 v{Q+8*j+6}, 0")
            a(f"v_mov_b32 v{Q+8*j+7}, 0")
        a("s_mov_b32 exec_lo, -1")
        scr = [S, S + 16, O, O + 16]
        for j in range(4):
            d = vr(scr[j], 16)
            a(f"v_mfma_f32_32x32x16_bf16 {d}, {vr(KV,4)}, {vr(Q+8*j,4)}, 0")
            a(f"v_mfma_f32_32x32x16_bf16 {d}, {vr(KV+4,4)}, {vr(Q+8*j+4,4)}, {d}")
        for j in range(4):
            self.max_tree([scr[j] + r for r in range(16)], T + 2 * j, T + 2 * j + 1)
        for j in range(4):
            a(f"v_cvt_pk_bf16_f32 v{T+2*j+1}, -v{T+2*j}, 0")
        a("s_mov_b32 exec_lo, 0")
        for j in range(4):
            a(f"v_mov_b32 v{Q+8*j+6}, v{T+2*j+1}")
        a("s_mov_b32 exec_lo, -1")
        for j in range(4):
            a(f"v_lshlrev_b32 v{NM+j}, 16, v{T+2*j+1}")
        self.stamp(0, "att0")
        m0, m1 = qk(0, 0)
        a(m0)
        a(m1)
        for u in range(64):
            t, j = divmod(u, 4)
            sb = S + 16 * (u & 1)
            slots = [None] * 4
            post = [[] for _ in range(4)]
            if u + 1 < 64:
                slots[0], slots[1] = qk(u + 1, (u + 1) & 1)
            if u >= 1:
                slots[2] = pv(u - 1, 1)
            slots[3] = pv(u, 0)
            if t + 1 < 16:
                rd = kv_reads(t + 1)
                if j == 0 and t % 2 == 1:
                    if t == 2 * F2B - 1:
                        post[2].append("s_waitcnt vmcnt(0)")
                    post[2].append("s_barrier")
                    if t == 2 * F2B - 1:
                        post[2].append("PUB2")
                if j == 0:
                    post[3].append(rd[0])
                if j == 1:
                    post[0].append(rd[1])
                    post[1].append(rd[2])
                    post[2].append(rd[3])
                if j == 2:
                    post[3].append("s_waitcnt lgkmcnt(0)")
            if u >= 62:
                pwl = part_write(u - 62)
                post[0] += pwl[:4]
                post[1] += pwl[4:5]
                post[2] += pwl[5:6]
                post[3] += pwl[6:7]
            for g in range(4):
                r = 4 * g
                a(f"v_exp_f32 v{sb+r}, v{sb+r}")
                a(f"v_exp_f32 v{sb+r+1}, v{sb+r+1}")
                if slots[g]:
                    a(slots[g])
                for x in post[g]:
                    if x == "PUB2":
                        self.publish(f"""
                        s_lshl_b32 s50, s2, 6
                        s_add_u32 s50, s50, {WS_F + 0x4000}
                        """, only_wave=0, t0=188, t1=189)
                    else:
                        a(x)
                a(f"v_exp_f32 v{sb+r+2}, v{sb+r+2}")
                a(f"v_exp_f32 v{sb+r+3}, v{sb+r+3}")
                a(f"v_cvt_pk_bf16_f32 v{P+2*g}, v{sb+r}, v{sb+r+1}")
                a(f"v_cvt_pk_bf16_f32 v{P+2*g+1}, v{sb+r+2}, v{sb+r+3}")
        a(pv(63, 1))
        self.stamp(0, "attE")
        for x in part_write(2) + part_write(3):
            a(x)
        a(f"""
        s_mov_b32 s50, {f32bits(2.0**-30)}
        s_mov_b32 s51, {f32bits(2.0**30)}
        s_mov_b64 s[52:53], -1
        """)
        for j in range(4):
            a(f"v_cmp_lt_f32 vcc, s50, v{O+16*j+12}")
            a("s_and_b64 s[52:53], s[52:53], vcc")
            a(f"v_cmp_gt_f32 vcc, s51, v{O+16*j+12}")
            a("s_and_b64 s[52:53], s[52:53], vcc")
        a("""
        s_cmp_eq_u32 s53, -1
        s_cbranch_scc0 FALLBACK
        """)
        a.label("COMBINE")
        a(f"""
        s_lshl_b32 s50, s{sW}, 12
        v_add_u32 v5, s50, v1
        v_add_u32 v5, {CB}, v5
        s_waitcnt lgkmcnt(0)
        s_barrier
        """)
        self.stamp(0, "C1")
        for k in range(4):
            for qd in range(4):
                a(f"ds_read_b128 {vr(O+16*k+4*qd,4)}, v5 offset:{k*16384 + qd*1024}")
        a("s_waitcnt lgkmcnt(0)")
        for k in range(4):
            a(f"v_mov_b32 v{T+2*k}, v{O+16*k+13}")
            a(f"v_mov_b32 v{T+2*k+1}, v{O+16*k+13}")
        for k in range(4):
            a(f"v_permlane32_swap_b32 v{T+2*k}, v{T+2*k+1}")
        a(f"v_min3_f32 v{T}, v{T+1}, v{T+3}, v{T+5}")
        a(f"v_min_f32 v{T}, v{T}, v{T+7}")
        for k in range(4):
            a(f"v_sub_f32 v{T+2*k+1}, v{T}, v{T+2*k+1}")
        for k in range(4):
            a(f"v_exp_f32 v{T+2*k+1}, v{T+2*k+1}")
        for r in range(16):
            a(f"v_mul_f32 v{O+r}, v{T+1}, v{O+r}")
        for k in range(1, 4):
            for r in range(16):
                a(f"v_fmac_f32 v{O+r}, v{T+2*k+1}, v{O+16*k+r}")
        self.finalize_o(O, T + 8, 2, "s56")
        a(f"""
        v_mov_b32 v188, {QL + 1792}
        v_mov_b32 v189, 1
        s_mov_b64 exec, 1
        ds_add_u32 v188, v189
        s_mov_b64 exec, -1
        """)
        a(f"""
        s_lshl_b32 s50, s{sQB}, 2
        s_add_u32 s50, s50, s{sW}
        s_lshl_b32 s50, s50, 4
        s_add_u32 s50, s50, s{sH}
        s_lshl_b32 s50, s50, 6
        s_add_u32 s50, s50, {WS_F + 0x10000}
        v_mov_b32 v188, 0
        v_mov_b32 v189, s{sNONCE}
        s_waitcnt vmcnt(0)
        s_mov_b64 exec, 1
        buffer_store_dword v189, v188, {sr(S_WS)}, s50 offen sc1
        s_mov_b64 exec, -1
        """)
        self.stamp(0, "pub3")
        a(f"s_cmp_ge_u32 s{sIDX}, 28")
        a("s_cbranch_scc1 C_DONE")
        a("s_barrier")
        self.oa_dma()
        a("s_waitcnt vmcnt(0)")
        a("s_barrier")
        a.label("C_DONE")
        self.stamp(0, "end")
        self.stamp_flush(14, 0)
        a("s_endpgm")

    def oa_dma(self):
        a = self.a
        a(f"""
        s_lshl_b32 s50, s{sRB3}, 1
        s_mul_i32 s50, s50, {TS}
        s_mul_i32 s51, s{sW}, 7168
        s_add_u32 s50, s50, s51
        s_add_u32 s50, s50, {WS_OA}
        s_add_u32 s52, s50, 4096
        s_add_u32 m0, s51, {OAL}
        """)
        for i in range(7):
            if i == 4:
                a(f"s_add_u32 m0, s51, {OAL + 4096}")
            a(f"buffer_load_dwordx4 v1, {sr(S_WS)}, {'s50' if i < 4 else 's52'} offen offset:{(i%4)*1024}{LSC} lds")

    def fallback(self):
        a = self.a
        R = self.regs
        Q, O, S, P, NM, T, KV = R["Q"], R["O"], R["S"], R["P"], R["NM"], R["T"], R["KV"]
        a.label("FALLBACK")
        a("s_nop 15")
        a(f"""
        v_and_b32 v5, 31, v0
        v_lshrrev_b32 v6, 5, v0
        v_lshlrev_b32 v5, 4, v5
        s_movk_i32 s50, 7168
        v_mad_u32_u24 v5, v6, s50, v5          ; V voffset
        s_lshl_b32 s57, s{sW}, 4
        s_mul_i32 s57, s57, {TS}
        s_mul_i32 s50, s{sH}, 1792
        s_add_u32 s58, s57, s50
        s_add_u32 s58, s58, {WS_K}
        s_mul_i32 s50, s{sH}, 448
        s_add_u32 s59, s57, s50
        s_add_u32 s59, s59, {WS_V}
        s_mov_b32 exec_lo, 0
        """)
        for j in range(4):
            a(f"v_mov_b32 v{Q+8*j+6}, 0")
        a(f"v_mov_b32 v{KV+6}, 0")
        a(f"v_mov_b32 v{KV+7}, 0")
        a("s_mov_b32 exec_lo, -1")
        for r in range(8):
            a(f"v_mov_b32 v{KV+8+r}, 0")
        a("s_mov_b32 exec_lo, 0x10000000")
        a("s_mov_b32 exec_hi, 0x10000000")
        for r in range(8):
            a(f"v_mov_b32 v{KV+8+r}, 0x3f803f80")
        a("s_mov_b64 exec, -1")
        for j in range(4):
            a(f"v_mov_b32 v{NM+j}, {f32bits(3.0e38)}")
            for r in range(16):
                a(f"v_mov_b32 v{O+16*j+r}, 0")
        a("s_mov_b32 s57, 0")
        a.label("FB_LOOP")
        self.load_qk_frag(KV, 224, "s58")
        a(f"""
        s_add_u32 s50, s59, 14336
        s_mov_b32 exec_lo, 0x0fffffff
        s_mov_b32 exec_hi, 0x0fffffff
        buffer_load_dwordx4 {vr(KV+8,4)}, v5, {sr(S_WS)}, s59 offen{LSC}
        buffer_load_dwordx4 {vr(KV+12,4)}, v5, {sr(S_WS)}, s50 offen{LSC}
        s_mov_b64 exec, -1
        s_waitcnt vmcnt(0)
        """)
        for j in range(4):
            d = vr(S, 16)
            a(f"v_mfma_f32_32x32x16_bf16 {d}, {vr(KV,4)}, {vr(Q+8*j,4)}, 0")
            a(f"v_mfma_f32_32x32x16_bf16 {d}, {vr(KV+4,4)}, {vr(Q+8*j+4,4)}, {d}")
            self.max_tree([S + r for r in range(16)], T, T + 1)
            a(f"v_min_f32 v{T+1}, v{NM+j}, -v{T}")
            a(f"v_sub_f32 v{T+2}, v{T+1}, v{NM+j}")
            a(f"v_exp_f32 v{T+2}, v{T+2}")
            a(f"v_mov_b32 v{NM+j}, v{T+1}")
            for r in range(16):
                a(f"v_add_f32 v{S+r}, v{S+r}, v{T+1}")
            for r in range(16):
                a(f"v_exp_f32 v{S+r}, v{S+r}")
            for r in range(16):
                a(f"v_mul_f32 v{O+16*j+r}, v{T+2}, v{O+16*j+r}")
            for r in range(8):
                a(f"v_cvt_pk_bf16_f32 v{P+r}, v{S+2*r}, v{S+2*r+1}")
            o = vr(O + 16 * j, 16)
            a(f"v_mfma_f32_32x32x16_bf16 {o}, {vr(KV+8,4)}, {vr(P,4)}, {o}")
            a(f"v_mfma_f32_32x32x16_bf16 {o}, {vr(KV+12,4)}, {vr(P+4,4)}, {o}")
        a(f"""
        s_nop 15
        s_add_u32 s58, s58, {TS}
        s_add_u32 s59, s59, {TS}
        s_add_u32 s57, s57, 1
        s_cmp_lt_u32 s57, 16
        s_cbranch_scc1 FB_LOOP
        """)
        for j in range(4):
            for x in self.part_write(j):
                a(x)
        a("s_branch COMBINE")

    def helper_p1(self):
        a, cfg = self.a, self.cfg
        a.label("HELPER")
        a(f"s_setprio {cfg.get('hprio', 3)}")
        a(f"""
        s_sub_u32 s56, s{sW}, 4         ; j
        v_lshrrev_b32 v2, 3, v0
        v_and_b32 v3, 7, v0
        v_lshrrev_b32 v4, 4, v0
        v_xor_b32 v8, v3, v4
        v_lshlrev_b32 v8, 4, v8
        s_movk_i32 s50, 896
        v_mad_u32_u24 v5, v2, s50, v8
        v_xor_b32 v6, 64, v5
        v_and_b32 v4, 1, v4
        v_lshlrev_b32 v4, 2, v4
        v_xor_b32 v8, v3, v4
        v_lshlrev_b32 v8, 4, v8
        s_movk_i32 s50, 2688
        v_mad_u32_u24 v7, v2, s50, v8   ; W voff
        s_lshl_b32 s57, s{sRB}, 6
        s_lshl_b32 s50, s56, 4
        s_add_u32 s57, s57, s50
        s_mul_i32 s57, s57, 896
        s_lshl_b32 s58, s{sCG}, 7
        s_mul_i32 s50, s56, 43008
        s_add_u32 s58, s58, s50         ; W base
        s_lshl_b32 s59, s56, 11
        """)
        self.srds_first()
        q = VmQ()
        self.hq = q

        steps, units, sched = self.p1_plan()
        xdone = set()

        def issue(j):
            pcs, cs = steps[j]
            for c in cs:
                if c not in xdone:
                    xdone.add(c)
                    for i in range(2):
                        a(f"s_add_u32 s50, s57, {8*i*896 + 128*c}")
                        a(f"s_add_u32 m0, s59, {R1 + c*8192 + 8*i*128}")
                        a(f"buffer_load_dwordx4 v{5+i}, {sr(S_X)}, s50 offen lds")
                        q.push(("c", j))
                for (br, part) in pcs:
                    un = units[j][((br, part), c)]
                    for ii in range(2):
                        a(f"s_add_u32 s50, s58, {part*896 + (64*c + 8*ii)*2688}")
                        a(f"s_add_u32 m0, s59, {R2 + un*8192 + 8*ii*128}")
                        a(f"buffer_load_dwordx4 v7, {sr(S_WA if br == 0 else S_WB)}, s50 offen lds")
                        q.push(("c", j))

        for j in sched[-1]:
            issue(j)
        self.srds_rest()
        self.get_nonce()
        for b in range(len(steps)):
            n = q.wait_for(("c", b))
            if n is not None:
                a(f"s_waitcnt vmcnt({n})")
            a("s_barrier")
            for j in sched[b]:
                issue(j)
            if b == 9:
                a(f"v_mov_b32 v12, 0")
                a(f"buffer_load_dword v14, v12, {sr(S_DBG)}, 0 offen sc1")
                q.push("non")
        self.stamp(1, "poll1")
        a("s_waitcnt vmcnt(0)")
        self.read_nonce(early=14)
        self.poll_all(0)
        self.stamp(1, "got1")
        q.clear()
        a("s_barrier")

    def helper_attn(self):
        a, cfg = self.a, self.cfg
        q = self.hq
        a.label("ATT_H_ENTRY")
        VMASK = "s_mov_b32 exec_lo, 0x0fffffff\ns_mov_b32 exec_hi, 0x0fffffff"
        a(f"""
        s_sub_u32 s56, s{sW}, 4         ; j
        v_and_b32 v2, 31, v0
        v_lshrrev_b32 v3, 5, v0
        v_lshlrev_b32 v4, 4, v2
        s_movk_i32 s50, 7168
        v_mad_u32_u24 v4, v3, s50, v4   ; v4 = V voffset
        v_lshlrev_b32 v5, 3, v2
        v_lshl_add_u32 v5, v3, 8, v5
        s_lshl_b32 s57, s56, 4
        s_mul_i32 s57, s57, {TS}
        s_mul_i32 s50, s{sH}, 1792
        s_add_u32 s58, s57, s50
        s_add_u32 s58, s58, {WS_K}      ; K stream
        s_mul_i32 s50, s{sH}, 448
        s_add_u32 s59, s57, s50
        s_add_u32 s59, s59, {WS_V}      ; V stream
        s_lshl_b32 s60, s56, 13         ; j*8192 lds
        v_lshlrev_b32 v6, 3, v0
        v_add_u32 v6, s60, v6
        v_add_u32 v6, {R2 + 1792}, v6
        v_mov_b32 v8, 0x3f80
        v_mov_b32 v9, 0
        v_and_b32 v7, 3, v0
        v_cmp_eq_u32 vcc, 0, v7
        v_mov_b32 v16, 0
        v_mov_b32 v17, 0x3f803f80
        v_cndmask_b32 v16, v16, v17, vcc
        v_mov_b32 v17, v16
        v_mov_b32 v18, v16
        v_mov_b32 v19, v16
        v_bfe_u32 v10, v0, 2, 1         ; hf
        v_lshl_add_u32 v7, v10, 5, v7
        v_bfe_u32 v10, v0, 3, 1         ; f
        v_lshl_add_u32 v7, v10, 6, v7
        v_lshlrev_b32 v7, 4, v7
        v_add_u32 v7, s60, v7
        v_add_u32 v7, {R2 + 2048 + 448}, v7
        """)

        def consts(sl):
            for kk in range(2):
                off = (SLOT_TS[sl] + kk) * 4096
                vb6, vb7, o = 6, 7, off
                if off > 60000:
                    a(f"v_add_u32 v10, {off}, v6")
                    a(f"v_add_u32 v11, {off}, v7")
                    vb6, vb7, o = 10, 11, 0
                a("s_mov_b32 exec_hi, 0")
                a(f"ds_write_b64 v{vb6}, v[8:9] offset:{o}")
                a("s_mov_b32 exec_lo, 0xffff")
                a(f"ds_write_b128 v{vb7}, v[16:19] offset:{o}")
                a("s_mov_b64 exec, -1")

        def stage(k):
            sl = k % 3
            for kk in range(2):
                base = R2 + (SLOT_TS[sl] + kk) * 4096
                if kk == 0:
                    a(f"s_add_u32 s51, s{sQB}, {k}")
                    a("s_and_b32 s51, s51, 7")
                    a(f"s_mul_i32 s51, s51, {2*TS*cfg.get('rotkv', 0)}")
                    if not cfg.get('rotkv', 0):
                        a(f"s_mov_b32 s51, {2*k*TS}")
                    a("s_add_u32 s52, s51, s58")
                    a("s_add_u32 s53, s51, s59")
                a(f"s_add_u32 s50, s52, {kk*TS}")
                a(f"s_add_u32 m0, s60, {base}")
                a(f"buffer_load_dwordx4 v1, {sr(S_WS)}, s50 offen{LSC} lds")
                a("s_mov_b32 exec_hi, 0xffff")
                a(f"buffer_load_dwordx4 v1, {sr(S_WS)}, s50 offen offset:1024{LSC} lds")
                a(VMASK)
                for f in range(2):
                    a(f"s_add_u32 s50, s53, {kk*TS + f*14336}")
                    a(f"s_add_u32 m0, s60, {base + 2048 + 1024*f}")
                    a(f"buffer_load_dwordx4 v4, {sr(S_WS)}, s50 offen{LSC} lds")
                a("s_mov_b64 exec, -1")
                for _ in range(4):
                    q.push(("s", k))

        def q_dma():
            a(f"""
            s_lshl_b32 s50, s{sQB}, 2
            s_add_u32 s50, s50, s56
            s_mul_i32 s50, s50, {TS}
            s_mul_i32 s51, s{sH}, 1792
            s_add_u32 s50, s50, s51
            s_lshl_b32 s51, s56, 11
            s_add_u32 m0, s51, {QL}
            buffer_load_dwordx4 v1, {sr(S_WS)}, s50 offen{LSC} lds
            s_mov_b32 exec_hi, 0xffff
            buffer_load_dwordx4 v1, {sr(S_WS)}, s50 offen offset:1024{LSC} lds
            s_mov_b32 exec_hi, -1
            """)
            q.push(("s", 0))
            q.push(("s", 0))

        def bar(k):
            n = q.wait_for(("s", k))
            if n is not None:
                a(f"s_waitcnt vmcnt({n}) lgkmcnt(0)")
            else:
                a("s_waitcnt lgkmcnt(0)")
            a("s_barrier")

        def wo_dma(srd_, region, tag, lo=0, hi=14):
            a(f"""
            v_lshrrev_b32 v10, 3, v0
            v_and_b32 v11, 7, v0
            v_bfe_u32 v12, v0, 4, 1
            v_lshlrev_b32 v12, 2, v12
            v_xor_b32 v11, v11, v12
            v_lshlrev_b32 v11, 4, v11
            s_movk_i32 s50, 896
            v_mad_u32_u24 v10, v10, s50, v11
            s_mul_i32 s51, s56, 100352
            s_lshl_b32 s50, s{sCB3}, 7
            s_add_u32 s51, s51, s50
            s_mul_i32 s52, s56, 14336
            """)
            for i in range(lo, hi):
                a(f"s_add_u32 s50, s51, {8*i*896}")
                a(f"s_add_u32 m0, s52, {region + i*1024}")
                a(f"buffer_load_dwordx4 v10, {sr(srd_)}, s50 offen lds")
                q.push(tag)

        skip3 = lambda name: (f"s_cmp_ge_u32 s{sIDX}, 28\ns_cbranch_scc1 {name}")

        q_dma()
        stage(0)
        consts(0)
        consts(1)
        consts(2)
        a(f"""
        v_mov_b32 v10, {QL + 1792}
        v_mov_b32 v11, 0
        ds_write_b32 v10, v11
        """)
        if cfg.get("s1early", 1):
            stage(1)
        bar(0)
        self.stamp(1, "S0")
        if not cfg.get("s1early", 1):
            stage(1)
        stage(2)
        wo_dma(S_WOB, R1, "woB", 0, 7)
        bar(1)
        stage(3)
        wo_dma(S_WOB, R1, "woB", 7, 14)
        bar(2)
        self.poll_issue("all", 0x4000, q)
        stage(4)
        a(f"s_waitcnt vmcnt({q.wait_for('poll')})")
        self.poll_check("all", 0x4000)
        self.stamp(1, "got2")
        a("s_barrier")
        stage(5)
        self.local_attn_loads(q)
        bar(4)
        stage(6)
        self.local_attn(q)
        self.stamp(1, "Ldone")
        bar(5)
        stage(7)
        self.out_gemm_setup()
        q.push("g")
        a(f"s_waitcnt vmcnt({q.wait_for('ost')})")
        a("s_barrier")
        self.publish(f"""
        s_lshl_b32 s50, s{sQB}, 4
        s_add_u32 s50, s50, s{sH}
        s_lshl_b32 s50, s50, 6
        s_add_u32 s50, s50, {WS_F + 0xC000}
        """, balance=True)
        q.push("pub")
        bar(7)
        self.poll16(0xC000, everyone=True)
        q.clear()
        self.stamp(1, "got4")
        self.out_gemm_loads(1, q, 0, 28)
        a("s_setprio 0")
        self.stamp(1, "oBiss")
        a("s_barrier")
        a(skip3("H_DONE"))
        self.out_gemm(1, R1, q, loads=False)
        lp = self.lab("HS")
        a(f"""
        v_mov_b32 v10, {QL + 1792}
        v_mov_b32 v11, 1
        s_mov_b64 exec, 1
        ds_add_u32 v10, v11
        s_mov_b64 exec, -1
        s_mov_b32 s51, 0
        """)
        a.label(lp)
        a(f"""
        ds_read_b32 v11, v10
        s_add_u32 s51, s51, 1
        s_waitcnt lgkmcnt(0)
        v_readfirstlane_b32 s50, v11
        s_cmp_ge_u32 s51, {SPIN_MAX}
        s_cbranch_scc1 {lp}_X
        s_cmp_lt_u32 s50, 8
        s_cbranch_scc1 {lp}
        """)
        a.label(lp + "_X")
        self.stamp(1, "bdone")
        wo_dma(S_WOA, R1, "woA")
        self.poll32()
        q.clear()
        a("s_barrier")
        self.stamp(1, "got3")
        self.oa_dma()
        a(f"""
        s_mul_i32 s50, s62, {TS}
        v_add_u32 v21, s50, v1
        v_add_u32 v21, {OAL}, v21
        s_waitcnt vmcnt(0)
        s_barrier
        """)
        self.stamp(1, "C4")
        self.out_gemm_lds()
        self.out_epilogue()
        a.label("H_DONE")
        if cfg.get("stamps"):
            a("s_waitcnt vmcnt(0)")
        self.stamp(1, "end")
        self.stamp_flush(14, 1)
        a("s_endpgm")

    def poll32(self):
        a = self.a
        loop, done = self.lab("POLL"), self.lab("POLLD")
        a(f"""
        s_waitcnt vmcnt(0)
        s_cmp_lg_u32 s{sW}, 4
        s_cbranch_scc1 {done}
        s_lshl_b32 s50, s{sRB3}, 11
        s_add_u32 s50, s50, {WS_F + 0x10000}
        s_mov_b32 s51, 0
        v_and_b32 v13, 31, v0
        v_lshlrev_b32 v13, 6, v13
        """)
        a.label(loop)
        a(f"""
        buffer_load_dword v12, v13, {sr(S_WS)}, s50 offen sc1
        s_waitcnt vmcnt(0)
        v_cmp_eq_u32 s[52:53], s{sNONCE}, v12
        s_cmp_eq_u64 s[52:53], -1
        s_cbranch_scc1 {done}
        s_add_u32 s51, s51, 1
        s_cmp_lt_u32 s51, {SPIN_MAX}
        s_cbranch_scc1 {loop}
        """)
        a.label(done)

    def out_gemm_lds(self):
        a = self.a
        ACC, NB = 64, 4
        WF, OFB = 32, 96

        def reads(s):
            b = WF + 4 * (s % NB)
            a(f"ds_read_b128 {vr(OFB+4*(s % NB),4)}, v21 offset:{s*1024}")
            for u in range(2):
                a(f"ds_read_b64_tr_b16 {vr(b+2*u,2)}, v20 offset:{(16*s+4*u)*128}")

        for s in range(NB - 1):
            reads(s)
        for s in range(28):
            if s + NB - 1 < 28:
                reads(s + NB - 1)
                lg = 3 * (NB - 1)
            else:
                lg = 3 * (27 - s)
            a(f"s_waitcnt lgkmcnt({lg})")
            d = vr(ACC, 16)
            c = "0" if s == 0 else d
            a(f"v_mfma_f32_32x32x16_bf16 {d}, {vr(WF+4*(s % NB),4)}, {vr(OFB+4*(s % NB),4)}, {c}")

    def local_attn_loads(self, q):
        a = self.a
        LQ, LK, LKP, LV, LVP = 20, 28, 36, 44, 52
        a(f"""
        s_lshl_b32 s61, s{sQB}, 2
        s_add_u32 s61, s61, s56         ; tB
        s_mul_i32 s62, s61, {TS}
        s_sub_u32 s63, s62, {TS}
        s_cmp_eq_u32 s61, 0
        s_cselect_b32 s63, s62, s63
        s_cselect_b32 s55, 0, -1
        s_mul_i32 s54, s{sH}, 1792
        s_add_u32 s50, s62, s54
        s_add_u32 s50, s50, {BR + WS_Q}
        """)
        for r in (LQ + 6, LQ + 7, LK + 6, LK + 7, LKP + 6, LKP + 7):
            a(f"v_mov_b32 v{r}, 0")
        for r in range(12):
            a(f"v_mov_b32 v{LV+r}, 0")
        a("s_mov_b32 exec_lo, 0x10000000")
        a("s_mov_b32 exec_hi, 0x10000000")
        for r in range(12):
            a(f"v_mov_b32 v{LV+r}, 0x3f803f80")
        a("s_mov_b64 exec, -1")
        self.load_qk_frag(LQ, 5, "s50", q, "L")
        a(f"s_add_u32 s50, s50, {WS_K - WS_Q}")
        self.load_qk_frag(LK, 5, "s50", q, "L")
        a(f"s_add_u32 s50, s63, s54")
        a(f"s_add_u32 s50, s50, {BR + WS_K}")
        self.load_qk_frag(LKP, 5, "s50", q, "L")
        a(f"""
        s_mul_i32 s54, s{sH}, 448
        s_add_u32 s50, s62, s54
        s_add_u32 s50, s50, {BR + WS_V}
        s_add_u32 s51, s50, 14336
        s_add_u32 s52, s63, s54
        s_add_u32 s52, s52, {BR + WS_V + 14336}
        s_mov_b32 exec_lo, 0x0fffffff
        s_mov_b32 exec_hi, 0x0fffffff
        buffer_load_dwordx4 {vr(LV,4)}, v4, {sr(S_WS)}, s50 offen{LSC}
        buffer_load_dwordx4 {vr(LV+4,4)}, v4, {sr(S_WS)}, s51 offen{LSC}
        buffer_load_dwordx4 {vr(LVP,4)}, v4, {sr(S_WS)}, s52 offen{LSC}
        s_mov_b64 exec, -1
        v_mov_b32 v15, {NEG_BIG}
        s_add_u32 s62, s62, {WS_OB}
        """)
        for _ in range(3):
            q.push("L")
        self.o_voff(14, 13)

    def local_attn(self, q):
        a = self.a
        LQ, LK, LKP, LV, LVP = 20, 28, 36, 44, 52
        Sd, Sp, P, T, O = 64, 80, 96, 104, 124
        n = q.wait_for("L")
        if n is not None:
            a(f"s_waitcnt vmcnt({n})")
        a(f"v_mfma_f32_32x32x16_bf16 {vr(Sd,16)}, {vr(LK,4)}, {vr(LQ,4)}, 0")
        a(f"v_mfma_f32_32x32x16_bf16 {vr(Sp,16)}, {vr(LKP,4)}, {vr(LQ,4)}, 0")
        a(f"v_mfma_f32_32x32x16_bf16 {vr(Sd,16)}, {vr(LK+4,4)}, {vr(LQ+4,4)}, {vr(Sd,16)}")
        a(f"v_mfma_f32_32x32x16_bf16 {vr(Sp,16)}, {vr(LKP+4,4)}, {vr(LQ+4,4)}, {vr(Sp,16)}")
        regs = []
        for r in range(16):
            m = lane_mask(lambda l: (((l & 31) - ((r & 3) + 8 * (r >> 2) + 4 * (l >> 5))) & ~14) == 0)
            sp = 50 + 2 * (r & 1)
            a(f"s_mov_b32 s{sp}, {m & 0xffffffff:#x}")
            a(f"s_mov_b32 s{sp+1}, {m >> 32:#x}")
            a(f"v_cndmask_b32 v{Sd+r}, v15, v{Sd+r}, s[{sp}:{sp+1}]")
            regs.append(Sd + r)
        for r in range(8, 16):
            m = lane_mask(lambda l: ((32 + (l & 31) - ((r & 3) + 8 * (r >> 2) + 4 * (l >> 5))) & ~14) == 0)
            sp = 50 + 2 * (r & 1)
            a(f"s_and_b32 s{sp}, s55, {m & 0xffffffff:#x}")
            a(f"s_and_b32 s{sp+1}, s55, {m >> 32:#x}")
            a(f"v_cndmask_b32 v{Sp+r}, v15, v{Sp+r}, s[{sp}:{sp+1}]")
            regs.append(Sp + r)
        self.max_tree(regs, T, T + 1)
        for r in regs:
            a(f"v_sub_f32 v{r}, v{r}, v{T}")
        for r in regs:
            a(f"v_exp_f32 v{r}, v{r}")
        for r in range(8):
            a(f"v_cvt_pk_bf16_f32 v{P+r}, v{Sd+2*r}, v{Sd+2*r+1}")
        for r in range(4):
            a(f"v_cvt_pk_bf16_f32 v{T+4+r}, v{Sp+8+2*r}, v{Sp+9+2*r}")
        a(f"v_mfma_f32_32x32x16_bf16 {vr(O,16)}, {vr(LV,4)}, {vr(P,4)}, 0")
        a(f"v_mfma_f32_32x32x16_bf16 {vr(O,16)}, {vr(LV+4,4)}, {vr(P+4,4)}, {vr(O,16)}")
        a(f"v_mfma_f32_32x32x16_bf16 {vr(O,16)}, {vr(LVP,4)}, {vr(T+4,4)}, {vr(O,16)}")
        self.finalize_o(O, T + 8, 14, "s62", q)

    def out_gemm_setup(self):
        a = self.a
        a(f"""
        s_and_b32 s62, s56, 1
        s_lshr_b32 s63, s56, 1
        v_and_b32 v20, 3, v0
        v_lshlrev_b32 v20, 3, v20
        v_bfe_u32 v21, v0, 4, 1
        v_lshl_add_u32 v20, v21, 5, v20
        s_lshl_b32 s50, s63, 6
        v_add_u32 v20, s50, v20
        v_bfe_u32 v21, v0, 3, 1
        v_lshlrev_b32 v21, 6, v21
        v_xor_b32 v20, v20, v21
        v_bfe_u32 v21, v0, 2, 2
        v_lshl_add_u32 v21, v3, 3, v21
        v_lshl_add_u32 v20, v21, 7, v20
        s_lshl_b32 s61, s{sRB3}, 1
        s_add_u32 s61, s61, s62         ; q tile
        s_lshl_b32 s50, s61, 7
        s_add_u32 s50, s50, {WS_G}
        v_lshlrev_b32 v22, 2, v2
        buffer_load_dword v23, v22, {sr(S_WS)}, s50 offen{LSC}
        s_mul_i32 s61, s61, {TS}
        """)

    def out_gemm_loads(self, br, q, lo=0, hi=28):
        a = self.a
        OF = 144
        for s in range(lo, hi):
            if s % 4 == 0:
                a(f"s_add_u32 s50, s61, {(WS_OA if br == 0 else WS_OB) + s*1024}")
            a(f"buffer_load_dwordx4 {vr(OF+4*s,4)}, v1, {sr(S_WS)}, s50 offen offset:{(s%4)*1024}{LSC}")
            q.push(("o", s))

    def out_gemm(self, br, region, q, loads=True):
        a = self.a
        ACC = 64 + 16 * br
        OF = 144
        WF, NB = 32, 4
        areg = 20 if region == R1 else 21
        if loads:
            self.out_gemm_loads(br, q)

        def reads(s):
            b = WF + 4 * (s % NB)
            for u in range(2):
                a(f"ds_read_b64_tr_b16 {vr(b+2*u,2)}, v{areg} offset:{(16*s+4*u)*128}")

        for s in range(NB - 1):
            reads(s)
        for s in range(28):
            if s + NB - 1 < 28:
                reads(s + NB - 1)
                lg = 2 * (NB - 1)
            else:
                lg = 2 * (27 - s)
            n = q.wait_for(('o', s))
            a(f"s_waitcnt lgkmcnt({lg})" if n is None else f"s_waitcnt vmcnt({n}) lgkmcnt({lg})")
            b = WF + 4 * (s % NB)
            d = vr(ACC, 16)
            c = "0" if s == 0 else d
            a(f"v_mfma_f32_32x32x16_bf16 {d}, {vr(b,4)}, {vr(OF+4*s,4)}, {c}")

    def out_epilogue(self):
        a = self.a
        A, B, W = 64, 80, 32
        a(f"""
        v_sub_f32 v24, 1.0, v23
        v_cvt_pk_bf16_f32 v24, v24, v24
        v_lshlrev_b32 v24, 16, v24
        s_lshl_b32 s50, s{sRB3}, 6
        s_lshl_b32 s51, s62, 5
        s_add_u32 s50, s50, s51
        v_add_u32 v25, s50, v2
        s_movk_i32 s50, 896
        v_mul_lo_u32 v25, v25, s50
        v_lshl_add_u32 v25, v3, 4, v25
        s_lshl_b32 s50, s{sCB3}, 7
        s_lshl_b32 s51, s63, 6
        s_add_u32 s50, s50, s51
        """)
        for r in range(16):
            a(f"v_mul_f32 v{B+r}, v24, v{B+r}")
        for r in range(16):
            a(f"v_fma_f32 v{A+r}, v23, v{A+r}, v{B+r}")
        for r in range(8):
            a(f"v_cvt_pk_bf16_f32 v{W+r}, v{A+2*r}, v{A+2*r+1}")
        for pr in range(2):
            b = W + 4 * pr
            a(f"v_permlane32_swap_b32 v{b}, v{b+2}")
            a(f"v_permlane32_swap_b32 v{b+1}, v{b+3}")
            a(f"buffer_store_dwordx4 {vr(b,4)}, v25, {sr(S_OUT)}, s50 offen offset:{32*pr}")

    def gate_wg(self):
        a = self.a
        a.label("GATE_WG")
        a(f"""
        s_lshl_b32 s56, s{sXCD}, 2
        s_add_u32 s56, s56, s{sIDX}
        s_sub_u32 s56, s56, 28
        s_lshl_b32 s56, s56, 6
        s_lshl_b32 s50, s{sW}, 4
        s_add_u32 s56, s56, s50
        s_mul_i32 s57, s56, 896
        """)
        NR = 16
        GW = 16 + 4 * NR
        for r in range(4 * NR + 4):
            a(f"v_mov_b32 v{16+r}, 0")
        a("s_mov_b32 exec_hi, 0x00ffffff")
        a(f"buffer_load_dwordx4 {vr(GW,4)}, v1, {sr(S_GATE)}, 0 offen")
        for i in range(NR):
            a(f"s_add_u32 s50, s57, {896*i}")
            a(f"buffer_load_dwordx4 {vr(16+4*i,4)}, v1, {sr(S_X)}, s50 offen")
        a("s_mov_b64 exec, -1")
        Z = GW + 4
        for i in range(NR):
            a(f"v_mov_b32 v{Z+i}, 0")
        a("s_waitcnt vmcnt(0)")
        for r in range(4):
            for i in range(NR):
                a(f"v_dot2_f32_bf16 v{Z+i}, v{16+4*i+r}, v{GW+r}, v{Z+i}")
        a("s_nop 2")
        for sh in (1, 2, 4, 8):
            for i in range(NR):
                a(f"v_add_f32_dpp v{Z+i}, v{Z+i}, v{Z+i} row_shr:{sh} row_mask:0xf bank_mask:0xf bound_ctrl:0")
        for i in range(NR):
            a(f"v_add_f32_dpp v{Z+i}, v{Z+i}, v{Z+i} row_bcast:15 row_mask:0xa bank_mask:0xf")
        for i in range(NR):
            a(f"v_add_f32_dpp v{Z+i}, v{Z+i}, v{Z+i} row_bcast:31 row_mask:0xc bank_mask:0xf")

        def round_pairs():
            for i in range(0, NR, 2):
                a(f"v_cvt_pk_bf16_f32 v16, v{Z+i}, v{Z+i+1}")
                a(f"v_lshlrev_b32 v{Z+i}, 16, v16")
                a(f"v_and_b32 v{Z+i+1}, 0xffff0000, v16")
        round_pairs()
        for i in range(NR):
            a(f"v_mul_f32 v{Z+i}, {NLOG2E}, v{Z+i}")
        for i in range(NR):
            a(f"v_exp_f32 v{Z+i}, v{Z+i}")
        for i in range(NR):
            a(f"v_add_f32 v{Z+i}, 1.0, v{Z+i}")
        for i in range(NR):
            a(f"v_rcp_f32 v{Z+i}, v{Z+i}")
        round_pairs()
        a(f"""
        s_lshl_b32 s50, s56, 2
        s_add_u32 s50, s50, {WS_G}
        v_mov_b32 v16, 0
        s_mov_b32 exec_lo, 0
        s_mov_b32 exec_hi, 0x80000000
        """)
        for i in range(NR // 4):
            a(f"buffer_store_dwordx4 {vr(Z+4*i,4)}, v16, {sr(S_WS)}, s50 offen offset:{16*i} sc1")
        a("""
        s_mov_b64 exec, -1
        s_waitcnt vmcnt(0)
        s_barrier
        """)
        self.read_nonce(t0=188, t1=189)
        self.publish(f"""
        s_lshl_b32 s50, s2, 6
        s_add_u32 s50, s50, {WS_F}
        """, only_wave=0, t0=188, t1=189)
        a("""
        s_barrier
        s_branch ATT_C_ENTRY
        """)
        a.label("GATE_H")
        a(f"s_setprio {self.cfg.get('hprio', 3)}")
        self.srds_first()
        self.srds_rest()
        if not self.cfg.get("l2pf", 0):
            a("s_barrier")
        if self.cfg.get("l2pf", 0):
            a(f"""
            s_sub_u32 s56, s{sIDX}, 28
            s_lshl_b32 s56, s56, 2
            s_add_u32 s56, s56, s{sW}
            s_sub_u32 s56, s56, 4           ; pw 0..15
            s_lshr_b32 s50, s{sXCD}, 1
            s_mul_i32 s57, s50, {512*896}
            s_mul_i32 s50, s56, 28672
            s_add_u32 s57, s57, s50         ; x slice
            v_and_b32 v2, 31, v0
            v_lshlrev_b32 v2, 4, v2
            v_lshrrev_b32 v3, 5, v0
            s_movk_i32 s50, 896
            v_mad_u32_u24 v4, v3, s50, v2   ; (r0,p0),(r0,p1)
            v_add_u32 v5, 1792, v4          ; (r0,p2),(r1,p0)
            v_add_u32 v6, 3584, v4          ; (r1,p1),(r1,p2)
            s_and_b32 s50, s{sXCD}, 1
            s_mul_i32 s58, s50, 384
            s_mul_i32 s50, s56, 5376
            s_add_u32 s58, s58, s50
            s_lshl_b32 s59, s56, 10
            """)
            n = [0]

            def dst():
                n[0] += 1
                return vr(16 + 4 * (n[0] % 32), 4)
            for i in range(28):
                if i % 4 == 0:
                    a(f"s_add_u32 s50, s57, {i*1024}")
                a(f"buffer_load_dwordx4 {dst()}, v1, {sr(S_X)}, s50 offen offset:{(i%4)*1024}")
            for sw in (S_WA, S_WB):
                for i in range(14):
                    a(f"s_add_u32 s50, s58, {i*16*5376}")
                    for k in range(3):
                        a(f"buffer_load_dwordx4 {dst()}, v{4+k}, {sr(sw)}, s50 offen")
                if sw == S_WA:
                    a("s_barrier")
            for sw in (S_WOB, S_WOA):
                for i in range(25):
                    a(f"s_add_u32 s50, s59, {i*16384}")
                    a(f"buffer_load_dwordx4 {dst()}, v1, {sr(sw)}, s50 offen")
        self.read_nonce()
        self.poll_all(0)
        a("""
        s_barrier
        s_branch ATT_H_ENTRY
        """)


def build(cfg):
    g = Gen(cfg)
    body = g.build()
    head = f"""; {NAME}: one persistent launch (projections -> attention -> output projection + gated mix)
; @launch grid=(256,1,1) block=(512,1,1) lds={LDS_BYTES}
.amdgcn_target "amdgcn-amd-amdhsa--gfx950"
.text
.globl {NAME}_kernel
"""
    tail = f""".section .rodata,"a"
.p2align 6
.amdhsa_kernel {NAME}_kernel
  .amdhsa_next_free_vgpr 256
  .amdhsa_next_free_sgpr 100
  .amdhsa_accum_offset {256}
  .amdhsa_group_segment_fixed_size 0
  .amdhsa_kernarg_size 80
  .amdhsa_user_sgpr_count 2
  .amdhsa_user_sgpr_kernarg_segment_ptr 1
  .amdhsa_system_sgpr_workgroup_id_x 1
.end_amdhsa_kernel
"""
    if cfg.get("stamps"):
        head = "; STAMPS " + repr(g.stnames) + "\n" + head
    return head + body + tail, g.a.n_pads


if __name__ == "__main__":
    cfg = {}
    out = f"cdna_kernels/{NAME}.s"
    for arg in sys.argv[1:]:
        if arg.startswith("-o="):
            out = arg[3:]
        else:
            k, v = arg.split("=")
            cfg[k] = int(v)
    s, n = build(cfg)
    open(out, "w").write(s)
    print("wrote", out, len(s), "bytes;", n, "hazard pads")
```

```python
import math
import struct
import sys
import os

sys.path.insert(0, os.path.dirname(os.path.abspath(__file__)))
from asmlib import Asm

NAME = "gated_mix__mha_block__sliding_local_dilated__prompt"

TS = 28672
WS_Q = 0x000000
WS_K = 0x200000
WS_V = 0x400000
BR = 0x600000
WS_OA = 0xC00000
WS_OB = 0xE00000
WS_G = 0x1000000
WS_F = 0x1010000
WS_USED = 0x1030000
WS_DIAG = 0x2000000

X_BYTES = 2048 * 448 * 2
W_BYTES = 448 * 1344 * 2
WO_BYTES = 448 * 448 * 2

R1 = 0
R2 = 57344
R3 = 106496
LDS_BYTES = 163840
CB = R2 + 32768
QL = 155648
OAL = R2
SLOT_TS = (8, 0, 16)
SPIN_MAX = 40000
LSC = ''


def f32bits(x):
    return struct.unpack("<I", struct.pack("<f", x))[0]


SCALE_F32 = struct.unpack("<f", struct.pack("<f", 28 ** -0.5))[0]
QSCALE = f32bits(SCALE_F32 * math.log2(math.e))
NEG_BIG = f32bits(-1.0e30)
NLOG2E = f32bits(-math.log2(math.e))

S_X, S_WA, S_WB, S_WS, S_WOA, S_WOB, S_OUT, S_DBG, S_GATE = 4, 8, 12, 16, 20, 24, 28, 32, 36
KA0 = 68
sW, sXCD, sIDX, sRB, sCG, sH, sQB, sRB3, sCB3, sNONCE = 40, 41, 42, 43, 44, 45, 46, 47, 48, 49
sGI = 3
sBR = 95
RW = 114688


def sr(b):
    return f"s[{b}:{b+3}]"


class VmQ:
    def __init__(self):
        self.q = []

    def push(self, tag):
        self.q.append(tag)

    def wait_for(self, tag):
        idx = max([i for i, t in enumerate(self.q) if t == tag], default=-1)
        if idx < 0:
            return None
        n = len(self.q) - 1 - idx
        self.q = self.q[idx + 1:]
        return min(n, 63)

    def clear(self):
        self.q = []


def vr(b, n):
    return f"v[{b}:{b+n-1}]"


def ar(b, n):
    return f"a[{b}:{b+n-1}]"


def lane_mask(fn):
    m = 0
    for l in range(64):
        if fn(l):
            m |= 1 << l
    return m


class Gen:
    def __init__(self, cfg):
        self.cfg = cfg
        self.a = Asm()
        self.nlab = 0
        self.stnames = {}

    def lab(self, p):
        self.nlab += 1
        return f"{p}_{self.nlab}"

    def stamp(self, idx, name=None):
        if not self.cfg.get("stamps"):
            return
        if name is not None and self.cfg.get("ststage") and idx == 0 and name in ("c0", "b7", "b11", "pub1", "c14", "preS0", "T1"):
            return
        if name is not None:
            role = idx
            lst = self.stnames.setdefault(role, ["start"])
            idx = len(lst)
            lst.append(name)
            assert idx < 14
        self.a(f"""
        s_memtime s[{64+2*idx}:{65+2*idx}]
        """)
        if idx == 0:
            self.a("s_memrealtime s[98:99]")

    def stamp_flush(self, n, role):
        if not self.cfg.get("stamps"):
            return
        a = self.a
        skip = self.lab("STSKIP")
        a(f"""
        s_memrealtime s[96:97]
        s_cmp_lg_u32 s{sW}, {4*role}
        s_cbranch_scc1 {skip}
        s_waitcnt lgkmcnt(0)
        s_mov_b32 s{S_WS+2}, 0x2100000
        s_lshl_b32 s50, s2, 8
        s_add_u32 s50, s50, {WS_DIAG + role*128}
        v_mov_b32 v3, 0
        """)
        for i in range(2 * n):
            a(f"v_mov_b32 v4, s{64+i}")
            a(f"buffer_store_dword v4, v3, {sr(S_WS)}, s50 offen offset:{4*i}")
        for i, s in enumerate((98, 99, 96, 97)):
            a(f"v_mov_b32 v4, s{s}")
            a(f"buffer_store_dword v4, v3, {sr(S_WS)}, s50 offen offset:{112+4*i}")
        a.label(skip)

    def publish(self, off_sgpr_expr_lines, only_wave=4, t0=12, t1=13, balance=False):
        a = self.a
        skip, end = self.lab("PUB"), self.lab("PUBE")
        a(off_sgpr_expr_lines)
        a(f"""
        v_mov_b32 v{t0}, 0
        v_mov_b32 v{t1}, s{sNONCE}
        s_mov_b64 exec, 1
        s_cmp_lg_u32 s{sW}, {only_wave}
        s_cbranch_scc1 {skip}
        buffer_store_dword v{t1}, v{t0}, {sr(S_WS)}, s50 offen sc1
        """)
        if balance:
            a(f"s_branch {end}")
        a.label(skip)
        if balance:
            a(f"buffer_load_dword v{t1}, v{t0}, {sr(S_GATE)}, 0 offen")
            a.label(end)
        a("s_mov_b64 exec, -1")

    def poll_all(self, foff):
        a = self.a
        loop, done = self.lab("POLL"), self.lab("POLLD")
        a(f"""
        s_waitcnt vmcnt(0)
        s_cmp_lg_u32 s{sW}, 4
        s_cbranch_scc1 {done}
        s_mov_b32 s50, {WS_F + foff}
        s_mov_b32 s92, {WS_F + foff + 4096}
        s_mov_b32 s93, {WS_F + foff + 8192}
        s_mov_b32 s94, {WS_F + foff + 12288}
        v_lshlrev_b32 v11, 6, v0
        s_mov_b32 s51, 0
        """)
        a.label(loop)
        a(f"""
        buffer_load_dword v12, v11, {sr(S_WS)}, s50 offen sc1
        buffer_load_dword v13, v11, {sr(S_WS)}, s92 offen sc1
        buffer_load_dword v14, v11, {sr(S_WS)}, s93 offen sc1
        buffer_load_dword v15, v11, {sr(S_WS)}, s94 offen sc1
        s_waitcnt vmcnt(0)
        v_cmp_eq_u32 s[52:53], s{sNONCE}, v12
        v_cmp_eq_u32 s[54:55], s{sNONCE}, v13
        s_and_b64 s[52:53], s[52:53], s[54:55]
        v_cmp_eq_u32 s[54:55], s{sNONCE}, v14
        s_and_b64 s[52:53], s[52:53], s[54:55]
        v_cmp_eq_u32 s[54:55], s{sNONCE}, v15
        s_and_b64 s[52:53], s[52:53], s[54:55]
        s_cmp_eq_u64 s[52:53], -1
        s_cbranch_scc1 {done}
        s_sleep {self.cfg.get("sleep", 4)}
        s_add_u32 s51, s51, 1
        s_cmp_lt_u32 s51, {SPIN_MAX}
        s_cbranch_scc1 {loop}
        """)
        a.label(done)

    def poll_issue(self, kind, foff, q):
        a = self.a
        if kind == "all":
            a("v_lshlrev_b32 v11, 6, v0")
            for i in range(4):
                a(f"s_mov_b32 s50, {WS_F + foff + 4096*i}")
                a(f"buffer_load_dword v{140+i}, v11, {sr(S_WS)}, s50 offen sc1")
                q.push("poll")
        else:
            a(f"""
            s_lshr_b32 s50, s{sRB3}, 1
            s_lshl_b32 s50, s50, 10
            s_add_u32 s50, s50, {WS_F + foff}
            v_and_b32 v11, 15, v0
            v_lshlrev_b32 v11, 6, v11
            buffer_load_dword v140, v11, {sr(S_WS)}, s50 offen sc1
            """)
            q.push("poll")

    def poll_check(self, kind, foff):
        a = self.a
        ok = self.lab("PCK")
        a(f"v_cmp_eq_u32 s[52:53], s{sNONCE}, v140")
        if kind == "all":
            for i in range(1, 4):
                a(f"v_cmp_eq_u32 s[54:55], s{sNONCE}, v{140+i}")
                a("s_and_b64 s[52:53], s[52:53], s[54:55]")
        a("s_cmp_eq_u64 s[52:53], -1")
        a(f"s_cbranch_scc1 {ok}")
        if kind == "all":
            self.poll_all(foff)
        else:
            self.poll16(foff)
        a.label(ok)

    def poll16(self, foff, everyone=False):
        a = self.a
        loop, done = self.lab("POLL"), self.lab("POLLD")
        a(f"""
        s_waitcnt vmcnt(0)
        s_cmp_lg_u32 s{sW}, {"s%d" % sW if everyone else 4}
        s_cbranch_scc1 {done}
        s_cmp_ge_u32 s{sIDX}, 28
        s_cbranch_scc1 {done}
        s_lshr_b32 s50, s{sRB3}, 1
        s_lshl_b32 s50, s50, 10
        s_add_u32 s50, s50, {WS_F + foff}
        s_mov_b32 s51, 0
        v_and_b32 v13, 15, v0
        v_lshlrev_b32 v13, 6, v13
        """)
        a.label(loop)
        a(f"""
        buffer_load_dword v12, v13, {sr(S_WS)}, s50 offen sc1
        s_waitcnt vmcnt(0)
        v_cmp_eq_u32 s[52:53], s{sNONCE}, v12
        s_cmp_eq_u64 s[52:53], -1
        s_cbranch_scc1 {done}
        s_sleep {self.cfg.get("sleep", 4)}
        s_add_u32 s51, s51, 1
        s_cmp_lt_u32 s51, {SPIN_MAX}
        s_cbranch_scc1 {loop}
        """)
        a.label(done)

    def get_nonce(self):
        a = self.a
        loop, done, skip = self.lab("NON"), self.lab("NOND"), self.lab("NONS")
        a(f"""
        v_mov_b32 v12, 0
        s_cmp_lg_u32 s2, 0
        s_cbranch_scc1 {skip}
        s_cmp_lg_u32 s{sW}, 4
        s_cbranch_scc1 {skip}
        s_memrealtime s[50:51]
        s_waitcnt lgkmcnt(0)
        s_or_b32 s50, s50, 1
        v_mov_b32 v13, s50
        s_mov_b64 exec, 1
        buffer_store_dword v13, v12, {sr(S_DBG)}, 0 offen sc1
        s_mov_b64 exec, -1
        """)
        a.label(skip)

    def read_nonce(self, early=None, t0=12, t1=13):
        a = self.a
        loop, done = self.lab("NON"), self.lab("NOND")
        if early is not None:
            a(f"""
            v_readfirstlane_b32 s{sNONCE}, v{early}
            s_cmp_lg_u32 s{sNONCE}, 0
            s_cbranch_scc1 {done}
            """)
        a(f"""
        v_mov_b32 v{t0}, 0
        s_mov_b32 s51, 0
        """)
        a.label(loop)
        a(f"""
        buffer_load_dword v{t1}, v{t0}, {sr(S_DBG)}, 0 offen sc1
        s_waitcnt vmcnt(0)
        v_readfirstlane_b32 s{sNONCE}, v{t1}
        s_cmp_lg_u32 s{sNONCE}, 0
        s_cbranch_scc1 {done}
        s_sleep {self.cfg.get("sleep", 4)}
        s_add_u32 s51, s51, 1
        s_cmp_lt_u32 s51, {SPIN_MAX}
        s_cbranch_scc1 {loop}
        """)
        a.label(done)

    def max_tree(self, regs, dst, tmp):
        a = self.a
        h = len(regs) // 2
        for (rs, d) in ((regs[:h], dst), (regs[h:], tmp)):
            a(f"v_max3_f32 v{d}, v{rs[0]}, v{rs[1]}, v{rs[2]}")
            i = 3
            while i + 1 < len(rs):
                a(f"v_max3_f32 v{d}, v{d}, v{rs[i]}, v{rs[i+1]}")
                i += 2
            if i < len(rs):
                a(f"v_max_f32 v{d}, v{d}, v{rs[i]}")
        a(f"v_max_f32 v{dst}, v{dst}, v{tmp}")
        a(f"v_mov_b32 v{tmp}, v{dst}")
        a(f"v_permlane32_swap_b32 v{dst}, v{tmp}")
        a(f"v_max_f32 v{dst}, v{dst}, v{tmp}")

    def o_voff(self, dst, tmp):
        self.a(f"""
        v_and_b32 v{dst}, 31, v0
        v_lshlrev_b32 v{dst}, 4, v{dst}
        v_lshrrev_b32 v{tmp}, 5, v0
        s_and_b32 s50, s{sH}, 1
        s_cmp_eq_u32 s50, 0
        s_cselect_b32 s51, 8, 504
        s_cselect_b32 s50, 0, 1544
        v_mad_u32_u24 v{dst}, v{tmp}, s51, v{dst}
        v_add_u32 v{dst}, s50, v{dst}
        s_lshr_b32 s50, s{sH}, 1
        s_mul_i32 s50, s50, 3584
        v_add_u32 v{dst}, s50, v{dst}
        """)

    def finalize_o(self, O, T, voff, soff, q=None):
        a = self.a
        a(f"""
        v_mov_b32 v{T}, v{O+12}
        v_mov_b32 v{T+1}, v{O+12}
        v_permlane32_swap_b32 v{T}, v{T+1}
        v_rcp_f32 v{T}, v{T+1}
        """)
        for r in range(16):
            a(f"v_mul_f32 v{O+r}, v{T}, v{O+r}")
        for r in range(8):
            a(f"v_cvt_pk_bf16_f32 v{T+2+r}, v{O+2*r}, v{O+2*r+1}")
        for i in range(4):
            if i == 3:
                a("s_mov_b32 exec_hi, 0")
            a(f"buffer_store_dwordx2 {vr(T+2+2*i,2)}, v{voff}, {sr(S_WS)}, {soff} offen offset:{512*i} sc1")
            if q is not None:
                q.push("ost")
        a("s_mov_b64 exec, -1")

    def load_qk_frag(self, dst, voff, soff, q=None, tag=None, pfx="v"):
        a = self.a
        for i in range(4):
            if i == 3:
                a("s_mov_b32 exec_hi, 0")
            a(f"buffer_load_dwordx2 {pfx}[{dst+2*i}:{dst+2*i+1}], v{voff}, {sr(S_WS)}, {soff} offen offset:{512*i}{LSC}")
            if q is not None:
                q.push(tag)
        a("s_mov_b32 exec_hi, -1")

    def srd(self, base, pair, nbytes):
        self.a(f"""
        s_mov_b32 s{base}, s{pair}
        s_and_b32 s{base+1}, s{pair+1}, 0xffff
        s_mov_b32 s{base+2}, {nbytes}
        s_mov_b32 s{base+3}, 0x20000
        """)

    def srds_first(self):
        self.a("s_waitcnt lgkmcnt(0)")
        self.srd(S_X, KA0, X_BYTES)
        if self.cfg.get("p1v", 1) == 2:
            self.a(f"""
            s_cmp_eq_u32 s{sBR}, 0
            s_cselect_b32 s{S_WA}, s{KA0+2}, s{KA0+8}
            s_cselect_b32 s{S_WA+1}, s{KA0+3}, s{KA0+9}
            s_and_b32 s{S_WA+1}, s{S_WA+1}, 0xffff
            s_mov_b32 s{S_WA+2}, {W_BYTES}
            s_mov_b32 s{S_WA+3}, 0x20000
            """)
        else:
            self.srd(S_WA, KA0 + 2, W_BYTES)

    def srds_rest(self):
        self.srd(S_WOA, KA0 + 4, WO_BYTES)
        self.srd(S_WB, KA0 + 8, W_BYTES)
        self.srd(S_WOB, KA0 + 10, WO_BYTES)
        self.srd(S_GATE, KA0 + 12, 896)
        self.srd(S_OUT, KA0 + 14, X_BYTES)
        self.srd(S_DBG, KA0 + 16, 256)
        self.srd(S_WS, KA0 + 18, WS_USED)
        self.a(f"""
        s_lshl_b32 s{sH}, s{sXCD}, 1
        s_and_b32 s50, s{sIDX}, 1
        s_add_u32 s{sH}, s{sH}, s50
        s_lshr_b32 s{sQB}, s2, 4
        s_lshl_b32 s{sRB3}, s{sXCD}, 2
        s_and_b32 s50, s{sIDX}, 3
        s_add_u32 s{sRB3}, s{sRB3}, s50
        s_lshr_b32 s{sCB3}, s{sIDX}, 2
        """)

    def build(self):
        a, cfg = self.a, self.cfg
        a.raw(".p2align 8")
        a.raw(f".type {NAME}_kernel,@function")
        a.label(f"{NAME}_kernel")
        a("""
        s_cmp_ge_u32 s2, 256
        s_cbranch_scc1 K_END
        """)
        self.stamp(0)
        a(f"""
        s_load_dwordx16 s[{KA0}:{KA0+15}], s[0:1], 0
        s_load_dwordx4 s[{KA0+16}:{KA0+19}], s[0:1], 64
        v_lshrrev_b32 v1, 6, v0
        v_and_b32 v0, 63, v0
        v_readfirstlane_b32 s{sW}, v1
        s_and_b32 s{sXCD}, s2, 7
        s_lshr_b32 s{sIDX}, s2, 3
        v_lshlrev_b32 v1, 4, v0
        """)
        if cfg.get("codepf", 1):
            a(f"""
            s_getpc_b64 s[52:53]
            """)
            a.label("PCREF")
            a(f"""
            s_sub_u32 s52, s52, PCREF-{NAME}_kernel
            s_subb_u32 s53, s53, 0
            s_and_b32 s53, s53, 0xffff
            s_mov_b32 s54, K_CODE_END-{NAME}_kernel
            s_mov_b32 s55, 0x20000
            s_lshl_b32 s50, s{sIDX}, 2
            s_add_u32 s50, s50, s{sW}
            s_lshl_b32 s50, s50, 10
            s_cmp_ge_u32 s{sW}, 4
            s_cbranch_scc1 NOPF
            buffer_load_dwordx4 v[240:243], v1, s[52:55], s50 offen
            """)
            a.label("NOPF")
        if cfg.get("p1v", 1) == 2:
            a(f"""
            s_cmp_ge_u32 s{sIDX}, 14
            s_cselect_b32 s{sBR}, 1, 0
            s_cselect_b32 s51, 14, 0
            s_sub_u32 s51, s{sIDX}, s51
            s_lshr_b32 s50, s{sXCD}, 1
            s_lshl_b32 s50, s50, 2          ; 4p
            s_and_b32 s61, s{sXCD}, 1       ; s
            s_and_b32 s{sRB}, s51, 3
            s_add_u32 s{sRB}, s{sRB}, s50
            s_lshr_b32 s{sCG}, s51, 2
            s_lshl_b32 s62, s61, 2
            s_add_u32 s{sCG}, s{sCG}, s62
            s_lshl_b32 s62, s61, 1
            s_add_u32 s62, s62, s51
            s_add_u32 s62, s62, s50
            s_sub_u32 s62, s62, 12
            s_cmp_ge_u32 s51, 12
            s_cselect_b32 s{sRB}, s62, s{sRB}
            s_cselect_b32 s{sCG}, 3, s{sCG}
            s_lshl_b32 s{sGI}, s{sXCD}, 2
            s_add_u32 s{sGI}, s{sGI}, s{sIDX}
            s_sub_u32 s{sGI}, s{sGI}, 28
            s_cmp_ge_u32 s{sIDX}, 28
            s_cselect_b32 s{sGI}, s{sGI}, -1
            """)
        elif cfg.get("p1map", 0) == 0:
            a(f"""
            s_lshr_b32 s50, s{sXCD}, 1
            s_lshl_b32 s50, s50, 3          ; 8p
            s_and_b32 s51, s{sXCD}, 1       ; s
            s_and_b32 s{sRB}, s{sIDX}, 7
            s_add_u32 s{sRB}, s{sRB}, s50
            s_lshr_b32 s{sCG}, s{sIDX}, 3
            s_lshl_b32 s61, s51, 2
            s_add_u32 s{sCG}, s{sCG}, s61
            s_sub_u32 s62, s{sIDX}, 24
            s_add_u32 s62, s62, s61
            s_add_u32 s62, s62, s50
            s_cmp_ge_u32 s{sIDX}, 24
            s_cselect_b32 s{sRB}, s62, s{sRB}
            s_cselect_b32 s{sCG}, 3, s{sCG}
            s_lshl_b32 s{sGI}, s{sXCD}, 2
            s_add_u32 s{sGI}, s{sGI}, s{sIDX}
            s_sub_u32 s{sGI}, s{sGI}, 28
            s_cmp_ge_u32 s{sIDX}, 28
            s_cselect_b32 s{sGI}, s{sGI}, -1
            """)
        else:
            a(f"""
            s_and_b32 s50, s{sXCD}, 1
            s_lshl_b32 s50, s50, 4
            s_lshr_b32 s{sRB}, s{sIDX}, 1
            s_and_b32 s{sCG}, s{sXCD}, 6
            s_and_b32 s51, s{sIDX}, 1
            s_add_u32 s{sCG}, s{sCG}, s51
            s_add_u32 s{sGI}, s50, s{sIDX}
            s_sub_u32 s{sGI}, s{sGI}, 16
            s_cmp_ge_u32 s{sXCD}, 6
            s_cselect_b32 s{sRB}, s{sIDX}, s{sRB}
            s_cselect_b32 s{sCG}, 6, s{sCG}
            s_cselect_b32 s51, s{sIDX}, 0
            s_add_u32 s{sRB}, s{sRB}, s50
            s_cmp_ge_u32 s51, 16
            s_cselect_b32 s{sGI}, s{sGI}, -1
            """)
        a(f"""
        s_cmp_lt_u32 s{sW}, 4
        s_cbranch_scc1 COMPUTE
        s_cmp_lg_u32 s{sGI}, -1
        s_cbranch_scc1 GATE_H
        """)
        if cfg.get("p1v", 1) == 2:
            self.helper_p1b()
        else:
            self.helper_p1()
        self.helper_attn()
        a.label("COMPUTE")
        self.srds_first()
        self.srds_rest()
        a(f"""
        s_cmp_lg_u32 s{sGI}, -1
        s_cbranch_scc1 GATE_WG
        """)
        if cfg.get("p1v", 1) == 2:
            self.compute_p1b()
        else:
            self.compute_p1()
        self.compute_attn()
        self.gate_wg()
        self.fallback()
        a.label("K_END")
        a("s_endpgm")
        a.label("K_CODE_END")
        return a.render()

    def p1_plan(self):
        order = self.cfg.get("order", 1)
        steps = []
        if order == 1:
            for c in range(7):
                steps.append(([(0, 1), (0, 2)], [c]))
            for cs in ([0, 1], [2, 3], [4, 5], [6]):
                steps.append(([(0, 0)], cs))
            for c in range(7):
                steps.append(([(1, 0), (1, 1), (1, 2)], [c]))
        else:
            for br in range(2):
                for c in range(7):
                    steps.append(([(br, 0), (br, 1), (br, 2)], [c]))
        u = 0
        units = []
        for pcs, cs in steps:
            m = {}
            for c in cs:
                for pc in pcs:
                    m[(pc, c)] = u % 12
                    u += 1
            units.append(m)
        LIM = self.cfg.get("inflight", 8)
        sched = {i: [] for i in range(-1, len(steps))}
        nxt, used = 0, 0
        size = [len(m) for m in units]
        for b in range(-1, len(steps)):
            live = sum(size[max(b, 0):nxt])
            ahead = sum(size[b + 1:nxt])
            lim = LIM if b >= self.cfg.get("ramp", 2) else self.cfg.get("inflight0", 8)
            while nxt < len(steps) and live + size[nxt] <= 12 and ahead + size[nxt] <= lim:
                sched[b].append(nxt)
                live += size[nxt]
                ahead += size[nxt]
                nxt += 1
        assert nxt == len(steps)
        return steps, units, sched

    def compute_p1(self):
        a, cfg = self.a, self.cfg
        ACC = [64, 112]
        FR = 16
        XA, WA = 4, 8
        PK = 160
        a(f"""
        s_and_b32 s56, s{sW}, 1         ; rho
        s_lshr_b32 s57, s{sW}, 1        ; c
        v_and_b32 v2, 31, v0            ; r
        v_lshrrev_b32 v3, 5, v0         ; hf
        v_bfe_u32 v10, v0, 1, 3
        v_xor_b32 v10, v10, v3
        s_lshl_b32 s50, s56, 12
        v_lshlrev_b32 v11, 7, v2
        v_add_u32 v11, s50, v11
        """)
        for sp in range(4):
            a(f"v_xor_b32 v12, {2*sp}, v10")
            a(f"v_lshl_add_u32 v{XA+sp}, v12, 4, v11")
        a(f"""
        v_and_b32 v11, 3, v0
        v_lshlrev_b32 v11, 3, v11
        v_bfe_u32 v12, v0, 4, 1
        v_lshl_add_u32 v11, v12, 5, v11
        s_lshl_b32 s50, s57, 6
        v_add_u32 v11, s50, v11
        v_bfe_u32 v12, v0, 3, 1
        v_lshlrev_b32 v12, 6, v12
        v_xor_b32 v11, v11, v12
        v_bfe_u32 v12, v0, 2, 2
        v_lshl_add_u32 v12, v3, 3, v12
        v_lshl_add_u32 v11, v12, 7, v11
        v_add_u32 v{WA}, {R2}, v11
        v_add_u32 v{WA+1}, {R2+49152}, v11
        v_lshlrev_b32 v10, 3, v2
        v_lshl_add_u32 v10, v3, 8, v10
        v_lshlrev_b32 v11, 4, v2
        s_movk_i32 s50, 7168
        v_mad_u32_u24 v11, v3, s50, v11 ; v11 = hf*7168 + (l&31)*16  (V)
        s_lshl_b32 s58, s{sRB}, 1
        s_add_u32 s58, s58, s56         ; t
        s_mul_i32 s58, s58, {TS}
        s_lshl_b32 s59, s{sCG}, 12
        s_lshl_b32 s50, s57, 11
        s_add_u32 s59, s59, s50
        s_add_u32 s59, s59, s58
        s_lshl_b32 s60, s{sCG}, 10
        s_lshl_b32 s50, s57, 9
        s_add_u32 s60, s60, s50
        s_add_u32 s60, s60, s58         ; V soffset
        s_mov_b32 s61, {QSCALE}
        """)

        steps, units, sched = self.p1_plan()
        ACCR = {(0, 0): 64, (0, 1): 80, (0, 2): 96, (1, 0): 112, (1, 1): 128, (1, 2): 144}
        ks = []
        for j, (pcs, cs) in enumerate(steps):
            for c in cs:
                for sp in range(4):
                    ks.append((j, c, sp, c == cs[0] and sp == 0))
        NK = len(ks)

        def reads(n):
            j, c, sp, _ = ks[n]
            b = FR + 16 * (n % 2)
            out = [f"ds_read_b128 {vr(b,4)}, v{XA+sp} offset:{c*8192}"]
            if cfg.get("exp_nox") and j >= 7:
                out = []
            for i, pc in enumerate(steps[j][0]):
                if cfg.get("exp_now") and i >= 1:
                    continue
                un = units[j][(pc, c)]
                for u in range(2):
                    off = (un % 6) * 8192 + (16 * sp + 4 * u) * 128
                    out.append(f"ds_read_b64_tr_b16 {vr(b+4+4*i+2*u,2)}, v{WA + un // 6} offset:{off}")
            return out

        def mfmas(n):
            j, c, sp, _ = ks[n]
            b = FR + 16 * (n % 2)
            X = vr(b, 4)
            out = []
            for i, pc in enumerate(steps[j][0]):
                W = vr(b + 4 + 4 * i, 4)
                d = vr(ACCR[pc], 16)
                cin = "0" if (c == 0 and sp == 0) else d
                if pc[1] < 2:
                    out.append(f"v_mfma_f32_32x32x16_bf16 {d}, {W}, {X}, {cin}")
                else:
                    out.append(f"v_mfma_f32_32x32x16_bf16 {d}, {X}, {W}, {cin}")
            return out

        def epilogue(pc):
            br, tile = pc
            acc = ACCR[pc]
            out = []
            if tile == 0:
                for r in range(8):
                    out.append(f"v_cvt_pk_bf16_f32 v{PK+r}, v{acc+2*r}, v{acc+2*r+1}")
                for r in range(8):
                    out.append(f"v_lshlrev_b32 v{acc+2*r}, 16, v{PK+r}")
                    out.append(f"v_and_b32 v{acc+2*r+1}, 0xffff0000, v{PK+r}")
                for r in range(16):
                    out.append(f"v_mul_f32 v{acc+r}, s61, v{acc+r}")
            for r in range(8):
                out.append(f"v_cvt_pk_bf16_f32 v{PK+8*tile+r}, v{acc+2*r}, v{acc+2*r+1}")
            if tile < 2:
                out.append(f"s_add_u32 s50, s59, {br*BR + (WS_Q if tile == 0 else WS_K)}")
                for gi in range(4):
                    out.append(f"buffer_store_dwordx2 {vr(PK+8*tile+2*gi,2)}, v10, {sr(S_WS)}, s50 offen offset:{512*gi} sc1")
            else:
                for f in range(2):
                    out.append(f"s_add_u32 s50, s60, {br*BR + WS_V + f*14336}")
                    out.append(f"buffer_store_dwordx4 {vr(PK+16+4*f,4)}, v11, {sr(S_WS)}, s50 offen sc1")
            if cfg.get("exp_nost") == 1:
                out = [x for x in out if not x.startswith("buffer_store")]
            if cfg.get("exp_nost") == 2:
                out = [x.replace(" sc1", "") for x in out]
            return out

        FB = cfg.get("flag1_bar", 13)
        pend = []
        a("s_barrier")
        self.stamp(0, "c0")
        for x in reads(0):
            a(x)
        for n in range(NK):
            j = ks[n][0]
            nxt = reads(n + 1) if n + 1 < NK else []
            first = n + 1 < NK and ks[n + 1][3]
            if first:
                jb = ks[n + 1][0]
                if jb == FB:
                    assert not pend
                    a("s_waitcnt vmcnt(0) lgkmcnt(0)")
                else:
                    a("s_waitcnt lgkmcnt(0)")
                a("s_barrier")
                if jb == FB:
                    self.read_nonce(early=190, t0=188, t1=189)
                    self.publish(f"""
                    s_lshl_b32 s50, s2, 6
                    s_add_u32 s50, s50, {WS_F}
                    """, only_wave=0, t0=188, t1=189)
                    self.stamp(0, "pub1")
                if jb == 6:
                    a("v_mov_b32 v188, 0")
                    a(f"buffer_load_dword v190, v188, {sr(S_DBG)}, 0 offen sc1")
                if jb in (7, 11):
                    self.stamp(0, f"b{jb}")
                fill = list(nxt)
            else:
                for x in nxt:
                    a(x)
                a(f"s_waitcnt lgkmcnt({len(nxt)})")
                fill = []
            mf = mfmas(n)
            if n >= 1 and steps[ks[n - 1][0]][0] != steps[j][0]:
                for pc in sorted(steps[ks[n - 1][0]][0], key=lambda p: -p[1]):
                    pend += epilogue(pc)
                hold = True
            else:
                hold = False
            extra = []
            if pend and not hold:
                k = cfg.get("epi_rate", 12) * len(mf)
                extra, pend = pend[:k], pend[k:]
            fill = fill + extra
            k = (len(fill) + len(mf) - 1) // len(mf)
            for i, m in enumerate(mf):
                a(m)
                for x in fill[i * k:(i + 1) * k]:
                    a(x)
        assert not pend
        self.stamp(0, "c14")
        for pc in steps[-1][0]:
            for x in epilogue(pc):
                a(x)
        a("s_waitcnt lgkmcnt(0)")
        a("s_barrier")
        self.stamp(0, "T1")

    def p1b_plan(self):
        steps = [([1, 2], [c]) for c in range(7)] + [([0], cs) for cs in ([0, 1], [2, 3], [4, 5], [6])]
        u = 0
        units = []
        for pcs, cs in steps:
            m = {}
            for c in cs:
                for pc in pcs:
                    m[(pc, c)] = u % 6
                    u += 1
            units.append(m)
        size = [len(m) for m in units]
        sched = {i: [] for i in range(-1, len(steps))}
        nxt = 0
        for b in range(-1, len(steps)):
            live = sum(size[max(b, 0):nxt])
            lim = 6 if b >= 0 else self.cfg.get("inflight0b", 4)
            while nxt < len(steps) and live + size[nxt] <= lim:
                sched[b].append(nxt)
                live += size[nxt]
                nxt += 1
        assert nxt == len(steps)
        return steps, units, sched

    def compute_p1b(self):
        a, cfg = self.a, self.cfg
        FR = 16
        XA, WA = 4, 12
        XA2 = 236
        PK = 160
        ACCR = {(1, 0): 64, (1, 1): 80, (2, 0): 96, (2, 1): 112, (0, 0): 128, (0, 1): 144}
        a(f"""
        s_and_b32 s56, s{sW}, 1         ; rp
        s_lshr_b32 s57, s{sW}, 1        ; c
        v_and_b32 v2, 31, v0
        v_lshrrev_b32 v3, 5, v0
        v_bfe_u32 v10, v0, 1, 3
        v_xor_b32 v10, v10, v3
        s_lshl_b32 s50, s56, 13
        v_lshlrev_b32 v11, 7, v2
        v_add_u32 v11, s50, v11
        """)
        for sp in range(4):
            a(f"v_xor_b32 v13, {2*sp}, v10")
            a(f"v_lshl_add_u32 v{XA+sp}, v13, 4, v11")
            a(f"v_add_u32 v{XA2+sp}, 0x10000, v{XA+sp}")
        a(f"""
        v_and_b32 v11, 3, v0
        v_lshlrev_b32 v11, 3, v11
        v_bfe_u32 v13, v0, 4, 1
        v_lshl_add_u32 v11, v13, 5, v11
        s_lshl_b32 s50, s57, 6
        v_add_u32 v11, s50, v11
        v_bfe_u32 v13, v0, 3, 1
        v_lshlrev_b32 v13, 6, v13
        v_xor_b32 v11, v11, v13
        v_bfe_u32 v13, v0, 2, 2
        v_lshl_add_u32 v13, v3, 3, v13
        v_lshl_add_u32 v11, v13, 7, v11
        v_add_u32 v{WA}, {RW}, v11
        v_lshlrev_b32 v10, 3, v2
        v_lshl_add_u32 v10, v3, 8, v10
        v_lshlrev_b32 v11, 4, v2
        s_movk_i32 s50, 7168
        v_mad_u32_u24 v11, v3, s50, v11 ; hf*7168 + (l&31)*16
        s_lshl_b32 s58, s{sRB}, 2
        s_lshl_b32 s50, s56, 1
        s_add_u32 s58, s58, s50         ; t0
        s_mul_i32 s58, s58, {TS}
        s_mul_i32 s50, s{sBR}, {BR}
        s_add_u32 s58, s58, s50
        s_lshl_b32 s59, s{sCG}, 12
        s_lshl_b32 s50, s57, 11
        s_add_u32 s59, s59, s50
        s_add_u32 s59, s59, s58         ; Q/K soffset
        s_lshl_b32 s60, s{sCG}, 10
        s_lshl_b32 s50, s57, 9
        s_add_u32 s60, s60, s50
        s_add_u32 s60, s60, s58         ; V soffset
        s_mov_b32 s61, {QSCALE}
        """)
        steps, units, sched = self.p1b_plan()
        ks = []
        for j, (pcs, cs) in enumerate(steps):
            for c in cs:
                for sp in range(4):
                    ks.append((j, c, sp, c == cs[0] and sp == 0))
        NK = len(ks)

        def reads(n):
            j, c, sp, _ = ks[n]
            b = FR + 16 * (n % 2)
            xa, off = (XA + sp, c * 16384) if c < 4 else (XA2 + sp, (c - 4) * 16384)
            out = [f"ds_read_b128 {vr(b,4)}, v{xa} offset:{off}", f"ds_read_b128 {vr(b+4,4)}, v{xa} offset:{off+4096}"]
            for i, pc in enumerate(steps[j][0]):
                un = units[j][(pc, c)]
                for u in range(2):
                    out.append(f"ds_read_b64_tr_b16 {vr(b+8+4*i+2*u,2)}, v{WA} offset:{un*8192 + (16*sp+4*u)*128}")
            return out

        def mfmas(n):
            j, c, sp, _ = ks[n]
            b = FR + 16 * (n % 2)
            out = []
            for i, pc in enumerate(steps[j][0]):
                W = vr(b + 8 + 4 * i, 4)
                for rho in range(2):
                    X = vr(b + 4 * rho, 4)
                    d = vr(ACCR[(pc, rho)], 16)
                    cin = "0" if (c == 0 and sp == 0) else d
                    if pc < 2:
                        out.append(f"v_mfma_f32_32x32x16_bf16 {d}, {W}, {X}, {cin}")
                    else:
                        out.append(f"v_mfma_f32_32x32x16_bf16 {d}, {X}, {W}, {cin}")
            return out

        def epilogue(pc, rho):
            acc = ACCR[(pc, rho)]
            pk = PK + 8 * ((2 * pc + rho) % 3)
            out = []
            if pc == 0:
                for r in range(8):
                    out.append(f"v_cvt_pk_bf16_f32 v{pk+r}, v{acc+2*r}, v{acc+2*r+1}")
                for r in range(8):
                    out.append(f"v_lshlrev_b32 v{acc+2*r}, 16, v{pk+r}")
                    out.append(f"v_and_b32 v{acc+2*r+1}, 0xffff0000, v{pk+r}")
                for r in range(16):
                    out.append(f"v_mul_f32 v{acc+r}, s61, v{acc+r}")
            for r in range(8):
                out.append(f"v_cvt_pk_bf16_f32 v{pk+r}, v{acc+2*r}, v{acc+2*r+1}")
            if pc < 2:
                out.append(f"s_add_u32 s50, s59, {(WS_Q if pc == 0 else WS_K) + rho*TS}")
                for gi in range(4):
                    out.append(f"buffer_store_dwordx2 {vr(pk+2*gi,2)}, v10, {sr(S_WS)}, s50 offen offset:{512*gi} sc1")
            else:
                for f in range(2):
                    out.append(f"s_add_u32 s50, s60, {WS_V + f*14336 + rho*TS}")
                    out.append(f"buffer_store_dwordx4 {vr(pk+4*f,4)}, v11, {sr(S_WS)}, s50 offen sc1")
            return out

        pend = []
        a("s_barrier")
        self.stamp(0, "c0")
        for x in reads(0):
            a(x)
        for n in range(NK):
            j = ks[n][0]
            nxt = reads(n + 1) if n + 1 < NK else []
            first = n + 1 < NK and ks[n + 1][3]
            if first:
                jb = ks[n + 1][0]
                a("s_waitcnt lgkmcnt(0)")
                a("s_barrier")
                if jb == 4:
                    a("v_mov_b32 v188, 0")
                    a(f"buffer_load_dword v190, v188, {sr(S_DBG)}, 0 offen sc1")
                if jb == 7:
                    self.stamp(0, "b7")
                    a("s_waitcnt vmcnt(0)")
                    self.read_nonce(early=190, t0=188, t1=189)
                    self.publish(f"""
                    s_xor_b32 s51, s{sBR}, 1
                    s_lshl_b32 s51, s51, 14
                    s_lshl_b32 s50, s2, 6
                    s_add_u32 s50, s50, s51
                    s_add_u32 s50, s50, {WS_F}
                    """, only_wave=0, t0=188, t1=189)
                fill = list(nxt)
            else:
                for x in nxt:
                    a(x)
                a(f"s_waitcnt lgkmcnt({len(nxt)})")
                fill = []
            mf = mfmas(n)
            hold = False
            if n >= 1 and steps[ks[n - 1][0]][0] != steps[j][0]:
                for pc in (2, 1):
                    for rho in range(2):
                        pend += epilogue(pc, rho)
                hold = True
            extra = []
            if pend and not hold:
                k = cfg.get("epi_rate_b", 5) * len(mf)
                extra, pend = pend[:k], pend[k:]
            fill = fill + extra
            k = (len(fill) + len(mf) - 1) // len(mf)
            for i, m in enumerate(mf):
                a(m)
                for x in fill[i * k:(i + 1) * k]:
                    a(x)
        assert not pend
        self.stamp(0, "c14")
        for rho in range(2):
            for x in epilogue(0, rho):
                a(x)
        a("s_waitcnt vmcnt(0) lgkmcnt(0)")
        a("s_barrier")
        self.publish(f"""
        s_lshl_b32 s51, s{sBR}, 14
        s_lshl_b32 s50, s2, 6
        s_add_u32 s50, s50, s51
        s_add_u32 s50, s50, {WS_F}
        """, only_wave=0, t0=188, t1=189)
        self.stamp(0, "pub1")
        a("s_barrier")
        self.stamp(0, "T1")

    def helper_p1b(self):
        a, cfg = self.a, self.cfg
        a.label("HELPER")
        a(f"""
        s_setprio {cfg.get('hprio', 3)}
        s_sub_u32 s56, s{sW}, 4         ; j
        v_lshrrev_b32 v2, 3, v0
        v_and_b32 v3, 7, v0
        v_lshrrev_b32 v4, 4, v0
        v_xor_b32 v8, v3, v4
        v_lshlrev_b32 v8, 4, v8
        s_movk_i32 s50, 896
        v_mad_u32_u24 v5, v2, s50, v8
        v_xor_b32 v6, 64, v5
        v_and_b32 v4, 1, v4
        v_lshlrev_b32 v4, 2, v4
        v_xor_b32 v8, v3, v4
        v_lshlrev_b32 v8, 4, v8
        s_movk_i32 s50, 2688
        v_mad_u32_u24 v7, v2, s50, v8
        s_lshl_b32 s57, s{sRB}, 7
        s_lshl_b32 s50, s56, 5
        s_add_u32 s57, s57, s50
        s_mul_i32 s57, s57, 896
        s_lshl_b32 s58, s{sCG}, 7
        s_mul_i32 s50, s56, 43008
        s_add_u32 s58, s58, s50         ; W base
        s_lshl_b32 s59, s56, 11
        s_lshl_b32 s60, s56, 12
        """)
        self.srds_first()
        q = VmQ()
        self.hq = q
        steps, units, sched = self.p1b_plan()
        xdone = set()

        def issue(j):
            pcs, cs = steps[j]
            for c in cs:
                if c not in xdone:
                    xdone.add(c)
                    for i in range(4):
                        a(f"s_add_u32 s50, s57, {8*i*896 + 128*c}")
                        a(f"s_add_u32 m0, s60, {c*16384 + 8*i*128}")
                        a(f"buffer_load_dwordx4 v{5+(i&1)}, {sr(S_X)}, s50 offen lds")
                        q.push(("c", j))
                for part in pcs:
                    un = units[j][(part, c)]
                    for ii in range(2):
                        a(f"s_add_u32 s50, s58, {part*896 + (64*c + 8*ii)*2688}")
                        a(f"s_add_u32 m0, s59, {RW + un*8192 + 8*ii*128}")
                        a(f"buffer_load_dwordx4 v7, {sr(S_WA)}, s50 offen lds")
                        q.push(("c", j))

        for j in sched[-1]:
            issue(j)
        self.srds_rest()
        self.get_nonce()
        for b in range(len(steps)):
            n = q.wait_for(("c", b))
            if n is not None:
                a(f"s_waitcnt vmcnt({n})")
            a("s_barrier")
            for j in sched[b]:
                issue(j)
            if b == 6:
                a(f"v_mov_b32 v12, 0")
                a(f"buffer_load_dword v14, v12, {sr(S_DBG)}, 0 offen sc1")
                q.push("non")
        a("s_barrier")
        self.stamp(1, "poll1")
        a("s_waitcnt vmcnt(0)")
        self.read_nonce(early=14)
        self.poll_all(0)
        self.stamp(1, "got1")
        q.clear()
        a("s_barrier")

    def attn_setup_and_q(self):
        a = self.a
        Q = 192
        a(f"""
        v_and_b32 v224, 31, v0
        v_lshrrev_b32 v225, 5, v0
        v_lshlrev_b32 v224, 3, v224
        v_lshl_add_u32 v224, v225, 8, v224
        v_add_u32 v225, {QL}, v224
        """)

    def compute_attn(self):
        a, cfg = self.a, self.cfg
        Q, O, S, P, NM, T, KV = 192, 48, 112, 144, 152, 156, 16
        KA, VA = 226, 232
        self.regs = dict(Q=Q, O=O, S=S, P=P, NM=NM, T=T, KV=KV)
        a.label("ATT_C_ENTRY")
        self.attn_setup_and_q()
        a(f"s_lshl_b32 s50, s{sW}, 13")
        for sl in range(3):
            for kk in range(2):
                a(f"v_add_u32 v{KA+2*sl+kk}, s50, v224")
                a(f"v_add_u32 v{KA+2*sl+kk}, {R2 + (SLOT_TS[sl]+kk)*4096}, v{KA+2*sl+kk}")
        a(f"""
        v_add_u32 v{VA}, s50, v1
        v_add_u32 v{VA+1}, {R2 + 65536 + 2048}, v{VA}
        v_add_u32 v{VA}, {R2 + 2048}, v{VA}
        """)
        self.o_voff(2, 3)
        a(f"""
        s_lshl_b32 s56, s{sQB}, 2
        s_add_u32 s56, s56, s{sW}
        s_mul_i32 s56, s56, {TS}
        s_add_u32 s56, s56, {WS_OA}
        """)

        def kv_reads(t):
            k, kk = divmod(t, 2)
            sl = k % 3
            b = KV + 16 * (t % 2)
            ts = SLOT_TS[sl] + kk
            out = []
            for f in range(2):
                out.append(f"ds_read2_b64 {vr(b+4*f,4)}, v{KA+2*sl+kk} offset0:{128*f} offset1:{128*f+64}")
            for f in range(2):
                vb, off = (VA, ts * 4096) if ts < 16 else (VA + 1, (ts - 16) * 4096)
                out.append(f"ds_read_b128 {vr(b+8+4*f,4)}, v{vb} offset:{off + 1024*f}")
            return out

        def qk(u, buf):
            t, j = divmod(u, 4)
            b = KV + 16 * (t % 2)
            d = vr(S + 16 * buf, 16)
            return (f"v_mfma_f32_32x32x16_bf16 {d}, {vr(b,4)}, {vr(Q+8*j,4)}, 0",
                    f"v_mfma_f32_32x32x16_bf16 {d}, {vr(b+4,4)}, {vr(Q+8*j+4,4)}, {d}")

        def pv(u, half):
            t, j = divmod(u, 4)
            b = KV + 16 * (t % 2)
            d = vr(O + 16 * j, 16)
            c = "0" if (t == 0 and half == 0) else d
            return f"v_mfma_f32_32x32x16_bf16 {d}, {vr(b+8+4*half,4)}, {vr(P+4*half,4)}, {c}"

        def part_write(j):
            out = ["s_mov_b32 exec_lo, 0", f"v_mov_b32 v{O+16*j+13}, v{NM+j}", "s_mov_b32 exec_lo, -1"]
            for qd in range(4):
                out.append(f"ds_write_b128 v{PW}, {vr(O+16*j+4*qd,4)} offset:{j*4096 + qd*1024}")
            return out
        self.part_write = part_write
        PW = 234
        a(f"s_lshl_b32 s50, s{sW}, 14")
        a(f"v_add_u32 v{PW}, s50, v1")
        a(f"v_add_u32 v{PW}, {CB}, v{PW}")
        if cfg.get("p1v", 1) != 2:
            a("s_waitcnt vmcnt(0)")
        self.stamp(0, "preS0")
        a("s_barrier")
        self.stamp(0, "S0")
        if cfg.get("p1v", 1) != 2:
            self.publish(f"""
            s_lshl_b32 s50, s2, 6
            s_add_u32 s50, s50, {WS_F + 0x4000}
            """, only_wave=0, t0=188, t1=189)
        F2B = -1
        a(f"v_add_u32 v3, 4096, v225")
        for j in range(4):
            for f in range(2):
                o0 = (j & 1) * 256 + 128 * f
                if o0 + 64 > 255:
                    a(f"v_add_u32 v4, {j*2048}, v225")
                    a(f"ds_read2_b64 {vr(Q+8*j+4*f,4)}, v4 offset0:{128*f} offset1:{128*f+64}")
                else:
                    a(f"ds_read2_b64 {vr(Q+8*j+4*f,4)}, v{225 if j < 2 else 3} offset0:{o0} offset1:{o0+64}")
        for x in kv_reads(0):
            a(x)
        a("s_waitcnt lgkmcnt(0)")
        a("s_mov_b32 exec_lo, 0")
        for j in range(4):
            a(f"v_mov_b32 v{Q+8*j+6}, 0")
            a(f"v_mov_b32 v{Q+8*j+7}, 0")
        a("s_mov_b32 exec_lo, -1")
        scr = [S, S + 16, O, O + 16]
        for j in range(4):
            d = vr(scr[j], 16)
            a(f"v_mfma_f32_32x32x16_bf16 {d}, {vr(KV,4)}, {vr(Q+8*j,4)}, 0")
            a(f"v_mfma_f32_32x32x16_bf16 {d}, {vr(KV+4,4)}, {vr(Q+8*j+4,4)}, {d}")
        for j in range(4):
            self.max_tree([scr[j] + r for r in range(16)], T + 2 * j, T + 2 * j + 1)
        for j in range(4):
            a(f"v_add_f32 v{T+2*j}, {f32bits(40.0)}, v{T+2*j}")
        for j in range(4):
            a(f"v_cvt_pk_bf16_f32 v{T+2*j+1}, -v{T+2*j}, 0")
        a("s_mov_b32 exec_lo, 0")
        for j in range(4):
            a(f"v_mov_b32 v{Q+8*j+6}, v{T+2*j+1}")
        a("s_mov_b32 exec_lo, -1")
        for j in range(4):
            a(f"v_lshlrev_b32 v{NM+j}, 16, v{T+2*j+1}")
        self.stamp(0, "att0")
        m0, m1 = qk(0, 0)
        a(m0)
        a(m1)
        for u in range(64):
            t, j = divmod(u, 4)
            sb = S + 16 * (u & 1)
            slots = [None] * 4
            post = [[] for _ in range(4)]
            if u + 1 < 64:
                slots[0], slots[1] = qk(u + 1, (u + 1) & 1)
            if u >= 1:
                slots[2] = pv(u - 1, 1)
            slots[3] = pv(u, 0)
            if t + 1 < 16:
                rd = kv_reads(t + 1)
                if j == 0 and t % 2 == 1:
                    if t == 2 * F2B - 1:
                        post[2].append("s_waitcnt vmcnt(0)")
                    post[2].append("s_barrier")
                    if cfg.get("ststage"):
                        post[2].append(("ST", f"S{(t+1)//2}"))
                    if t == 2 * F2B - 1:
                        post[2].append("PUB2")
                if j == 0:
                    post[3].append(rd[0])
                if j == 1:
                    post[0].append(rd[1])
                    post[1].append(rd[2])
                    post[2].append(rd[3])
                if j == 2:
                    post[3].append("s_waitcnt lgkmcnt(0)")
            if u >= 62:
                pwl = part_write(u - 62)
                post[0] += pwl[:4]
                post[1] += pwl[4:5]
                post[2] += pwl[5:6]
                post[3] += pwl[6:7]
            for g in range(4):
                r = 4 * g
                a(f"v_exp_f32 v{sb+r}, v{sb+r}")
                a(f"v_exp_f32 v{sb+r+1}, v{sb+r+1}")
                if slots[g]:
                    a(slots[g])
                for x in post[g]:
                    if isinstance(x, tuple):
                        self.stamp(0, x[1])
                    elif x == "PUB2":
                        self.publish(f"""
                        s_lshl_b32 s50, s2, 6
                        s_add_u32 s50, s50, {WS_F + 0x4000}
                        """, only_wave=0, t0=188, t1=189)
                    else:
                        a(x)
                a(f"v_exp_f32 v{sb+r+2}, v{sb+r+2}")
                a(f"v_exp_f32 v{sb+r+3}, v{sb+r+3}")
                a(f"v_cvt_pk_bf16_f32 v{P+2*g}, v{sb+r}, v{sb+r+1}")
                a(f"v_cvt_pk_bf16_f32 v{P+2*g+1}, v{sb+r+2}, v{sb+r+3}")
        a(pv(63, 1))
        self.stamp(0, "attE")
        for x in part_write(2) + part_write(3):
            a(x)
        a(f"""
        s_mov_b32 s50, {f32bits(2.0**-60)}
        s_mov_b32 s51, {f32bits(2.0**64)}
        s_mov_b64 s[52:53], -1
        """)
        for j in range(4):
            a(f"v_cmp_lt_f32 vcc, s50, v{O+16*j+12}")
            a("s_and_b64 s[52:53], s[52:53], vcc")
            a(f"v_cmp_gt_f32 vcc, s51, v{O+16*j+12}")
            a("s_and_b64 s[52:53], s[52:53], vcc")
        a("""
        s_cmp_eq_u32 s53, -1
        s_cbranch_scc0 FALLBACK
        """)
        a.label("COMBINE")
        a(f"""
        s_lshl_b32 s50, s{sW}, 12
        v_add_u32 v5, s50, v1
        v_add_u32 v5, {CB}, v5
        s_waitcnt lgkmcnt(0)
        s_barrier
        """)
        self.stamp(0, "C1")
        for k in range(4):
            for qd in range(4):
                a(f"ds_read_b128 {vr(O+16*k+4*qd,4)}, v5 offset:{k*16384 + qd*1024}")
        a("s_waitcnt lgkmcnt(0)")
        for k in range(4):
            a(f"v_mov_b32 v{T+2*k}, v{O+16*k+13}")
            a(f"v_mov_b32 v{T+2*k+1}, v{O+16*k+13}")
        for k in range(4):
            a(f"v_permlane32_swap_b32 v{T+2*k}, v{T+2*k+1}")
        a(f"v_min3_f32 v{T}, v{T+1}, v{T+3}, v{T+5}")
        a(f"v_min_f32 v{T}, v{T}, v{T+7}")
        for k in range(4):
            a(f"v_sub_f32 v{T+2*k+1}, v{T}, v{T+2*k+1}")
        for k in range(4):
            a(f"v_exp_f32 v{T+2*k+1}, v{T+2*k+1}")
        for r in range(16):
            a(f"v_mul_f32 v{O+r}, v{T+1}, v{O+r}")
        for k in range(1, 4):
            for r in range(16):
                a(f"v_fmac_f32 v{O+r}, v{T+2*k+1}, v{O+16*k+r}")
        self.finalize_o(O, T + 8, 2, "s56")
        a(f"""
        v_mov_b32 v188, {QL + 1792}
        v_mov_b32 v189, 1
        s_mov_b64 exec, 1
        ds_add_u32 v188, v189
        s_mov_b64 exec, -1
        """)
        a(f"""
        s_lshl_b32 s50, s{sQB}, 2
        s_add_u32 s50, s50, s{sW}
        s_lshl_b32 s50, s50, 4
        s_add_u32 s50, s50, s{sH}
        s_lshl_b32 s50, s50, 6
        s_add_u32 s50, s50, {WS_F + 0x10000}
        v_mov_b32 v188, 0
        v_mov_b32 v189, s{sNONCE}
        s_waitcnt vmcnt(0)
        s_mov_b64 exec, 1
        buffer_store_dword v189, v188, {sr(S_WS)}, s50 offen sc1
        s_mov_b64 exec, -1
        """)
        self.stamp(0, "pub3")
        a(f"s_cmp_ge_u32 s{sIDX}, 28")
        a("s_cbranch_scc1 C_DONE")
        a("s_barrier")
        self.oa_dma()
        a("s_waitcnt vmcnt(0)")
        a("s_barrier")
        a.label("C_DONE")
        self.stamp(0, "end")
        self.stamp_flush(14, 0)
        a("s_endpgm")

    def oa_dma(self):
        a = self.a
        a(f"""
        s_lshl_b32 s50, s{sRB3}, 1
        s_mul_i32 s50, s50, {TS}
        s_mul_i32 s51, s{sW}, 7168
        s_add_u32 s50, s50, s51
        s_add_u32 s50, s50, {WS_OA}
        s_add_u32 s52, s50, 4096
        s_add_u32 m0, s51, {OAL}
        """)
        for i in range(7):
            if i == 4:
                a(f"s_add_u32 m0, s51, {OAL + 4096}")
            a(f"buffer_load_dwordx4 v1, {sr(S_WS)}, {'s50' if i < 4 else 's52'} offen offset:{(i%4)*1024}{LSC} lds")

    def fallback(self):
        a = self.a
        R = self.regs
        Q, O, S, P, NM, T, KV = R["Q"], R["O"], R["S"], R["P"], R["NM"], R["T"], R["KV"]
        a.label("FALLBACK")
        a("s_nop 15")
        a(f"""
        v_and_b32 v5, 31, v0
        v_lshrrev_b32 v6, 5, v0
        v_lshlrev_b32 v5, 4, v5
        s_movk_i32 s50, 7168
        v_mad_u32_u24 v5, v6, s50, v5          ; V voffset
        s_lshl_b32 s57, s{sW}, 4
        s_mul_i32 s57, s57, {TS}
        s_mul_i32 s50, s{sH}, 1792
        s_add_u32 s58, s57, s50
        s_add_u32 s58, s58, {WS_K}
        s_mul_i32 s50, s{sH}, 448
        s_add_u32 s59, s57, s50
        s_add_u32 s59, s59, {WS_V}
        s_mov_b32 exec_lo, 0
        """)
        for j in range(4):
            a(f"v_mov_b32 v{Q+8*j+6}, 0")
        a(f"v_mov_b32 v{KV+6}, 0")
        a(f"v_mov_b32 v{KV+7}, 0")
        a("s_mov_b32 exec_lo, -1")
        for r in range(8):
            a(f"v_mov_b32 v{KV+8+r}, 0")
        a("s_mov_b32 exec_lo, 0x10000000")
        a("s_mov_b32 exec_hi, 0x10000000")
        for r in range(8):
            a(f"v_mov_b32 v{KV+8+r}, 0x3f803f80")
        a("s_mov_b64 exec, -1")
        for j in range(4):
            a(f"v_mov_b32 v{NM+j}, {f32bits(3.0e38)}")
            for r in range(16):
                a(f"v_mov_b32 v{O+16*j+r}, 0")
        a("s_mov_b32 s57, 0")
        a.label("FB_LOOP")
        self.load_qk_frag(KV, 224, "s58")
        a(f"""
        s_add_u32 s50, s59, 14336
        s_mov_b32 exec_lo, 0x0fffffff
        s_mov_b32 exec_hi, 0x0fffffff
        buffer_load_dwordx4 {vr(KV+8,4)}, v5, {sr(S_WS)}, s59 offen{LSC}
        buffer_load_dwordx4 {vr(KV+12,4)}, v5, {sr(S_WS)}, s50 offen{LSC}
        s_mov_b64 exec, -1
        s_waitcnt vmcnt(0)
        """)
        for j in range(4):
            d = vr(S, 16)
            a(f"v_mfma_f32_32x32x16_bf16 {d}, {vr(KV,4)}, {vr(Q+8*j,4)}, 0")
            a(f"v_mfma_f32_32x32x16_bf16 {d}, {vr(KV+4,4)}, {vr(Q+8*j+4,4)}, {d}")
            self.max_tree([S + r for r in range(16)], T, T + 1)
            a(f"v_min_f32 v{T+1}, v{NM+j}, -v{T}")
            a(f"v_sub_f32 v{T+2}, v{T+1}, v{NM+j}")
            a(f"v_exp_f32 v{T+2}, v{T+2}")
            a(f"v_mov_b32 v{NM+j}, v{T+1}")
            for r in range(16):
                a(f"v_add_f32 v{S+r}, v{S+r}, v{T+1}")
            for r in range(16):
                a(f"v_exp_f32 v{S+r}, v{S+r}")
            for r in range(16):
                a(f"v_mul_f32 v{O+16*j+r}, v{T+2}, v{O+16*j+r}")
            for r in range(8):
                a(f"v_cvt_pk_bf16_f32 v{P+r}, v{S+2*r}, v{S+2*r+1}")
            o = vr(O + 16 * j, 16)
            a(f"v_mfma_f32_32x32x16_bf16 {o}, {vr(KV+8,4)}, {vr(P,4)}, {o}")
            a(f"v_mfma_f32_32x32x16_bf16 {o}, {vr(KV+12,4)}, {vr(P+4,4)}, {o}")
        a(f"""
        s_nop 15
        s_add_u32 s58, s58, {TS}
        s_add_u32 s59, s59, {TS}
        s_add_u32 s57, s57, 1
        s_cmp_lt_u32 s57, 16
        s_cbranch_scc1 FB_LOOP
        """)
        for j in range(4):
            for x in self.part_write(j):
                a(x)
        a("s_branch COMBINE")

    def helper_p1(self):
        a, cfg = self.a, self.cfg
        a.label("HELPER")
        a(f"s_setprio {cfg.get('hprio', 3)}")
        a(f"""
        s_sub_u32 s56, s{sW}, 4         ; j
        v_lshrrev_b32 v2, 3, v0
        v_and_b32 v3, 7, v0
        v_lshrrev_b32 v4, 4, v0
        v_xor_b32 v8, v3, v4
        v_lshlrev_b32 v8, 4, v8
        s_movk_i32 s50, 896
        v_mad_u32_u24 v5, v2, s50, v8
        v_xor_b32 v6, 64, v5
        v_and_b32 v4, 1, v4
        v_lshlrev_b32 v4, 2, v4
        v_xor_b32 v8, v3, v4
        v_lshlrev_b32 v8, 4, v8
        s_movk_i32 s50, 2688
        v_mad_u32_u24 v7, v2, s50, v8   ; W voff
        s_lshl_b32 s57, s{sRB}, 6
        s_lshl_b32 s50, s56, 4
        s_add_u32 s57, s57, s50
        s_mul_i32 s57, s57, 896
        s_lshl_b32 s58, s{sCG}, 7
        s_mul_i32 s50, s56, 43008
        s_add_u32 s58, s58, s50         ; W base
        s_lshl_b32 s59, s56, 11
        """)
        self.srds_first()
        q = VmQ()
        self.hq = q

        steps, units, sched = self.p1_plan()
        xdone = set()

        def issue(j):
            pcs, cs = steps[j]
            for c in cs:
                if c not in xdone:
                    xdone.add(c)
                    for i in range(2):
                        a(f"s_add_u32 s50, s57, {8*i*896 + 128*c}")
                        a(f"s_add_u32 m0, s59, {R1 + c*8192 + 8*i*128}")
                        a(f"buffer_load_dwordx4 v{5+i}, {sr(S_X)}, s50 offen lds")
                        q.push(("c", j))
                for (br, part) in pcs:
                    un = units[j][((br, part), c)]
                    for ii in range(2):
                        a(f"s_add_u32 s50, s58, {part*896 + (64*c + 8*ii)*2688}")
                        a(f"s_add_u32 m0, s59, {R2 + un*8192 + 8*ii*128}")
                        a(f"buffer_load_dwordx4 v7, {sr(S_WA if br == 0 else S_WB)}, s50 offen lds")
                        q.push(("c", j))

        for j in sched[-1]:
            issue(j)
        self.srds_rest()
        self.get_nonce()
        for b in range(len(steps)):
            n = q.wait_for(("c", b))
            if n is not None:
                a(f"s_waitcnt vmcnt({n})")
            a("s_barrier")
            for j in sched[b]:
                issue(j)
            if b == 9:
                a(f"v_mov_b32 v12, 0")
                a(f"buffer_load_dword v14, v12, {sr(S_DBG)}, 0 offen sc1")
                q.push("non")
        self.stamp(1, "poll1")
        a("s_waitcnt vmcnt(0)")
        self.read_nonce(early=14)
        self.poll_all(0)
        self.stamp(1, "got1")
        q.clear()
        a("s_barrier")

    def helper_attn(self):
        a, cfg = self.a, self.cfg
        q = self.hq
        a.label("ATT_H_ENTRY")
        VMASK = "s_mov_b32 exec_lo, 0x0fffffff\ns_mov_b32 exec_hi, 0x0fffffff"
        a(f"""
        s_sub_u32 s56, s{sW}, 4         ; j
        v_and_b32 v2, 31, v0
        v_lshrrev_b32 v3, 5, v0
        v_lshlrev_b32 v4, 4, v2
        s_movk_i32 s50, 7168
        v_mad_u32_u24 v4, v3, s50, v4   ; v4 = V voffset
        v_lshlrev_b32 v5, 3, v2
        v_lshl_add_u32 v5, v3, 8, v5
        s_lshl_b32 s57, s56, 4
        s_mul_i32 s57, s57, {TS}
        s_mul_i32 s50, s{sH}, 1792
        s_add_u32 s58, s57, s50
        s_add_u32 s58, s58, {WS_K}      ; K stream
        s_mul_i32 s50, s{sH}, 448
        s_add_u32 s59, s57, s50
        s_add_u32 s59, s59, {WS_V}      ; V stream
        s_lshl_b32 s60, s56, 13         ; j*8192 lds
        v_lshlrev_b32 v6, 3, v0
        v_add_u32 v6, s60, v6
        v_add_u32 v6, {R2 + 1792}, v6
        v_mov_b32 v8, 0x3f80
        v_mov_b32 v9, 0
        v_and_b32 v7, 3, v0
        v_cmp_eq_u32 vcc, 0, v7
        v_mov_b32 v16, 0
        v_mov_b32 v17, 0x3f803f80
        v_cndmask_b32 v16, v16, v17, vcc
        v_mov_b32 v17, v16
        v_mov_b32 v18, v16
        v_mov_b32 v19, v16
        v_bfe_u32 v10, v0, 2, 1         ; hf
        v_lshl_add_u32 v7, v10, 5, v7
        v_bfe_u32 v10, v0, 3, 1         ; f
        v_lshl_add_u32 v7, v10, 6, v7
        v_lshlrev_b32 v7, 4, v7
        v_add_u32 v7, s60, v7
        v_add_u32 v7, {R2 + 2048 + 448}, v7
        """)

        def consts(sl):
            for kk in range(2):
                off = (SLOT_TS[sl] + kk) * 4096
                vb6, vb7, o = 6, 7, off
                if off > 60000:
                    a(f"v_add_u32 v10, {off}, v6")
                    a(f"v_add_u32 v11, {off}, v7")
                    vb6, vb7, o = 10, 11, 0
                a("s_mov_b32 exec_hi, 0")
                a(f"ds_write_b64 v{vb6}, v[8:9] offset:{o}")
                a("s_mov_b32 exec_lo, 0xffff")
                a(f"ds_write_b128 v{vb7}, v[16:19] offset:{o}")
                a("s_mov_b64 exec, -1")

        def stage(k):
            sl = k % 3
            for kk in range(2):
                base = R2 + (SLOT_TS[sl] + kk) * 4096
                if kk == 0:
                    a(f"s_add_u32 s51, s{sQB}, {k}")
                    a("s_and_b32 s51, s51, 7")
                    a(f"s_mul_i32 s51, s51, {2*TS*cfg.get('rotkv', 0)}")
                    if not cfg.get('rotkv', 0):
                        a(f"s_mov_b32 s51, {2*k*TS}")
                    a("s_add_u32 s52, s51, s58")
                    a("s_add_u32 s53, s51, s59")
                a(f"s_add_u32 s50, s52, {kk*TS}")
                a(f"s_add_u32 m0, s60, {base}")
                a(f"buffer_load_dwordx4 v1, {sr(S_WS)}, s50 offen{LSC} lds")
                a("s_mov_b32 exec_hi, 0xffff")
                a(f"buffer_load_dwordx4 v1, {sr(S_WS)}, s50 offen offset:1024{LSC} lds")
                a(VMASK)
                for f in range(2):
                    a(f"s_add_u32 s50, s53, {kk*TS + f*14336}")
                    a(f"s_add_u32 m0, s60, {base + 2048 + 1024*f}")
                    a(f"buffer_load_dwordx4 v4, {sr(S_WS)}, s50 offen{LSC} lds")
                a("s_mov_b64 exec, -1")
                for _ in range(4):
                    q.push(("s", k))

        def q_dma():
            a(f"""
            s_lshl_b32 s50, s{sQB}, 2
            s_add_u32 s50, s50, s56
            s_mul_i32 s50, s50, {TS}
            s_mul_i32 s51, s{sH}, 1792
            s_add_u32 s50, s50, s51
            s_lshl_b32 s51, s56, 11
            s_add_u32 m0, s51, {QL}
            buffer_load_dwordx4 v1, {sr(S_WS)}, s50 offen{LSC} lds
            s_mov_b32 exec_hi, 0xffff
            buffer_load_dwordx4 v1, {sr(S_WS)}, s50 offen offset:1024{LSC} lds
            s_mov_b32 exec_hi, -1
            """)
            q.push(("s", 0))
            q.push(("s", 0))

        def bar(k):
            n = q.wait_for(("s", k))
            if n is not None:
                a(f"s_waitcnt vmcnt({n}) lgkmcnt(0)")
            else:
                a("s_waitcnt lgkmcnt(0)")
            a("s_barrier")

        def wo_dma(srd_, region, tag, lo=0, hi=14):
            a(f"""
            v_lshrrev_b32 v10, 3, v0
            v_and_b32 v11, 7, v0
            v_bfe_u32 v12, v0, 4, 1
            v_lshlrev_b32 v12, 2, v12
            v_xor_b32 v11, v11, v12
            v_lshlrev_b32 v11, 4, v11
            s_movk_i32 s50, 896
            v_mad_u32_u24 v10, v10, s50, v11
            s_mul_i32 s51, s56, 100352
            s_lshl_b32 s50, s{sCB3}, 7
            s_add_u32 s51, s51, s50
            s_mul_i32 s52, s56, 14336
            """)
            for i in range(lo, hi):
                a(f"s_add_u32 s50, s51, {8*i*896}")
                a(f"s_add_u32 m0, s52, {region + i*1024}")
                a(f"buffer_load_dwordx4 v10, {sr(srd_)}, s50 offen lds")
                q.push(tag)

        skip3 = lambda name: (f"s_cmp_ge_u32 s{sIDX}, 28\ns_cbranch_scc1 {name}")

        q_dma()
        stage(0)
        consts(0)
        consts(1)
        consts(2)
        a(f"""
        v_mov_b32 v10, {QL + 1792}
        v_mov_b32 v11, 0
        ds_write_b32 v10, v11
        """)
        if cfg.get("s1early", 1):
            stage(1)
        bar(0)
        self.stamp(1, "S0")
        if not cfg.get("s1early", 1):
            stage(1)
        stage(2)
        wo_dma(S_WOB, R1, "woB", 0, 7)
        bar(1)
        stage(3)
        wo_dma(S_WOB, R1, "woB", 7, 14)
        bar(2)
        self.poll_issue("all", 0x4000, q)
        stage(4)
        a(f"s_waitcnt vmcnt({q.wait_for('poll')})")
        self.poll_check("all", 0x4000)
        self.stamp(1, "got2")
        a("s_barrier")
        stage(5)
        self.local_attn_loads(q)
        bar(4)
        stage(6)
        self.local_attn(q)
        self.stamp(1, "Ldone")
        bar(5)
        stage(7)
        self.out_gemm_setup()
        q.push("g")
        a(f"s_waitcnt vmcnt({q.wait_for('ost')})")
        a("s_barrier")
        self.publish(f"""
        s_lshl_b32 s50, s{sQB}, 4
        s_add_u32 s50, s50, s{sH}
        s_lshl_b32 s50, s50, 6
        s_add_u32 s50, s50, {WS_F + 0xC000}
        """, balance=True)
        q.push("pub")
        bar(7)
        self.poll16(0xC000, everyone=True)
        q.clear()
        self.stamp(1, "got4")
        self.out_gemm_loads(1, q, 0, 28)
        a("s_setprio 0")
        self.stamp(1, "oBiss")
        a("s_barrier")
        a(skip3("H_DONE"))
        self.out_gemm(1, R1, q, loads=False)
        lp = self.lab("HS")
        a(f"""
        v_mov_b32 v10, {QL + 1792}
        v_mov_b32 v11, 1
        s_mov_b64 exec, 1
        ds_add_u32 v10, v11
        s_mov_b64 exec, -1
        s_mov_b32 s51, 0
        """)
        a.label(lp)
        a(f"""
        ds_read_b32 v11, v10
        s_add_u32 s51, s51, 1
        s_waitcnt lgkmcnt(0)
        v_readfirstlane_b32 s50, v11
        s_cmp_ge_u32 s51, {SPIN_MAX}
        s_cbranch_scc1 {lp}_X
        s_cmp_lt_u32 s50, 8
        s_cbranch_scc1 {lp}
        """)
        a.label(lp + "_X")
        self.stamp(1, "bdone")
        wo_dma(S_WOA, R1, "woA")
        self.poll32()
        q.clear()
        a("s_barrier")
        self.stamp(1, "got3")
        self.oa_dma()
        a(f"""
        s_mul_i32 s50, s62, {TS}
        v_add_u32 v21, s50, v1
        v_add_u32 v21, {OAL}, v21
        s_waitcnt vmcnt(0)
        s_barrier
        """)
        self.stamp(1, "C4")
        self.out_gemm_lds()
        self.out_epilogue()
        a.label("H_DONE")
        if cfg.get("stamps"):
            a("s_waitcnt vmcnt(0)")
        self.stamp(1, "end")
        self.stamp_flush(14, 1)
        a("s_endpgm")

    def poll32(self):
        a = self.a
        loop, done = self.lab("POLL"), self.lab("POLLD")
        a(f"""
        s_waitcnt vmcnt(0)
        s_cmp_lg_u32 s{sW}, 4
        s_cbranch_scc1 {done}
        s_lshl_b32 s50, s{sRB3}, 11
        s_add_u32 s50, s50, {WS_F + 0x10000}
        s_mov_b32 s51, 0
        v_and_b32 v13, 31, v0
        v_lshlrev_b32 v13, 6, v13
        """)
        if self.cfg.get("pipepoll", 1):
            regs = (140, 141, 142)
            for r in regs[:2]:
                a(f"buffer_load_dword v{r}, v13, {sr(S_WS)}, s50 offen sc1")
                a("s_sleep 3")
            a.label(loop)
            for i, r in enumerate(regs):
                a(f"""
                buffer_load_dword v{regs[(i+2) % 3]}, v13, {sr(S_WS)}, s50 offen sc1
                s_waitcnt vmcnt(2)
                v_cmp_eq_u32 s[52:53], s{sNONCE}, v{r}
                s_cmp_eq_u64 s[52:53], -1
                s_cbranch_scc1 {done}
                """)
            a(f"""
            s_add_u32 s51, s51, 1
            s_cmp_lt_u32 s51, {SPIN_MAX}
            s_cbranch_scc1 {loop}
            """)
        else:
            a.label(loop)
            a(f"""
            buffer_load_dword v12, v13, {sr(S_WS)}, s50 offen sc1
            s_waitcnt vmcnt(0)
            v_cmp_eq_u32 s[52:53], s{sNONCE}, v12
            s_cmp_eq_u64 s[52:53], -1
            s_cbranch_scc1 {done}
            s_add_u32 s51, s51, 1
            s_cmp_lt_u32 s51, {SPIN_MAX}
            s_cbranch_scc1 {loop}
            """)
        a.label(done)

    def out_gemm_lds(self):
        a = self.a
        ACC, NB = 64, 4
        WF, OFB = 32, 96

        def reads(s):
            b = WF + 4 * (s % NB)
            a(f"ds_read_b128 {vr(OFB+4*(s % NB),4)}, v21 offset:{s*1024}")
            for u in range(2):
                a(f"ds_read_b64_tr_b16 {vr(b+2*u,2)}, v20 offset:{(16*s+4*u)*128}")

        for s in range(NB - 1):
            reads(s)
        for s in range(28):
            if s + NB - 1 < 28:
                reads(s + NB - 1)
                lg = 3 * (NB - 1)
            else:
                lg = 3 * (27 - s)
            a(f"s_waitcnt lgkmcnt({lg})")
            d = vr(ACC, 16)
            c = "0" if s == 0 else d
            a(f"v_mfma_f32_32x32x16_bf16 {d}, {vr(WF+4*(s % NB),4)}, {vr(OFB+4*(s % NB),4)}, {c}")

    def local_attn_loads(self, q):
        a = self.a
        LQ, LK, LKP, LV, LVP = 20, 28, 36, 44, 52
        a(f"""
        s_lshl_b32 s61, s{sQB}, 2
        s_add_u32 s61, s61, s56         ; tB
        s_mul_i32 s62, s61, {TS}
        s_sub_u32 s63, s62, {TS}
        s_cmp_eq_u32 s61, 0
        s_cselect_b32 s63, s62, s63
        s_cselect_b32 s55, 0, -1
        s_mul_i32 s54, s{sH}, 1792
        s_add_u32 s50, s62, s54
        s_add_u32 s50, s50, {BR + WS_Q}
        """)
        for r in (LQ + 6, LQ + 7, LK + 6, LK + 7, LKP + 6, LKP + 7):
            a(f"v_mov_b32 v{r}, 0")
        for r in range(12):
            a(f"v_mov_b32 v{LV+r}, 0")
        a("s_mov_b32 exec_lo, 0x10000000")
        a("s_mov_b32 exec_hi, 0x10000000")
        for r in range(12):
            a(f"v_mov_b32 v{LV+r}, 0x3f803f80")
        a("s_mov_b64 exec, -1")
        self.load_qk_frag(LQ, 5, "s50", q, "L")
        a(f"s_add_u32 s50, s50, {WS_K - WS_Q}")
        self.load_qk_frag(LK, 5, "s50", q, "L")
        a(f"s_add_u32 s50, s63, s54")
        a(f"s_add_u32 s50, s50, {BR + WS_K}")
        self.load_qk_frag(LKP, 5, "s50", q, "L")
        a(f"""
        s_mul_i32 s54, s{sH}, 448
        s_add_u32 s50, s62, s54
        s_add_u32 s50, s50, {BR + WS_V}
        s_add_u32 s51, s50, 14336
        s_add_u32 s52, s63, s54
        s_add_u32 s52, s52, {BR + WS_V + 14336}
        s_mov_b32 exec_lo, 0x0fffffff
        s_mov_b32 exec_hi, 0x0fffffff
        buffer_load_dwordx4 {vr(LV,4)}, v4, {sr(S_WS)}, s50 offen{LSC}
        buffer_load_dwordx4 {vr(LV+4,4)}, v4, {sr(S_WS)}, s51 offen{LSC}
        buffer_load_dwordx4 {vr(LVP,4)}, v4, {sr(S_WS)}, s52 offen{LSC}
        s_mov_b64 exec, -1
        v_mov_b32 v15, {NEG_BIG}
        s_add_u32 s62, s62, {WS_OB}
        """)
        for _ in range(3):
            q.push("L")
        self.o_voff(14, 13)

    def local_attn(self, q):
        a = self.a
        LQ, LK, LKP, LV, LVP = 20, 28, 36, 44, 52
        Sd, Sp, P, T, O = 64, 80, 96, 104, 124
        n = q.wait_for("L")
        if n is not None:
            a(f"s_waitcnt vmcnt({n})")
        a(f"v_mfma_f32_32x32x16_bf16 {vr(Sd,16)}, {vr(LK,4)}, {vr(LQ,4)}, 0")
        a(f"v_mfma_f32_32x32x16_bf16 {vr(Sp,16)}, {vr(LKP,4)}, {vr(LQ,4)}, 0")
        a(f"v_mfma_f32_32x32x16_bf16 {vr(Sd,16)}, {vr(LK+4,4)}, {vr(LQ+4,4)}, {vr(Sd,16)}")
        a(f"v_mfma_f32_32x32x16_bf16 {vr(Sp,16)}, {vr(LKP+4,4)}, {vr(LQ+4,4)}, {vr(Sp,16)}")
        regs = []
        for r in range(16):
            m = lane_mask(lambda l: (((l & 31) - ((r & 3) + 8 * (r >> 2) + 4 * (l >> 5))) & ~14) == 0)
            sp = 50 + 2 * (r & 1)
            a(f"s_mov_b32 s{sp}, {m & 0xffffffff:#x}")
            a(f"s_mov_b32 s{sp+1}, {m >> 32:#x}")
            a(f"v_cndmask_b32 v{Sd+r}, v15, v{Sd+r}, s[{sp}:{sp+1}]")
            regs.append(Sd + r)
        for r in range(8, 16):
            m = lane_mask(lambda l: ((32 + (l & 31) - ((r & 3) + 8 * (r >> 2) + 4 * (l >> 5))) & ~14) == 0)
            sp = 50 + 2 * (r & 1)
            a(f"s_and_b32 s{sp}, s55, {m & 0xffffffff:#x}")
            a(f"s_and_b32 s{sp+1}, s55, {m >> 32:#x}")
            a(f"v_cndmask_b32 v{Sp+r}, v15, v{Sp+r}, s[{sp}:{sp+1}]")
            regs.append(Sp + r)
        self.max_tree(regs, T, T + 1)
        for r in regs:
            a(f"v_sub_f32 v{r}, v{r}, v{T}")
        for r in regs:
            a(f"v_exp_f32 v{r}, v{r}")
        for r in range(8):
            a(f"v_cvt_pk_bf16_f32 v{P+r}, v{Sd+2*r}, v{Sd+2*r+1}")
        for r in range(4):
            a(f"v_cvt_pk_bf16_f32 v{T+4+r}, v{Sp+8+2*r}, v{Sp+9+2*r}")
        a(f"v_mfma_f32_32x32x16_bf16 {vr(O,16)}, {vr(LV,4)}, {vr(P,4)}, 0")
        a(f"v_mfma_f32_32x32x16_bf16 {vr(O,16)}, {vr(LV+4,4)}, {vr(P+4,4)}, {vr(O,16)}")
        a(f"v_mfma_f32_32x32x16_bf16 {vr(O,16)}, {vr(LVP,4)}, {vr(T+4,4)}, {vr(O,16)}")
        self.finalize_o(O, T + 8, 14, "s62", q)

    def out_gemm_setup(self):
        a = self.a
        a(f"""
        s_and_b32 s62, s56, 1
        s_lshr_b32 s63, s56, 1
        v_and_b32 v20, 3, v0
        v_lshlrev_b32 v20, 3, v20
        v_bfe_u32 v21, v0, 4, 1
        v_lshl_add_u32 v20, v21, 5, v20
        s_lshl_b32 s50, s63, 6
        v_add_u32 v20, s50, v20
        v_bfe_u32 v21, v0, 3, 1
        v_lshlrev_b32 v21, 6, v21
        v_xor_b32 v20, v20, v21
        v_bfe_u32 v21, v0, 2, 2
        v_lshl_add_u32 v21, v3, 3, v21
        v_lshl_add_u32 v20, v21, 7, v20
        s_lshl_b32 s61, s{sRB3}, 1
        s_add_u32 s61, s61, s62         ; q tile
        s_lshl_b32 s50, s61, 7
        s_add_u32 s50, s50, {WS_G}
        v_lshlrev_b32 v22, 2, v2
        buffer_load_dword v23, v22, {sr(S_WS)}, s50 offen{LSC}
        s_mul_i32 s61, s61, {TS}
        """)

    def out_gemm_loads(self, br, q, lo=0, hi=28):
        a = self.a
        OF = 144
        for s in range(lo, hi):
            if s % 4 == 0:
                a(f"s_add_u32 s50, s61, {(WS_OA if br == 0 else WS_OB) + s*1024}")
            a(f"buffer_load_dwordx4 {vr(OF+4*s,4)}, v1, {sr(S_WS)}, s50 offen offset:{(s%4)*1024}{LSC}")
            q.push(("o", s))

    def out_gemm(self, br, region, q, loads=True):
        a = self.a
        ACC = 64 + 16 * br
        OF = 144
        WF, NB = 32, 4
        areg = 20 if region == R1 else 21
        if loads:
            self.out_gemm_loads(br, q)

        def reads(s):
            b = WF + 4 * (s % NB)
            for u in range(2):
                a(f"ds_read_b64_tr_b16 {vr(b+2*u,2)}, v{areg} offset:{(16*s+4*u)*128}")

        for s in range(NB - 1):
            reads(s)
        for s in range(28):
            if s + NB - 1 < 28:
                reads(s + NB - 1)
                lg = 2 * (NB - 1)
            else:
                lg = 2 * (27 - s)
            n = q.wait_for(('o', s))
            a(f"s_waitcnt lgkmcnt({lg})" if n is None else f"s_waitcnt vmcnt({n}) lgkmcnt({lg})")
            b = WF + 4 * (s % NB)
            d = vr(ACC, 16)
            c = "0" if s == 0 else d
            a(f"v_mfma_f32_32x32x16_bf16 {d}, {vr(b,4)}, {vr(OF+4*s,4)}, {c}")

    def out_epilogue(self):
        a = self.a
        A, B, W = 64, 80, 32
        a(f"""
        v_sub_f32 v24, 1.0, v23
        v_cvt_pk_bf16_f32 v24, v24, v24
        v_lshlrev_b32 v24, 16, v24
        s_lshl_b32 s50, s{sRB3}, 6
        s_lshl_b32 s51, s62, 5
        s_add_u32 s50, s50, s51
        v_add_u32 v25, s50, v2
        s_movk_i32 s50, 896
        v_mul_lo_u32 v25, v25, s50
        v_lshl_add_u32 v25, v3, 4, v25
        s_lshl_b32 s50, s{sCB3}, 7
        s_lshl_b32 s51, s63, 6
        s_add_u32 s50, s50, s51
        """)
        for r in range(16):
            a(f"v_mul_f32 v{B+r}, v24, v{B+r}")
        for r in range(16):
            a(f"v_fma_f32 v{A+r}, v23, v{A+r}, v{B+r}")
        for r in range(8):
            a(f"v_cvt_pk_bf16_f32 v{W+r}, v{A+2*r}, v{A+2*r+1}")
        for pr in range(2):
            b = W + 4 * pr
            a(f"v_permlane32_swap_b32 v{b}, v{b+2}")
            a(f"v_permlane32_swap_b32 v{b+1}, v{b+3}")
            a(f"buffer_store_dwordx4 {vr(b,4)}, v25, {sr(S_OUT)}, s50 offen offset:{32*pr}")

    def gate_wg(self):
        a = self.a
        a.label("GATE_WG")
        a(f"""
        s_lshl_b32 s56, s{sGI}, 6
        s_lshl_b32 s50, s{sW}, 4
        s_add_u32 s56, s56, s50
        s_mul_i32 s57, s56, 896
        """)
        NR = 16
        GW = 16 + 4 * NR
        for r in range(4 * NR + 4):
            a(f"v_mov_b32 v{16+r}, 0")
        a("s_mov_b32 exec_hi, 0x00ffffff")
        a(f"buffer_load_dwordx4 {vr(GW,4)}, v1, {sr(S_GATE)}, 0 offen")
        for i in range(NR):
            a(f"s_add_u32 s50, s57, {896*i}")
            a(f"buffer_load_dwordx4 {vr(16+4*i,4)}, v1, {sr(S_X)}, s50 offen")
        a("s_mov_b64 exec, -1")
        Z = GW + 4
        for i in range(NR):
            a(f"v_mov_b32 v{Z+i}, 0")
        a("s_waitcnt vmcnt(0)")
        for r in range(4):
            for i in range(NR):
                a(f"v_dot2_f32_bf16 v{Z+i}, v{16+4*i+r}, v{GW+r}, v{Z+i}")
        a("s_nop 2")
        for sh in (1, 2, 4, 8):
            for i in range(NR):
                a(f"v_add_f32_dpp v{Z+i}, v{Z+i}, v{Z+i} row_shr:{sh} row_mask:0xf bank_mask:0xf bound_ctrl:0")
        for i in range(NR):
            a(f"v_add_f32_dpp v{Z+i}, v{Z+i}, v{Z+i} row_bcast:15 row_mask:0xa bank_mask:0xf")
        for i in range(NR):
            a(f"v_add_f32_dpp v{Z+i}, v{Z+i}, v{Z+i} row_bcast:31 row_mask:0xc bank_mask:0xf")

        def round_pairs():
            for i in range(0, NR, 2):
                a(f"v_cvt_pk_bf16_f32 v16, v{Z+i}, v{Z+i+1}")
                a(f"v_lshlrev_b32 v{Z+i}, 16, v16")
                a(f"v_and_b32 v{Z+i+1}, 0xffff0000, v16")
        round_pairs()
        for i in range(NR):
            a(f"v_mul_f32 v{Z+i}, {NLOG2E}, v{Z+i}")
        for i in range(NR):
            a(f"v_exp_f32 v{Z+i}, v{Z+i}")
        for i in range(NR):
            a(f"v_add_f32 v{Z+i}, 1.0, v{Z+i}")
        for i in range(NR):
            a(f"v_rcp_f32 v{Z+i}, v{Z+i}")
        round_pairs()
        a(f"""
        s_lshl_b32 s50, s56, 2
        s_add_u32 s50, s50, {WS_G}
        v_mov_b32 v16, 0
        s_mov_b32 exec_lo, 0
        s_mov_b32 exec_hi, 0x80000000
        """)
        for i in range(NR // 4):
            a(f"buffer_store_dwordx4 {vr(Z+4*i,4)}, v16, {sr(S_WS)}, s50 offen offset:{16*i} sc1")
        a("""
        s_mov_b64 exec, -1
        s_waitcnt vmcnt(0)
        s_barrier
        """)
        self.read_nonce(t0=188, t1=189)
        self.publish(f"""
        s_lshl_b32 s50, s2, 6
        s_add_u32 s50, s50, {WS_F}
        """, only_wave=0, t0=188, t1=189)
        if self.cfg.get("p1v", 1) == 2:
            self.publish(f"""
            s_lshl_b32 s50, s2, 6
            s_add_u32 s50, s50, {WS_F + 0x4000}
            """, only_wave=0, t0=188, t1=189)
        a("""
        s_barrier
        s_branch ATT_C_ENTRY
        """)
        a.label("GATE_H")
        a(f"s_setprio {self.cfg.get('hprio', 3)}")
        self.srds_first()
        self.srds_rest()
        if not self.cfg.get("l2pf", 1):
            a("s_barrier")
        if self.cfg.get("l2pf", 1):
            a(f"""
            s_sub_u32 s56, s{sIDX}, 28
            s_lshl_b32 s56, s56, 2
            s_add_u32 s56, s56, s{sW}
            s_sub_u32 s56, s56, 4           ; pw 0..15
            s_lshr_b32 s50, s{sXCD}, 1
            s_mul_i32 s57, s50, {512*896}
            s_mul_i32 s50, s56, 28672
            s_add_u32 s57, s57, s50         ; x slice
            v_and_b32 v2, 31, v0
            v_lshlrev_b32 v2, 4, v2
            v_lshrrev_b32 v3, 5, v0
            s_movk_i32 s50, 896
            v_mad_u32_u24 v4, v3, s50, v2   ; (r0,p0),(r0,p1)
            v_add_u32 v5, 1792, v4          ; (r0,p2),(r1,p0)
            v_add_u32 v6, 3584, v4          ; (r1,p1),(r1,p2)
            s_and_b32 s50, s{sXCD}, 1
            s_mul_i32 s58, s50, 384
            s_mul_i32 s50, s56, 5376
            s_add_u32 s58, s58, s50
            s_lshl_b32 s59, s56, 10
            """)
            n = [0]

            def dst():
                n[0] += 1
                return vr(16 + 4 * (n[0] % 32), 4)
            for sw in (S_WB,):
                for i in range(14):
                    a(f"s_add_u32 s50, s58, {i*16*5376}")
                    for k in range(3):
                        a(f"buffer_load_dwordx4 {dst()}, v{4+k}, {sr(sw)}, s50 offen")
                a("s_barrier")
            for sw in ((S_WOB, S_WOA) if self.cfg.get("l2pf") == 2 else ()):
                for i in range(25):
                    a(f"s_add_u32 s50, s59, {i*16384}")
                    a(f"buffer_load_dwordx4 {dst()}, v1, {sr(sw)}, s50 offen")
        self.read_nonce()
        self.poll_all(0)
        a("""
        s_barrier
        s_branch ATT_H_ENTRY
        """)


def build(cfg):
    g = Gen(cfg)
    body = g.build()
    head = f"""; {NAME}: one persistent launch (projections -> attention -> output projection + gated mix)
; @launch grid=(256,1,1) block=(512,1,1) lds={LDS_BYTES}
.amdgcn_target "amdgcn-amd-amdhsa--gfx950"
.text
.globl {NAME}_kernel
"""
    tail = f""".section .rodata,"a"
.p2align 6
.amdhsa_kernel {NAME}_kernel
  .amdhsa_next_free_vgpr 256
  .amdhsa_next_free_sgpr 100
  .amdhsa_accum_offset {256}
  .amdhsa_group_segment_fixed_size 0
  .amdhsa_kernarg_size 80
  .amdhsa_user_sgpr_count 2
  .amdhsa_user_sgpr_kernarg_segment_ptr 1
  .amdhsa_system_sgpr_workgroup_id_x 1
.end_amdhsa_kernel
"""
    if cfg.get("stamps"):
        head = "; STAMPS " + repr(g.stnames) + "\n" + head
    return head + body + tail, g.a.n_pads


if __name__ == "__main__":
    cfg = {}
    out = f"cdna_kernels/{NAME}.s"
    for arg in sys.argv[1:]:
        if arg.startswith("-o="):
            out = arg[3:]
        else:
            k, v = arg.split("=")
            cfg[k] = int(v)
    s, n = build(cfg)
    open(out, "w").write(s)
    print("wrote", out, len(s), "bytes;", n, "hazard pads")
```

```python
import math
import struct
import sys
import os

sys.path.insert(0, os.path.dirname(os.path.abspath(__file__)))
from asmlib import Asm

NAME = "gated_mix__mha_block__sliding_local_dilated__prompt"

TS = 28672
WS_Q = 0x000000
WS_K = 0x200000
WS_V = 0x400000
BR = 0x600000
WS_OA = 0xC00000
WS_OB = 0xE00000
WS_G = 0x1000000
WS_F = 0x1010000
WS_USED = 0x1030000
WS_DIAG = 0x2000000

X_BYTES = 2048 * 448 * 2
W_BYTES = 448 * 1344 * 2
WO_BYTES = 448 * 448 * 2

R1 = 0
R2 = 57344
R3 = 106496
LDS_BYTES = 163840
CB = R2 + 32768
QL = 155648
OAL = R2
SLOT_TS = (8, 0, 16)
SPIN_MAX = 40000
LSC = ''


def f32bits(x):
    return struct.unpack("<I", struct.pack("<f", x))[0]


SCALE_F32 = struct.unpack("<f", struct.pack("<f", 28 ** -0.5))[0]
QSCALE = f32bits(SCALE_F32 * math.log2(math.e))
NEG_BIG = f32bits(-1.0e30)
NLOG2E = f32bits(-math.log2(math.e))

S_X, S_WA, S_WB, S_WS, S_WOA, S_WOB, S_OUT, S_DBG, S_GATE = 4, 8, 12, 16, 20, 24, 28, 32, 36
KA0 = 68
sW, sXCD, sIDX, sRB, sCG, sH, sQB, sRB3, sCB3, sNONCE = 40, 41, 42, 43, 44, 45, 46, 47, 48, 49
sGI = 3
sBR = 95
RW = 114688


def sr(b):
    return f"s[{b}:{b+3}]"


class VmQ:
    def __init__(self):
        self.q = []

    def push(self, tag):
        self.q.append(tag)

    def wait_for(self, tag):
        idx = max([i for i, t in enumerate(self.q) if t == tag], default=-1)
        if idx < 0:
            return None
        n = len(self.q) - 1 - idx
        self.q = self.q[idx + 1:]
        return min(n, 63)

    def clear(self):
        self.q = []


def vr(b, n):
    return f"v[{b}:{b+n-1}]"


def ar(b, n):
    return f"a[{b}:{b+n-1}]"


def lane_mask(fn):
    m = 0
    for l in range(64):
        if fn(l):
            m |= 1 << l
    return m


class Gen:
    def __init__(self, cfg):
        self.cfg = cfg
        self.a = Asm()
        self.nlab = 0
        self.stnames = {}

    def lab(self, p):
        self.nlab += 1
        return f"{p}_{self.nlab}"

    def stamp(self, idx, name=None):
        if not self.cfg.get("stamps"):
            return
        if name is not None and self.cfg.get("ststage") and idx == 0 and name in ("c0", "b7", "b11", "pub1", "c14", "preS0", "T1"):
            return
        if name is not None:
            role = idx
            lst = self.stnames.setdefault(role, ["start"])
            idx = len(lst)
            lst.append(name)
            assert idx < 14
        self.a(f"""
        s_memtime s[{64+2*idx}:{65+2*idx}]
        """)
        if idx == 0:
            self.a("s_memrealtime s[98:99]")

    def stamp_flush(self, n, role):
        if not self.cfg.get("stamps"):
            return
        a = self.a
        skip = self.lab("STSKIP")
        a(f"""
        s_memrealtime s[96:97]
        s_cmp_lg_u32 s{sW}, {4*role}
        s_cbranch_scc1 {skip}
        s_waitcnt lgkmcnt(0)
        s_mov_b32 s{S_WS+2}, 0x2100000
        s_lshl_b32 s50, s2, 8
        s_add_u32 s50, s50, {WS_DIAG + role*128}
        v_mov_b32 v3, 0
        """)
        for i in range(2 * n):
            a(f"v_mov_b32 v4, s{64+i}")
            a(f"buffer_store_dword v4, v3, {sr(S_WS)}, s50 offen offset:{4*i}")
        for i, s in enumerate((98, 99, 96, 97)):
            a(f"v_mov_b32 v4, s{s}")
            a(f"buffer_store_dword v4, v3, {sr(S_WS)}, s50 offen offset:{112+4*i}")
        a.label(skip)

    def publish(self, off_sgpr_expr_lines, only_wave=4, t0=12, t1=13, balance=False):
        a = self.a
        skip, end = self.lab("PUB"), self.lab("PUBE")
        a(off_sgpr_expr_lines)
        a(f"""
        v_mov_b32 v{t0}, 0
        v_mov_b32 v{t1}, s{sNONCE}
        s_mov_b64 exec, 1
        s_cmp_lg_u32 s{sW}, {only_wave}
        s_cbranch_scc1 {skip}
        buffer_store_dword v{t1}, v{t0}, {sr(S_WS)}, s50 offen sc1
        """)
        if balance:
            a(f"s_branch {end}")
        a.label(skip)
        if balance:
            a(f"buffer_load_dword v{t1}, v{t0}, {sr(S_GATE)}, 0 offen")
            a.label(end)
        a("s_mov_b64 exec, -1")

    def poll_all(self, foff):
        a = self.a
        loop, done = self.lab("POLL"), self.lab("POLLD")
        a(f"""
        s_waitcnt vmcnt(0)
        s_cmp_lg_u32 s{sW}, 4
        s_cbranch_scc1 {done}
        s_mov_b32 s50, {WS_F + foff}
        s_mov_b32 s92, {WS_F + foff + 4096}
        s_mov_b32 s93, {WS_F + foff + 8192}
        s_mov_b32 s94, {WS_F + foff + 12288}
        v_lshlrev_b32 v11, 6, v0
        s_mov_b32 s51, 0
        """)
        a.label(loop)
        a(f"""
        buffer_load_dword v12, v11, {sr(S_WS)}, s50 offen sc1
        buffer_load_dword v13, v11, {sr(S_WS)}, s92 offen sc1
        buffer_load_dword v14, v11, {sr(S_WS)}, s93 offen sc1
        buffer_load_dword v15, v11, {sr(S_WS)}, s94 offen sc1
        s_waitcnt vmcnt(0)
        v_cmp_eq_u32 s[52:53], s{sNONCE}, v12
        v_cmp_eq_u32 s[54:55], s{sNONCE}, v13
        s_and_b64 s[52:53], s[52:53], s[54:55]
        v_cmp_eq_u32 s[54:55], s{sNONCE}, v14
        s_and_b64 s[52:53], s[52:53], s[54:55]
        v_cmp_eq_u32 s[54:55], s{sNONCE}, v15
        s_and_b64 s[52:53], s[52:53], s[54:55]
        s_cmp_eq_u64 s[52:53], -1
        s_cbranch_scc1 {done}
        s_sleep {self.cfg.get("sleep", 4)}
        s_add_u32 s51, s51, 1
        s_cmp_lt_u32 s51, {SPIN_MAX}
        s_cbranch_scc1 {loop}
        """)
        a.label(done)

    def poll_issue(self, kind, foff, q):
        a = self.a
        if kind == "all":
            a("v_lshlrev_b32 v11, 6, v0")
            for i in range(4):
                a(f"s_mov_b32 s50, {WS_F + foff + 4096*i}")
                a(f"buffer_load_dword v{140+i}, v11, {sr(S_WS)}, s50 offen sc1")
                q.push("poll")
        else:
            a(f"""
            s_lshr_b32 s50, s{sRB3}, 1
            s_lshl_b32 s50, s50, 10
            s_add_u32 s50, s50, {WS_F + foff}
            v_and_b32 v11, 15, v0
            v_lshlrev_b32 v11, 6, v11
            buffer_load_dword v140, v11, {sr(S_WS)}, s50 offen sc1
            """)
            q.push("poll")

    def poll_check(self, kind, foff):
        a = self.a
        ok = self.lab("PCK")
        a(f"v_cmp_eq_u32 s[52:53], s{sNONCE}, v140")
        if kind == "all":
            for i in range(1, 4):
                a(f"v_cmp_eq_u32 s[54:55], s{sNONCE}, v{140+i}")
                a("s_and_b64 s[52:53], s[52:53], s[54:55]")
        a("s_cmp_eq_u64 s[52:53], -1")
        a(f"s_cbranch_scc1 {ok}")
        if kind == "all":
            self.poll_all(foff)
        else:
            self.poll16(foff)
        a.label(ok)

    def poll16(self, foff, everyone=False):
        a = self.a
        loop, done = self.lab("POLL"), self.lab("POLLD")
        a(f"""
        s_waitcnt vmcnt(0)
        s_cmp_lg_u32 s{sW}, {"s%d" % sW if everyone else 4}
        s_cbranch_scc1 {done}
        s_cmp_ge_u32 s{sIDX}, 28
        s_cbranch_scc1 {done}
        s_lshr_b32 s50, s{sRB3}, 1
        s_lshl_b32 s50, s50, 10
        s_add_u32 s50, s50, {WS_F + foff}
        s_mov_b32 s51, 0
        v_and_b32 v13, 15, v0
        v_lshlrev_b32 v13, 6, v13
        """)
        a.label(loop)
        a(f"""
        buffer_load_dword v12, v13, {sr(S_WS)}, s50 offen sc1
        s_waitcnt vmcnt(0)
        v_cmp_eq_u32 s[52:53], s{sNONCE}, v12
        s_cmp_eq_u64 s[52:53], -1
        s_cbranch_scc1 {done}
        s_sleep {self.cfg.get("sleep", 4)}
        s_add_u32 s51, s51, 1
        s_cmp_lt_u32 s51, {SPIN_MAX}
        s_cbranch_scc1 {loop}
        """)
        a.label(done)

    def get_nonce(self):
        a = self.a
        loop, done, skip = self.lab("NON"), self.lab("NOND"), self.lab("NONS")
        a(f"""
        v_mov_b32 v12, 0
        s_cmp_lg_u32 s2, 0
        s_cbranch_scc1 {skip}
        s_cmp_lg_u32 s{sW}, 4
        s_cbranch_scc1 {skip}
        s_memrealtime s[50:51]
        s_waitcnt lgkmcnt(0)
        s_or_b32 s50, s50, 1
        v_mov_b32 v13, s50
        s_mov_b64 exec, 1
        buffer_store_dword v13, v12, {sr(S_DBG)}, 0 offen sc1
        s_mov_b64 exec, -1
        """)
        a.label(skip)

    def read_nonce(self, early=None, t0=12, t1=13):
        a = self.a
        loop, done = self.lab("NON"), self.lab("NOND")
        if early is not None:
            a(f"""
            v_readfirstlane_b32 s{sNONCE}, v{early}
            s_cmp_lg_u32 s{sNONCE}, 0
            s_cbranch_scc1 {done}
            """)
        a(f"""
        v_mov_b32 v{t0}, 0
        s_mov_b32 s51, 0
        """)
        a.label(loop)
        a(f"""
        buffer_load_dword v{t1}, v{t0}, {sr(S_DBG)}, 0 offen sc1
        s_waitcnt vmcnt(0)
        v_readfirstlane_b32 s{sNONCE}, v{t1}
        s_cmp_lg_u32 s{sNONCE}, 0
        s_cbranch_scc1 {done}
        s_sleep {self.cfg.get("sleep", 4)}
        s_add_u32 s51, s51, 1
        s_cmp_lt_u32 s51, {SPIN_MAX}
        s_cbranch_scc1 {loop}
        """)
        a.label(done)

    def max_tree(self, regs, dst, tmp):
        a = self.a
        h = len(regs) // 2
        for (rs, d) in ((regs[:h], dst), (regs[h:], tmp)):
            a(f"v_max3_f32 v{d}, v{rs[0]}, v{rs[1]}, v{rs[2]}")
            i = 3
            while i + 1 < len(rs):
                a(f"v_max3_f32 v{d}, v{d}, v{rs[i]}, v{rs[i+1]}")
                i += 2
            if i < len(rs):
                a(f"v_max_f32 v{d}, v{d}, v{rs[i]}")
        a(f"v_max_f32 v{dst}, v{dst}, v{tmp}")
        a(f"v_mov_b32 v{tmp}, v{dst}")
        a(f"v_permlane32_swap_b32 v{dst}, v{tmp}")
        a(f"v_max_f32 v{dst}, v{dst}, v{tmp}")

    def o_voff(self, dst, tmp):
        self.a(f"""
        v_and_b32 v{dst}, 31, v0
        v_lshlrev_b32 v{dst}, 4, v{dst}
        v_lshrrev_b32 v{tmp}, 5, v0
        s_and_b32 s50, s{sH}, 1
        s_cmp_eq_u32 s50, 0
        s_cselect_b32 s51, 8, 504
        s_cselect_b32 s50, 0, 1544
        v_mad_u32_u24 v{dst}, v{tmp}, s51, v{dst}
        v_add_u32 v{dst}, s50, v{dst}
        s_lshr_b32 s50, s{sH}, 1
        s_mul_i32 s50, s50, 3584
        v_add_u32 v{dst}, s50, v{dst}
        """)

    def finalize_o(self, O, T, voff, soff, q=None):
        a = self.a
        a(f"""
        v_mov_b32 v{T}, v{O+12}
        v_mov_b32 v{T+1}, v{O+12}
        v_permlane32_swap_b32 v{T}, v{T+1}
        v_rcp_f32 v{T}, v{T+1}
        """)
        for r in range(16):
            a(f"v_mul_f32 v{O+r}, v{T}, v{O+r}")
        for r in range(8):
            a(f"v_cvt_pk_bf16_f32 v{T+2+r}, v{O+2*r}, v{O+2*r+1}")
        for i in range(4):
            if i == 3:
                a("s_mov_b32 exec_hi, 0")
            a(f"buffer_store_dwordx2 {vr(T+2+2*i,2)}, v{voff}, {sr(S_WS)}, {soff} offen offset:{512*i} sc1")
            if q is not None:
                q.push("ost")
        a("s_mov_b64 exec, -1")

    def load_qk_frag(self, dst, voff, soff, q=None, tag=None, pfx="v"):
        a = self.a
        for i in range(4):
            if i == 3:
                a("s_mov_b32 exec_hi, 0")
            a(f"buffer_load_dwordx2 {pfx}[{dst+2*i}:{dst+2*i+1}], v{voff}, {sr(S_WS)}, {soff} offen offset:{512*i}{LSC}")
            if q is not None:
                q.push(tag)
        a("s_mov_b32 exec_hi, -1")

    def srd(self, base, pair, nbytes):
        self.a(f"""
        s_mov_b32 s{base}, s{pair}
        s_and_b32 s{base+1}, s{pair+1}, 0xffff
        s_mov_b32 s{base+2}, {nbytes}
        s_mov_b32 s{base+3}, 0x20000
        """)

    def srds_first(self):
        self.a("s_waitcnt lgkmcnt(0)")
        self.srd(S_X, KA0, X_BYTES)
        if self.cfg.get("p1v", 1) == 2:
            self.a(f"""
            s_cmp_eq_u32 s{sBR}, 0
            s_cselect_b32 s{S_WA}, s{KA0+2}, s{KA0+8}
            s_cselect_b32 s{S_WA+1}, s{KA0+3}, s{KA0+9}
            s_and_b32 s{S_WA+1}, s{S_WA+1}, 0xffff
            s_mov_b32 s{S_WA+2}, {W_BYTES}
            s_mov_b32 s{S_WA+3}, 0x20000
            """)
        else:
            self.srd(S_WA, KA0 + 2, W_BYTES)

    def srds_rest(self):
        self.srd(S_WOA, KA0 + 4, WO_BYTES)
        self.srd(S_WB, KA0 + 8, W_BYTES)
        self.srd(S_WOB, KA0 + 10, WO_BYTES)
        self.srd(S_GATE, KA0 + 12, 896)
        self.srd(S_OUT, KA0 + 14, X_BYTES)
        self.srd(S_DBG, KA0 + 16, 256)
        self.srd(S_WS, KA0 + 18, WS_USED)
        self.a(f"""
        s_lshl_b32 s{sH}, s{sXCD}, 1
        s_and_b32 s50, s{sIDX}, 1
        s_add_u32 s{sH}, s{sH}, s50
        s_lshr_b32 s{sQB}, s2, 4
        s_lshl_b32 s{sRB3}, s{sXCD}, 2
        s_and_b32 s50, s{sIDX}, 3
        s_add_u32 s{sRB3}, s{sRB3}, s50
        s_lshr_b32 s{sCB3}, s{sIDX}, 2
        """)

    def build(self):
        a, cfg = self.a, self.cfg
        a.raw(".p2align 8")
        a.raw(f".type {NAME}_kernel,@function")
        a.label(f"{NAME}_kernel")
        a("""
        s_cmp_ge_u32 s2, 256
        s_cbranch_scc1 K_END
        """)
        self.stamp(0)
        a(f"""
        s_load_dwordx16 s[{KA0}:{KA0+15}], s[0:1], 0
        s_load_dwordx4 s[{KA0+16}:{KA0+19}], s[0:1], 64
        v_lshrrev_b32 v1, 6, v0
        v_and_b32 v0, 63, v0
        v_readfirstlane_b32 s{sW}, v1
        s_and_b32 s{sXCD}, s2, 7
        s_lshr_b32 s{sIDX}, s2, 3
        v_lshlrev_b32 v1, 4, v0
        """)
        if cfg.get("codepf", 1):
            a(f"""
            s_getpc_b64 s[52:53]
            """)
            a.label("PCREF")
            a(f"""
            s_sub_u32 s52, s52, PCREF-{NAME}_kernel
            s_subb_u32 s53, s53, 0
            s_and_b32 s53, s53, 0xffff
            s_mov_b32 s54, K_CODE_END-{NAME}_kernel
            s_mov_b32 s55, 0x20000
            s_lshl_b32 s50, s{sIDX}, 2
            s_add_u32 s50, s50, s{sW}
            s_lshl_b32 s50, s50, 10
            s_cmp_ge_u32 s{sW}, 4
            s_cbranch_scc1 NOPF
            buffer_load_dwordx4 v[240:243], v1, s[52:55], s50 offen
            """)
            a.label("NOPF")
        if cfg.get("p1v", 1) == 2:
            a(f"""
            s_cmp_ge_u32 s{sIDX}, 14
            s_cselect_b32 s{sBR}, 1, 0
            s_cselect_b32 s51, 14, 0
            s_sub_u32 s51, s{sIDX}, s51
            s_lshr_b32 s50, s{sXCD}, 1
            s_lshl_b32 s50, s50, 2          ; 4p
            s_and_b32 s61, s{sXCD}, 1       ; s
            s_and_b32 s{sRB}, s51, 3
            s_add_u32 s{sRB}, s{sRB}, s50
            s_lshr_b32 s{sCG}, s51, 2
            s_lshl_b32 s62, s61, 2
            s_add_u32 s{sCG}, s{sCG}, s62
            s_lshl_b32 s62, s61, 1
            s_add_u32 s62, s62, s51
            s_add_u32 s62, s62, s50
            s_sub_u32 s62, s62, 12
            s_cmp_ge_u32 s51, 12
            s_cselect_b32 s{sRB}, s62, s{sRB}
            s_cselect_b32 s{sCG}, 3, s{sCG}
            s_lshl_b32 s{sGI}, s{sXCD}, 2
            s_add_u32 s{sGI}, s{sGI}, s{sIDX}
            s_sub_u32 s{sGI}, s{sGI}, 28
            s_cmp_ge_u32 s{sIDX}, 28
            s_cselect_b32 s{sGI}, s{sGI}, -1
            """)
        elif cfg.get("p1map", 0) == 0:
            a(f"""
            s_lshr_b32 s50, s{sXCD}, 1
            s_lshl_b32 s50, s50, 3          ; 8p
            s_and_b32 s51, s{sXCD}, 1       ; s
            s_and_b32 s{sRB}, s{sIDX}, 7
            s_add_u32 s{sRB}, s{sRB}, s50
            s_lshr_b32 s{sCG}, s{sIDX}, 3
            s_lshl_b32 s61, s51, 2
            s_add_u32 s{sCG}, s{sCG}, s61
            s_sub_u32 s62, s{sIDX}, 24
            s_add_u32 s62, s62, s61
            s_add_u32 s62, s62, s50
            s_cmp_ge_u32 s{sIDX}, 24
            s_cselect_b32 s{sRB}, s62, s{sRB}
            s_cselect_b32 s{sCG}, 3, s{sCG}
            s_lshl_b32 s{sGI}, s{sXCD}, 2
            s_add_u32 s{sGI}, s{sGI}, s{sIDX}
            s_sub_u32 s{sGI}, s{sGI}, 28
            s_cmp_ge_u32 s{sIDX}, 28
            s_cselect_b32 s{sGI}, s{sGI}, -1
            """)
        else:
            a(f"""
            s_and_b32 s50, s{sXCD}, 1
            s_lshl_b32 s50, s50, 4
            s_lshr_b32 s{sRB}, s{sIDX}, 1
            s_and_b32 s{sCG}, s{sXCD}, 6
            s_and_b32 s51, s{sIDX}, 1
            s_add_u32 s{sCG}, s{sCG}, s51
            s_add_u32 s{sGI}, s50, s{sIDX}
            s_sub_u32 s{sGI}, s{sGI}, 16
            s_cmp_ge_u32 s{sXCD}, 6
            s_cselect_b32 s{sRB}, s{sIDX}, s{sRB}
            s_cselect_b32 s{sCG}, 6, s{sCG}
            s_cselect_b32 s51, s{sIDX}, 0
            s_add_u32 s{sRB}, s{sRB}, s50
            s_cmp_ge_u32 s51, 16
            s_cselect_b32 s{sGI}, s{sGI}, -1
            """)
        a(f"""
        s_cmp_lt_u32 s{sW}, 4
        s_cbranch_scc1 COMPUTE
        s_cmp_lg_u32 s{sGI}, -1
        s_cbranch_scc1 GATE_H
        """)
        if cfg.get("p1v", 1) == 2:
            self.helper_p1b()
        else:
            self.helper_p1()
        self.helper_attn()
        a.label("COMPUTE")
        self.srds_first()
        self.srds_rest()
        if cfg.get("pfall"):
            a(f"""
            s_lshl_b32 s56, s{sIDX}, 2
            s_add_u32 s56, s56, s{sW}
            v_and_b32 v2, 31, v0
            v_lshlrev_b32 v2, 4, v2
            v_lshrrev_b32 v3, 5, v0
            s_movk_i32 s50, 896
            v_mad_u32_u24 v4, v3, s50, v2
            v_add_u32 v5, 1792, v4
            v_add_u32 v6, 3584, v4
            s_and_b32 s50, s{sXCD}, 1
            s_mul_i32 s58, s50, 384
            s_mul_i32 s50, s56, 5376
            s_add_u32 s58, s58, s50
            """)
            for i in range(cfg.get("pfall")):
                a(f"s_add_u32 s50, s58, {i*128*5376}")
                for k in range(3):
                    a(f"buffer_load_dwordx4 v[244:247], v{4+k}, {sr(S_WB)}, s50 offen")
        a(f"""
        s_cmp_lg_u32 s{sGI}, -1
        s_cbranch_scc1 GATE_WG
        """)
        if cfg.get("p1v", 1) == 2:
            self.compute_p1b()
        else:
            self.compute_p1()
        self.compute_attn()
        self.gate_wg()
        self.fallback()
        a.label("K_END")
        a("s_endpgm")
        a.label("K_CODE_END")
        return a.render()

    def p1_plan(self):
        order = self.cfg.get("order", 1)
        steps = []
        if order == 1:
            for c in range(7):
                steps.append(([(0, 1), (0, 2)], [c]))
            for cs in ([0, 1], [2, 3], [4, 5], [6]):
                steps.append(([(0, 0)], cs))
            for c in range(7):
                steps.append(([(1, 0), (1, 1), (1, 2)], [c]))
        else:
            for br in range(2):
                for c in range(7):
                    steps.append(([(br, 0), (br, 1), (br, 2)], [c]))
        u = 0
        units = []
        for pcs, cs in steps:
            m = {}
            for c in cs:
                for pc in pcs:
                    m[(pc, c)] = u % 12
                    u += 1
            units.append(m)
        LIM = self.cfg.get("inflight", 8)
        sched = {i: [] for i in range(-1, len(steps))}
        nxt, used = 0, 0
        size = [len(m) for m in units]
        for b in range(-1, len(steps)):
            live = sum(size[max(b, 0):nxt])
            ahead = sum(size[b + 1:nxt])
            lim = LIM if b >= self.cfg.get("ramp", 2) else self.cfg.get("inflight0", 8)
            while nxt < len(steps) and live + size[nxt] <= 12 and ahead + size[nxt] <= lim:
                sched[b].append(nxt)
                live += size[nxt]
                ahead += size[nxt]
                nxt += 1
        assert nxt == len(steps)
        return steps, units, sched

    def compute_p1(self):
        a, cfg = self.a, self.cfg
        ACC = [64, 112]
        FR = 16
        XA, WA = 4, 8
        PK = 160
        a(f"""
        s_and_b32 s56, s{sW}, 1         ; rho
        s_lshr_b32 s57, s{sW}, 1        ; c
        v_and_b32 v2, 31, v0            ; r
        v_lshrrev_b32 v3, 5, v0         ; hf
        v_bfe_u32 v10, v0, 1, 3
        v_xor_b32 v10, v10, v3
        s_lshl_b32 s50, s56, 12
        v_lshlrev_b32 v11, 7, v2
        v_add_u32 v11, s50, v11
        """)
        for sp in range(4):
            a(f"v_xor_b32 v12, {2*sp}, v10")
            a(f"v_lshl_add_u32 v{XA+sp}, v12, 4, v11")
        a(f"""
        v_and_b32 v11, 3, v0
        v_lshlrev_b32 v11, 3, v11
        v_bfe_u32 v12, v0, 4, 1
        v_lshl_add_u32 v11, v12, 5, v11
        s_lshl_b32 s50, s57, 6
        v_add_u32 v11, s50, v11
        v_bfe_u32 v12, v0, 3, 1
        v_lshlrev_b32 v12, 6, v12
        v_xor_b32 v11, v11, v12
        v_bfe_u32 v12, v0, 2, 2
        v_lshl_add_u32 v12, v3, 3, v12
        v_lshl_add_u32 v11, v12, 7, v11
        v_add_u32 v{WA}, {R2}, v11
        v_add_u32 v{WA+1}, {R2+49152}, v11
        v_lshlrev_b32 v10, 3, v2
        v_lshl_add_u32 v10, v3, 8, v10
        v_lshlrev_b32 v11, 4, v2
        s_movk_i32 s50, 7168
        v_mad_u32_u24 v11, v3, s50, v11 ; v11 = hf*7168 + (l&31)*16  (V)
        s_lshl_b32 s58, s{sRB}, 1
        s_add_u32 s58, s58, s56         ; t
        s_mul_i32 s58, s58, {TS}
        s_lshl_b32 s59, s{sCG}, 12
        s_lshl_b32 s50, s57, 11
        s_add_u32 s59, s59, s50
        s_add_u32 s59, s59, s58
        s_lshl_b32 s60, s{sCG}, 10
        s_lshl_b32 s50, s57, 9
        s_add_u32 s60, s60, s50
        s_add_u32 s60, s60, s58         ; V soffset
        s_mov_b32 s61, {QSCALE}
        """)

        steps, units, sched = self.p1_plan()
        ACCR = {(0, 0): 64, (0, 1): 80, (0, 2): 96, (1, 0): 112, (1, 1): 128, (1, 2): 144}
        ks = []
        for j, (pcs, cs) in enumerate(steps):
            for c in cs:
                for sp in range(4):
                    ks.append((j, c, sp, c == cs[0] and sp == 0))
        NK = len(ks)

        def reads(n):
            j, c, sp, _ = ks[n]
            b = FR + 16 * (n % 2)
            out = [f"ds_read_b128 {vr(b,4)}, v{XA+sp} offset:{c*8192}"]
            if cfg.get("exp_nox") and j >= 7:
                out = []
            for i, pc in enumerate(steps[j][0]):
                if cfg.get("exp_now") and i >= 1:
                    continue
                un = units[j][(pc, c)]
                for u in range(2):
                    off = (un % 6) * 8192 + (16 * sp + 4 * u) * 128
                    out.append(f"ds_read_b64_tr_b16 {vr(b+4+4*i+2*u,2)}, v{WA + un // 6} offset:{off}")
            return out

        def mfmas(n):
            j, c, sp, _ = ks[n]
            b = FR + 16 * (n % 2)
            X = vr(b, 4)
            out = []
            for i, pc in enumerate(steps[j][0]):
                W = vr(b + 4 + 4 * i, 4)
                d = vr(ACCR[pc], 16)
                cin = "0" if (c == 0 and sp == 0) else d
                if pc[1] < 2:
                    out.append(f"v_mfma_f32_32x32x16_bf16 {d}, {W}, {X}, {cin}")
                else:
                    out.append(f"v_mfma_f32_32x32x16_bf16 {d}, {X}, {W}, {cin}")
            return out

        def epilogue(pc):
            br, tile = pc
            acc = ACCR[pc]
            out = []
            if tile == 0:
                for r in range(8):
                    out.append(f"v_cvt_pk_bf16_f32 v{PK+r}, v{acc+2*r}, v{acc+2*r+1}")
                for r in range(8):
                    out.append(f"v_lshlrev_b32 v{acc+2*r}, 16, v{PK+r}")
                    out.append(f"v_and_b32 v{acc+2*r+1}, 0xffff0000, v{PK+r}")
                for r in range(16):
                    out.append(f"v_mul_f32 v{acc+r}, s61, v{acc+r}")
            for r in range(8):
                out.append(f"v_cvt_pk_bf16_f32 v{PK+8*tile+r}, v{acc+2*r}, v{acc+2*r+1}")
            if tile < 2:
                out.append(f"s_add_u32 s50, s59, {br*BR + (WS_Q if tile == 0 else WS_K)}")
                for gi in range(4):
                    out.append(f"buffer_store_dwordx2 {vr(PK+8*tile+2*gi,2)}, v10, {sr(S_WS)}, s50 offen offset:{512*gi} sc1")
            else:
                for f in range(2):
                    out.append(f"s_add_u32 s50, s60, {br*BR + WS_V + f*14336}")
                    out.append(f"buffer_store_dwordx4 {vr(PK+16+4*f,4)}, v11, {sr(S_WS)}, s50 offen sc1")
            if cfg.get("exp_nost") == 1:
                out = [x for x in out if not x.startswith("buffer_store")]
            if cfg.get("exp_nost") == 2:
                out = [x.replace(" sc1", "") for x in out]
            return out

        FB = cfg.get("flag1_bar", 13)
        pend = []
        a("s_barrier")
        self.stamp(0, "c0")
        for x in reads(0):
            a(x)
        for n in range(NK):
            j = ks[n][0]
            nxt = reads(n + 1) if n + 1 < NK else []
            first = n + 1 < NK and ks[n + 1][3]
            if first:
                jb = ks[n + 1][0]
                if jb == FB:
                    assert not pend
                    a("s_waitcnt vmcnt(0) lgkmcnt(0)")
                else:
                    a("s_waitcnt lgkmcnt(0)")
                a("s_barrier")
                if jb == FB:
                    self.read_nonce(early=190, t0=188, t1=189)
                    self.publish(f"""
                    s_lshl_b32 s50, s2, 6
                    s_add_u32 s50, s50, {WS_F}
                    """, only_wave=0, t0=188, t1=189)
                    self.stamp(0, "pub1")
                if jb == 6:
                    a("v_mov_b32 v188, 0")
                    a(f"buffer_load_dword v190, v188, {sr(S_DBG)}, 0 offen sc1")
                if jb in (7, 11):
                    self.stamp(0, f"b{jb}")
                fill = list(nxt)
            else:
                for x in nxt:
                    a(x)
                a(f"s_waitcnt lgkmcnt({len(nxt)})")
                fill = []
            mf = mfmas(n)
            if n >= 1 and steps[ks[n - 1][0]][0] != steps[j][0]:
                for pc in sorted(steps[ks[n - 1][0]][0], key=lambda p: -p[1]):
                    pend += epilogue(pc)
                hold = True
            else:
                hold = False
            extra = []
            if pend and not hold:
                k = cfg.get("epi_rate", 12) * len(mf)
                extra, pend = pend[:k], pend[k:]
            fill = fill + extra
            k = (len(fill) + len(mf) - 1) // len(mf)
            for i, m in enumerate(mf):
                a(m)
                for x in fill[i * k:(i + 1) * k]:
                    a(x)
        assert not pend
        self.stamp(0, "c14")
        for pc in steps[-1][0]:
            for x in epilogue(pc):
                a(x)
        a("s_waitcnt lgkmcnt(0)")
        a("s_barrier")
        self.stamp(0, "T1")

    def p1b_plan(self):
        steps = [([1, 2], [c]) for c in range(7)] + [([0], cs) for cs in ([0, 1], [2, 3], [4, 5], [6])]
        u = 0
        units = []
        for pcs, cs in steps:
            m = {}
            for c in cs:
                for pc in pcs:
                    m[(pc, c)] = u % 6
                    u += 1
            units.append(m)
        size = [len(m) for m in units]
        sched = {i: [] for i in range(-1, len(steps))}
        nxt = 0
        for b in range(-1, len(steps)):
            live = sum(size[max(b, 0):nxt])
            lim = 6 if b >= 0 else self.cfg.get("inflight0b", 4)
            while nxt < len(steps) and live + size[nxt] <= lim:
                sched[b].append(nxt)
                live += size[nxt]
                nxt += 1
        assert nxt == len(steps)
        return steps, units, sched

    def compute_p1b(self):
        a, cfg = self.a, self.cfg
        FR = 16
        XA, WA = 4, 12
        XA2 = 236
        PK = 160
        ACCR = {(1, 0): 64, (1, 1): 80, (2, 0): 96, (2, 1): 112, (0, 0): 128, (0, 1): 144}
        a(f"""
        s_and_b32 s56, s{sW}, 1         ; rp
        s_lshr_b32 s57, s{sW}, 1        ; c
        v_and_b32 v2, 31, v0
        v_lshrrev_b32 v3, 5, v0
        v_bfe_u32 v10, v0, 1, 3
        v_xor_b32 v10, v10, v3
        s_lshl_b32 s50, s56, 13
        v_lshlrev_b32 v11, 7, v2
        v_add_u32 v11, s50, v11
        """)
        for sp in range(4):
            a(f"v_xor_b32 v13, {2*sp}, v10")
            a(f"v_lshl_add_u32 v{XA+sp}, v13, 4, v11")
            a(f"v_add_u32 v{XA2+sp}, 0x10000, v{XA+sp}")
        a(f"""
        v_and_b32 v11, 3, v0
        v_lshlrev_b32 v11, 3, v11
        v_bfe_u32 v13, v0, 4, 1
        v_lshl_add_u32 v11, v13, 5, v11
        s_lshl_b32 s50, s57, 6
        v_add_u32 v11, s50, v11
        v_bfe_u32 v13, v0, 3, 1
        v_lshlrev_b32 v13, 6, v13
        v_xor_b32 v11, v11, v13
        v_bfe_u32 v13, v0, 2, 2
        v_lshl_add_u32 v13, v3, 3, v13
        v_lshl_add_u32 v11, v13, 7, v11
        v_add_u32 v{WA}, {RW}, v11
        v_lshlrev_b32 v10, 3, v2
        v_lshl_add_u32 v10, v3, 8, v10
        v_lshlrev_b32 v11, 4, v2
        s_movk_i32 s50, 7168
        v_mad_u32_u24 v11, v3, s50, v11 ; hf*7168 + (l&31)*16
        s_lshl_b32 s58, s{sRB}, 2
        s_lshl_b32 s50, s56, 1
        s_add_u32 s58, s58, s50         ; t0
        s_mul_i32 s58, s58, {TS}
        s_mul_i32 s50, s{sBR}, {BR}
        s_add_u32 s58, s58, s50
        s_lshl_b32 s59, s{sCG}, 12
        s_lshl_b32 s50, s57, 11
        s_add_u32 s59, s59, s50
        s_add_u32 s59, s59, s58         ; Q/K soffset
        s_lshl_b32 s60, s{sCG}, 10
        s_lshl_b32 s50, s57, 9
        s_add_u32 s60, s60, s50
        s_add_u32 s60, s60, s58         ; V soffset
        s_mov_b32 s61, {QSCALE}
        """)
        steps, units, sched = self.p1b_plan()
        ks = []
        for j, (pcs, cs) in enumerate(steps):
            for c in cs:
                for sp in range(4):
                    ks.append((j, c, sp, c == cs[0] and sp == 0))
        NK = len(ks)

        def reads(n):
            j, c, sp, _ = ks[n]
            b = FR + 16 * (n % 2)
            xa, off = (XA + sp, c * 16384) if c < 4 else (XA2 + sp, (c - 4) * 16384)
            out = [f"ds_read_b128 {vr(b,4)}, v{xa} offset:{off}", f"ds_read_b128 {vr(b+4,4)}, v{xa} offset:{off+4096}"]
            for i, pc in enumerate(steps[j][0]):
                un = units[j][(pc, c)]
                for u in range(2):
                    out.append(f"ds_read_b64_tr_b16 {vr(b+8+4*i+2*u,2)}, v{WA} offset:{un*8192 + (16*sp+4*u)*128}")
            return out

        def mfmas(n):
            j, c, sp, _ = ks[n]
            b = FR + 16 * (n % 2)
            out = []
            for i, pc in enumerate(steps[j][0]):
                W = vr(b + 8 + 4 * i, 4)
                for rho in range(2):
                    X = vr(b + 4 * rho, 4)
                    d = vr(ACCR[(pc, rho)], 16)
                    cin = "0" if (c == 0 and sp == 0) else d
                    if pc < 2:
                        out.append(f"v_mfma_f32_32x32x16_bf16 {d}, {W}, {X}, {cin}")
                    else:
                        out.append(f"v_mfma_f32_32x32x16_bf16 {d}, {X}, {W}, {cin}")
            return out

        def epilogue(pc, rho):
            acc = ACCR[(pc, rho)]
            pk = PK + 8 * ((2 * pc + rho) % 3)
            out = []
            if pc == 0:
                for r in range(8):
                    out.append(f"v_cvt_pk_bf16_f32 v{pk+r}, v{acc+2*r}, v{acc+2*r+1}")
                for r in range(8):
                    out.append(f"v_lshlrev_b32 v{acc+2*r}, 16, v{pk+r}")
                    out.append(f"v_and_b32 v{acc+2*r+1}, 0xffff0000, v{pk+r}")
                for r in range(16):
                    out.append(f"v_mul_f32 v{acc+r}, s61, v{acc+r}")
            for r in range(8):
                out.append(f"v_cvt_pk_bf16_f32 v{pk+r}, v{acc+2*r}, v{acc+2*r+1}")
            if pc < 2:
                out.append(f"s_add_u32 s50, s59, {(WS_Q if pc == 0 else WS_K) + rho*TS}")
                for gi in range(4):
                    out.append(f"buffer_store_dwordx2 {vr(pk+2*gi,2)}, v10, {sr(S_WS)}, s50 offen offset:{512*gi} sc1")
            else:
                for f in range(2):
                    out.append(f"s_add_u32 s50, s60, {WS_V + f*14336 + rho*TS}")
                    out.append(f"buffer_store_dwordx4 {vr(pk+4*f,4)}, v11, {sr(S_WS)}, s50 offen sc1")
            return out

        pend = []
        a("s_barrier")
        self.stamp(0, "c0")
        for x in reads(0):
            a(x)
        for n in range(NK):
            j = ks[n][0]
            nxt = reads(n + 1) if n + 1 < NK else []
            first = n + 1 < NK and ks[n + 1][3]
            if first:
                jb = ks[n + 1][0]
                a("s_waitcnt lgkmcnt(0)")
                a("s_barrier")
                if jb == 4:
                    a("v_mov_b32 v188, 0")
                    a(f"buffer_load_dword v190, v188, {sr(S_DBG)}, 0 offen sc1")
                if jb == 7:
                    self.stamp(0, "b7")
                    a("s_waitcnt vmcnt(0)")
                    self.read_nonce(early=190, t0=188, t1=189)
                    self.publish(f"""
                    s_xor_b32 s51, s{sBR}, 1
                    s_lshl_b32 s51, s51, 14
                    s_lshl_b32 s50, s2, 6
                    s_add_u32 s50, s50, s51
                    s_add_u32 s50, s50, {WS_F}
                    """, only_wave=0, t0=188, t1=189)
                fill = list(nxt)
            else:
                for x in nxt:
                    a(x)
                a(f"s_waitcnt lgkmcnt({len(nxt)})")
                fill = []
            mf = mfmas(n)
            hold = False
            if n >= 1 and steps[ks[n - 1][0]][0] != steps[j][0]:
                for pc in (2, 1):
                    for rho in range(2):
                        pend += epilogue(pc, rho)
                hold = True
            extra = []
            if pend and not hold:
                k = cfg.get("epi_rate_b", 5) * len(mf)
                extra, pend = pend[:k], pend[k:]
            fill = fill + extra
            k = (len(fill) + len(mf) - 1) // len(mf)
            for i, m in enumerate(mf):
                a(m)
                for x in fill[i * k:(i + 1) * k]:
                    a(x)
        assert not pend
        self.stamp(0, "c14")
        for rho in range(2):
            for x in epilogue(0, rho):
                a(x)
        a("s_waitcnt vmcnt(0) lgkmcnt(0)")
        a("s_barrier")
        self.publish(f"""
        s_lshl_b32 s51, s{sBR}, 14
        s_lshl_b32 s50, s2, 6
        s_add_u32 s50, s50, s51
        s_add_u32 s50, s50, {WS_F}
        """, only_wave=0, t0=188, t1=189)
        self.stamp(0, "pub1")
        a("s_barrier")
        self.stamp(0, "T1")

    def helper_p1b(self):
        a, cfg = self.a, self.cfg
        a.label("HELPER")
        a(f"""
        s_setprio {cfg.get('hprio', 3)}
        s_sub_u32 s56, s{sW}, 4         ; j
        v_lshrrev_b32 v2, 3, v0
        v_and_b32 v3, 7, v0
        v_lshrrev_b32 v4, 4, v0
        v_xor_b32 v8, v3, v4
        v_lshlrev_b32 v8, 4, v8
        s_movk_i32 s50, 896
        v_mad_u32_u24 v5, v2, s50, v8
        v_xor_b32 v6, 64, v5
        v_and_b32 v4, 1, v4
        v_lshlrev_b32 v4, 2, v4
        v_xor_b32 v8, v3, v4
        v_lshlrev_b32 v8, 4, v8
        s_movk_i32 s50, 2688
        v_mad_u32_u24 v7, v2, s50, v8
        s_lshl_b32 s57, s{sRB}, 7
        s_lshl_b32 s50, s56, 5
        s_add_u32 s57, s57, s50
        s_mul_i32 s57, s57, 896
        s_lshl_b32 s58, s{sCG}, 7
        s_mul_i32 s50, s56, 43008
        s_add_u32 s58, s58, s50         ; W base
        s_lshl_b32 s59, s56, 11
        s_lshl_b32 s60, s56, 12
        """)
        self.srds_first()
        q = VmQ()
        self.hq = q
        steps, units, sched = self.p1b_plan()
        xdone = set()

        def issue(j):
            pcs, cs = steps[j]
            for c in cs:
                if c not in xdone:
                    xdone.add(c)
                    for i in range(4):
                        a(f"s_add_u32 s50, s57, {8*i*896 + 128*c}")
                        a(f"s_add_u32 m0, s60, {c*16384 + 8*i*128}")
                        a(f"buffer_load_dwordx4 v{5+(i&1)}, {sr(S_X)}, s50 offen lds")
                        q.push(("c", j))
                for part in pcs:
                    un = units[j][(part, c)]
                    for ii in range(2):
                        a(f"s_add_u32 s50, s58, {part*896 + (64*c + 8*ii)*2688}")
                        a(f"s_add_u32 m0, s59, {RW + un*8192 + 8*ii*128}")
                        a(f"buffer_load_dwordx4 v7, {sr(S_WA)}, s50 offen lds")
                        q.push(("c", j))

        for j in sched[-1]:
            issue(j)
        self.srds_rest()
        self.get_nonce()
        for b in range(len(steps)):
            n = q.wait_for(("c", b))
            if n is not None:
                a(f"s_waitcnt vmcnt({n})")
            a("s_barrier")
            for j in sched[b]:
                issue(j)
            if b == 6:
                a(f"v_mov_b32 v12, 0")
                a(f"buffer_load_dword v14, v12, {sr(S_DBG)}, 0 offen sc1")
                q.push("non")
        a("s_barrier")
        self.stamp(1, "poll1")
        a("s_waitcnt vmcnt(0)")
        self.read_nonce(early=14)
        self.poll_all(0)
        self.stamp(1, "got1")
        q.clear()
        a("s_barrier")

    def attn_setup_and_q(self):
        a = self.a
        Q = 192
        a(f"""
        v_and_b32 v224, 31, v0
        v_lshrrev_b32 v225, 5, v0
        v_lshlrev_b32 v224, 3, v224
        v_lshl_add_u32 v224, v225, 8, v224
        v_add_u32 v225, {QL}, v224
        """)

    def compute_attn(self):
        a, cfg = self.a, self.cfg
        Q, O, S, P, NM, T, KV = 192, 48, 112, 144, 152, 156, 16
        KA, VA = 226, 232
        self.regs = dict(Q=Q, O=O, S=S, P=P, NM=NM, T=T, KV=KV)
        a.label("ATT_C_ENTRY")
        self.attn_setup_and_q()
        a(f"s_lshl_b32 s50, s{sW}, 13")
        for sl in range(3):
            for kk in range(2):
                a(f"v_add_u32 v{KA+2*sl+kk}, s50, v224")
                a(f"v_add_u32 v{KA+2*sl+kk}, {R2 + (SLOT_TS[sl]+kk)*4096}, v{KA+2*sl+kk}")
        a(f"""
        v_add_u32 v{VA}, s50, v1
        v_add_u32 v{VA+1}, {R2 + 65536 + 2048}, v{VA}
        v_add_u32 v{VA}, {R2 + 2048}, v{VA}
        """)
        self.o_voff(2, 3)
        a(f"""
        s_lshl_b32 s56, s{sQB}, 2
        s_add_u32 s56, s56, s{sW}
        s_mul_i32 s56, s56, {TS}
        s_add_u32 s56, s56, {WS_OA}
        """)

        def kv_reads(t):
            k, kk = divmod(t, 2)
            sl = k % 3
            b = KV + 16 * (t % 2)
            ts = SLOT_TS[sl] + kk
            out = []
            for f in range(2):
                out.append(f"ds_read2_b64 {vr(b+4*f,4)}, v{KA+2*sl+kk} offset0:{128*f} offset1:{128*f+64}")
            for f in range(2):
                vb, off = (VA, ts * 4096) if ts < 16 else (VA + 1, (ts - 16) * 4096)
                out.append(f"ds_read_b128 {vr(b+8+4*f,4)}, v{vb} offset:{off + 1024*f}")
            return out

        def qk(u, buf):
            t, j = divmod(u, 4)
            b = KV + 16 * (t % 2)
            d = vr(S + 16 * buf, 16)
            return (f"v_mfma_f32_32x32x16_bf16 {d}, {vr(b,4)}, {vr(Q+8*j,4)}, 0",
                    f"v_mfma_f32_32x32x16_bf16 {d}, {vr(b+4,4)}, {vr(Q+8*j+4,4)}, {d}")

        def pv(u, half):
            t, j = divmod(u, 4)
            b = KV + 16 * (t % 2)
            d = vr(O + 16 * j, 16)
            c = "0" if (t == 0 and half == 0) else d
            return f"v_mfma_f32_32x32x16_bf16 {d}, {vr(b+8+4*half,4)}, {vr(P+4*half,4)}, {c}"

        def part_write(j):
            out = ["s_mov_b32 exec_lo, 0", f"v_mov_b32 v{O+16*j+13}, v{NM+j}", "s_mov_b32 exec_lo, -1"]
            for qd in range(4):
                out.append(f"ds_write_b128 v{PW}, {vr(O+16*j+4*qd,4)} offset:{j*4096 + qd*1024}")
            return out
        self.part_write = part_write
        PW = 234
        a(f"s_lshl_b32 s50, s{sW}, 14")
        a(f"v_add_u32 v{PW}, s50, v1")
        a(f"v_add_u32 v{PW}, {CB}, v{PW}")
        if cfg.get("p1v", 1) != 2:
            a("s_waitcnt vmcnt(0)")
        self.stamp(0, "preS0")
        a("s_barrier")
        self.stamp(0, "S0")
        if cfg.get("p1v", 1) != 2:
            self.publish(f"""
            s_lshl_b32 s50, s2, 6
            s_add_u32 s50, s50, {WS_F + 0x4000}
            """, only_wave=0, t0=188, t1=189)
        F2B = -1
        a(f"v_add_u32 v3, 4096, v225")
        for j in range(4):
            for f in range(2):
                o0 = (j & 1) * 256 + 128 * f
                if o0 + 64 > 255:
                    a(f"v_add_u32 v4, {j*2048}, v225")
                    a(f"ds_read2_b64 {vr(Q+8*j+4*f,4)}, v4 offset0:{128*f} offset1:{128*f+64}")
                else:
                    a(f"ds_read2_b64 {vr(Q+8*j+4*f,4)}, v{225 if j < 2 else 3} offset0:{o0} offset1:{o0+64}")
        for x in kv_reads(0):
            a(x)
        a("s_waitcnt lgkmcnt(0)")
        a("s_mov_b32 exec_lo, 0")
        for j in range(4):
            a(f"v_mov_b32 v{Q+8*j+6}, 0")
            a(f"v_mov_b32 v{Q+8*j+7}, 0")
        a("s_mov_b32 exec_lo, -1")
        scr = [S, S + 16, O, O + 16]
        for j in range(4):
            d = vr(scr[j], 16)
            a(f"v_mfma_f32_32x32x16_bf16 {d}, {vr(KV,4)}, {vr(Q+8*j,4)}, 0")
            a(f"v_mfma_f32_32x32x16_bf16 {d}, {vr(KV+4,4)}, {vr(Q+8*j+4,4)}, {d}")
        for j in range(4):
            self.max_tree([scr[j] + r for r in range(16)], T + 2 * j, T + 2 * j + 1)
        for j in range(4):
            a(f"v_add_f32 v{T+2*j}, {f32bits(40.0)}, v{T+2*j}")
        for j in range(4):
            a(f"v_cvt_pk_bf16_f32 v{T+2*j+1}, -v{T+2*j}, 0")
        a("s_mov_b32 exec_lo, 0")
        for j in range(4):
            a(f"v_mov_b32 v{Q+8*j+6}, v{T+2*j+1}")
        a("s_mov_b32 exec_lo, -1")
        for j in range(4):
            a(f"v_lshlrev_b32 v{NM+j}, 16, v{T+2*j+1}")
        self.stamp(0, "att0")
        m0, m1 = qk(0, 0)
        a(m0)
        a(m1)
        for u in range(64):
            t, j = divmod(u, 4)
            sb = S + 16 * (u & 1)
            slots = [None] * 4
            post = [[] for _ in range(4)]
            if u + 1 < 64:
                slots[0], slots[1] = qk(u + 1, (u + 1) & 1)
            if u >= 1:
                slots[2] = pv(u - 1, 1)
            slots[3] = pv(u, 0)
            if t + 1 < 16:
                rd = kv_reads(t + 1)
                if j == 0 and t % 2 == 1:
                    if t == 2 * F2B - 1:
                        post[2].append("s_waitcnt vmcnt(0)")
                    post[2].append("s_barrier")
                    if cfg.get("ststage"):
                        post[2].append(("ST", f"S{(t+1)//2}"))
                    if t == 2 * F2B - 1:
                        post[2].append("PUB2")
                if j == 0:
                    post[3].append(rd[0])
                if j == 1:
                    post[0].append(rd[1])
                    post[1].append(rd[2])
                    post[2].append(rd[3])
                if j == 2:
                    post[3].append("s_waitcnt lgkmcnt(0)")
            if u >= 62:
                pwl = part_write(u - 62)
                post[0] += pwl[:4]
                post[1] += pwl[4:5]
                post[2] += pwl[5:6]
                post[3] += pwl[6:7]
            for g in range(4):
                r = 4 * g
                a(f"v_exp_f32 v{sb+r}, v{sb+r}")
                a(f"v_exp_f32 v{sb+r+1}, v{sb+r+1}")
                if slots[g]:
                    a(slots[g])
                for x in post[g]:
                    if isinstance(x, tuple):
                        self.stamp(0, x[1])
                    elif x == "PUB2":
                        self.publish(f"""
                        s_lshl_b32 s50, s2, 6
                        s_add_u32 s50, s50, {WS_F + 0x4000}
                        """, only_wave=0, t0=188, t1=189)
                    else:
                        a(x)
                a(f"v_exp_f32 v{sb+r+2}, v{sb+r+2}")
                a(f"v_exp_f32 v{sb+r+3}, v{sb+r+3}")
                a(f"v_cvt_pk_bf16_f32 v{P+2*g}, v{sb+r}, v{sb+r+1}")
                a(f"v_cvt_pk_bf16_f32 v{P+2*g+1}, v{sb+r+2}, v{sb+r+3}")
        a(pv(63, 1))
        self.stamp(0, "attE")
        for x in part_write(2) + part_write(3):
            a(x)
        a(f"""
        s_mov_b32 s50, {f32bits(2.0**-60)}
        s_mov_b32 s51, {f32bits(2.0**64)}
        s_mov_b64 s[52:53], -1
        """)
        for j in range(4):
            a(f"v_cmp_lt_f32 vcc, s50, v{O+16*j+12}")
            a("s_and_b64 s[52:53], s[52:53], vcc")
            a(f"v_cmp_gt_f32 vcc, s51, v{O+16*j+12}")
            a("s_and_b64 s[52:53], s[52:53], vcc")
        a("""
        s_cmp_eq_u32 s53, -1
        s_cbranch_scc0 FALLBACK
        """)
        a.label("COMBINE")
        a(f"""
        s_lshl_b32 s50, s{sW}, 12
        v_add_u32 v5, s50, v1
        v_add_u32 v5, {CB}, v5
        s_waitcnt lgkmcnt(0)
        s_barrier
        """)
        self.stamp(0, "C1")
        for k in range(4):
            for qd in range(4):
                a(f"ds_read_b128 {vr(O+16*k+4*qd,4)}, v5 offset:{k*16384 + qd*1024}")
        a("s_waitcnt lgkmcnt(0)")
        for k in range(4):
            a(f"v_mov_b32 v{T+2*k}, v{O+16*k+13}")
            a(f"v_mov_b32 v{T+2*k+1}, v{O+16*k+13}")
        for k in range(4):
            a(f"v_permlane32_swap_b32 v{T+2*k}, v{T+2*k+1}")
        a(f"v_min3_f32 v{T}, v{T+1}, v{T+3}, v{T+5}")
        a(f"v_min_f32 v{T}, v{T}, v{T+7}")
        for k in range(4):
            a(f"v_sub_f32 v{T+2*k+1}, v{T}, v{T+2*k+1}")
        for k in range(4):
            a(f"v_exp_f32 v{T+2*k+1}, v{T+2*k+1}")
        for r in range(16):
            a(f"v_mul_f32 v{O+r}, v{T+1}, v{O+r}")
        for k in range(1, 4):
            for r in range(16):
                a(f"v_fmac_f32 v{O+r}, v{T+2*k+1}, v{O+16*k+r}")
        self.finalize_o(O, T + 8, 2, "s56")
        a(f"""
        v_mov_b32 v188, {QL + 1792}
        v_mov_b32 v189, 1
        s_mov_b64 exec, 1
        ds_add_u32 v188, v189
        s_mov_b64 exec, -1
        """)
        a(f"""
        s_lshl_b32 s50, s{sQB}, 2
        s_add_u32 s50, s50, s{sW}
        s_lshl_b32 s50, s50, 4
        s_add_u32 s50, s50, s{sH}
        s_lshl_b32 s50, s50, 6
        s_add_u32 s50, s50, {WS_F + 0x10000}
        v_mov_b32 v188, 0
        v_mov_b32 v189, s{sNONCE}
        s_waitcnt vmcnt(0)
        s_mov_b64 exec, 1
        buffer_store_dword v189, v188, {sr(S_WS)}, s50 offen sc1
        s_mov_b64 exec, -1
        """)
        self.stamp(0, "pub3")
        a(f"s_cmp_ge_u32 s{sIDX}, 28")
        a("s_cbranch_scc1 C_DONE")
        a("s_barrier")
        self.oa_dma()
        a("s_waitcnt vmcnt(0)")
        a("s_barrier")
        a.label("C_DONE")
        self.stamp(0, "end")
        self.stamp_flush(14, 0)
        a("s_endpgm")

    def oa_dma(self):
        a = self.a
        a(f"""
        s_lshl_b32 s50, s{sRB3}, 1
        s_mul_i32 s50, s50, {TS}
        s_mul_i32 s51, s{sW}, 7168
        s_add_u32 s50, s50, s51
        s_add_u32 s50, s50, {WS_OA}
        s_add_u32 s52, s50, 4096
        s_add_u32 m0, s51, {OAL}
        """)
        for i in range(7):
            if i == 4:
                a(f"s_add_u32 m0, s51, {OAL + 4096}")
            a(f"buffer_load_dwordx4 v1, {sr(S_WS)}, {'s50' if i < 4 else 's52'} offen offset:{(i%4)*1024}{LSC} lds")

    def fallback(self):
        a = self.a
        R = self.regs
        Q, O, S, P, NM, T, KV = R["Q"], R["O"], R["S"], R["P"], R["NM"], R["T"], R["KV"]
        a.label("FALLBACK")
        a("s_nop 15")
        a(f"""
        v_and_b32 v5, 31, v0
        v_lshrrev_b32 v6, 5, v0
        v_lshlrev_b32 v5, 4, v5
        s_movk_i32 s50, 7168
        v_mad_u32_u24 v5, v6, s50, v5          ; V voffset
        s_lshl_b32 s57, s{sW}, 4
        s_mul_i32 s57, s57, {TS}
        s_mul_i32 s50, s{sH}, 1792
        s_add_u32 s58, s57, s50
        s_add_u32 s58, s58, {WS_K}
        s_mul_i32 s50, s{sH}, 448
        s_add_u32 s59, s57, s50
        s_add_u32 s59, s59, {WS_V}
        s_mov_b32 exec_lo, 0
        """)
        for j in range(4):
            a(f"v_mov_b32 v{Q+8*j+6}, 0")
        a(f"v_mov_b32 v{KV+6}, 0")
        a(f"v_mov_b32 v{KV+7}, 0")
        a("s_mov_b32 exec_lo, -1")
        for r in range(8):
            a(f"v_mov_b32 v{KV+8+r}, 0")
        a("s_mov_b32 exec_lo, 0x10000000")
        a("s_mov_b32 exec_hi, 0x10000000")
        for r in range(8):
            a(f"v_mov_b32 v{KV+8+r}, 0x3f803f80")
        a("s_mov_b64 exec, -1")
        for j in range(4):
            a(f"v_mov_b32 v{NM+j}, {f32bits(3.0e38)}")
            for r in range(16):
                a(f"v_mov_b32 v{O+16*j+r}, 0")
        a("s_mov_b32 s57, 0")
        a.label("FB_LOOP")
        self.load_qk_frag(KV, 224, "s58")
        a(f"""
        s_add_u32 s50, s59, 14336
        s_mov_b32 exec_lo, 0x0fffffff
        s_mov_b32 exec_hi, 0x0fffffff
        buffer_load_dwordx4 {vr(KV+8,4)}, v5, {sr(S_WS)}, s59 offen{LSC}
        buffer_load_dwordx4 {vr(KV+12,4)}, v5, {sr(S_WS)}, s50 offen{LSC}
        s_mov_b64 exec, -1
        s_waitcnt vmcnt(0)
        """)
        for j in range(4):
            d = vr(S, 16)
            a(f"v_mfma_f32_32x32x16_bf16 {d}, {vr(KV,4)}, {vr(Q+8*j,4)}, 0")
            a(f"v_mfma_f32_32x32x16_bf16 {d}, {vr(KV+4,4)}, {vr(Q+8*j+4,4)}, {d}")
            self.max_tree([S + r for r in range(16)], T, T + 1)
            a(f"v_min_f32 v{T+1}, v{NM+j}, -v{T}")
            a(f"v_sub_f32 v{T+2}, v{T+1}, v{NM+j}")
            a(f"v_exp_f32 v{T+2}, v{T+2}")
            a(f"v_mov_b32 v{NM+j}, v{T+1}")
            for r in range(16):
                a(f"v_add_f32 v{S+r}, v{S+r}, v{T+1}")
            for r in range(16):
                a(f"v_exp_f32 v{S+r}, v{S+r}")
            for r in range(16):
                a(f"v_mul_f32 v{O+16*j+r}, v{T+2}, v{O+16*j+r}")
            for r in range(8):
                a(f"v_cvt_pk_bf16_f32 v{P+r}, v{S+2*r}, v{S+2*r+1}")
            o = vr(O + 16 * j, 16)
            a(f"v_mfma_f32_32x32x16_bf16 {o}, {vr(KV+8,4)}, {vr(P,4)}, {o}")
            a(f"v_mfma_f32_32x32x16_bf16 {o}, {vr(KV+12,4)}, {vr(P+4,4)}, {o}")
        a(f"""
        s_nop 15
        s_add_u32 s58, s58, {TS}
        s_add_u32 s59, s59, {TS}
        s_add_u32 s57, s57, 1
        s_cmp_lt_u32 s57, 16
        s_cbranch_scc1 FB_LOOP
        """)
        for j in range(4):
            for x in self.part_write(j):
                a(x)
        a("s_branch COMBINE")

    def helper_p1(self):
        a, cfg = self.a, self.cfg
        a.label("HELPER")
        a(f"s_setprio {cfg.get('hprio', 3)}")
        a(f"""
        s_sub_u32 s56, s{sW}, 4         ; j
        v_lshrrev_b32 v2, 3, v0
        v_and_b32 v3, 7, v0
        v_lshrrev_b32 v4, 4, v0
        v_xor_b32 v8, v3, v4
        v_lshlrev_b32 v8, 4, v8
        s_movk_i32 s50, 896
        v_mad_u32_u24 v5, v2, s50, v8
        v_xor_b32 v6, 64, v5
        v_and_b32 v4, 1, v4
        v_lshlrev_b32 v4, 2, v4
        v_xor_b32 v8, v3, v4
        v_lshlrev_b32 v8, 4, v8
        s_movk_i32 s50, 2688
        v_mad_u32_u24 v7, v2, s50, v8   ; W voff
        s_lshl_b32 s57, s{sRB}, 6
        s_lshl_b32 s50, s56, 4
        s_add_u32 s57, s57, s50
        s_mul_i32 s57, s57, 896
        s_lshl_b32 s58, s{sCG}, 7
        s_mul_i32 s50, s56, 43008
        s_add_u32 s58, s58, s50         ; W base
        s_lshl_b32 s59, s56, 11
        """)
        self.srds_first()
        q = VmQ()
        self.hq = q

        steps, units, sched = self.p1_plan()
        xdone = set()

        def issue(j):
            pcs, cs = steps[j]
            for c in cs:
                if c not in xdone:
                    xdone.add(c)
                    for i in range(2):
                        a(f"s_add_u32 s50, s57, {8*i*896 + 128*c}")
                        a(f"s_add_u32 m0, s59, {R1 + c*8192 + 8*i*128}")
                        a(f"buffer_load_dwordx4 v{5+i}, {sr(S_X)}, s50 offen lds")
                        q.push(("c", j))
                for (br, part) in pcs:
                    un = units[j][((br, part), c)]
                    for ii in range(2):
                        a(f"s_add_u32 s50, s58, {part*896 + (64*c + 8*ii)*2688}")
                        a(f"s_add_u32 m0, s59, {R2 + un*8192 + 8*ii*128}")
                        a(f"buffer_load_dwordx4 v7, {sr(S_WA if br == 0 else S_WB)}, s50 offen lds")
                        q.push(("c", j))

        for j in sched[-1]:
            issue(j)
        self.srds_rest()
        self.get_nonce()
        for b in range(len(steps)):
            n = q.wait_for(("c", b))
            if n is not None:
                a(f"s_waitcnt vmcnt({n})")
            a("s_barrier")
            for j in sched[b]:
                issue(j)
            if b == 9:
                a(f"v_mov_b32 v12, 0")
                a(f"buffer_load_dword v14, v12, {sr(S_DBG)}, 0 offen sc1")
                q.push("non")
        self.stamp(1, "poll1")
        a("s_waitcnt vmcnt(0)")
        self.read_nonce(early=14)
        self.poll_all(0)
        self.stamp(1, "got1")
        q.clear()
        a("s_barrier")

    def helper_attn(self):
        a, cfg = self.a, self.cfg
        q = self.hq
        a.label("ATT_H_ENTRY")
        VMASK = "s_mov_b32 exec_lo, 0x0fffffff\ns_mov_b32 exec_hi, 0x0fffffff"
        a(f"""
        s_sub_u32 s56, s{sW}, 4         ; j
        v_and_b32 v2, 31, v0
        v_lshrrev_b32 v3, 5, v0
        v_lshlrev_b32 v4, 4, v2
        s_movk_i32 s50, 7168
        v_mad_u32_u24 v4, v3, s50, v4   ; v4 = V voffset
        v_lshlrev_b32 v5, 3, v2
        v_lshl_add_u32 v5, v3, 8, v5
        s_lshl_b32 s57, s56, 4
        s_mul_i32 s57, s57, {TS}
        s_mul_i32 s50, s{sH}, 1792
        s_add_u32 s58, s57, s50
        s_add_u32 s58, s58, {WS_K}      ; K stream
        s_mul_i32 s50, s{sH}, 448
        s_add_u32 s59, s57, s50
        s_add_u32 s59, s59, {WS_V}      ; V stream
        s_lshl_b32 s60, s56, 13         ; j*8192 lds
        v_lshlrev_b32 v6, 3, v0
        v_add_u32 v6, s60, v6
        v_add_u32 v6, {R2 + 1792}, v6
        v_mov_b32 v8, 0x3f80
        v_mov_b32 v9, 0
        v_and_b32 v7, 3, v0
        v_cmp_eq_u32 vcc, 0, v7
        v_mov_b32 v16, 0
        v_mov_b32 v17, 0x3f803f80
        v_cndmask_b32 v16, v16, v17, vcc
        v_mov_b32 v17, v16
        v_mov_b32 v18, v16
        v_mov_b32 v19, v16
        v_bfe_u32 v10, v0, 2, 1         ; hf
        v_lshl_add_u32 v7, v10, 5, v7
        v_bfe_u32 v10, v0, 3, 1         ; f
        v_lshl_add_u32 v7, v10, 6, v7
        v_lshlrev_b32 v7, 4, v7
        v_add_u32 v7, s60, v7
        v_add_u32 v7, {R2 + 2048 + 448}, v7
        """)

        def consts(sl):
            for kk in range(2):
                off = (SLOT_TS[sl] + kk) * 4096
                vb6, vb7, o = 6, 7, off
                if off > 60000:
                    a(f"v_add_u32 v10, {off}, v6")
                    a(f"v_add_u32 v11, {off}, v7")
                    vb6, vb7, o = 10, 11, 0
                a("s_mov_b32 exec_hi, 0")
                a(f"ds_write_b64 v{vb6}, v[8:9] offset:{o}")
                a("s_mov_b32 exec_lo, 0xffff")
                a(f"ds_write_b128 v{vb7}, v[16:19] offset:{o}")
                a("s_mov_b64 exec, -1")

        def stage(k):
            sl = k % 3
            for kk in range(2):
                base = R2 + (SLOT_TS[sl] + kk) * 4096
                if kk == 0:
                    a(f"s_add_u32 s51, s{sQB}, {k}")
                    a("s_and_b32 s51, s51, 7")
                    a(f"s_mul_i32 s51, s51, {2*TS*cfg.get('rotkv', 0)}")
                    if not cfg.get('rotkv', 0):
                        a(f"s_mov_b32 s51, {2*k*TS}")
                    a("s_add_u32 s52, s51, s58")
                    a("s_add_u32 s53, s51, s59")
                a(f"s_add_u32 s50, s52, {kk*TS}")
                a(f"s_add_u32 m0, s60, {base}")
                a(f"buffer_load_dwordx4 v1, {sr(S_WS)}, s50 offen{LSC} lds")
                a("s_mov_b32 exec_hi, 0xffff")
                a(f"buffer_load_dwordx4 v1, {sr(S_WS)}, s50 offen offset:1024{LSC} lds")
                a(VMASK)
                for f in range(2):
                    a(f"s_add_u32 s50, s53, {kk*TS + f*14336}")
                    a(f"s_add_u32 m0, s60, {base + 2048 + 1024*f}")
                    a(f"buffer_load_dwordx4 v4, {sr(S_WS)}, s50 offen{LSC} lds")
                a("s_mov_b64 exec, -1")
                for _ in range(4):
                    q.push(("s", k))

        def q_dma():
            a(f"""
            s_lshl_b32 s50, s{sQB}, 2
            s_add_u32 s50, s50, s56
            s_mul_i32 s50, s50, {TS}
            s_mul_i32 s51, s{sH}, 1792
            s_add_u32 s50, s50, s51
            s_lshl_b32 s51, s56, 11
            s_add_u32 m0, s51, {QL}
            buffer_load_dwordx4 v1, {sr(S_WS)}, s50 offen{LSC} lds
            s_mov_b32 exec_hi, 0xffff
            buffer_load_dwordx4 v1, {sr(S_WS)}, s50 offen offset:1024{LSC} lds
            s_mov_b32 exec_hi, -1
            """)
            q.push(("s", 0))
            q.push(("s", 0))

        def bar(k):
            n = q.wait_for(("s", k))
            if n is not None:
                a(f"s_waitcnt vmcnt({n}) lgkmcnt(0)")
            else:
                a("s_waitcnt lgkmcnt(0)")
            a("s_barrier")

        def wo_dma(srd_, region, tag, lo=0, hi=14):
            a(f"""
            v_lshrrev_b32 v10, 3, v0
            v_and_b32 v11, 7, v0
            v_bfe_u32 v12, v0, 4, 1
            v_lshlrev_b32 v12, 2, v12
            v_xor_b32 v11, v11, v12
            v_lshlrev_b32 v11, 4, v11
            s_movk_i32 s50, 896
            v_mad_u32_u24 v10, v10, s50, v11
            s_mul_i32 s51, s56, 100352
            s_lshl_b32 s50, s{sCB3}, 7
            s_add_u32 s51, s51, s50
            s_mul_i32 s52, s56, 14336
            """)
            for i in range(lo, hi):
                a(f"s_add_u32 s50, s51, {8*i*896}")
                a(f"s_add_u32 m0, s52, {region + i*1024}")
                a(f"buffer_load_dwordx4 v10, {sr(srd_)}, s50 offen lds")
                q.push(tag)

        skip3 = lambda name: (f"s_cmp_ge_u32 s{sIDX}, 28\ns_cbranch_scc1 {name}")

        q_dma()
        stage(0)
        consts(0)
        consts(1)
        consts(2)
        a(f"""
        v_mov_b32 v10, {QL + 1792}
        v_mov_b32 v11, 0
        ds_write_b32 v10, v11
        """)
        if cfg.get("s1early", 1):
            stage(1)
        bar(0)
        self.stamp(1, "S0")
        if not cfg.get("s1early", 1):
            stage(1)
        stage(2)
        wo_dma(S_WOB, R1, "woB", 0, 7)
        bar(1)
        stage(3)
        wo_dma(S_WOB, R1, "woB", 7, 14)
        bar(2)
        self.poll_issue("all", 0x4000, q)
        stage(4)
        a(f"s_waitcnt vmcnt({q.wait_for('poll')})")
        self.poll_check("all", 0x4000)
        self.stamp(1, "got2")
        a("s_barrier")
        stage(5)
        self.local_attn_loads(q)
        bar(4)
        stage(6)
        self.local_attn(q)
        self.stamp(1, "Ldone")
        bar(5)
        stage(7)
        self.out_gemm_setup()
        q.push("g")
        a(f"s_waitcnt vmcnt({q.wait_for('ost')})")
        a("s_barrier")
        self.publish(f"""
        s_lshl_b32 s50, s{sQB}, 4
        s_add_u32 s50, s50, s{sH}
        s_lshl_b32 s50, s50, 6
        s_add_u32 s50, s50, {WS_F + 0xC000}
        """, balance=True)
        q.push("pub")
        bar(7)
        self.poll16(0xC000, everyone=True)
        q.clear()
        self.stamp(1, "got4")
        self.out_gemm_loads(1, q, 0, 28)
        a("s_setprio 0")
        self.stamp(1, "oBiss")
        a("s_barrier")
        a(skip3("H_DONE"))
        self.out_gemm(1, R1, q, loads=False)
        lp = self.lab("HS")
        a(f"""
        v_mov_b32 v10, {QL + 1792}
        v_mov_b32 v11, 1
        s_mov_b64 exec, 1
        ds_add_u32 v10, v11
        s_mov_b64 exec, -1
        s_mov_b32 s51, 0
        """)
        a.label(lp)
        a(f"""
        ds_read_b32 v11, v10
        s_add_u32 s51, s51, 1
        s_waitcnt lgkmcnt(0)
        v_readfirstlane_b32 s50, v11
        s_cmp_ge_u32 s51, {SPIN_MAX}
        s_cbranch_scc1 {lp}_X
        s_cmp_lt_u32 s50, 8
        s_cbranch_scc1 {lp}
        """)
        a.label(lp + "_X")
        self.stamp(1, "bdone")
        wo_dma(S_WOA, R1, "woA")
        self.poll32()
        q.clear()
        a("s_barrier")
        self.stamp(1, "got3")
        self.oa_dma()
        a(f"""
        s_mul_i32 s50, s62, {TS}
        v_add_u32 v21, s50, v1
        v_add_u32 v21, {OAL}, v21
        s_waitcnt vmcnt(0)
        s_barrier
        """)
        self.stamp(1, "C4")
        self.out_gemm_lds()
        self.out_epilogue()
        a.label("H_DONE")
        if cfg.get("stamps"):
            a("s_waitcnt vmcnt(0)")
        self.stamp(1, "end")
        self.stamp_flush(14, 1)
        a("s_endpgm")

    def poll32(self):
        a = self.a
        loop, done = self.lab("POLL"), self.lab("POLLD")
        a(f"""
        s_waitcnt vmcnt(0)
        s_cmp_lg_u32 s{sW}, 4
        s_cbranch_scc1 {done}
        s_lshl_b32 s50, s{sRB3}, 11
        s_add_u32 s50, s50, {WS_F + 0x10000}
        s_mov_b32 s51, 0
        v_and_b32 v13, 31, v0
        v_lshlrev_b32 v13, 6, v13
        """)
        if self.cfg.get("pipepoll", 1):
            regs = (140, 141, 142)
            for r in regs[:2]:
                a(f"buffer_load_dword v{r}, v13, {sr(S_WS)}, s50 offen sc1")
                a("s_sleep 3")
            a.label(loop)
            for i, r in enumerate(regs):
                a(f"""
                buffer_load_dword v{regs[(i+2) % 3]}, v13, {sr(S_WS)}, s50 offen sc1
                s_waitcnt vmcnt(2)
                v_cmp_eq_u32 s[52:53], s{sNONCE}, v{r}
                s_cmp_eq_u64 s[52:53], -1
                s_cbranch_scc1 {done}
                """)
            a(f"""
            s_add_u32 s51, s51, 1
            s_cmp_lt_u32 s51, {SPIN_MAX}
            s_cbranch_scc1 {loop}
            """)
        else:
            a.label(loop)
            a(f"""
            buffer_load_dword v12, v13, {sr(S_WS)}, s50 offen sc1
            s_waitcnt vmcnt(0)
            v_cmp_eq_u32 s[52:53], s{sNONCE}, v12
            s_cmp_eq_u64 s[52:53], -1
            s_cbranch_scc1 {done}
            s_add_u32 s51, s51, 1
            s_cmp_lt_u32 s51, {SPIN_MAX}
            s_cbranch_scc1 {loop}
            """)
        a.label(done)

    def out_gemm_lds(self):
        a = self.a
        ACC, NB = 64, 4
        WF, OFB = 32, 96

        def reads(s):
            b = WF + 4 * (s % NB)
            a(f"ds_read_b128 {vr(OFB+4*(s % NB),4)}, v21 offset:{s*1024}")
            for u in range(2):
                a(f"ds_read_b64_tr_b16 {vr(b+2*u,2)}, v20 offset:{(16*s+4*u)*128}")

        for s in range(NB - 1):
            reads(s)
        for s in range(28):
            if s + NB - 1 < 28:
                reads(s + NB - 1)
                lg = 3 * (NB - 1)
            else:
                lg = 3 * (27 - s)
            a(f"s_waitcnt lgkmcnt({lg})")
            d = vr(ACC, 16)
            c = "0" if s == 0 else d
            a(f"v_mfma_f32_32x32x16_bf16 {d}, {vr(WF+4*(s % NB),4)}, {vr(OFB+4*(s % NB),4)}, {c}")

    def local_attn_loads(self, q):
        a = self.a
        LQ, LK, LKP, LV, LVP = 20, 28, 36, 44, 52
        a(f"""
        s_lshl_b32 s61, s{sQB}, 2
        s_add_u32 s61, s61, s56         ; tB
        s_mul_i32 s62, s61, {TS}
        s_sub_u32 s63, s62, {TS}
        s_cmp_eq_u32 s61, 0
        s_cselect_b32 s63, s62, s63
        s_cselect_b32 s55, 0, -1
        s_mul_i32 s54, s{sH}, 1792
        s_add_u32 s50, s62, s54
        s_add_u32 s50, s50, {BR + WS_Q}
        """)
        for r in (LQ + 6, LQ + 7, LK + 6, LK + 7, LKP + 6, LKP + 7):
            a(f"v_mov_b32 v{r}, 0")
        for r in range(12):
            a(f"v_mov_b32 v{LV+r}, 0")
        a("s_mov_b32 exec_lo, 0x10000000")
        a("s_mov_b32 exec_hi, 0x10000000")
        for r in range(12):
            a(f"v_mov_b32 v{LV+r}, 0x3f803f80")
        a("s_mov_b64 exec, -1")
        self.load_qk_frag(LQ, 5, "s50", q, "L")
        a(f"s_add_u32 s50, s50, {WS_K - WS_Q}")
        self.load_qk_frag(LK, 5, "s50", q, "L")
        a(f"s_add_u32 s50, s63, s54")
        a(f"s_add_u32 s50, s50, {BR + WS_K}")
        self.load_qk_frag(LKP, 5, "s50", q, "L")
        a(f"""
        s_mul_i32 s54, s{sH}, 448
        s_add_u32 s50, s62, s54
        s_add_u32 s50, s50, {BR + WS_V}
        s_add_u32 s51, s50, 14336
        s_add_u32 s52, s63, s54
        s_add_u32 s52, s52, {BR + WS_V + 14336}
        s_mov_b32 exec_lo, 0x0fffffff
        s_mov_b32 exec_hi, 0x0fffffff
        buffer_load_dwordx4 {vr(LV,4)}, v4, {sr(S_WS)}, s50 offen{LSC}
        buffer_load_dwordx4 {vr(LV+4,4)}, v4, {sr(S_WS)}, s51 offen{LSC}
        buffer_load_dwordx4 {vr(LVP,4)}, v4, {sr(S_WS)}, s52 offen{LSC}
        s_mov_b64 exec, -1
        v_mov_b32 v15, {NEG_BIG}
        s_add_u32 s62, s62, {WS_OB}
        """)
        for _ in range(3):
            q.push("L")
        self.o_voff(14, 13)

    def local_attn(self, q):
        a = self.a
        LQ, LK, LKP, LV, LVP = 20, 28, 36, 44, 52
        Sd, Sp, P, T, O = 64, 80, 96, 104, 124
        n = q.wait_for("L")
        if n is not None:
            a(f"s_waitcnt vmcnt({n})")
        a(f"v_mfma_f32_32x32x16_bf16 {vr(Sd,16)}, {vr(LK,4)}, {vr(LQ,4)}, 0")
        a(f"v_mfma_f32_32x32x16_bf16 {vr(Sp,16)}, {vr(LKP,4)}, {vr(LQ,4)}, 0")
        a(f"v_mfma_f32_32x32x16_bf16 {vr(Sd,16)}, {vr(LK+4,4)}, {vr(LQ+4,4)}, {vr(Sd,16)}")
        a(f"v_mfma_f32_32x32x16_bf16 {vr(Sp,16)}, {vr(LKP+4,4)}, {vr(LQ+4,4)}, {vr(Sp,16)}")
        regs = []
        for r in range(16):
            m = lane_mask(lambda l: (((l & 31) - ((r & 3) + 8 * (r >> 2) + 4 * (l >> 5))) & ~14) == 0)
            sp = 50 + 2 * (r & 1)
            a(f"s_mov_b32 s{sp}, {m & 0xffffffff:#x}")
            a(f"s_mov_b32 s{sp+1}, {m >> 32:#x}")
            a(f"v_cndmask_b32 v{Sd+r}, v15, v{Sd+r}, s[{sp}:{sp+1}]")
            regs.append(Sd + r)
        for r in range(8, 16):
            m = lane_mask(lambda l: ((32 + (l & 31) - ((r & 3) + 8 * (r >> 2) + 4 * (l >> 5))) & ~14) == 0)
            sp = 50 + 2 * (r & 1)
            a(f"s_and_b32 s{sp}, s55, {m & 0xffffffff:#x}")
            a(f"s_and_b32 s{sp+1}, s55, {m >> 32:#x}")
            a(f"v_cndmask_b32 v{Sp+r}, v15, v{Sp+r}, s[{sp}:{sp+1}]")
            regs.append(Sp + r)
        self.max_tree(regs, T, T + 1)
        for r in regs:
            a(f"v_sub_f32 v{r}, v{r}, v{T}")
        for r in regs:
            a(f"v_exp_f32 v{r}, v{r}")
        for r in range(8):
            a(f"v_cvt_pk_bf16_f32 v{P+r}, v{Sd+2*r}, v{Sd+2*r+1}")
        for r in range(4):
            a(f"v_cvt_pk_bf16_f32 v{T+4+r}, v{Sp+8+2*r}, v{Sp+9+2*r}")
        a(f"v_mfma_f32_32x32x16_bf16 {vr(O,16)}, {vr(LV,4)}, {vr(P,4)}, 0")
        a(f"v_mfma_f32_32x32x16_bf16 {vr(O,16)}, {vr(LV+4,4)}, {vr(P+4,4)}, {vr(O,16)}")
        a(f"v_mfma_f32_32x32x16_bf16 {vr(O,16)}, {vr(LVP,4)}, {vr(T+4,4)}, {vr(O,16)}")
        self.finalize_o(O, T + 8, 14, "s62", q)

    def out_gemm_setup(self):
        a = self.a
        a(f"""
        s_and_b32 s62, s56, 1
        s_lshr_b32 s63, s56, 1
        v_and_b32 v20, 3, v0
        v_lshlrev_b32 v20, 3, v20
        v_bfe_u32 v21, v0, 4, 1
        v_lshl_add_u32 v20, v21, 5, v20
        s_lshl_b32 s50, s63, 6
        v_add_u32 v20, s50, v20
        v_bfe_u32 v21, v0, 3, 1
        v_lshlrev_b32 v21, 6, v21
        v_xor_b32 v20, v20, v21
        v_bfe_u32 v21, v0, 2, 2
        v_lshl_add_u32 v21, v3, 3, v21
        v_lshl_add_u32 v20, v21, 7, v20
        s_lshl_b32 s61, s{sRB3}, 1
        s_add_u32 s61, s61, s62         ; q tile
        s_lshl_b32 s50, s61, 7
        s_add_u32 s50, s50, {WS_G}
        v_lshlrev_b32 v22, 2, v2
        buffer_load_dword v23, v22, {sr(S_WS)}, s50 offen{LSC}
        s_mul_i32 s61, s61, {TS}
        """)

    def out_gemm_loads(self, br, q, lo=0, hi=28):
        a = self.a
        OF = 144
        for s in range(lo, hi):
            if s % 4 == 0:
                a(f"s_add_u32 s50, s61, {(WS_OA if br == 0 else WS_OB) + s*1024}")
            a(f"buffer_load_dwordx4 {vr(OF+4*s,4)}, v1, {sr(S_WS)}, s50 offen offset:{(s%4)*1024}{LSC}")
            q.push(("o", s))

    def out_gemm(self, br, region, q, loads=True):
        a = self.a
        ACC = 64 + 16 * br
        OF = 144
        WF, NB = 32, 4
        areg = 20 if region == R1 else 21
        if loads:
            self.out_gemm_loads(br, q)

        def reads(s):
            b = WF + 4 * (s % NB)
            for u in range(2):
                a(f"ds_read_b64_tr_b16 {vr(b+2*u,2)}, v{areg} offset:{(16*s+4*u)*128}")

        for s in range(NB - 1):
            reads(s)
        for s in range(28):
            if s + NB - 1 < 28:
                reads(s + NB - 1)
                lg = 2 * (NB - 1)
            else:
                lg = 2 * (27 - s)
            n = q.wait_for(('o', s))
            a(f"s_waitcnt lgkmcnt({lg})" if n is None else f"s_waitcnt vmcnt({n}) lgkmcnt({lg})")
            b = WF + 4 * (s % NB)
            d = vr(ACC, 16)
            c = "0" if s == 0 else d
            a(f"v_mfma_f32_32x32x16_bf16 {d}, {vr(b,4)}, {vr(OF+4*s,4)}, {c}")

    def out_epilogue(self):
        a = self.a
        A, B, W = 64, 80, 32
        a(f"""
        v_sub_f32 v24, 1.0, v23
        v_cvt_pk_bf16_f32 v24, v24, v24
        v_lshlrev_b32 v24, 16, v24
        s_lshl_b32 s50, s{sRB3}, 6
        s_lshl_b32 s51, s62, 5
        s_add_u32 s50, s50, s51
        v_add_u32 v25, s50, v2
        s_movk_i32 s50, 896
        v_mul_lo_u32 v25, v25, s50
        v_lshl_add_u32 v25, v3, 4, v25
        s_lshl_b32 s50, s{sCB3}, 7
        s_lshl_b32 s51, s63, 6
        s_add_u32 s50, s50, s51
        """)
        for r in range(16):
            a(f"v_mul_f32 v{B+r}, v24, v{B+r}")
        for r in range(16):
            a(f"v_fma_f32 v{A+r}, v23, v{A+r}, v{B+r}")
        for r in range(8):
            a(f"v_cvt_pk_bf16_f32 v{W+r}, v{A+2*r}, v{A+2*r+1}")
        for pr in range(2):
            b = W + 4 * pr
            a(f"v_permlane32_swap_b32 v{b}, v{b+2}")
            a(f"v_permlane32_swap_b32 v{b+1}, v{b+3}")
            a(f"buffer_store_dwordx4 {vr(b,4)}, v25, {sr(S_OUT)}, s50 offen offset:{32*pr}{('', ' sc1', ' nt', ' sc0 sc1')[self.cfg.get('outpol', 0)]}")

    def gate_wg(self):
        a = self.a
        a.label("GATE_WG")
        a(f"""
        s_lshl_b32 s56, s{sGI}, 6
        s_lshl_b32 s50, s{sW}, 4
        s_add_u32 s56, s56, s50
        s_mul_i32 s57, s56, 896
        """)
        NR = 16
        GW = 16 + 4 * NR
        for r in range(4 * NR + 4):
            a(f"v_mov_b32 v{16+r}, 0")
        a("s_mov_b32 exec_hi, 0x00ffffff")
        a(f"buffer_load_dwordx4 {vr(GW,4)}, v1, {sr(S_GATE)}, 0 offen")
        for i in range(NR):
            a(f"s_add_u32 s50, s57, {896*i}")
            a(f"buffer_load_dwordx4 {vr(16+4*i,4)}, v1, {sr(S_X)}, s50 offen")
        a("s_mov_b64 exec, -1")
        Z = GW + 4
        for i in range(NR):
            a(f"v_mov_b32 v{Z+i}, 0")
        a("s_waitcnt vmcnt(0)")
        for r in range(4):
            for i in range(NR):
                a(f"v_dot2_f32_bf16 v{Z+i}, v{16+4*i+r}, v{GW+r}, v{Z+i}")
        a("s_nop 2")
        for sh in (1, 2, 4, 8):
            for i in range(NR):
                a(f"v_add_f32_dpp v{Z+i}, v{Z+i}, v{Z+i} row_shr:{sh} row_mask:0xf bank_mask:0xf bound_ctrl:0")
        for i in range(NR):
            a(f"v_add_f32_dpp v{Z+i}, v{Z+i}, v{Z+i} row_bcast:15 row_mask:0xa bank_mask:0xf")
        for i in range(NR):
            a(f"v_add_f32_dpp v{Z+i}, v{Z+i}, v{Z+i} row_bcast:31 row_mask:0xc bank_mask:0xf")

        def round_pairs():
            for i in range(0, NR, 2):
                a(f"v_cvt_pk_bf16_f32 v16, v{Z+i}, v{Z+i+1}")
                a(f"v_lshlrev_b32 v{Z+i}, 16, v16")
                a(f"v_and_b32 v{Z+i+1}, 0xffff0000, v16")
        round_pairs()
        for i in range(NR):
            a(f"v_mul_f32 v{Z+i}, {NLOG2E}, v{Z+i}")
        for i in range(NR):
            a(f"v_exp_f32 v{Z+i}, v{Z+i}")
        for i in range(NR):
            a(f"v_add_f32 v{Z+i}, 1.0, v{Z+i}")
        for i in range(NR):
            a(f"v_rcp_f32 v{Z+i}, v{Z+i}")
        round_pairs()
        a(f"""
        s_lshl_b32 s50, s56, 2
        s_add_u32 s50, s50, {WS_G}
        v_mov_b32 v16, 0
        s_mov_b32 exec_lo, 0
        s_mov_b32 exec_hi, 0x80000000
        """)
        for i in range(NR // 4):
            a(f"buffer_store_dwordx4 {vr(Z+4*i,4)}, v16, {sr(S_WS)}, s50 offen offset:{16*i} sc1")
        a("""
        s_mov_b64 exec, -1
        s_waitcnt vmcnt(0)
        s_barrier
        """)
        self.read_nonce(t0=188, t1=189)
        self.publish(f"""
        s_lshl_b32 s50, s2, 6
        s_add_u32 s50, s50, {WS_F}
        """, only_wave=0, t0=188, t1=189)
        if self.cfg.get("p1v", 1) == 2:
            self.publish(f"""
            s_lshl_b32 s50, s2, 6
            s_add_u32 s50, s50, {WS_F + 0x4000}
            """, only_wave=0, t0=188, t1=189)
        a("""
        s_barrier
        s_branch ATT_C_ENTRY
        """)
        a.label("GATE_H")
        a(f"s_setprio {self.cfg.get('hprio', 3)}")
        self.srds_first()
        self.srds_rest()
        if not self.cfg.get("l2pf", 1):
            a("s_barrier")
        if self.cfg.get("l2pf", 1):
            a(f"""
            s_sub_u32 s56, s{sIDX}, 28
            s_lshl_b32 s56, s56, 2
            s_add_u32 s56, s56, s{sW}
            s_sub_u32 s56, s56, 4           ; pw 0..15
            s_lshr_b32 s50, s{sXCD}, 1
            s_mul_i32 s57, s50, {512*896}
            s_mul_i32 s50, s56, 28672
            s_add_u32 s57, s57, s50         ; x slice
            v_and_b32 v2, 31, v0
            v_lshlrev_b32 v2, 4, v2
            v_lshrrev_b32 v3, 5, v0
            s_movk_i32 s50, 896
            v_mad_u32_u24 v4, v3, s50, v2   ; (r0,p0),(r0,p1)
            v_add_u32 v5, 1792, v4          ; (r0,p2),(r1,p0)
            v_add_u32 v6, 3584, v4          ; (r1,p1),(r1,p2)
            s_and_b32 s50, s{sXCD}, 1
            s_mul_i32 s58, s50, 384
            s_mul_i32 s50, s56, 5376
            s_add_u32 s58, s58, s50
            s_lshl_b32 s59, s56, 10
            """)
            n = [0]

            def dst():
                n[0] += 1
                return vr(16 + 4 * (n[0] % 32), 4)
            if self.cfg.get("l2pf") == 3:
                a("""
                s_movk_i32 s50, 2688
                v_mad_u32_u24 v7, v3, s50, v2
                """)
                for i in range(14):
                    a(f"s_add_u32 s50, s58, {i*16*5376}")
                    a(f"buffer_load_dwordx4 {dst()}, v7, {sr(S_WA)}, s50 offen")
            for sw in (S_WB,):
                for i in range(14):
                    a(f"s_add_u32 s50, s58, {i*16*5376}")
                    for k in range(3):
                        a(f"buffer_load_dwordx4 {dst()}, v{4+k}, {sr(sw)}, s50 offen")
                    if i == self.cfg.get("gbar", 13):
                        a("s_barrier")
            for sw in ((S_WOB, S_WOA) if self.cfg.get("l2pf") == 2 else ()):
                for i in range(25):
                    a(f"s_add_u32 s50, s59, {i*16384}")
                    a(f"buffer_load_dwordx4 {dst()}, v1, {sr(sw)}, s50 offen")
        self.read_nonce()
        self.poll_all(0)
        a("""
        s_barrier
        s_branch ATT_H_ENTRY
        """)


def build(cfg):
    g = Gen(cfg)
    body = g.build()
    head = f"""; {NAME}: one persistent launch (projections -> attention -> output projection + gated mix)
; @launch grid=(256,1,1) block=(512,1,1) lds={LDS_BYTES}
.amdgcn_target "amdgcn-amd-amdhsa--gfx950"
.text
.globl {NAME}_kernel
"""
    tail = f""".section .rodata,"a"
.p2align 6
.amdhsa_kernel {NAME}_kernel
  .amdhsa_next_free_vgpr 256
  .amdhsa_next_free_sgpr 100
  .amdhsa_accum_offset {256}
  .amdhsa_group_segment_fixed_size 0
  .amdhsa_kernarg_size 80
  .amdhsa_user_sgpr_count 2
  .amdhsa_user_sgpr_kernarg_segment_ptr 1
  .amdhsa_system_sgpr_workgroup_id_x 1
.end_amdhsa_kernel
"""
    if cfg.get("stamps"):
        head = "; STAMPS " + repr(g.stnames) + "\n" + head
    return head + body + tail, g.a.n_pads


if __name__ == "__main__":
    cfg = {}
    out = f"cdna_kernels/{NAME}.s"
    for arg in sys.argv[1:]:
        if arg.startswith("-o="):
            out = arg[3:]
        else:
            k, v = arg.split("=")
            cfg[k] = int(v)
    s, n = build(cfg)
    open(out, "w").write(s)
    print("wrote", out, len(s), "bytes;", n, "hazard pads")
```

```python
import math
import struct
import sys
import os

sys.path.insert(0, os.path.dirname(os.path.abspath(__file__)))
from asmlib import Asm

NAME = "gated_mix__mha_block__sliding_local_dilated__prompt"

TS = 28672
WS_Q = 0x000000
WS_K = 0x200000
WS_V = 0x400000
BR = 0x600000
WS_OA = 0xC00000
WS_OB = 0xE00000
WS_G = 0x1000000
WS_F = 0x1010000
WS_USED = 0x1030000
WS_DIAG = 0x2000000

X_BYTES = 2048 * 448 * 2
W_BYTES = 448 * 1344 * 2
WO_BYTES = 448 * 448 * 2

R1 = 0
R2 = 57344
R3 = 106496
LDS_BYTES = 163840
CB = R2 + 32768
QL = 155648
OAL = R2
SLOT_TS = (8, 0, 16)
SPIN_MAX = 40000
LSC = ''


def f32bits(x):
    return struct.unpack("<I", struct.pack("<f", x))[0]


SCALE_F32 = struct.unpack("<f", struct.pack("<f", 28 ** -0.5))[0]
QSCALE = f32bits(SCALE_F32 * math.log2(math.e))
NEG_BIG = f32bits(-1.0e30)
NLOG2E = f32bits(-math.log2(math.e))

S_X, S_WA, S_WB, S_WS, S_WOA, S_WOB, S_OUT, S_DBG, S_GATE = 4, 8, 12, 16, 20, 24, 28, 32, 36
KA0 = 68
sW, sXCD, sIDX, sRB, sCG, sH, sQB, sRB3, sCB3, sNONCE = 40, 41, 42, 43, 44, 45, 46, 47, 48, 49
sGI = 3
sBR = 95
RW = 114688


def sr(b):
    return f"s[{b}:{b+3}]"


class VmQ:
    def __init__(self):
        self.q = []

    def push(self, tag):
        self.q.append(tag)

    def wait_for(self, tag):
        idx = max([i for i, t in enumerate(self.q) if t == tag], default=-1)
        if idx < 0:
            return None
        n = len(self.q) - 1 - idx
        self.q = self.q[idx + 1:]
        return min(n, 63)

    def clear(self):
        self.q = []


def vr(b, n):
    return f"v[{b}:{b+n-1}]"


def ar(b, n):
    return f"a[{b}:{b+n-1}]"


def lane_mask(fn):
    m = 0
    for l in range(64):
        if fn(l):
            m |= 1 << l
    return m


class Gen:
    def __init__(self, cfg):
        self.cfg = cfg
        self.a = Asm()
        self.nlab = 0
        self.stnames = {}

    def lab(self, p):
        self.nlab += 1
        return f"{p}_{self.nlab}"

    def stamp(self, idx, name=None):
        if not self.cfg.get("stamps"):
            return
        if name is not None and self.cfg.get("ststage") and idx == 0 and name in ("c0", "b7", "b11", "pub1", "c14", "preS0", "T1"):
            return
        if name is not None:
            role = idx
            lst = self.stnames.setdefault(role, ["start"])
            idx = len(lst)
            lst.append(name)
            assert idx < 14
        self.a(f"""
        s_memtime s[{64+2*idx}:{65+2*idx}]
        """)
        if idx == 0:
            self.a("s_memrealtime s[98:99]")

    def stamp_flush(self, n, role):
        if not self.cfg.get("stamps"):
            return
        a = self.a
        skip = self.lab("STSKIP")
        a(f"""
        s_memrealtime s[96:97]
        s_cmp_lg_u32 s{sW}, {4*role}
        s_cbranch_scc1 {skip}
        s_waitcnt lgkmcnt(0)
        s_mov_b32 s{S_WS+2}, 0x2100000
        s_lshl_b32 s50, s2, 8
        s_add_u32 s50, s50, {WS_DIAG + role*128}
        v_mov_b32 v3, 0
        """)
        for i in range(2 * n):
            a(f"v_mov_b32 v4, s{64+i}")
            a(f"buffer_store_dword v4, v3, {sr(S_WS)}, s50 offen offset:{4*i}")
        for i, s in enumerate((98, 99, 96, 97)):
            a(f"v_mov_b32 v4, s{s}")
            a(f"buffer_store_dword v4, v3, {sr(S_WS)}, s50 offen offset:{112+4*i}")
        a.label(skip)

    def publish(self, off_sgpr_expr_lines, only_wave=4, t0=12, t1=13, balance=False):
        a = self.a
        skip, end = self.lab("PUB"), self.lab("PUBE")
        a(off_sgpr_expr_lines)
        a(f"""
        v_mov_b32 v{t0}, 0
        v_mov_b32 v{t1}, s{sNONCE}
        s_mov_b64 exec, 1
        s_cmp_lg_u32 s{sW}, {only_wave}
        s_cbranch_scc1 {skip}
        buffer_store_dword v{t1}, v{t0}, {sr(S_WS)}, s50 offen sc1
        """)
        if balance:
            a(f"s_branch {end}")
        a.label(skip)
        if balance:
            a(f"buffer_load_dword v{t1}, v{t0}, {sr(S_GATE)}, 0 offen")
            a.label(end)
        a("s_mov_b64 exec, -1")

    def poll_all(self, foff):
        a = self.a
        loop, done = self.lab("POLL"), self.lab("POLLD")
        a(f"""
        s_waitcnt vmcnt(0)
        s_cmp_lg_u32 s{sW}, 4
        s_cbranch_scc1 {done}
        s_mov_b32 s50, {WS_F + foff}
        s_mov_b32 s92, {WS_F + foff + 4096}
        s_mov_b32 s93, {WS_F + foff + 8192}
        s_mov_b32 s94, {WS_F + foff + 12288}
        v_lshlrev_b32 v11, 6, v0
        s_mov_b32 s51, 0
        """)
        if self.cfg.get("mpoll", 1):
            pend = (52, 54, 88, 90)
            offs = ("s50", "s92", "s93", "s94")
            for p in pend:
                a(f"s_mov_b64 s[{p}:{p+1}], -1")
            a.label(loop)
            for i, p in enumerate(pend):
                sk = self.lab("PSK")
                a(f"""
                s_mov_b64 exec, s[{p}:{p+1}]
                s_cbranch_execz {sk}
                buffer_load_dword v{12+i}, v11, {sr(S_WS)}, {offs[i]} offen sc1
                """)
                a.label(sk)
            a("s_waitcnt vmcnt(0)")
            for i, p in enumerate(pend):
                a(f"s_mov_b64 exec, s[{p}:{p+1}]")
                a(f"v_cmp_ne_u32 s[{p}:{p+1}], s{sNONCE}, v{12+i}")
            a(f"""
            s_mov_b64 exec, -1
            s_or_b64 vcc, s[52:53], s[54:55]
            s_or_b64 vcc, vcc, s[88:89]
            s_or_b64 vcc, vcc, s[90:91]
            s_cmp_eq_u64 vcc, 0
            s_cbranch_scc1 {done}
            s_sleep {self.cfg.get("sleep", 4)}
            s_add_u32 s51, s51, 1
            s_cmp_lt_u32 s51, {SPIN_MAX}
            s_cbranch_scc1 {loop}
            """)
            a.label(done)
            return
        a.label(loop)
        a(f"""
        buffer_load_dword v12, v11, {sr(S_WS)}, s50 offen sc1
        buffer_load_dword v13, v11, {sr(S_WS)}, s92 offen sc1
        buffer_load_dword v14, v11, {sr(S_WS)}, s93 offen sc1
        buffer_load_dword v15, v11, {sr(S_WS)}, s94 offen sc1
        s_waitcnt vmcnt(0)
        v_cmp_eq_u32 s[52:53], s{sNONCE}, v12
        v_cmp_eq_u32 s[54:55], s{sNONCE}, v13
        s_and_b64 s[52:53], s[52:53], s[54:55]
        v_cmp_eq_u32 s[54:55], s{sNONCE}, v14
        s_and_b64 s[52:53], s[52:53], s[54:55]
        v_cmp_eq_u32 s[54:55], s{sNONCE}, v15
        s_and_b64 s[52:53], s[52:53], s[54:55]
        s_cmp_eq_u64 s[52:53], -1
        s_cbranch_scc1 {done}
        s_sleep {self.cfg.get("sleep", 4)}
        s_add_u32 s51, s51, 1
        s_cmp_lt_u32 s51, {SPIN_MAX}
        s_cbranch_scc1 {loop}
        """)
        a.label(done)

    def poll_issue(self, kind, foff, q):
        a = self.a
        if kind == "all":
            a("v_lshlrev_b32 v11, 6, v0")
            for i in range(4):
                a(f"s_mov_b32 s50, {WS_F + foff + 4096*i}")
                a(f"buffer_load_dword v{140+i}, v11, {sr(S_WS)}, s50 offen sc1")
                q.push("poll")
        else:
            a(f"""
            s_lshr_b32 s50, s{sRB3}, 1
            s_lshl_b32 s50, s50, 10
            s_add_u32 s50, s50, {WS_F + foff}
            v_and_b32 v11, 15, v0
            v_lshlrev_b32 v11, 6, v11
            buffer_load_dword v140, v11, {sr(S_WS)}, s50 offen sc1
            """)
            q.push("poll")

    def poll_check(self, kind, foff):
        a = self.a
        ok = self.lab("PCK")
        a(f"v_cmp_eq_u32 s[52:53], s{sNONCE}, v140")
        if kind == "all":
            for i in range(1, 4):
                a(f"v_cmp_eq_u32 s[54:55], s{sNONCE}, v{140+i}")
                a("s_and_b64 s[52:53], s[52:53], s[54:55]")
        a("s_cmp_eq_u64 s[52:53], -1")
        a(f"s_cbranch_scc1 {ok}")
        if kind == "all":
            self.poll_all(foff)
        else:
            self.poll16(foff)
        a.label(ok)

    def poll16(self, foff, everyone=False):
        a = self.a
        loop, done = self.lab("POLL"), self.lab("POLLD")
        a(f"""
        s_waitcnt vmcnt(0)
        s_cmp_lg_u32 s{sW}, {"s%d" % sW if everyone else 4}
        s_cbranch_scc1 {done}
        s_cmp_ge_u32 s{sIDX}, 28
        s_cbranch_scc1 {done}
        s_lshr_b32 s50, s{sRB3}, 1
        s_lshl_b32 s50, s50, 10
        s_add_u32 s50, s50, {WS_F + foff}
        s_mov_b32 s51, 0
        v_and_b32 v13, 15, v0
        v_lshlrev_b32 v13, 6, v13
        """)
        a.label(loop)
        a(f"""
        buffer_load_dword v12, v13, {sr(S_WS)}, s50 offen sc1
        s_waitcnt vmcnt(0)
        v_cmp_eq_u32 s[52:53], s{sNONCE}, v12
        s_cmp_eq_u64 s[52:53], -1
        s_cbranch_scc1 {done}
        s_sleep {self.cfg.get("sleep", 4)}
        s_add_u32 s51, s51, 1
        s_cmp_lt_u32 s51, {SPIN_MAX}
        s_cbranch_scc1 {loop}
        """)
        a.label(done)

    def get_nonce(self):
        a = self.a
        loop, done, skip = self.lab("NON"), self.lab("NOND"), self.lab("NONS")
        a(f"""
        v_mov_b32 v12, 0
        s_cmp_lg_u32 s2, 0
        s_cbranch_scc1 {skip}
        s_cmp_lg_u32 s{sW}, 4
        s_cbranch_scc1 {skip}
        s_memrealtime s[50:51]
        s_waitcnt lgkmcnt(0)
        s_or_b32 s50, s50, 1
        v_mov_b32 v13, s50
        s_mov_b64 exec, 1
        buffer_store_dword v13, v12, {sr(S_DBG)}, 0 offen sc1
        s_mov_b64 exec, -1
        """)
        a.label(skip)

    def read_nonce(self, early=None, t0=12, t1=13):
        a = self.a
        loop, done = self.lab("NON"), self.lab("NOND")
        if early is not None:
            a(f"""
            v_readfirstlane_b32 s{sNONCE}, v{early}
            s_cmp_lg_u32 s{sNONCE}, 0
            s_cbranch_scc1 {done}
            """)
        a(f"""
        v_mov_b32 v{t0}, 0
        s_mov_b32 s51, 0
        """)
        a.label(loop)
        a(f"""
        buffer_load_dword v{t1}, v{t0}, {sr(S_DBG)}, 0 offen sc1
        s_waitcnt vmcnt(0)
        v_readfirstlane_b32 s{sNONCE}, v{t1}
        s_cmp_lg_u32 s{sNONCE}, 0
        s_cbranch_scc1 {done}
        s_sleep {self.cfg.get("sleep", 4)}
        s_add_u32 s51, s51, 1
        s_cmp_lt_u32 s51, {SPIN_MAX}
        s_cbranch_scc1 {loop}
        """)
        a.label(done)

    def max_tree(self, regs, dst, tmp):
        a = self.a
        h = len(regs) // 2
        for (rs, d) in ((regs[:h], dst), (regs[h:], tmp)):
            a(f"v_max3_f32 v{d}, v{rs[0]}, v{rs[1]}, v{rs[2]}")
            i = 3
            while i + 1 < len(rs):
                a(f"v_max3_f32 v{d}, v{d}, v{rs[i]}, v{rs[i+1]}")
                i += 2
            if i < len(rs):
                a(f"v_max_f32 v{d}, v{d}, v{rs[i]}")
        a(f"v_max_f32 v{dst}, v{dst}, v{tmp}")
        a(f"v_mov_b32 v{tmp}, v{dst}")
        a(f"v_permlane32_swap_b32 v{dst}, v{tmp}")
        a(f"v_max_f32 v{dst}, v{dst}, v{tmp}")

    def o_voff(self, dst, tmp):
        self.a(f"""
        v_and_b32 v{dst}, 31, v0
        v_lshlrev_b32 v{dst}, 4, v{dst}
        v_lshrrev_b32 v{tmp}, 5, v0
        s_and_b32 s50, s{sH}, 1
        s_cmp_eq_u32 s50, 0
        s_cselect_b32 s51, 8, 504
        s_cselect_b32 s50, 0, 1544
        v_mad_u32_u24 v{dst}, v{tmp}, s51, v{dst}
        v_add_u32 v{dst}, s50, v{dst}
        s_lshr_b32 s50, s{sH}, 1
        s_mul_i32 s50, s50, 3584
        v_add_u32 v{dst}, s50, v{dst}
        """)

    def finalize_o(self, O, T, voff, soff, q=None):
        a = self.a
        a(f"""
        v_mov_b32 v{T}, v{O+12}
        v_mov_b32 v{T+1}, v{O+12}
        v_permlane32_swap_b32 v{T}, v{T+1}
        v_rcp_f32 v{T}, v{T+1}
        """)
        for r in range(16):
            a(f"v_mul_f32 v{O+r}, v{T}, v{O+r}")
        for r in range(8):
            a(f"v_cvt_pk_bf16_f32 v{T+2+r}, v{O+2*r}, v{O+2*r+1}")
        for i in range(4):
            if i == 3:
                a("s_mov_b32 exec_hi, 0")
            a(f"buffer_store_dwordx2 {vr(T+2+2*i,2)}, v{voff}, {sr(S_WS)}, {soff} offen offset:{512*i} sc1")
            if q is not None:
                q.push("ost")
        a("s_mov_b64 exec, -1")

    def load_qk_frag(self, dst, voff, soff, q=None, tag=None, pfx="v"):
        a = self.a
        for i in range(4):
            if i == 3:
                a("s_mov_b32 exec_hi, 0")
            a(f"buffer_load_dwordx2 {pfx}[{dst+2*i}:{dst+2*i+1}], v{voff}, {sr(S_WS)}, {soff} offen offset:{512*i}{LSC}")
            if q is not None:
                q.push(tag)
        a("s_mov_b32 exec_hi, -1")

    def srd(self, base, pair, nbytes):
        self.a(f"""
        s_mov_b32 s{base}, s{pair}
        s_and_b32 s{base+1}, s{pair+1}, 0xffff
        s_mov_b32 s{base+2}, {nbytes}
        s_mov_b32 s{base+3}, 0x20000
        """)

    def srds_first(self):
        self.a("s_waitcnt lgkmcnt(0)")
        self.srd(S_X, KA0, X_BYTES)
        if self.cfg.get("p1v", 1) == 2:
            self.a(f"""
            s_cmp_eq_u32 s{sBR}, 0
            s_cselect_b32 s{S_WA}, s{KA0+2}, s{KA0+8}
            s_cselect_b32 s{S_WA+1}, s{KA0+3}, s{KA0+9}
            s_and_b32 s{S_WA+1}, s{S_WA+1}, 0xffff
            s_mov_b32 s{S_WA+2}, {W_BYTES}
            s_mov_b32 s{S_WA+3}, 0x20000
            """)
        else:
            self.srd(S_WA, KA0 + 2, W_BYTES)

    def srds_rest(self):
        self.srd(S_WOA, KA0 + 4, WO_BYTES)
        self.srd(S_WB, KA0 + 8, W_BYTES)
        self.srd(S_WOB, KA0 + 10, WO_BYTES)
        self.srd(S_GATE, KA0 + 12, 896)
        self.srd(S_OUT, KA0 + 14, X_BYTES)
        self.srd(S_DBG, KA0 + 16, 256)
        self.srd(S_WS, KA0 + 18, WS_USED)
        self.a(f"""
        s_lshl_b32 s{sH}, s{sXCD}, 1
        s_and_b32 s50, s{sIDX}, 1
        s_add_u32 s{sH}, s{sH}, s50
        s_lshr_b32 s{sQB}, s2, 4
        s_lshl_b32 s{sRB3}, s{sXCD}, 2
        s_and_b32 s50, s{sIDX}, 3
        s_add_u32 s{sRB3}, s{sRB3}, s50
        s_lshr_b32 s{sCB3}, s{sIDX}, 2
        """)

    def build(self):
        a, cfg = self.a, self.cfg
        a.raw(".p2align 8")
        a.raw(f".type {NAME}_kernel,@function")
        a.label(f"{NAME}_kernel")
        a("""
        s_cmp_ge_u32 s2, 256
        s_cbranch_scc1 K_END
        """)
        self.stamp(0)
        a(f"""
        s_load_dwordx16 s[{KA0}:{KA0+15}], s[0:1], 0
        s_load_dwordx4 s[{KA0+16}:{KA0+19}], s[0:1], 64
        v_lshrrev_b32 v1, 6, v0
        v_and_b32 v0, 63, v0
        v_readfirstlane_b32 s{sW}, v1
        s_and_b32 s{sXCD}, s2, 7
        s_lshr_b32 s{sIDX}, s2, 3
        v_lshlrev_b32 v1, 4, v0
        """)
        if cfg.get("codepf", 1):
            a(f"""
            s_getpc_b64 s[52:53]
            """)
            a.label("PCREF")
            a(f"""
            s_sub_u32 s52, s52, PCREF-{NAME}_kernel
            s_subb_u32 s53, s53, 0
            s_and_b32 s53, s53, 0xffff
            s_mov_b32 s54, K_CODE_END-{NAME}_kernel
            s_mov_b32 s55, 0x20000
            s_lshl_b32 s50, s{sIDX}, 2
            s_add_u32 s50, s50, s{sW}
            s_lshl_b32 s50, s50, 10
            s_cmp_ge_u32 s{sW}, 4
            s_cbranch_scc1 NOPF
            buffer_load_dwordx4 v[240:243], v1, s[52:55], s50 offen
            """)
            a.label("NOPF")
        if cfg.get("p1v", 1) == 2:
            a(f"""
            s_cmp_ge_u32 s{sIDX}, 14
            s_cselect_b32 s{sBR}, 1, 0
            s_cselect_b32 s51, 14, 0
            s_sub_u32 s51, s{sIDX}, s51
            s_lshr_b32 s50, s{sXCD}, 1
            s_lshl_b32 s50, s50, 2          ; 4p
            s_and_b32 s61, s{sXCD}, 1       ; s
            s_and_b32 s{sRB}, s51, 3
            s_add_u32 s{sRB}, s{sRB}, s50
            s_lshr_b32 s{sCG}, s51, 2
            s_lshl_b32 s62, s61, 2
            s_add_u32 s{sCG}, s{sCG}, s62
            s_lshl_b32 s62, s61, 1
            s_add_u32 s62, s62, s51
            s_add_u32 s62, s62, s50
            s_sub_u32 s62, s62, 12
            s_cmp_ge_u32 s51, 12
            s_cselect_b32 s{sRB}, s62, s{sRB}
            s_cselect_b32 s{sCG}, 3, s{sCG}
            s_lshl_b32 s{sGI}, s{sXCD}, 2
            s_add_u32 s{sGI}, s{sGI}, s{sIDX}
            s_sub_u32 s{sGI}, s{sGI}, 28
            s_cmp_ge_u32 s{sIDX}, 28
            s_cselect_b32 s{sGI}, s{sGI}, -1
            """)
        elif cfg.get("p1map", 0) == 0:
            a(f"""
            s_lshr_b32 s50, s{sXCD}, 1
            s_lshl_b32 s50, s50, 3          ; 8p
            s_and_b32 s51, s{sXCD}, 1       ; s
            s_and_b32 s{sRB}, s{sIDX}, 7
            s_add_u32 s{sRB}, s{sRB}, s50
            s_lshr_b32 s{sCG}, s{sIDX}, 3
            s_lshl_b32 s61, s51, 2
            s_add_u32 s{sCG}, s{sCG}, s61
            s_sub_u32 s62, s{sIDX}, 24
            s_add_u32 s62, s62, s61
            s_add_u32 s62, s62, s50
            s_cmp_ge_u32 s{sIDX}, 24
            s_cselect_b32 s{sRB}, s62, s{sRB}
            s_cselect_b32 s{sCG}, 3, s{sCG}
            s_lshl_b32 s{sGI}, s{sXCD}, 2
            s_add_u32 s{sGI}, s{sGI}, s{sIDX}
            s_sub_u32 s{sGI}, s{sGI}, 28
            s_cmp_ge_u32 s{sIDX}, 28
            s_cselect_b32 s{sGI}, s{sGI}, -1
            """)
        else:
            a(f"""
            s_and_b32 s50, s{sXCD}, 1
            s_lshl_b32 s50, s50, 4
            s_lshr_b32 s{sRB}, s{sIDX}, 1
            s_and_b32 s{sCG}, s{sXCD}, 6
            s_and_b32 s51, s{sIDX}, 1
            s_add_u32 s{sCG}, s{sCG}, s51
            s_add_u32 s{sGI}, s50, s{sIDX}
            s_sub_u32 s{sGI}, s{sGI}, 16
            s_cmp_ge_u32 s{sXCD}, 6
            s_cselect_b32 s{sRB}, s{sIDX}, s{sRB}
            s_cselect_b32 s{sCG}, 6, s{sCG}
            s_cselect_b32 s51, s{sIDX}, 0
            s_add_u32 s{sRB}, s{sRB}, s50
            s_cmp_ge_u32 s51, 16
            s_cselect_b32 s{sGI}, s{sGI}, -1
            """)
        a(f"""
        s_cmp_lt_u32 s{sW}, 4
        s_cbranch_scc1 COMPUTE
        s_cmp_lg_u32 s{sGI}, -1
        s_cbranch_scc1 GATE_H
        """)
        if cfg.get("p1v", 1) == 2:
            self.helper_p1b()
        else:
            self.helper_p1()
        self.helper_attn()
        a.label("COMPUTE")
        self.srds_first()
        self.srds_rest()
        if cfg.get("pfall"):
            a(f"""
            s_lshl_b32 s56, s{sIDX}, 2
            s_add_u32 s56, s56, s{sW}
            v_and_b32 v2, 31, v0
            v_lshlrev_b32 v2, 4, v2
            v_lshrrev_b32 v3, 5, v0
            s_movk_i32 s50, 896
            v_mad_u32_u24 v4, v3, s50, v2
            v_add_u32 v5, 1792, v4
            v_add_u32 v6, 3584, v4
            s_and_b32 s50, s{sXCD}, 1
            s_mul_i32 s58, s50, 384
            s_mul_i32 s50, s56, 5376
            s_add_u32 s58, s58, s50
            """)
            for i in range(cfg.get("pfall")):
                a(f"s_add_u32 s50, s58, {i*128*5376}")
                for k in range(3):
                    a(f"buffer_load_dwordx4 v[244:247], v{4+k}, {sr(S_WB)}, s50 offen")
        a(f"""
        s_cmp_lg_u32 s{sGI}, -1
        s_cbranch_scc1 GATE_WG
        """)
        if cfg.get("p1v", 1) == 2:
            self.compute_p1b()
        else:
            self.compute_p1()
        self.compute_attn()
        self.gate_wg()
        self.fallback()
        a.label("K_END")
        a("s_endpgm")
        a.label("K_CODE_END")
        return a.render()

    def p1_plan(self):
        order = self.cfg.get("order", 1)
        steps = []
        if order == 1:
            for c in range(7):
                steps.append(([(0, 1), (0, 2)], [c]))
            for cs in ([0, 1], [2, 3], [4, 5], [6]):
                steps.append(([(0, 0)], cs))
            for c in range(7):
                steps.append(([(1, 0), (1, 1), (1, 2)], [c]))
        else:
            for br in range(2):
                for c in range(7):
                    steps.append(([(br, 0), (br, 1), (br, 2)], [c]))
        u = 0
        units = []
        for pcs, cs in steps:
            m = {}
            for c in cs:
                for pc in pcs:
                    m[(pc, c)] = u % 12
                    u += 1
            units.append(m)
        LIM = self.cfg.get("inflight", 8)
        sched = {i: [] for i in range(-1, len(steps))}
        nxt, used = 0, 0
        size = [len(m) for m in units]
        for b in range(-1, len(steps)):
            live = sum(size[max(b, 0):nxt])
            ahead = sum(size[b + 1:nxt])
            lim = LIM if b >= self.cfg.get("ramp", 2) else self.cfg.get("inflight0", 8)
            while nxt < len(steps) and live + size[nxt] <= 12 and ahead + size[nxt] <= lim:
                sched[b].append(nxt)
                live += size[nxt]
                ahead += size[nxt]
                nxt += 1
        assert nxt == len(steps)
        return steps, units, sched

    def compute_p1(self):
        a, cfg = self.a, self.cfg
        ACC = [64, 112]
        FR = 16
        XA, WA = 4, 8
        PK = 160
        a(f"""
        s_and_b32 s56, s{sW}, 1         ; rho
        s_lshr_b32 s57, s{sW}, 1        ; c
        v_and_b32 v2, 31, v0            ; r
        v_lshrrev_b32 v3, 5, v0         ; hf
        v_bfe_u32 v10, v0, 1, 3
        v_xor_b32 v10, v10, v3
        s_lshl_b32 s50, s56, 12
        v_lshlrev_b32 v11, 7, v2
        v_add_u32 v11, s50, v11
        """)
        for sp in range(4):
            a(f"v_xor_b32 v12, {2*sp}, v10")
            a(f"v_lshl_add_u32 v{XA+sp}, v12, 4, v11")
        a(f"""
        v_and_b32 v11, 3, v0
        v_lshlrev_b32 v11, 3, v11
        v_bfe_u32 v12, v0, 4, 1
        v_lshl_add_u32 v11, v12, 5, v11
        s_lshl_b32 s50, s57, 6
        v_add_u32 v11, s50, v11
        v_bfe_u32 v12, v0, 3, 1
        v_lshlrev_b32 v12, 6, v12
        v_xor_b32 v11, v11, v12
        v_bfe_u32 v12, v0, 2, 2
        v_lshl_add_u32 v12, v3, 3, v12
        v_lshl_add_u32 v11, v12, 7, v11
        v_add_u32 v{WA}, {R2}, v11
        v_add_u32 v{WA+1}, {R2+49152}, v11
        v_lshlrev_b32 v10, 3, v2
        v_lshl_add_u32 v10, v3, 8, v10
        v_lshlrev_b32 v11, 4, v2
        s_movk_i32 s50, 7168
        v_mad_u32_u24 v11, v3, s50, v11 ; v11 = hf*7168 + (l&31)*16  (V)
        s_lshl_b32 s58, s{sRB}, 1
        s_add_u32 s58, s58, s56         ; t
        s_mul_i32 s58, s58, {TS}
        s_lshl_b32 s59, s{sCG}, 12
        s_lshl_b32 s50, s57, 11
        s_add_u32 s59, s59, s50
        s_add_u32 s59, s59, s58
        s_lshl_b32 s60, s{sCG}, 10
        s_lshl_b32 s50, s57, 9
        s_add_u32 s60, s60, s50
        s_add_u32 s60, s60, s58         ; V soffset
        s_mov_b32 s61, {QSCALE}
        """)

        steps, units, sched = self.p1_plan()
        ACCR = {(0, 0): 64, (0, 1): 80, (0, 2): 96, (1, 0): 112, (1, 1): 128, (1, 2): 144}
        ks = []
        for j, (pcs, cs) in enumerate(steps):
            for c in cs:
                for sp in range(4):
                    ks.append((j, c, sp, c == cs[0] and sp == 0))
        NK = len(ks)

        def reads(n):
            j, c, sp, _ = ks[n]
            b = FR + 16 * (n % 2)
            out = [f"ds_read_b128 {vr(b,4)}, v{XA+sp} offset:{c*8192}"]
            if cfg.get("exp_nox") and j >= 7:
                out = []
            for i, pc in enumerate(steps[j][0]):
                if cfg.get("exp_now") and i >= 1:
                    continue
                un = units[j][(pc, c)]
                for u in range(2):
                    off = (un % 6) * 8192 + (16 * sp + 4 * u) * 128
                    out.append(f"ds_read_b64_tr_b16 {vr(b+4+4*i+2*u,2)}, v{WA + un // 6} offset:{off}")
            return out

        def mfmas(n):
            j, c, sp, _ = ks[n]
            b = FR + 16 * (n % 2)
            X = vr(b, 4)
            out = []
            for i, pc in enumerate(steps[j][0]):
                W = vr(b + 4 + 4 * i, 4)
                d = vr(ACCR[pc], 16)
                cin = "0" if (c == 0 and sp == 0) else d
                if pc[1] < 2:
                    out.append(f"v_mfma_f32_32x32x16_bf16 {d}, {W}, {X}, {cin}")
                else:
                    out.append(f"v_mfma_f32_32x32x16_bf16 {d}, {X}, {W}, {cin}")
            return out

        def epilogue(pc):
            br, tile = pc
            acc = ACCR[pc]
            out = []
            if tile == 0:
                for r in range(8):
                    out.append(f"v_cvt_pk_bf16_f32 v{PK+r}, v{acc+2*r}, v{acc+2*r+1}")
                for r in range(8):
                    out.append(f"v_lshlrev_b32 v{acc+2*r}, 16, v{PK+r}")
                    out.append(f"v_and_b32 v{acc+2*r+1}, 0xffff0000, v{PK+r}")
                for r in range(16):
                    out.append(f"v_mul_f32 v{acc+r}, s61, v{acc+r}")
            for r in range(8):
                out.append(f"v_cvt_pk_bf16_f32 v{PK+8*tile+r}, v{acc+2*r}, v{acc+2*r+1}")
            if tile < 2:
                out.append(f"s_add_u32 s50, s59, {br*BR + (WS_Q if tile == 0 else WS_K)}")
                for gi in range(4):
                    out.append(f"buffer_store_dwordx2 {vr(PK+8*tile+2*gi,2)}, v10, {sr(S_WS)}, s50 offen offset:{512*gi} sc1")
            else:
                for f in range(2):
                    out.append(f"s_add_u32 s50, s60, {br*BR + WS_V + f*14336}")
                    out.append(f"buffer_store_dwordx4 {vr(PK+16+4*f,4)}, v11, {sr(S_WS)}, s50 offen sc1")
            if cfg.get("exp_nost") == 1:
                out = [x for x in out if not x.startswith("buffer_store")]
            if cfg.get("exp_nost") == 2:
                out = [x.replace(" sc1", "") for x in out]
            return out

        FB = cfg.get("flag1_bar", 13)
        pend = []
        a("s_barrier")
        self.stamp(0, "c0")
        for x in reads(0):
            a(x)
        for n in range(NK):
            j = ks[n][0]
            nxt = reads(n + 1) if n + 1 < NK else []
            first = n + 1 < NK and ks[n + 1][3]
            if first:
                jb = ks[n + 1][0]
                if jb == FB:
                    assert not pend
                    a("s_waitcnt vmcnt(0) lgkmcnt(0)")
                else:
                    a("s_waitcnt lgkmcnt(0)")
                a("s_barrier")
                if jb == FB:
                    self.read_nonce(early=190, t0=188, t1=189)
                    self.publish(f"""
                    s_lshl_b32 s50, s2, 6
                    s_add_u32 s50, s50, {WS_F}
                    """, only_wave=0, t0=188, t1=189)
                    self.stamp(0, "pub1")
                if jb == 6:
                    a("v_mov_b32 v188, 0")
                    a(f"buffer_load_dword v190, v188, {sr(S_DBG)}, 0 offen sc1")
                if jb in (7, 11):
                    self.stamp(0, f"b{jb}")
                fill = list(nxt)
            else:
                for x in nxt:
                    a(x)
                a(f"s_waitcnt lgkmcnt({len(nxt)})")
                fill = []
            mf = mfmas(n)
            if n >= 1 and steps[ks[n - 1][0]][0] != steps[j][0]:
                for pc in sorted(steps[ks[n - 1][0]][0], key=lambda p: -p[1]):
                    pend += epilogue(pc)
                hold = True
            else:
                hold = False
            extra = []
            if pend and not hold:
                k = cfg.get("epi_rate", 12) * len(mf)
                extra, pend = pend[:k], pend[k:]
            fill = fill + extra
            k = (len(fill) + len(mf) - 1) // len(mf)
            for i, m in enumerate(mf):
                a(m)
                for x in fill[i * k:(i + 1) * k]:
                    a(x)
        assert not pend
        self.stamp(0, "c14")
        for pc in steps[-1][0]:
            for x in epilogue(pc):
                a(x)
        a("s_waitcnt lgkmcnt(0)")
        a("s_barrier")
        self.stamp(0, "T1")

    def p1b_plan(self):
        steps = [([1, 2], [c]) for c in range(7)] + [([0], cs) for cs in ([0, 1], [2, 3], [4, 5], [6])]
        u = 0
        units = []
        for pcs, cs in steps:
            m = {}
            for c in cs:
                for pc in pcs:
                    m[(pc, c)] = u % 6
                    u += 1
            units.append(m)
        size = [len(m) for m in units]
        sched = {i: [] for i in range(-1, len(steps))}
        nxt = 0
        for b in range(-1, len(steps)):
            live = sum(size[max(b, 0):nxt])
            lim = 6 if b >= 0 else self.cfg.get("inflight0b", 4)
            while nxt < len(steps) and live + size[nxt] <= lim:
                sched[b].append(nxt)
                live += size[nxt]
                nxt += 1
        assert nxt == len(steps)
        return steps, units, sched

    def compute_p1b(self):
        a, cfg = self.a, self.cfg
        FR = 16
        XA, WA = 4, 12
        XA2 = 236
        PK = 160
        ACCR = {(1, 0): 64, (1, 1): 80, (2, 0): 96, (2, 1): 112, (0, 0): 128, (0, 1): 144}
        a(f"""
        s_and_b32 s56, s{sW}, 1         ; rp
        s_lshr_b32 s57, s{sW}, 1        ; c
        v_and_b32 v2, 31, v0
        v_lshrrev_b32 v3, 5, v0
        v_bfe_u32 v10, v0, 1, 3
        v_xor_b32 v10, v10, v3
        s_lshl_b32 s50, s56, 13
        v_lshlrev_b32 v11, 7, v2
        v_add_u32 v11, s50, v11
        """)
        for sp in range(4):
            a(f"v_xor_b32 v13, {2*sp}, v10")
            a(f"v_lshl_add_u32 v{XA+sp}, v13, 4, v11")
            a(f"v_add_u32 v{XA2+sp}, 0x10000, v{XA+sp}")
        a(f"""
        v_and_b32 v11, 3, v0
        v_lshlrev_b32 v11, 3, v11
        v_bfe_u32 v13, v0, 4, 1
        v_lshl_add_u32 v11, v13, 5, v11
        s_lshl_b32 s50, s57, 6
        v_add_u32 v11, s50, v11
        v_bfe_u32 v13, v0, 3, 1
        v_lshlrev_b32 v13, 6, v13
        v_xor_b32 v11, v11, v13
        v_bfe_u32 v13, v0, 2, 2
        v_lshl_add_u32 v13, v3, 3, v13
        v_lshl_add_u32 v11, v13, 7, v11
        v_add_u32 v{WA}, {RW}, v11
        v_lshlrev_b32 v10, 3, v2
        v_lshl_add_u32 v10, v3, 8, v10
        v_lshlrev_b32 v11, 4, v2
        s_movk_i32 s50, 7168
        v_mad_u32_u24 v11, v3, s50, v11 ; hf*7168 + (l&31)*16
        s_lshl_b32 s58, s{sRB}, 2
        s_lshl_b32 s50, s56, 1
        s_add_u32 s58, s58, s50         ; t0
        s_mul_i32 s58, s58, {TS}
        s_mul_i32 s50, s{sBR}, {BR}
        s_add_u32 s58, s58, s50
        s_lshl_b32 s59, s{sCG}, 12
        s_lshl_b32 s50, s57, 11
        s_add_u32 s59, s59, s50
        s_add_u32 s59, s59, s58         ; Q/K soffset
        s_lshl_b32 s60, s{sCG}, 10
        s_lshl_b32 s50, s57, 9
        s_add_u32 s60, s60, s50
        s_add_u32 s60, s60, s58         ; V soffset
        s_mov_b32 s61, {QSCALE}
        """)
        steps, units, sched = self.p1b_plan()
        ks = []
        for j, (pcs, cs) in enumerate(steps):
            for c in cs:
                for sp in range(4):
                    ks.append((j, c, sp, c == cs[0] and sp == 0))
        NK = len(ks)

        def reads(n):
            j, c, sp, _ = ks[n]
            b = FR + 16 * (n % 2)
            xa, off = (XA + sp, c * 16384) if c < 4 else (XA2 + sp, (c - 4) * 16384)
            out = [f"ds_read_b128 {vr(b,4)}, v{xa} offset:{off}", f"ds_read_b128 {vr(b+4,4)}, v{xa} offset:{off+4096}"]
            for i, pc in enumerate(steps[j][0]):
                un = units[j][(pc, c)]
                for u in range(2):
                    out.append(f"ds_read_b64_tr_b16 {vr(b+8+4*i+2*u,2)}, v{WA} offset:{un*8192 + (16*sp+4*u)*128}")
            return out

        def mfmas(n):
            j, c, sp, _ = ks[n]
            b = FR + 16 * (n % 2)
            out = []
            for i, pc in enumerate(steps[j][0]):
                W = vr(b + 8 + 4 * i, 4)
                for rho in range(2):
                    X = vr(b + 4 * rho, 4)
                    d = vr(ACCR[(pc, rho)], 16)
                    cin = "0" if (c == 0 and sp == 0) else d
                    if pc < 2:
                        out.append(f"v_mfma_f32_32x32x16_bf16 {d}, {W}, {X}, {cin}")
                    else:
                        out.append(f"v_mfma_f32_32x32x16_bf16 {d}, {X}, {W}, {cin}")
            return out

        def epilogue(pc, rho):
            acc = ACCR[(pc, rho)]
            pk = PK + 8 * ((2 * pc + rho) % 3)
            out = []
            if pc == 0:
                for r in range(8):
                    out.append(f"v_cvt_pk_bf16_f32 v{pk+r}, v{acc+2*r}, v{acc+2*r+1}")
                for r in range(8):
                    out.append(f"v_lshlrev_b32 v{acc+2*r}, 16, v{pk+r}")
                    out.append(f"v_and_b32 v{acc+2*r+1}, 0xffff0000, v{pk+r}")
                for r in range(16):
                    out.append(f"v_mul_f32 v{acc+r}, s61, v{acc+r}")
            for r in range(8):
                out.append(f"v_cvt_pk_bf16_f32 v{pk+r}, v{acc+2*r}, v{acc+2*r+1}")
            if pc < 2:
                out.append(f"s_add_u32 s50, s59, {(WS_Q if pc == 0 else WS_K) + rho*TS}")
                for gi in range(4):
                    out.append(f"buffer_store_dwordx2 {vr(pk+2*gi,2)}, v10, {sr(S_WS)}, s50 offen offset:{512*gi} sc1")
            else:
                for f in range(2):
                    out.append(f"s_add_u32 s50, s60, {WS_V + f*14336 + rho*TS}")
                    out.append(f"buffer_store_dwordx4 {vr(pk+4*f,4)}, v11, {sr(S_WS)}, s50 offen sc1")
            return out

        pend = []
        a("s_barrier")
        self.stamp(0, "c0")
        for x in reads(0):
            a(x)
        for n in range(NK):
            j = ks[n][0]
            nxt = reads(n + 1) if n + 1 < NK else []
            first = n + 1 < NK and ks[n + 1][3]
            if first:
                jb = ks[n + 1][0]
                a("s_waitcnt lgkmcnt(0)")
                a("s_barrier")
                if jb == 4:
                    a("v_mov_b32 v188, 0")
                    a(f"buffer_load_dword v190, v188, {sr(S_DBG)}, 0 offen sc1")
                if jb == 7:
                    self.stamp(0, "b7")
                    a("s_waitcnt vmcnt(0)")
                    self.read_nonce(early=190, t0=188, t1=189)
                    self.publish(f"""
                    s_xor_b32 s51, s{sBR}, 1
                    s_lshl_b32 s51, s51, 14
                    s_lshl_b32 s50, s2, 6
                    s_add_u32 s50, s50, s51
                    s_add_u32 s50, s50, {WS_F}
                    """, only_wave=0, t0=188, t1=189)
                fill = list(nxt)
            else:
                for x in nxt:
                    a(x)
                a(f"s_waitcnt lgkmcnt({len(nxt)})")
                fill = []
            mf = mfmas(n)
            hold = False
            if n >= 1 and steps[ks[n - 1][0]][0] != steps[j][0]:
                for pc in (2, 1):
                    for rho in range(2):
                        pend += epilogue(pc, rho)
                hold = True
            extra = []
            if pend and not hold:
                k = cfg.get("epi_rate_b", 5) * len(mf)
                extra, pend = pend[:k], pend[k:]
            fill = fill + extra
            k = (len(fill) + len(mf) - 1) // len(mf)
            for i, m in enumerate(mf):
                a(m)
                for x in fill[i * k:(i + 1) * k]:
                    a(x)
        assert not pend
        self.stamp(0, "c14")
        for rho in range(2):
            for x in epilogue(0, rho):
                a(x)
        a("s_waitcnt vmcnt(0) lgkmcnt(0)")
        a("s_barrier")
        self.publish(f"""
        s_lshl_b32 s51, s{sBR}, 14
        s_lshl_b32 s50, s2, 6
        s_add_u32 s50, s50, s51
        s_add_u32 s50, s50, {WS_F}
        """, only_wave=0, t0=188, t1=189)
        self.stamp(0, "pub1")
        a("s_barrier")
        self.stamp(0, "T1")

    def helper_p1b(self):
        a, cfg = self.a, self.cfg
        a.label("HELPER")
        a(f"""
        s_setprio {cfg.get('hprio', 1)}
        s_sub_u32 s56, s{sW}, 4         ; j
        v_lshrrev_b32 v2, 3, v0
        v_and_b32 v3, 7, v0
        v_lshrrev_b32 v4, 4, v0
        v_xor_b32 v8, v3, v4
        v_lshlrev_b32 v8, 4, v8
        s_movk_i32 s50, 896
        v_mad_u32_u24 v5, v2, s50, v8
        v_xor_b32 v6, 64, v5
        v_and_b32 v4, 1, v4
        v_lshlrev_b32 v4, 2, v4
        v_xor_b32 v8, v3, v4
        v_lshlrev_b32 v8, 4, v8
        s_movk_i32 s50, 2688
        v_mad_u32_u24 v7, v2, s50, v8
        s_lshl_b32 s57, s{sRB}, 7
        s_lshl_b32 s50, s56, 5
        s_add_u32 s57, s57, s50
        s_mul_i32 s57, s57, 896
        s_lshl_b32 s58, s{sCG}, 7
        s_mul_i32 s50, s56, 43008
        s_add_u32 s58, s58, s50         ; W base
        s_lshl_b32 s59, s56, 11
        s_lshl_b32 s60, s56, 12
        """)
        self.srds_first()
        q = VmQ()
        self.hq = q
        steps, units, sched = self.p1b_plan()
        xdone = set()

        def issue(j):
            pcs, cs = steps[j]
            for c in cs:
                if c not in xdone:
                    xdone.add(c)
                    for i in range(4):
                        a(f"s_add_u32 s50, s57, {8*i*896 + 128*c}")
                        a(f"s_add_u32 m0, s60, {c*16384 + 8*i*128}")
                        a(f"buffer_load_dwordx4 v{5+(i&1)}, {sr(S_X)}, s50 offen lds")
                        q.push(("c", j))
                for part in pcs:
                    un = units[j][(part, c)]
                    for ii in range(2):
                        a(f"s_add_u32 s50, s58, {part*896 + (64*c + 8*ii)*2688}")
                        a(f"s_add_u32 m0, s59, {RW + un*8192 + 8*ii*128}")
                        a(f"buffer_load_dwordx4 v7, {sr(S_WA)}, s50 offen lds")
                        q.push(("c", j))

        for j in sched[-1]:
            issue(j)
        self.srds_rest()
        self.get_nonce()
        for b in range(len(steps)):
            n = q.wait_for(("c", b))
            if n is not None:
                a(f"s_waitcnt vmcnt({n})")
            a("s_barrier")
            for j in sched[b]:
                issue(j)
            if b == 6:
                a(f"v_mov_b32 v12, 0")
                a(f"buffer_load_dword v14, v12, {sr(S_DBG)}, 0 offen sc1")
                q.push("non")
        a("s_barrier")
        self.stamp(1, "poll1")
        a("s_waitcnt vmcnt(0)")
        self.read_nonce(early=14)
        self.poll_all(0)
        self.stamp(1, "got1")
        q.clear()
        a("s_barrier")

    def attn_setup_and_q(self):
        a = self.a
        Q = 192
        a(f"""
        v_and_b32 v224, 31, v0
        v_lshrrev_b32 v225, 5, v0
        v_lshlrev_b32 v224, 3, v224
        v_lshl_add_u32 v224, v225, 8, v224
        v_add_u32 v225, {QL}, v224
        """)

    def compute_attn(self):
        a, cfg = self.a, self.cfg
        Q, O, S, P, NM, T, KV = 192, 48, 112, 144, 152, 156, 16
        KA, VA = 226, 232
        self.regs = dict(Q=Q, O=O, S=S, P=P, NM=NM, T=T, KV=KV)
        a.label("ATT_C_ENTRY")
        self.attn_setup_and_q()
        a(f"s_lshl_b32 s50, s{sW}, 13")
        for sl in range(3):
            for kk in range(2):
                a(f"v_add_u32 v{KA+2*sl+kk}, s50, v224")
                a(f"v_add_u32 v{KA+2*sl+kk}, {R2 + (SLOT_TS[sl]+kk)*4096}, v{KA+2*sl+kk}")
        a(f"""
        v_add_u32 v{VA}, s50, v1
        v_add_u32 v{VA+1}, {R2 + 65536 + 2048}, v{VA}
        v_add_u32 v{VA}, {R2 + 2048}, v{VA}
        """)
        self.o_voff(2, 3)
        a(f"""
        s_lshl_b32 s56, s{sQB}, 2
        s_add_u32 s56, s56, s{sW}
        s_mul_i32 s56, s56, {TS}
        s_add_u32 s56, s56, {WS_OA}
        """)

        def kv_reads(t):
            k, kk = divmod(t, 2)
            sl = k % 3
            b = KV + 16 * (t % 2)
            ts = SLOT_TS[sl] + kk
            out = []
            for f in range(2):
                out.append(f"ds_read2_b64 {vr(b+4*f,4)}, v{KA+2*sl+kk} offset0:{128*f} offset1:{128*f+64}")
            for f in range(2):
                vb, off = (VA, ts * 4096) if ts < 16 else (VA + 1, (ts - 16) * 4096)
                out.append(f"ds_read_b128 {vr(b+8+4*f,4)}, v{vb} offset:{off + 1024*f}")
            return out

        def qk(u, buf):
            t, j = divmod(u, 4)
            b = KV + 16 * (t % 2)
            d = vr(S + 16 * buf, 16)
            return (f"v_mfma_f32_32x32x16_bf16 {d}, {vr(b,4)}, {vr(Q+8*j,4)}, 0",
                    f"v_mfma_f32_32x32x16_bf16 {d}, {vr(b+4,4)}, {vr(Q+8*j+4,4)}, {d}")

        def pv(u, half):
            t, j = divmod(u, 4)
            b = KV + 16 * (t % 2)
            d = vr(O + 16 * j, 16)
            c = "0" if (t == 0 and half == 0) else d
            return f"v_mfma_f32_32x32x16_bf16 {d}, {vr(b+8+4*half,4)}, {vr(P+4*half,4)}, {c}"

        def part_write(j):
            out = ["s_mov_b32 exec_lo, 0", f"v_mov_b32 v{O+16*j+13}, v{NM+j}", "s_mov_b32 exec_lo, -1"]
            for qd in range(4):
                out.append(f"ds_write_b128 v{PW}, {vr(O+16*j+4*qd,4)} offset:{j*4096 + qd*1024}")
            return out
        self.part_write = part_write
        PW = 234
        a(f"s_lshl_b32 s50, s{sW}, 14")
        a(f"v_add_u32 v{PW}, s50, v1")
        a(f"v_add_u32 v{PW}, {CB}, v{PW}")
        if cfg.get("p1v", 1) != 2:
            a("s_waitcnt vmcnt(0)")
        self.stamp(0, "preS0")
        a("s_barrier")
        self.stamp(0, "S0")
        if cfg.get("p1v", 1) != 2:
            self.publish(f"""
            s_lshl_b32 s50, s2, 6
            s_add_u32 s50, s50, {WS_F + 0x4000}
            """, only_wave=0, t0=188, t1=189)
        F2B = -1
        a(f"v_add_u32 v3, 4096, v225")
        for j in range(4):
            for f in range(2):
                o0 = (j & 1) * 256 + 128 * f
                if o0 + 64 > 255:
                    a(f"v_add_u32 v4, {j*2048}, v225")
                    a(f"ds_read2_b64 {vr(Q+8*j+4*f,4)}, v4 offset0:{128*f} offset1:{128*f+64}")
                else:
                    a(f"ds_read2_b64 {vr(Q+8*j+4*f,4)}, v{225 if j < 2 else 3} offset0:{o0} offset1:{o0+64}")
        for x in kv_reads(0):
            a(x)
        a("s_waitcnt lgkmcnt(0)")
        a("s_mov_b32 exec_lo, 0")
        for j in range(4):
            a(f"v_mov_b32 v{Q+8*j+6}, 0")
            a(f"v_mov_b32 v{Q+8*j+7}, 0")
        a("s_mov_b32 exec_lo, -1")
        scr = [S, S + 16, O, O + 16]
        for j in range(4):
            d = vr(scr[j], 16)
            a(f"v_mfma_f32_32x32x16_bf16 {d}, {vr(KV,4)}, {vr(Q+8*j,4)}, 0")
            a(f"v_mfma_f32_32x32x16_bf16 {d}, {vr(KV+4,4)}, {vr(Q+8*j+4,4)}, {d}")
        for j in range(4):
            self.max_tree([scr[j] + r for r in range(16)], T + 2 * j, T + 2 * j + 1)
        for j in range(4):
            a(f"v_add_f32 v{T+2*j}, {f32bits(40.0)}, v{T+2*j}")
        for j in range(4):
            a(f"v_cvt_pk_bf16_f32 v{T+2*j+1}, -v{T+2*j}, 0")
        a("s_mov_b32 exec_lo, 0")
        for j in range(4):
            a(f"v_mov_b32 v{Q+8*j+6}, v{T+2*j+1}")
        a("s_mov_b32 exec_lo, -1")
        for j in range(4):
            a(f"v_lshlrev_b32 v{NM+j}, 16, v{T+2*j+1}")
        self.stamp(0, "att0")
        m0, m1 = qk(0, 0)
        a(m0)
        a(m1)
        for u in range(64):
            t, j = divmod(u, 4)
            sb = S + 16 * (u & 1)
            slots = [None] * 4
            post = [[] for _ in range(4)]
            if u + 1 < 64:
                slots[0], slots[1] = qk(u + 1, (u + 1) & 1)
            if u >= 1:
                slots[2] = pv(u - 1, 1)
            slots[3] = pv(u, 0)
            if t + 1 < 16:
                rd = kv_reads(t + 1)
                if j == 0 and t % 2 == 1:
                    if t == 2 * F2B - 1:
                        post[2].append("s_waitcnt vmcnt(0)")
                    post[2].append("s_barrier")
                    if cfg.get("ststage"):
                        post[2].append(("ST", f"S{(t+1)//2}"))
                    if t == 2 * F2B - 1:
                        post[2].append("PUB2")
                if j == 0:
                    post[3].append(rd[0])
                if j == 1:
                    post[0].append(rd[1])
                    post[1].append(rd[2])
                    post[2].append(rd[3])
                if j == 2:
                    post[3].append("s_waitcnt lgkmcnt(0)")
            if u >= 62:
                pwl = part_write(u - 62)
                post[0] += pwl[:4]
                post[1] += pwl[4:5]
                post[2] += pwl[5:6]
                post[3] += pwl[6:7]
            for g in range(4):
                r = 4 * g
                a(f"v_exp_f32 v{sb+r}, v{sb+r}")
                a(f"v_exp_f32 v{sb+r+1}, v{sb+r+1}")
                if slots[g]:
                    a(slots[g])
                for x in post[g]:
                    if isinstance(x, tuple):
                        self.stamp(0, x[1])
                    elif x == "PUB2":
                        self.publish(f"""
                        s_lshl_b32 s50, s2, 6
                        s_add_u32 s50, s50, {WS_F + 0x4000}
                        """, only_wave=0, t0=188, t1=189)
                    else:
                        a(x)
                a(f"v_exp_f32 v{sb+r+2}, v{sb+r+2}")
                a(f"v_exp_f32 v{sb+r+3}, v{sb+r+3}")
                a(f"v_cvt_pk_bf16_f32 v{P+2*g}, v{sb+r}, v{sb+r+1}")
                a(f"v_cvt_pk_bf16_f32 v{P+2*g+1}, v{sb+r+2}, v{sb+r+3}")
        a(pv(63, 1))
        self.stamp(0, "attE")
        for x in part_write(2) + part_write(3):
            a(x)
        a(f"""
        s_mov_b32 s50, {f32bits(2.0**-60)}
        s_mov_b32 s51, {f32bits(2.0**64)}
        s_mov_b64 s[52:53], -1
        """)
        for j in range(4):
            a(f"v_cmp_lt_f32 vcc, s50, v{O+16*j+12}")
            a("s_and_b64 s[52:53], s[52:53], vcc")
            a(f"v_cmp_gt_f32 vcc, s51, v{O+16*j+12}")
            a("s_and_b64 s[52:53], s[52:53], vcc")
        a("""
        s_cmp_eq_u32 s53, -1
        s_cbranch_scc0 FALLBACK
        """)
        a.label("COMBINE")
        a(f"""
        s_lshl_b32 s50, s{sW}, 12
        v_add_u32 v5, s50, v1
        v_add_u32 v5, {CB}, v5
        s_waitcnt lgkmcnt(0)
        s_barrier
        """)
        self.stamp(0, "C1")
        for k in range(4):
            for qd in range(4):
                a(f"ds_read_b128 {vr(O+16*k+4*qd,4)}, v5 offset:{k*16384 + qd*1024}")
        a("s_waitcnt lgkmcnt(0)")
        for k in range(4):
            a(f"v_mov_b32 v{T+2*k}, v{O+16*k+13}")
            a(f"v_mov_b32 v{T+2*k+1}, v{O+16*k+13}")
        for k in range(4):
            a(f"v_permlane32_swap_b32 v{T+2*k}, v{T+2*k+1}")
        a(f"v_min3_f32 v{T}, v{T+1}, v{T+3}, v{T+5}")
        a(f"v_min_f32 v{T}, v{T}, v{T+7}")
        for k in range(4):
            a(f"v_sub_f32 v{T+2*k+1}, v{T}, v{T+2*k+1}")
        for k in range(4):
            a(f"v_exp_f32 v{T+2*k+1}, v{T+2*k+1}")
        for r in range(16):
            a(f"v_mul_f32 v{O+r}, v{T+1}, v{O+r}")
        for k in range(1, 4):
            for r in range(16):
                a(f"v_fmac_f32 v{O+r}, v{T+2*k+1}, v{O+16*k+r}")
        self.finalize_o(O, T + 8, 2, "s56")
        a(f"""
        v_mov_b32 v188, {QL + 1792}
        v_mov_b32 v189, 1
        s_mov_b64 exec, 1
        ds_add_u32 v188, v189
        s_mov_b64 exec, -1
        """)
        a(f"""
        s_lshl_b32 s50, s{sQB}, 2
        s_add_u32 s50, s50, s{sW}
        s_lshl_b32 s50, s50, 4
        s_add_u32 s50, s50, s{sH}
        s_lshl_b32 s50, s50, 6
        s_add_u32 s50, s50, {WS_F + 0x10000}
        v_mov_b32 v188, 0
        v_mov_b32 v189, s{sNONCE}
        s_waitcnt vmcnt(0)
        s_mov_b64 exec, 1
        buffer_store_dword v189, v188, {sr(S_WS)}, s50 offen sc1
        s_mov_b64 exec, -1
        """)
        self.stamp(0, "pub3")
        a(f"s_cmp_ge_u32 s{sIDX}, 28")
        a("s_cbranch_scc1 C_DONE")
        a("s_barrier")
        self.oa_dma()
        a("s_waitcnt vmcnt(0)")
        a("s_barrier")
        a.label("C_DONE")
        self.stamp(0, "end")
        self.stamp_flush(14, 0)
        a("s_endpgm")

    def oa_dma(self):
        a = self.a
        a(f"""
        s_lshl_b32 s50, s{sRB3}, 1
        s_mul_i32 s50, s50, {TS}
        s_mul_i32 s51, s{sW}, 7168
        s_add_u32 s50, s50, s51
        s_add_u32 s50, s50, {WS_OA}
        s_add_u32 s52, s50, 4096
        s_add_u32 m0, s51, {OAL}
        """)
        for i in range(7):
            if i == 4:
                a(f"s_add_u32 m0, s51, {OAL + 4096}")
            a(f"buffer_load_dwordx4 v1, {sr(S_WS)}, {'s50' if i < 4 else 's52'} offen offset:{(i%4)*1024}{LSC} lds")

    def fallback(self):
        a = self.a
        R = self.regs
        Q, O, S, P, NM, T, KV = R["Q"], R["O"], R["S"], R["P"], R["NM"], R["T"], R["KV"]
        a.label("FALLBACK")
        a("s_nop 15")
        a(f"""
        v_and_b32 v5, 31, v0
        v_lshrrev_b32 v6, 5, v0
        v_lshlrev_b32 v5, 4, v5
        s_movk_i32 s50, 7168
        v_mad_u32_u24 v5, v6, s50, v5          ; V voffset
        s_lshl_b32 s57, s{sW}, 4
        s_mul_i32 s57, s57, {TS}
        s_mul_i32 s50, s{sH}, 1792
        s_add_u32 s58, s57, s50
        s_add_u32 s58, s58, {WS_K}
        s_mul_i32 s50, s{sH}, 448
        s_add_u32 s59, s57, s50
        s_add_u32 s59, s59, {WS_V}
        s_mov_b32 exec_lo, 0
        """)
        for j in range(4):
            a(f"v_mov_b32 v{Q+8*j+6}, 0")
        a(f"v_mov_b32 v{KV+6}, 0")
        a(f"v_mov_b32 v{KV+7}, 0")
        a("s_mov_b32 exec_lo, -1")
        for r in range(8):
            a(f"v_mov_b32 v{KV+8+r}, 0")
        a("s_mov_b32 exec_lo, 0x10000000")
        a("s_mov_b32 exec_hi, 0x10000000")
        for r in range(8):
            a(f"v_mov_b32 v{KV+8+r}, 0x3f803f80")
        a("s_mov_b64 exec, -1")
        for j in range(4):
            a(f"v_mov_b32 v{NM+j}, {f32bits(3.0e38)}")
            for r in range(16):
                a(f"v_mov_b32 v{O+16*j+r}, 0")
        a("s_mov_b32 s57, 0")
        a.label("FB_LOOP")
        self.load_qk_frag(KV, 224, "s58")
        a(f"""
        s_add_u32 s50, s59, 14336
        s_mov_b32 exec_lo, 0x0fffffff
        s_mov_b32 exec_hi, 0x0fffffff
        buffer_load_dwordx4 {vr(KV+8,4)}, v5, {sr(S_WS)}, s59 offen{LSC}
        buffer_load_dwordx4 {vr(KV+12,4)}, v5, {sr(S_WS)}, s50 offen{LSC}
        s_mov_b64 exec, -1
        s_waitcnt vmcnt(0)
        """)
        for j in range(4):
            d = vr(S, 16)
            a(f"v_mfma_f32_32x32x16_bf16 {d}, {vr(KV,4)}, {vr(Q+8*j,4)}, 0")
            a(f"v_mfma_f32_32x32x16_bf16 {d}, {vr(KV+4,4)}, {vr(Q+8*j+4,4)}, {d}")
            self.max_tree([S + r for r in range(16)], T, T + 1)
            a(f"v_min_f32 v{T+1}, v{NM+j}, -v{T}")
            a(f"v_sub_f32 v{T+2}, v{T+1}, v{NM+j}")
            a(f"v_exp_f32 v{T+2}, v{T+2}")
            a(f"v_mov_b32 v{NM+j}, v{T+1}")
            for r in range(16):
                a(f"v_add_f32 v{S+r}, v{S+r}, v{T+1}")
            for r in range(16):
                a(f"v_exp_f32 v{S+r}, v{S+r}")
            for r in range(16):
                a(f"v_mul_f32 v{O+16*j+r}, v{T+2}, v{O+16*j+r}")
            for r in range(8):
                a(f"v_cvt_pk_bf16_f32 v{P+r}, v{S+2*r}, v{S+2*r+1}")
            o = vr(O + 16 * j, 16)
            a(f"v_mfma_f32_32x32x16_bf16 {o}, {vr(KV+8,4)}, {vr(P,4)}, {o}")
            a(f"v_mfma_f32_32x32x16_bf16 {o}, {vr(KV+12,4)}, {vr(P+4,4)}, {o}")
        a(f"""
        s_nop 15
        s_add_u32 s58, s58, {TS}
        s_add_u32 s59, s59, {TS}
        s_add_u32 s57, s57, 1
        s_cmp_lt_u32 s57, 16
        s_cbranch_scc1 FB_LOOP
        """)
        for j in range(4):
            for x in self.part_write(j):
                a(x)
        a("s_branch COMBINE")

    def helper_p1(self):
        a, cfg = self.a, self.cfg
        a.label("HELPER")
        a(f"s_setprio {cfg.get('hprio', 1)}")
        a(f"""
        s_sub_u32 s56, s{sW}, 4         ; j
        v_lshrrev_b32 v2, 3, v0
        v_and_b32 v3, 7, v0
        v_lshrrev_b32 v4, 4, v0
        v_xor_b32 v8, v3, v4
        v_lshlrev_b32 v8, 4, v8
        s_movk_i32 s50, 896
        v_mad_u32_u24 v5, v2, s50, v8
        v_xor_b32 v6, 64, v5
        v_and_b32 v4, 1, v4
        v_lshlrev_b32 v4, 2, v4
        v_xor_b32 v8, v3, v4
        v_lshlrev_b32 v8, 4, v8
        s_movk_i32 s50, 2688
        v_mad_u32_u24 v7, v2, s50, v8   ; W voff
        s_lshl_b32 s57, s{sRB}, 6
        s_lshl_b32 s50, s56, 4
        s_add_u32 s57, s57, s50
        s_mul_i32 s57, s57, 896
        s_lshl_b32 s58, s{sCG}, 7
        s_mul_i32 s50, s56, 43008
        s_add_u32 s58, s58, s50         ; W base
        s_lshl_b32 s59, s56, 11
        """)
        self.srds_first()
        q = VmQ()
        self.hq = q

        steps, units, sched = self.p1_plan()
        xdone = set()

        def issue(j):
            pcs, cs = steps[j]
            for c in cs:
                if c not in xdone:
                    xdone.add(c)
                    for i in range(2):
                        a(f"s_add_u32 s50, s57, {8*i*896 + 128*c}")
                        a(f"s_add_u32 m0, s59, {R1 + c*8192 + 8*i*128}")
                        a(f"buffer_load_dwordx4 v{5+i}, {sr(S_X)}, s50 offen lds")
                        q.push(("c", j))
                for (br, part) in pcs:
                    un = units[j][((br, part), c)]
                    for ii in range(2):
                        a(f"s_add_u32 s50, s58, {part*896 + (64*c + 8*ii)*2688}")
                        a(f"s_add_u32 m0, s59, {R2 + un*8192 + 8*ii*128}")
                        a(f"buffer_load_dwordx4 v7, {sr(S_WA if br == 0 else S_WB)}, s50 offen lds")
                        q.push(("c", j))

        for j in sched[-1]:
            issue(j)
        self.srds_rest()
        self.get_nonce()
        for b in range(len(steps)):
            n = q.wait_for(("c", b))
            if n is not None:
                a(f"s_waitcnt vmcnt({n})")
            a("s_barrier")
            for j in sched[b]:
                issue(j)
            if b == 9:
                a(f"v_mov_b32 v12, 0")
                a(f"buffer_load_dword v14, v12, {sr(S_DBG)}, 0 offen sc1")
                q.push("non")
        self.stamp(1, "poll1")
        a("s_waitcnt vmcnt(0)")
        self.read_nonce(early=14)
        self.poll_all(0)
        self.stamp(1, "got1")
        q.clear()
        a("s_barrier")

    def helper_attn(self):
        a, cfg = self.a, self.cfg
        q = self.hq
        a.label("ATT_H_ENTRY")
        VMASK = "s_mov_b32 exec_lo, 0x0fffffff\ns_mov_b32 exec_hi, 0x0fffffff"
        a(f"""
        s_sub_u32 s56, s{sW}, 4         ; j
        v_and_b32 v2, 31, v0
        v_lshrrev_b32 v3, 5, v0
        v_lshlrev_b32 v4, 4, v2
        s_movk_i32 s50, 7168
        v_mad_u32_u24 v4, v3, s50, v4   ; v4 = V voffset
        v_lshlrev_b32 v5, 3, v2
        v_lshl_add_u32 v5, v3, 8, v5
        s_lshl_b32 s57, s56, 4
        s_mul_i32 s57, s57, {TS}
        s_mul_i32 s50, s{sH}, 1792
        s_add_u32 s58, s57, s50
        s_add_u32 s58, s58, {WS_K}      ; K stream
        s_mul_i32 s50, s{sH}, 448
        s_add_u32 s59, s57, s50
        s_add_u32 s59, s59, {WS_V}      ; V stream
        s_lshl_b32 s60, s56, 13         ; j*8192 lds
        v_lshlrev_b32 v6, 3, v0
        v_add_u32 v6, s60, v6
        v_add_u32 v6, {R2 + 1792}, v6
        v_mov_b32 v8, 0x3f80
        v_mov_b32 v9, 0
        v_and_b32 v7, 3, v0
        v_cmp_eq_u32 vcc, 0, v7
        v_mov_b32 v16, 0
        v_mov_b32 v17, 0x3f803f80
        v_cndmask_b32 v16, v16, v17, vcc
        v_mov_b32 v17, v16
        v_mov_b32 v18, v16
        v_mov_b32 v19, v16
        v_bfe_u32 v10, v0, 2, 1         ; hf
        v_lshl_add_u32 v7, v10, 5, v7
        v_bfe_u32 v10, v0, 3, 1         ; f
        v_lshl_add_u32 v7, v10, 6, v7
        v_lshlrev_b32 v7, 4, v7
        v_add_u32 v7, s60, v7
        v_add_u32 v7, {R2 + 2048 + 448}, v7
        """)

        def consts(sl):
            for kk in range(2):
                off = (SLOT_TS[sl] + kk) * 4096
                vb6, vb7, o = 6, 7, off
                if off > 60000:
                    a(f"v_add_u32 v10, {off}, v6")
                    a(f"v_add_u32 v11, {off}, v7")
                    vb6, vb7, o = 10, 11, 0
                a("s_mov_b32 exec_hi, 0")
                a(f"ds_write_b64 v{vb6}, v[8:9] offset:{o}")
                a("s_mov_b32 exec_lo, 0xffff")
                a(f"ds_write_b128 v{vb7}, v[16:19] offset:{o}")
                a("s_mov_b64 exec, -1")

        def stage(k):
            sl = k % 3
            for kk in range(2):
                base = R2 + (SLOT_TS[sl] + kk) * 4096
                if kk == 0:
                    a(f"s_add_u32 s51, s{sQB}, {k}")
                    a("s_and_b32 s51, s51, 7")
                    a(f"s_mul_i32 s51, s51, {2*TS*cfg.get('rotkv', 0)}")
                    if not cfg.get('rotkv', 0):
                        a(f"s_mov_b32 s51, {2*k*TS}")
                    a("s_add_u32 s52, s51, s58")
                    a("s_add_u32 s53, s51, s59")
                a(f"s_add_u32 s50, s52, {kk*TS}")
                a(f"s_add_u32 m0, s60, {base}")
                a(f"buffer_load_dwordx4 v1, {sr(S_WS)}, s50 offen{LSC} lds")
                a("s_mov_b32 exec_hi, 0xffff")
                a(f"buffer_load_dwordx4 v1, {sr(S_WS)}, s50 offen offset:1024{LSC} lds")
                a(VMASK)
                for f in range(2):
                    a(f"s_add_u32 s50, s53, {kk*TS + f*14336}")
                    a(f"s_add_u32 m0, s60, {base + 2048 + 1024*f}")
                    a(f"buffer_load_dwordx4 v4, {sr(S_WS)}, s50 offen{LSC} lds")
                a("s_mov_b64 exec, -1")
                for _ in range(4):
                    q.push(("s", k))

        def q_dma():
            a(f"""
            s_lshl_b32 s50, s{sQB}, 2
            s_add_u32 s50, s50, s56
            s_mul_i32 s50, s50, {TS}
            s_mul_i32 s51, s{sH}, 1792
            s_add_u32 s50, s50, s51
            s_lshl_b32 s51, s56, 11
            s_add_u32 m0, s51, {QL}
            buffer_load_dwordx4 v1, {sr(S_WS)}, s50 offen{LSC} lds
            s_mov_b32 exec_hi, 0xffff
            buffer_load_dwordx4 v1, {sr(S_WS)}, s50 offen offset:1024{LSC} lds
            s_mov_b32 exec_hi, -1
            """)
            q.push(("s", 0))
            q.push(("s", 0))

        def bar(k):
            n = q.wait_for(("s", k))
            if n is not None:
                a(f"s_waitcnt vmcnt({n}) lgkmcnt(0)")
            else:
                a("s_waitcnt lgkmcnt(0)")
            a("s_barrier")

        def wo_dma(srd_, region, tag, lo=0, hi=14):
            a(f"""
            v_lshrrev_b32 v10, 3, v0
            v_and_b32 v11, 7, v0
            v_bfe_u32 v12, v0, 4, 1
            v_lshlrev_b32 v12, 2, v12
            v_xor_b32 v11, v11, v12
            v_lshlrev_b32 v11, 4, v11
            s_movk_i32 s50, 896
            v_mad_u32_u24 v10, v10, s50, v11
            s_mul_i32 s51, s56, 100352
            s_lshl_b32 s50, s{sCB3}, 7
            s_add_u32 s51, s51, s50
            s_mul_i32 s52, s56, 14336
            """)
            for i in range(lo, hi):
                a(f"s_add_u32 s50, s51, {8*i*896}")
                a(f"s_add_u32 m0, s52, {region + i*1024}")
                a(f"buffer_load_dwordx4 v10, {sr(srd_)}, s50 offen lds")
                q.push(tag)

        skip3 = lambda name: (f"s_cmp_ge_u32 s{sIDX}, 28\ns_cbranch_scc1 {name}")

        q_dma()
        stage(0)
        consts(0)
        consts(1)
        consts(2)
        a(f"""
        v_mov_b32 v10, {QL + 1792}
        v_mov_b32 v11, 0
        ds_write_b32 v10, v11
        """)
        if cfg.get("s1early", 1):
            stage(1)
        bar(0)
        self.stamp(1, "S0")
        if not cfg.get("s1early", 1):
            stage(1)
        stage(2)
        wo_dma(S_WOB, R1, "woB", 0, 7)
        bar(1)
        stage(3)
        wo_dma(S_WOB, R1, "woB", 7, 14)
        bar(2)
        self.poll_issue("all", 0x4000, q)
        stage(4)
        a(f"s_waitcnt vmcnt({q.wait_for('poll')})")
        self.poll_check("all", 0x4000)
        self.stamp(1, "got2")
        a("s_barrier")
        stage(5)
        self.local_attn_loads(q)
        bar(4)
        stage(6)
        self.local_attn(q)
        self.stamp(1, "Ldone")
        bar(5)
        stage(7)
        self.out_gemm_setup()
        q.push("g")
        a(f"s_waitcnt vmcnt({q.wait_for('ost')})")
        a("s_barrier")
        self.publish(f"""
        s_lshl_b32 s50, s{sQB}, 4
        s_add_u32 s50, s50, s{sH}
        s_lshl_b32 s50, s50, 6
        s_add_u32 s50, s50, {WS_F + 0xC000}
        """, balance=True)
        q.push("pub")
        bar(7)
        self.poll16(0xC000, everyone=True)
        q.clear()
        self.stamp(1, "got4")
        self.out_gemm_loads(1, q, 0, 28)
        a("s_setprio 0")
        self.stamp(1, "oBiss")
        a("s_barrier")
        a(skip3("H_DONE"))
        self.out_gemm(1, R1, q, loads=False)
        lp = self.lab("HS")
        a(f"""
        v_mov_b32 v10, {QL + 1792}
        v_mov_b32 v11, 1
        s_mov_b64 exec, 1
        ds_add_u32 v10, v11
        s_mov_b64 exec, -1
        s_mov_b32 s51, 0
        """)
        a.label(lp)
        a(f"""
        ds_read_b32 v11, v10
        s_add_u32 s51, s51, 1
        s_waitcnt lgkmcnt(0)
        v_readfirstlane_b32 s50, v11
        s_cmp_ge_u32 s51, {SPIN_MAX}
        s_cbranch_scc1 {lp}_X
        s_cmp_lt_u32 s50, 8
        s_cbranch_scc1 {lp}
        """)
        a.label(lp + "_X")
        self.stamp(1, "bdone")
        wo_dma(S_WOA, R1, "woA")
        self.poll32()
        q.clear()
        a("s_barrier")
        self.stamp(1, "got3")
        self.oa_dma()
        a(f"""
        s_mul_i32 s50, s62, {TS}
        v_add_u32 v21, s50, v1
        v_add_u32 v21, {OAL}, v21
        s_waitcnt vmcnt(0)
        s_barrier
        """)
        self.stamp(1, "C4")
        self.out_gemm_lds()
        self.out_epilogue()
        a.label("H_DONE")
        if cfg.get("stamps"):
            a("s_waitcnt vmcnt(0)")
        self.stamp(1, "end")
        self.stamp_flush(14, 1)
        a("s_endpgm")

    def poll32(self):
        a = self.a
        loop, done = self.lab("POLL"), self.lab("POLLD")
        a(f"""
        s_waitcnt vmcnt(0)
        s_cmp_lg_u32 s{sW}, 4
        s_cbranch_scc1 {done}
        s_lshl_b32 s50, s{sRB3}, 11
        s_add_u32 s50, s50, {WS_F + 0x10000}
        s_mov_b32 s51, 0
        v_and_b32 v13, 31, v0
        v_lshlrev_b32 v13, 6, v13
        """)
        if self.cfg.get("pipepoll", 2) == 2:
            a("s_mov_b32 s52, -1")
            a("s_mov_b32 s53, 0")
            a.label(loop)
            a(f"""
            s_mov_b64 exec, s[52:53]
            buffer_load_dword v12, v13, {sr(S_WS)}, s50 offen sc1
            s_waitcnt vmcnt(0)
            v_cmp_ne_u32 s[52:53], s{sNONCE}, v12
            s_mov_b64 exec, -1
            s_cmp_eq_u64 s[52:53], 0
            s_cbranch_scc1 {done}
            s_sleep {self.cfg.get("sleep3", 2)}
            s_add_u32 s51, s51, 1
            s_cmp_lt_u32 s51, {SPIN_MAX}
            s_cbranch_scc1 {loop}
            """)
        elif self.cfg.get("pipepoll", 2) == 1:
            regs = (140, 141, 142)
            for r in regs[:2]:
                a(f"buffer_load_dword v{r}, v13, {sr(S_WS)}, s50 offen sc1")
                a("s_sleep 3")
            a.label(loop)
            for i, r in enumerate(regs):
                a(f"""
                buffer_load_dword v{regs[(i+2) % 3]}, v13, {sr(S_WS)}, s50 offen sc1
                s_waitcnt vmcnt(2)
                v_cmp_eq_u32 s[52:53], s{sNONCE}, v{r}
                s_cmp_eq_u64 s[52:53], -1
                s_cbranch_scc1 {done}
                """)
            a(f"""
            s_add_u32 s51, s51, 1
            s_cmp_lt_u32 s51, {SPIN_MAX}
            s_cbranch_scc1 {loop}
            """)
        else:
            a.label(loop)
            a(f"""
            buffer_load_dword v12, v13, {sr(S_WS)}, s50 offen sc1
            s_waitcnt vmcnt(0)
            v_cmp_eq_u32 s[52:53], s{sNONCE}, v12
            s_cmp_eq_u64 s[52:53], -1
            s_cbranch_scc1 {done}
            s_add_u32 s51, s51, 1
            s_cmp_lt_u32 s51, {SPIN_MAX}
            s_cbranch_scc1 {loop}
            """)
        a.label(done)

    def out_gemm_lds(self):
        a = self.a
        ACC, NB = 64, 4
        WF, OFB = 32, 96

        def reads(s):
            b = WF + 4 * (s % NB)
            a(f"ds_read_b128 {vr(OFB+4*(s % NB),4)}, v21 offset:{s*1024}")
            for u in range(2):
                a(f"ds_read_b64_tr_b16 {vr(b+2*u,2)}, v20 offset:{(16*s+4*u)*128}")

        for s in range(NB - 1):
            reads(s)
        for s in range(28):
            if s + NB - 1 < 28:
                reads(s + NB - 1)
                lg = 3 * (NB - 1)
            else:
                lg = 3 * (27 - s)
            a(f"s_waitcnt lgkmcnt({lg})")
            d = vr(ACC, 16)
            c = "0" if s == 0 else d
            a(f"v_mfma_f32_32x32x16_bf16 {d}, {vr(WF+4*(s % NB),4)}, {vr(OFB+4*(s % NB),4)}, {c}")

    def local_attn_loads(self, q):
        a = self.a
        LQ, LK, LKP, LV, LVP = 20, 28, 36, 44, 52
        a(f"""
        s_lshl_b32 s61, s{sQB}, 2
        s_add_u32 s61, s61, s56         ; tB
        s_mul_i32 s62, s61, {TS}
        s_sub_u32 s63, s62, {TS}
        s_cmp_eq_u32 s61, 0
        s_cselect_b32 s63, s62, s63
        s_cselect_b32 s55, 0, -1
        s_mul_i32 s54, s{sH}, 1792
        s_add_u32 s50, s62, s54
        s_add_u32 s50, s50, {BR + WS_Q}
        """)
        for r in (LQ + 6, LQ + 7, LK + 6, LK + 7, LKP + 6, LKP + 7):
            a(f"v_mov_b32 v{r}, 0")
        for r in range(12):
            a(f"v_mov_b32 v{LV+r}, 0")
        a("s_mov_b32 exec_lo, 0x10000000")
        a("s_mov_b32 exec_hi, 0x10000000")
        for r in range(12):
            a(f"v_mov_b32 v{LV+r}, 0x3f803f80")
        a("s_mov_b64 exec, -1")
        self.load_qk_frag(LQ, 5, "s50", q, "L")
        a(f"s_add_u32 s50, s50, {WS_K - WS_Q}")
        self.load_qk_frag(LK, 5, "s50", q, "L")
        a(f"s_add_u32 s50, s63, s54")
        a(f"s_add_u32 s50, s50, {BR + WS_K}")
        self.load_qk_frag(LKP, 5, "s50", q, "L")
        a(f"""
        s_mul_i32 s54, s{sH}, 448
        s_add_u32 s50, s62, s54
        s_add_u32 s50, s50, {BR + WS_V}
        s_add_u32 s51, s50, 14336
        s_add_u32 s52, s63, s54
        s_add_u32 s52, s52, {BR + WS_V + 14336}
        s_mov_b32 exec_lo, 0x0fffffff
        s_mov_b32 exec_hi, 0x0fffffff
        buffer_load_dwordx4 {vr(LV,4)}, v4, {sr(S_WS)}, s50 offen{LSC}
        buffer_load_dwordx4 {vr(LV+4,4)}, v4, {sr(S_WS)}, s51 offen{LSC}
        buffer_load_dwordx4 {vr(LVP,4)}, v4, {sr(S_WS)}, s52 offen{LSC}
        s_mov_b64 exec, -1
        v_mov_b32 v15, {NEG_BIG}
        s_add_u32 s62, s62, {WS_OB}
        """)
        for _ in range(3):
            q.push("L")
        self.o_voff(14, 13)

    def local_attn(self, q):
        a = self.a
        LQ, LK, LKP, LV, LVP = 20, 28, 36, 44, 52
        Sd, Sp, P, T, O = 64, 80, 96, 104, 124
        n = q.wait_for("L")
        if n is not None:
            a(f"s_waitcnt vmcnt({n})")
        a(f"v_mfma_f32_32x32x16_bf16 {vr(Sd,16)}, {vr(LK,4)}, {vr(LQ,4)}, 0")
        a(f"v_mfma_f32_32x32x16_bf16 {vr(Sp,16)}, {vr(LKP,4)}, {vr(LQ,4)}, 0")
        a(f"v_mfma_f32_32x32x16_bf16 {vr(Sd,16)}, {vr(LK+4,4)}, {vr(LQ+4,4)}, {vr(Sd,16)}")
        a(f"v_mfma_f32_32x32x16_bf16 {vr(Sp,16)}, {vr(LKP+4,4)}, {vr(LQ+4,4)}, {vr(Sp,16)}")
        regs = []
        for r in range(16):
            m = lane_mask(lambda l: (((l & 31) - ((r & 3) + 8 * (r >> 2) + 4 * (l >> 5))) & ~14) == 0)
            sp = 50 + 2 * (r & 1)
            a(f"s_mov_b32 s{sp}, {m & 0xffffffff:#x}")
            a(f"s_mov_b32 s{sp+1}, {m >> 32:#x}")
            a(f"v_cndmask_b32 v{Sd+r}, v15, v{Sd+r}, s[{sp}:{sp+1}]")
            regs.append(Sd + r)
        for r in range(8, 16):
            m = lane_mask(lambda l: ((32 + (l & 31) - ((r & 3) + 8 * (r >> 2) + 4 * (l >> 5))) & ~14) == 0)
            sp = 50 + 2 * (r & 1)
            a(f"s_and_b32 s{sp}, s55, {m & 0xffffffff:#x}")
            a(f"s_and_b32 s{sp+1}, s55, {m >> 32:#x}")
            a(f"v_cndmask_b32 v{Sp+r}, v15, v{Sp+r}, s[{sp}:{sp+1}]")
            regs.append(Sp + r)
        self.max_tree(regs, T, T + 1)
        for r in regs:
            a(f"v_sub_f32 v{r}, v{r}, v{T}")
        for r in regs:
            a(f"v_exp_f32 v{r}, v{r}")
        for r in range(8):
            a(f"v_cvt_pk_bf16_f32 v{P+r}, v{Sd+2*r}, v{Sd+2*r+1}")
        for r in range(4):
            a(f"v_cvt_pk_bf16_f32 v{T+4+r}, v{Sp+8+2*r}, v{Sp+9+2*r}")
        a(f"v_mfma_f32_32x32x16_bf16 {vr(O,16)}, {vr(LV,4)}, {vr(P,4)}, 0")
        a(f"v_mfma_f32_32x32x16_bf16 {vr(O,16)}, {vr(LV+4,4)}, {vr(P+4,4)}, {vr(O,16)}")
        a(f"v_mfma_f32_32x32x16_bf16 {vr(O,16)}, {vr(LVP,4)}, {vr(T+4,4)}, {vr(O,16)}")
        self.finalize_o(O, T + 8, 14, "s62", q)

    def out_gemm_setup(self):
        a = self.a
        a(f"""
        s_and_b32 s62, s56, 1
        s_lshr_b32 s63, s56, 1
        v_and_b32 v20, 3, v0
        v_lshlrev_b32 v20, 3, v20
        v_bfe_u32 v21, v0, 4, 1
        v_lshl_add_u32 v20, v21, 5, v20
        s_lshl_b32 s50, s63, 6
        v_add_u32 v20, s50, v20
        v_bfe_u32 v21, v0, 3, 1
        v_lshlrev_b32 v21, 6, v21
        v_xor_b32 v20, v20, v21
        v_bfe_u32 v21, v0, 2, 2
        v_lshl_add_u32 v21, v3, 3, v21
        v_lshl_add_u32 v20, v21, 7, v20
        s_lshl_b32 s61, s{sRB3}, 1
        s_add_u32 s61, s61, s62         ; q tile
        s_lshl_b32 s50, s61, 7
        s_add_u32 s50, s50, {WS_G}
        v_lshlrev_b32 v22, 2, v2
        buffer_load_dword v23, v22, {sr(S_WS)}, s50 offen{LSC}
        s_mul_i32 s61, s61, {TS}
        """)

    def out_gemm_loads(self, br, q, lo=0, hi=28):
        a = self.a
        OF = 144
        for s in range(lo, hi):
            if s % 4 == 0:
                a(f"s_add_u32 s50, s61, {(WS_OA if br == 0 else WS_OB) + s*1024}")
            a(f"buffer_load_dwordx4 {vr(OF+4*s,4)}, v1, {sr(S_WS)}, s50 offen offset:{(s%4)*1024}{LSC}")
            q.push(("o", s))

    def out_gemm(self, br, region, q, loads=True):
        a = self.a
        ACC = 64 + 16 * br
        OF = 144
        WF, NB = 32, 4
        areg = 20 if region == R1 else 21
        if loads:
            self.out_gemm_loads(br, q)

        def reads(s):
            b = WF + 4 * (s % NB)
            for u in range(2):
                a(f"ds_read_b64_tr_b16 {vr(b+2*u,2)}, v{areg} offset:{(16*s+4*u)*128}")

        for s in range(NB - 1):
            reads(s)
        for s in range(28):
            if s + NB - 1 < 28:
                reads(s + NB - 1)
                lg = 2 * (NB - 1)
            else:
                lg = 2 * (27 - s)
            n = q.wait_for(('o', s))
            a(f"s_waitcnt lgkmcnt({lg})" if n is None else f"s_waitcnt vmcnt({n}) lgkmcnt({lg})")
            b = WF + 4 * (s % NB)
            d = vr(ACC, 16)
            c = "0" if s == 0 else d
            a(f"v_mfma_f32_32x32x16_bf16 {d}, {vr(b,4)}, {vr(OF+4*s,4)}, {c}")

    def out_epilogue(self):
        a = self.a
        A, B, W = 64, 80, 32
        a(f"""
        v_sub_f32 v24, 1.0, v23
        v_cvt_pk_bf16_f32 v24, v24, v24
        v_lshlrev_b32 v24, 16, v24
        s_lshl_b32 s50, s{sRB3}, 6
        s_lshl_b32 s51, s62, 5
        s_add_u32 s50, s50, s51
        v_add_u32 v25, s50, v2
        s_movk_i32 s50, 896
        v_mul_lo_u32 v25, v25, s50
        v_lshl_add_u32 v25, v3, 4, v25
        s_lshl_b32 s50, s{sCB3}, 7
        s_lshl_b32 s51, s63, 6
        s_add_u32 s50, s50, s51
        """)
        for r in range(16):
            a(f"v_mul_f32 v{B+r}, v24, v{B+r}")
        for r in range(16):
            a(f"v_fma_f32 v{A+r}, v23, v{A+r}, v{B+r}")
        for r in range(8):
            a(f"v_cvt_pk_bf16_f32 v{W+r}, v{A+2*r}, v{A+2*r+1}")
        for pr in range(2):
            b = W + 4 * pr
            a(f"v_permlane32_swap_b32 v{b}, v{b+2}")
            a(f"v_permlane32_swap_b32 v{b+1}, v{b+3}")
            a(f"buffer_store_dwordx4 {vr(b,4)}, v25, {sr(S_OUT)}, s50 offen offset:{32*pr}{('', ' sc1', ' nt', ' sc0 sc1')[self.cfg.get('outpol', 0)]}")

    def gate_wg(self):
        a = self.a
        a.label("GATE_WG")
        a(f"""
        s_lshl_b32 s56, s{sGI}, 6
        s_lshl_b32 s50, s{sW}, 4
        s_add_u32 s56, s56, s50
        s_mul_i32 s57, s56, 896
        """)
        NR = 16
        GW = 16 + 4 * NR
        for r in range(4 * NR + 4):
            a(f"v_mov_b32 v{16+r}, 0")
        a("s_mov_b32 exec_hi, 0x00ffffff")
        a(f"buffer_load_dwordx4 {vr(GW,4)}, v1, {sr(S_GATE)}, 0 offen")
        for i in range(NR):
            a(f"s_add_u32 s50, s57, {896*i}")
            a(f"buffer_load_dwordx4 {vr(16+4*i,4)}, v1, {sr(S_X)}, s50 offen")
        a("s_mov_b64 exec, -1")
        Z = GW + 4
        for i in range(NR):
            a(f"v_mov_b32 v{Z+i}, 0")
        a("s_waitcnt vmcnt(0)")
        for r in range(4):
            for i in range(NR):
                a(f"v_dot2_f32_bf16 v{Z+i}, v{16+4*i+r}, v{GW+r}, v{Z+i}")
        a("s_nop 2")
        for sh in (1, 2, 4, 8):
            for i in range(NR):
                a(f"v_add_f32_dpp v{Z+i}, v{Z+i}, v{Z+i} row_shr:{sh} row_mask:0xf bank_mask:0xf bound_ctrl:0")
        for i in range(NR):
            a(f"v_add_f32_dpp v{Z+i}, v{Z+i}, v{Z+i} row_bcast:15 row_mask:0xa bank_mask:0xf")
        for i in range(NR):
            a(f"v_add_f32_dpp v{Z+i}, v{Z+i}, v{Z+i} row_bcast:31 row_mask:0xc bank_mask:0xf")

        def round_pairs():
            for i in range(0, NR, 2):
                a(f"v_cvt_pk_bf16_f32 v16, v{Z+i}, v{Z+i+1}")
                a(f"v_lshlrev_b32 v{Z+i}, 16, v16")
                a(f"v_and_b32 v{Z+i+1}, 0xffff0000, v16")
        round_pairs()
        for i in range(NR):
            a(f"v_mul_f32 v{Z+i}, {NLOG2E}, v{Z+i}")
        for i in range(NR):
            a(f"v_exp_f32 v{Z+i}, v{Z+i}")
        for i in range(NR):
            a(f"v_add_f32 v{Z+i}, 1.0, v{Z+i}")
        for i in range(NR):
            a(f"v_rcp_f32 v{Z+i}, v{Z+i}")
        round_pairs()
        a(f"""
        s_lshl_b32 s50, s56, 2
        s_add_u32 s50, s50, {WS_G}
        v_mov_b32 v16, 0
        s_mov_b32 exec_lo, 0
        s_mov_b32 exec_hi, 0x80000000
        """)
        for i in range(NR // 4):
            a(f"buffer_store_dwordx4 {vr(Z+4*i,4)}, v16, {sr(S_WS)}, s50 offen offset:{16*i} sc1")
        a("""
        s_mov_b64 exec, -1
        s_waitcnt vmcnt(0)
        s_barrier
        """)
        self.read_nonce(t0=188, t1=189)
        self.publish(f"""
        s_lshl_b32 s50, s2, 6
        s_add_u32 s50, s50, {WS_F}
        """, only_wave=0, t0=188, t1=189)
        if self.cfg.get("p1v", 1) == 2:
            self.publish(f"""
            s_lshl_b32 s50, s2, 6
            s_add_u32 s50, s50, {WS_F + 0x4000}
            """, only_wave=0, t0=188, t1=189)
        a("""
        s_barrier
        s_branch ATT_C_ENTRY
        """)
        a.label("GATE_H")
        a(f"s_setprio {self.cfg.get('hprio', 1)}")
        self.srds_first()
        self.srds_rest()
        if not self.cfg.get("l2pf", 1):
            a("s_barrier")
        if self.cfg.get("l2pf", 1):
            a(f"""
            s_sub_u32 s56, s{sIDX}, 28
            s_lshl_b32 s56, s56, 2
            s_add_u32 s56, s56, s{sW}
            s_sub_u32 s56, s56, 4           ; pw 0..15
            s_lshr_b32 s50, s{sXCD}, 1
            s_mul_i32 s57, s50, {512*896}
            s_mul_i32 s50, s56, 28672
            s_add_u32 s57, s57, s50         ; x slice
            v_and_b32 v2, 31, v0
            v_lshlrev_b32 v2, 4, v2
            v_lshrrev_b32 v3, 5, v0
            s_movk_i32 s50, 896
            v_mad_u32_u24 v4, v3, s50, v2   ; (r0,p0),(r0,p1)
            v_add_u32 v5, 1792, v4          ; (r0,p2),(r1,p0)
            v_add_u32 v6, 3584, v4          ; (r1,p1),(r1,p2)
            s_and_b32 s50, s{sXCD}, 1
            s_mul_i32 s58, s50, 384
            s_mul_i32 s50, s56, 5376
            s_add_u32 s58, s58, s50
            s_lshl_b32 s59, s56, 10
            """)
            n = [0]

            def dst():
                n[0] += 1
                return vr(16 + 4 * (n[0] % 32), 4)
            if self.cfg.get("l2pf") == 3:
                a("""
                s_movk_i32 s50, 2688
                v_mad_u32_u24 v7, v3, s50, v2
                """)
                for i in range(14):
                    a(f"s_add_u32 s50, s58, {i*16*5376}")
                    a(f"buffer_load_dwordx4 {dst()}, v7, {sr(S_WA)}, s50 offen")
            for sw in (S_WB,):
                for i in range(14):
                    a(f"s_add_u32 s50, s58, {i*16*5376}")
                    for k in range(3):
                        a(f"buffer_load_dwordx4 {dst()}, v{4+k}, {sr(sw)}, s50 offen")
                    if i == self.cfg.get("gbar", 13):
                        a("s_barrier")
            for sw in ((S_WOB, S_WOA) if self.cfg.get("l2pf") == 2 else ()):
                for i in range(25):
                    a(f"s_add_u32 s50, s59, {i*16384}")
                    a(f"buffer_load_dwordx4 {dst()}, v1, {sr(sw)}, s50 offen")
        self.read_nonce()
        self.poll_all(0)
        a("""
        s_barrier
        s_branch ATT_H_ENTRY
        """)


def build(cfg):
    g = Gen(cfg)
    body = g.build()
    head = f"""; {NAME}: one persistent launch (projections -> attention -> output projection + gated mix)
; @launch grid=(256,1,1) block=(512,1,1) lds={LDS_BYTES}
.amdgcn_target "amdgcn-amd-amdhsa--gfx950"
.text
.globl {NAME}_kernel
"""
    tail = f""".section .rodata,"a"
.p2align 6
.amdhsa_kernel {NAME}_kernel
  .amdhsa_next_free_vgpr 256
  .amdhsa_next_free_sgpr 100
  .amdhsa_accum_offset {256}
  .amdhsa_group_segment_fixed_size 0
  .amdhsa_kernarg_size 80
  .amdhsa_user_sgpr_count 2
  .amdhsa_user_sgpr_kernarg_segment_ptr 1
  .amdhsa_system_sgpr_workgroup_id_x 1
.end_amdhsa_kernel
"""
    if cfg.get("stamps"):
        head = "; STAMPS " + repr(g.stnames) + "\n" + head
    return head + body + tail, g.a.n_pads


if __name__ == "__main__":
    cfg = {}
    out = f"cdna_kernels/{NAME}.s"
    for arg in sys.argv[1:]:
        if arg.startswith("-o="):
            out = arg[3:]
        else:
            k, v = arg.split("=")
            cfg[k] = int(v)
    s, n = build(cfg)
    open(out, "w").write(s)
    print("wrote", out, len(s), "bytes;", n, "hazard pads")
```

```python
import math
import struct
import sys
import os

sys.path.insert(0, os.path.dirname(os.path.abspath(__file__)))
from asmlib import Asm

NAME = "gated_mix__mha_block__sliding_local_dilated__prompt"

TS = 28672
WS_Q = 0x000000
WS_K = 0x200000
WS_V = 0x400000
BR = 0x600000
WS_OA = 0xC00000
WS_OB = 0xE00000
WS_G = 0x1000000
WS_F = 0x1010000
WS_USED = 0x1030000
WS_DIAG = 0x2000000

X_BYTES = 2048 * 448 * 2
W_BYTES = 448 * 1344 * 2
WO_BYTES = 448 * 448 * 2

R1 = 0
R2 = 57344
R3 = 106496
LDS_BYTES = 163840
CB = R2 + 32768
QL = 155648
OAL = R2
SLOT_TS = (8, 0, 16)
SPIN_MAX = 40000
LSC = ''


def f32bits(x):
    return struct.unpack("<I", struct.pack("<f", x))[0]


SCALE_F32 = struct.unpack("<f", struct.pack("<f", 28 ** -0.5))[0]
QSCALE = f32bits(SCALE_F32 * math.log2(math.e))
NEG_BIG = f32bits(-1.0e30)
NLOG2E = f32bits(-math.log2(math.e))

S_X, S_WA, S_WB, S_WS, S_WOA, S_WOB, S_OUT, S_DBG, S_GATE = 4, 8, 12, 16, 20, 24, 28, 32, 36
KA0 = 68
sW, sXCD, sIDX, sRB, sCG, sH, sQB, sRB3, sCB3, sNONCE = 40, 41, 42, 43, 44, 45, 46, 47, 48, 49
sGI = 3
sBR = 95
RW = 114688


def sr(b):
    return f"s[{b}:{b+3}]"


class VmQ:
    def __init__(self):
        self.q = []

    def push(self, tag):
        self.q.append(tag)

    def wait_for(self, tag):
        idx = max([i for i, t in enumerate(self.q) if t == tag], default=-1)
        if idx < 0:
            return None
        n = len(self.q) - 1 - idx
        self.q = self.q[idx + 1:]
        return min(n, 63)

    def clear(self):
        self.q = []


def vr(b, n):
    return f"v[{b}:{b+n-1}]"


def ar(b, n):
    return f"a[{b}:{b+n-1}]"


def lane_mask(fn):
    m = 0
    for l in range(64):
        if fn(l):
            m |= 1 << l
    return m


class Gen:
    def __init__(self, cfg):
        self.cfg = cfg
        self.a = Asm()
        self.nlab = 0
        self.stnames = {}

    def lab(self, p):
        self.nlab += 1
        return f"{p}_{self.nlab}"

    def stamp(self, idx, name=None):
        if not self.cfg.get("stamps"):
            return
        if name is not None and self.cfg.get("ststage") and idx == 0 and name in ("c0", "b7", "b11", "pub1", "c14", "preS0", "T1"):
            return
        if name is not None:
            role = idx
            lst = self.stnames.setdefault(role, ["start"])
            idx = len(lst)
            lst.append(name)
            assert idx < 14
        self.a(f"""
        s_memtime s[{64+2*idx}:{65+2*idx}]
        """)
        if idx == 0:
            self.a("s_memrealtime s[98:99]")

    def stamp_flush(self, n, role):
        if not self.cfg.get("stamps"):
            return
        a = self.a
        skip = self.lab("STSKIP")
        a(f"""
        s_memrealtime s[96:97]
        s_cmp_lg_u32 s{sW}, {4*role}
        s_cbranch_scc1 {skip}
        s_waitcnt lgkmcnt(0)
        s_mov_b32 s{S_WS+2}, 0x2100000
        s_lshl_b32 s50, s2, 8
        s_add_u32 s50, s50, {WS_DIAG + role*128}
        v_mov_b32 v3, 0
        """)
        for i in range(2 * n):
            a(f"v_mov_b32 v4, s{64+i}")
            a(f"buffer_store_dword v4, v3, {sr(S_WS)}, s50 offen offset:{4*i}")
        for i, s in enumerate((98, 99, 96, 97)):
            a(f"v_mov_b32 v4, s{s}")
            a(f"buffer_store_dword v4, v3, {sr(S_WS)}, s50 offen offset:{112+4*i}")
        a.label(skip)

    def publish(self, off_sgpr_expr_lines, only_wave=4, t0=12, t1=13, balance=False):
        a = self.a
        skip, end = self.lab("PUB"), self.lab("PUBE")
        a(off_sgpr_expr_lines)
        a(f"""
        v_mov_b32 v{t0}, 0
        v_mov_b32 v{t1}, s{sNONCE}
        s_mov_b64 exec, 1
        s_cmp_lg_u32 s{sW}, {only_wave}
        s_cbranch_scc1 {skip}
        buffer_store_dword v{t1}, v{t0}, {sr(S_WS)}, s50 offen sc1
        """)
        if balance:
            a(f"s_branch {end}")
        a.label(skip)
        if balance:
            a(f"buffer_load_dword v{t1}, v{t0}, {sr(S_GATE)}, 0 offen")
            a.label(end)
        a("s_mov_b64 exec, -1")

    def poll_all(self, foff):
        a = self.a
        loop, done = self.lab("POLL"), self.lab("POLLD")
        a(f"""
        s_waitcnt vmcnt(0)
        s_cmp_lg_u32 s{sW}, 4
        s_cbranch_scc1 {done}
        s_mov_b32 s50, {WS_F + foff}
        s_mov_b32 s92, {WS_F + foff + 4096}
        s_mov_b32 s93, {WS_F + foff + 8192}
        s_mov_b32 s94, {WS_F + foff + 12288}
        v_lshlrev_b32 v11, 6, v0
        s_mov_b32 s51, 0
        """)
        if self.cfg.get("mpoll", 1):
            pend = (52, 54, 88, 90)
            offs = ("s50", "s92", "s93", "s94")
            for p in pend:
                a(f"s_mov_b64 s[{p}:{p+1}], -1")
            a.label(loop)
            for i, p in enumerate(pend):
                sk = self.lab("PSK")
                a(f"""
                s_mov_b64 exec, s[{p}:{p+1}]
                s_cbranch_execz {sk}
                buffer_load_dword v{12+i}, v11, {sr(S_WS)}, {offs[i]} offen sc1
                """)
                a.label(sk)
            a("s_waitcnt vmcnt(0)")
            for i, p in enumerate(pend):
                a(f"s_mov_b64 exec, s[{p}:{p+1}]")
                a(f"v_cmp_ne_u32 s[{p}:{p+1}], s{sNONCE}, v{12+i}")
            a(f"""
            s_mov_b64 exec, -1
            s_or_b64 vcc, s[52:53], s[54:55]
            s_or_b64 vcc, vcc, s[88:89]
            s_or_b64 vcc, vcc, s[90:91]
            s_cmp_eq_u64 vcc, 0
            s_cbranch_scc1 {done}
            s_sleep {self.cfg.get("sleep", 4)}
            s_add_u32 s51, s51, 1
            s_cmp_lt_u32 s51, {SPIN_MAX}
            s_cbranch_scc1 {loop}
            """)
            a.label(done)
            return
        a.label(loop)
        a(f"""
        buffer_load_dword v12, v11, {sr(S_WS)}, s50 offen sc1
        buffer_load_dword v13, v11, {sr(S_WS)}, s92 offen sc1
        buffer_load_dword v14, v11, {sr(S_WS)}, s93 offen sc1
        buffer_load_dword v15, v11, {sr(S_WS)}, s94 offen sc1
        s_waitcnt vmcnt(0)
        v_cmp_eq_u32 s[52:53], s{sNONCE}, v12
        v_cmp_eq_u32 s[54:55], s{sNONCE}, v13
        s_and_b64 s[52:53], s[52:53], s[54:55]
        v_cmp_eq_u32 s[54:55], s{sNONCE}, v14
        s_and_b64 s[52:53], s[52:53], s[54:55]
        v_cmp_eq_u32 s[54:55], s{sNONCE}, v15
        s_and_b64 s[52:53], s[52:53], s[54:55]
        s_cmp_eq_u64 s[52:53], -1
        s_cbranch_scc1 {done}
        s_sleep {self.cfg.get("sleep", 4)}
        s_add_u32 s51, s51, 1
        s_cmp_lt_u32 s51, {SPIN_MAX}
        s_cbranch_scc1 {loop}
        """)
        a.label(done)

    def poll_issue(self, kind, foff, q):
        a = self.a
        if kind == "all":
            a("v_lshlrev_b32 v11, 6, v0")
            for i in range(4):
                a(f"s_mov_b32 s50, {WS_F + foff + 4096*i}")
                a(f"buffer_load_dword v{140+i}, v11, {sr(S_WS)}, s50 offen sc1")
                q.push("poll")
        else:
            a(f"""
            s_lshr_b32 s50, s{sRB3}, 1
            s_lshl_b32 s50, s50, 10
            s_add_u32 s50, s50, {WS_F + foff}
            v_and_b32 v11, 15, v0
            v_lshlrev_b32 v11, 6, v11
            buffer_load_dword v140, v11, {sr(S_WS)}, s50 offen sc1
            """)
            q.push("poll")

    def poll_check(self, kind, foff):
        a = self.a
        ok = self.lab("PCK")
        a(f"v_cmp_eq_u32 s[52:53], s{sNONCE}, v140")
        if kind == "all":
            for i in range(1, 4):
                a(f"v_cmp_eq_u32 s[54:55], s{sNONCE}, v{140+i}")
                a("s_and_b64 s[52:53], s[52:53], s[54:55]")
        a("s_cmp_eq_u64 s[52:53], -1")
        a(f"s_cbranch_scc1 {ok}")
        if kind == "all":
            self.poll_all(foff)
        else:
            self.poll16(foff)
        a.label(ok)

    def poll16(self, foff, everyone=False):
        a = self.a
        loop, done = self.lab("POLL"), self.lab("POLLD")
        a(f"""
        s_waitcnt vmcnt(0)
        s_cmp_lg_u32 s{sW}, {"s%d" % sW if everyone else 4}
        s_cbranch_scc1 {done}
        s_cmp_ge_u32 s{sIDX}, 28
        s_cbranch_scc1 {done}
        s_lshr_b32 s50, s{sRB3}, 1
        s_lshl_b32 s50, s50, 10
        s_add_u32 s50, s50, {WS_F + foff}
        s_mov_b32 s51, 0
        v_and_b32 v13, 15, v0
        v_lshlrev_b32 v13, 6, v13
        """)
        a.label(loop)
        a(f"""
        buffer_load_dword v12, v13, {sr(S_WS)}, s50 offen sc1
        s_waitcnt vmcnt(0)
        v_cmp_eq_u32 s[52:53], s{sNONCE}, v12
        s_cmp_eq_u64 s[52:53], -1
        s_cbranch_scc1 {done}
        s_sleep {self.cfg.get("sleep", 4)}
        s_add_u32 s51, s51, 1
        s_cmp_lt_u32 s51, {SPIN_MAX}
        s_cbranch_scc1 {loop}
        """)
        a.label(done)

    def get_nonce(self):
        a = self.a
        loop, done, skip = self.lab("NON"), self.lab("NOND"), self.lab("NONS")
        a(f"""
        v_mov_b32 v12, 0
        s_cmp_lg_u32 s2, 0
        s_cbranch_scc1 {skip}
        s_cmp_lg_u32 s{sW}, 4
        s_cbranch_scc1 {skip}
        s_memrealtime s[50:51]
        s_waitcnt lgkmcnt(0)
        s_or_b32 s50, s50, 1
        v_mov_b32 v13, s50
        s_mov_b64 exec, 1
        buffer_store_dword v13, v12, {sr(S_DBG)}, 0 offen sc1
        s_mov_b64 exec, -1
        """)
        a.label(skip)

    def read_nonce(self, early=None, t0=12, t1=13):
        a = self.a
        loop, done = self.lab("NON"), self.lab("NOND")
        if early is not None:
            a(f"""
            v_readfirstlane_b32 s{sNONCE}, v{early}
            s_cmp_lg_u32 s{sNONCE}, 0
            s_cbranch_scc1 {done}
            """)
        a(f"""
        v_mov_b32 v{t0}, 0
        s_mov_b32 s51, 0
        """)
        a.label(loop)
        a(f"""
        buffer_load_dword v{t1}, v{t0}, {sr(S_DBG)}, 0 offen sc1
        s_waitcnt vmcnt(0)
        v_readfirstlane_b32 s{sNONCE}, v{t1}
        s_cmp_lg_u32 s{sNONCE}, 0
        s_cbranch_scc1 {done}
        s_sleep {self.cfg.get("sleep", 4)}
        s_add_u32 s51, s51, 1
        s_cmp_lt_u32 s51, {SPIN_MAX}
        s_cbranch_scc1 {loop}
        """)
        a.label(done)

    def max_tree(self, regs, dst, tmp):
        a = self.a
        h = len(regs) // 2
        for (rs, d) in ((regs[:h], dst), (regs[h:], tmp)):
            a(f"v_max3_f32 v{d}, v{rs[0]}, v{rs[1]}, v{rs[2]}")
            i = 3
            while i + 1 < len(rs):
                a(f"v_max3_f32 v{d}, v{d}, v{rs[i]}, v{rs[i+1]}")
                i += 2
            if i < len(rs):
                a(f"v_max_f32 v{d}, v{d}, v{rs[i]}")
        a(f"v_max_f32 v{dst}, v{dst}, v{tmp}")
        a(f"v_mov_b32 v{tmp}, v{dst}")
        a(f"v_permlane32_swap_b32 v{dst}, v{tmp}")
        a(f"v_max_f32 v{dst}, v{dst}, v{tmp}")

    def o_voff(self, dst, tmp):
        self.a(f"""
        v_and_b32 v{dst}, 31, v0
        v_lshlrev_b32 v{dst}, 4, v{dst}
        v_lshrrev_b32 v{tmp}, 5, v0
        s_and_b32 s50, s{sH}, 1
        s_cmp_eq_u32 s50, 0
        s_cselect_b32 s51, 8, 504
        s_cselect_b32 s50, 0, 1544
        v_mad_u32_u24 v{dst}, v{tmp}, s51, v{dst}
        v_add_u32 v{dst}, s50, v{dst}
        s_lshr_b32 s50, s{sH}, 1
        s_mul_i32 s50, s50, 3584
        v_add_u32 v{dst}, s50, v{dst}
        """)

    def finalize_o(self, O, T, voff, soff, q=None):
        a = self.a
        a(f"""
        v_mov_b32 v{T}, v{O+12}
        v_mov_b32 v{T+1}, v{O+12}
        v_permlane32_swap_b32 v{T}, v{T+1}
        v_rcp_f32 v{T}, v{T+1}
        """)
        for r in range(16):
            a(f"v_mul_f32 v{O+r}, v{T}, v{O+r}")
        for r in range(8):
            a(f"v_cvt_pk_bf16_f32 v{T+2+r}, v{O+2*r}, v{O+2*r+1}")
        for i in range(4):
            if i == 3:
                a("s_mov_b32 exec_hi, 0")
            a(f"buffer_store_dwordx2 {vr(T+2+2*i,2)}, v{voff}, {sr(S_WS)}, {soff} offen offset:{512*i} sc1")
            if q is not None:
                q.push("ost")
        a("s_mov_b64 exec, -1")

    def load_qk_frag(self, dst, voff, soff, q=None, tag=None, pfx="v"):
        a = self.a
        for i in range(4):
            if i == 3:
                a("s_mov_b32 exec_hi, 0")
            a(f"buffer_load_dwordx2 {pfx}[{dst+2*i}:{dst+2*i+1}], v{voff}, {sr(S_WS)}, {soff} offen offset:{512*i}{LSC}")
            if q is not None:
                q.push(tag)
        a("s_mov_b32 exec_hi, -1")

    def srd(self, base, pair, nbytes):
        self.a(f"""
        s_mov_b32 s{base}, s{pair}
        s_and_b32 s{base+1}, s{pair+1}, 0xffff
        s_mov_b32 s{base+2}, {nbytes}
        s_mov_b32 s{base+3}, 0x20000
        """)

    def srds_first(self):
        self.a("s_waitcnt lgkmcnt(0)")
        self.srd(S_X, KA0, X_BYTES)
        if self.cfg.get("p1v", 1) == 2:
            self.a(f"""
            s_cmp_eq_u32 s{sBR}, 0
            s_cselect_b32 s{S_WA}, s{KA0+2}, s{KA0+8}
            s_cselect_b32 s{S_WA+1}, s{KA0+3}, s{KA0+9}
            s_and_b32 s{S_WA+1}, s{S_WA+1}, 0xffff
            s_mov_b32 s{S_WA+2}, {W_BYTES}
            s_mov_b32 s{S_WA+3}, 0x20000
            """)
        else:
            self.srd(S_WA, KA0 + 2, W_BYTES)

    def srds_rest(self):
        self.srd(S_WOA, KA0 + 4, WO_BYTES)
        self.srd(S_WB, KA0 + 8, W_BYTES)
        self.srd(S_WOB, KA0 + 10, WO_BYTES)
        self.srd(S_GATE, KA0 + 12, 896)
        self.srd(S_OUT, KA0 + 14, X_BYTES)
        self.srd(S_DBG, KA0 + 16, 256)
        self.srd(S_WS, KA0 + 18, WS_USED)
        self.a(f"""
        s_lshl_b32 s{sH}, s{sXCD}, 1
        s_and_b32 s50, s{sIDX}, 1
        s_add_u32 s{sH}, s{sH}, s50
        s_lshr_b32 s{sQB}, s2, 4
        s_lshl_b32 s{sRB3}, s{sXCD}, 2
        s_and_b32 s50, s{sIDX}, 3
        s_add_u32 s{sRB3}, s{sRB3}, s50
        s_lshr_b32 s{sCB3}, s{sIDX}, 2
        """)

    def build(self):
        a, cfg = self.a, self.cfg
        a.raw(".p2align 8")
        a.raw(f".type {NAME}_kernel,@function")
        a.label(f"{NAME}_kernel")
        a("""
        s_cmp_ge_u32 s2, 256
        s_cbranch_scc1 K_END
        """)
        self.stamp(0)
        a(f"""
        s_load_dwordx16 s[{KA0}:{KA0+15}], s[0:1], 0
        s_load_dwordx4 s[{KA0+16}:{KA0+19}], s[0:1], 64
        v_lshrrev_b32 v1, 6, v0
        v_and_b32 v0, 63, v0
        v_readfirstlane_b32 s{sW}, v1
        s_and_b32 s{sXCD}, s2, 7
        s_lshr_b32 s{sIDX}, s2, 3
        v_lshlrev_b32 v1, 4, v0
        """)
        if cfg.get("codepf", 1):
            a(f"""
            s_getpc_b64 s[52:53]
            """)
            a.label("PCREF")
            a(f"""
            s_sub_u32 s52, s52, PCREF-{NAME}_kernel
            s_subb_u32 s53, s53, 0
            s_and_b32 s53, s53, 0xffff
            s_mov_b32 s54, K_CODE_END-{NAME}_kernel
            s_mov_b32 s55, 0x20000
            s_lshl_b32 s50, s{sIDX}, 2
            s_add_u32 s50, s50, s{sW}
            s_lshl_b32 s50, s50, 10
            s_cmp_ge_u32 s{sW}, 4
            s_cbranch_scc1 NOPF
            buffer_load_dwordx4 v[240:243], v1, s[52:55], s50 offen
            """)
            a.label("NOPF")
        if cfg.get("p1v", 1) == 2:
            a(f"""
            s_cmp_ge_u32 s{sIDX}, 14
            s_cselect_b32 s{sBR}, 1, 0
            s_cselect_b32 s51, 14, 0
            s_sub_u32 s51, s{sIDX}, s51
            s_lshr_b32 s50, s{sXCD}, 1
            s_lshl_b32 s50, s50, 2          ; 4p
            s_and_b32 s61, s{sXCD}, 1       ; s
            s_and_b32 s{sRB}, s51, 3
            s_add_u32 s{sRB}, s{sRB}, s50
            s_lshr_b32 s{sCG}, s51, 2
            s_lshl_b32 s62, s61, 2
            s_add_u32 s{sCG}, s{sCG}, s62
            s_lshl_b32 s62, s61, 1
            s_add_u32 s62, s62, s51
            s_add_u32 s62, s62, s50
            s_sub_u32 s62, s62, 12
            s_cmp_ge_u32 s51, 12
            s_cselect_b32 s{sRB}, s62, s{sRB}
            s_cselect_b32 s{sCG}, 3, s{sCG}
            s_lshl_b32 s{sGI}, s{sXCD}, 2
            s_add_u32 s{sGI}, s{sGI}, s{sIDX}
            s_sub_u32 s{sGI}, s{sGI}, 28
            s_cmp_ge_u32 s{sIDX}, 28
            s_cselect_b32 s{sGI}, s{sGI}, -1
            """)
        elif cfg.get("p1map", 0) == 0:
            a(f"""
            s_lshr_b32 s50, s{sXCD}, 1
            s_lshl_b32 s50, s50, 3          ; 8p
            s_and_b32 s51, s{sXCD}, 1       ; s
            s_and_b32 s{sRB}, s{sIDX}, 7
            s_add_u32 s{sRB}, s{sRB}, s50
            s_lshr_b32 s{sCG}, s{sIDX}, 3
            s_lshl_b32 s61, s51, 2
            s_add_u32 s{sCG}, s{sCG}, s61
            s_sub_u32 s62, s{sIDX}, 24
            s_add_u32 s62, s62, s61
            s_add_u32 s62, s62, s50
            s_cmp_ge_u32 s{sIDX}, 24
            s_cselect_b32 s{sRB}, s62, s{sRB}
            s_cselect_b32 s{sCG}, 3, s{sCG}
            s_lshl_b32 s{sGI}, s{sXCD}, 2
            s_add_u32 s{sGI}, s{sGI}, s{sIDX}
            s_sub_u32 s{sGI}, s{sGI}, 28
            s_cmp_ge_u32 s{sIDX}, 28
            s_cselect_b32 s{sGI}, s{sGI}, -1
            """)
        else:
            a(f"""
            s_and_b32 s50, s{sXCD}, 1
            s_lshl_b32 s50, s50, 4
            s_lshr_b32 s{sRB}, s{sIDX}, 1
            s_and_b32 s{sCG}, s{sXCD}, 6
            s_and_b32 s51, s{sIDX}, 1
            s_add_u32 s{sCG}, s{sCG}, s51
            s_add_u32 s{sGI}, s50, s{sIDX}
            s_sub_u32 s{sGI}, s{sGI}, 16
            s_cmp_ge_u32 s{sXCD}, 6
            s_cselect_b32 s{sRB}, s{sIDX}, s{sRB}
            s_cselect_b32 s{sCG}, 6, s{sCG}
            s_cselect_b32 s51, s{sIDX}, 0
            s_add_u32 s{sRB}, s{sRB}, s50
            s_cmp_ge_u32 s51, 16
            s_cselect_b32 s{sGI}, s{sGI}, -1
            """)
        a(f"""
        s_cmp_lt_u32 s{sW}, 4
        s_cbranch_scc1 COMPUTE
        s_cmp_lg_u32 s{sGI}, -1
        s_cbranch_scc1 GATE_H
        """)
        if cfg.get("p1v", 1) == 2:
            self.helper_p1b()
        else:
            self.helper_p1()
        self.helper_attn()
        a.label("COMPUTE")
        self.srds_first()
        self.srds_rest()
        if cfg.get("tlb", 1):
            a(f"""
            v_and_b32 v2, 15, v0
            v_lshlrev_b32 v2, 21, v2
            v_add_u32 v2, 0x1f0000, v2
            s_mov_b32 exec_lo, 0xff
            s_mov_b32 exec_hi, 0
            buffer_load_dword v244, v2, {sr(S_WS)}, 0 offen
            s_mov_b32 exec_lo, 3
            v_mul_u32_u24 v2, {X_BYTES - 4}, v0
            buffer_load_dword v245, v2, {sr(S_OUT)}, 0 offen
            s_mov_b64 exec, -1
            """)
        if cfg.get("pfall"):
            a(f"""
            s_lshl_b32 s56, s{sIDX}, 2
            s_add_u32 s56, s56, s{sW}
            v_and_b32 v2, 31, v0
            v_lshlrev_b32 v2, 4, v2
            v_lshrrev_b32 v3, 5, v0
            s_movk_i32 s50, 896
            v_mad_u32_u24 v4, v3, s50, v2
            v_add_u32 v5, 1792, v4
            v_add_u32 v6, 3584, v4
            s_and_b32 s50, s{sXCD}, 1
            s_mul_i32 s58, s50, 384
            s_mul_i32 s50, s56, 5376
            s_add_u32 s58, s58, s50
            """)
            for i in range(cfg.get("pfall")):
                a(f"s_add_u32 s50, s58, {i*128*5376}")
                for k in range(3):
                    a(f"buffer_load_dwordx4 v[244:247], v{4+k}, {sr(S_WB)}, s50 offen")
        a(f"""
        s_cmp_lg_u32 s{sGI}, -1
        s_cbranch_scc1 GATE_WG
        """)
        if cfg.get("p1v", 1) == 2:
            self.compute_p1b()
        else:
            self.compute_p1()
        self.compute_attn()
        self.gate_wg()
        self.fallback()
        a.label("K_END")
        a("s_endpgm")
        a.label("K_CODE_END")
        return a.render()

    def p1_plan(self):
        order = self.cfg.get("order", 1)
        steps = []
        if order == 1:
            for c in range(7):
                steps.append(([(0, 1), (0, 2)], [c]))
            for cs in ([0, 1], [2, 3], [4, 5], [6]):
                steps.append(([(0, 0)], cs))
            for c in range(7):
                steps.append(([(1, 0), (1, 1), (1, 2)], [c]))
        else:
            for br in range(2):
                for c in range(7):
                    steps.append(([(br, 0), (br, 1), (br, 2)], [c]))
        u = 0
        units = []
        for pcs, cs in steps:
            m = {}
            for c in cs:
                for pc in pcs:
                    m[(pc, c)] = u % 12
                    u += 1
            units.append(m)
        LIM = self.cfg.get("inflight", 8)
        sched = {i: [] for i in range(-1, len(steps))}
        nxt, used = 0, 0
        size = [len(m) for m in units]
        for b in range(-1, len(steps)):
            live = sum(size[max(b, 0):nxt])
            ahead = sum(size[b + 1:nxt])
            lim = LIM if b >= self.cfg.get("ramp", 2) else self.cfg.get("inflight0", 8)
            while nxt < len(steps) and live + size[nxt] <= 12 and ahead + size[nxt] <= lim:
                sched[b].append(nxt)
                live += size[nxt]
                ahead += size[nxt]
                nxt += 1
        assert nxt == len(steps)
        return steps, units, sched

    def compute_p1(self):
        a, cfg = self.a, self.cfg
        ACC = [64, 112]
        FR = 16
        XA, WA = 4, 8
        PK = 160
        a(f"""
        s_and_b32 s56, s{sW}, 1         ; rho
        s_lshr_b32 s57, s{sW}, 1        ; c
        v_and_b32 v2, 31, v0            ; r
        v_lshrrev_b32 v3, 5, v0         ; hf
        v_bfe_u32 v10, v0, 1, 3
        v_xor_b32 v10, v10, v3
        s_lshl_b32 s50, s56, 12
        v_lshlrev_b32 v11, 7, v2
        v_add_u32 v11, s50, v11
        """)
        for sp in range(4):
            a(f"v_xor_b32 v12, {2*sp}, v10")
            a(f"v_lshl_add_u32 v{XA+sp}, v12, 4, v11")
        a(f"""
        v_and_b32 v11, 3, v0
        v_lshlrev_b32 v11, 3, v11
        v_bfe_u32 v12, v0, 4, 1
        v_lshl_add_u32 v11, v12, 5, v11
        s_lshl_b32 s50, s57, 6
        v_add_u32 v11, s50, v11
        v_bfe_u32 v12, v0, 3, 1
        v_lshlrev_b32 v12, 6, v12
        v_xor_b32 v11, v11, v12
        v_bfe_u32 v12, v0, 2, 2
        v_lshl_add_u32 v12, v3, 3, v12
        v_lshl_add_u32 v11, v12, 7, v11
        v_add_u32 v{WA}, {R2}, v11
        v_add_u32 v{WA+1}, {R2+49152}, v11
        v_lshlrev_b32 v10, 3, v2
        v_lshl_add_u32 v10, v3, 8, v10
        v_lshlrev_b32 v11, 4, v2
        s_movk_i32 s50, 7168
        v_mad_u32_u24 v11, v3, s50, v11 ; v11 = hf*7168 + (l&31)*16  (V)
        s_lshl_b32 s58, s{sRB}, 1
        s_add_u32 s58, s58, s56         ; t
        s_mul_i32 s58, s58, {TS}
        s_lshl_b32 s59, s{sCG}, 12
        s_lshl_b32 s50, s57, 11
        s_add_u32 s59, s59, s50
        s_add_u32 s59, s59, s58
        s_lshl_b32 s60, s{sCG}, 10
        s_lshl_b32 s50, s57, 9
        s_add_u32 s60, s60, s50
        s_add_u32 s60, s60, s58         ; V soffset
        s_mov_b32 s61, {QSCALE}
        """)

        steps, units, sched = self.p1_plan()
        ACCR = {(0, 0): 64, (0, 1): 80, (0, 2): 96, (1, 0): 112, (1, 1): 128, (1, 2): 144}
        ks = []
        for j, (pcs, cs) in enumerate(steps):
            for c in cs:
                for sp in range(4):
                    ks.append((j, c, sp, c == cs[0] and sp == 0))
        NK = len(ks)

        def reads(n):
            j, c, sp, _ = ks[n]
            b = FR + 16 * (n % 2)
            out = [f"ds_read_b128 {vr(b,4)}, v{XA+sp} offset:{c*8192}"]
            if cfg.get("exp_nox") and j >= 7:
                out = []
            for i, pc in enumerate(steps[j][0]):
                if cfg.get("exp_now") and i >= 1:
                    continue
                un = units[j][(pc, c)]
                for u in range(2):
                    off = (un % 6) * 8192 + (16 * sp + 4 * u) * 128
                    out.append(f"ds_read_b64_tr_b16 {vr(b+4+4*i+2*u,2)}, v{WA + un // 6} offset:{off}")
            return out

        def mfmas(n):
            j, c, sp, _ = ks[n]
            b = FR + 16 * (n % 2)
            X = vr(b, 4)
            out = []
            for i, pc in enumerate(steps[j][0]):
                W = vr(b + 4 + 4 * i, 4)
                d = vr(ACCR[pc], 16)
                cin = "0" if (c == 0 and sp == 0) else d
                if pc[1] < 2:
                    out.append(f"v_mfma_f32_32x32x16_bf16 {d}, {W}, {X}, {cin}")
                else:
                    out.append(f"v_mfma_f32_32x32x16_bf16 {d}, {X}, {W}, {cin}")
            return out

        def epilogue(pc):
            br, tile = pc
            acc = ACCR[pc]
            out = []
            if tile == 0:
                for r in range(8):
                    out.append(f"v_cvt_pk_bf16_f32 v{PK+r}, v{acc+2*r}, v{acc+2*r+1}")
                for r in range(8):
                    out.append(f"v_lshlrev_b32 v{acc+2*r}, 16, v{PK+r}")
                    out.append(f"v_and_b32 v{acc+2*r+1}, 0xffff0000, v{PK+r}")
                for r in range(16):
                    out.append(f"v_mul_f32 v{acc+r}, s61, v{acc+r}")
            for r in range(8):
                out.append(f"v_cvt_pk_bf16_f32 v{PK+8*tile+r}, v{acc+2*r}, v{acc+2*r+1}")
            if tile < 2:
                out.append(f"s_add_u32 s50, s59, {br*BR + (WS_Q if tile == 0 else WS_K)}")
                for gi in range(4):
                    out.append(f"buffer_store_dwordx2 {vr(PK+8*tile+2*gi,2)}, v10, {sr(S_WS)}, s50 offen offset:{512*gi} sc1")
            else:
                for f in range(2):
                    out.append(f"s_add_u32 s50, s60, {br*BR + WS_V + f*14336}")
                    out.append(f"buffer_store_dwordx4 {vr(PK+16+4*f,4)}, v11, {sr(S_WS)}, s50 offen sc1")
            if cfg.get("exp_nost") == 1:
                out = [x for x in out if not x.startswith("buffer_store")]
            if cfg.get("exp_nost") == 2:
                out = [x.replace(" sc1", "") for x in out]
            return out

        FB = cfg.get("flag1_bar", 13)
        pend = []
        a("s_barrier")
        self.stamp(0, "c0")
        for x in reads(0):
            a(x)
        for n in range(NK):
            j = ks[n][0]
            nxt = reads(n + 1) if n + 1 < NK else []
            first = n + 1 < NK and ks[n + 1][3]
            if first:
                jb = ks[n + 1][0]
                if jb == FB:
                    assert not pend
                    a("s_waitcnt vmcnt(0) lgkmcnt(0)")
                else:
                    a("s_waitcnt lgkmcnt(0)")
                a("s_barrier")
                if jb == FB:
                    self.read_nonce(early=190, t0=188, t1=189)
                    self.publish(f"""
                    s_lshl_b32 s50, s2, 6
                    s_add_u32 s50, s50, {WS_F}
                    """, only_wave=0, t0=188, t1=189)
                    self.stamp(0, "pub1")
                if jb == 6:
                    a("v_mov_b32 v188, 0")
                    a(f"buffer_load_dword v190, v188, {sr(S_DBG)}, 0 offen sc1")
                if jb in (7, 11):
                    self.stamp(0, f"b{jb}")
                fill = list(nxt)
            else:
                for x in nxt:
                    a(x)
                a(f"s_waitcnt lgkmcnt({len(nxt)})")
                fill = []
            mf = mfmas(n)
            if n >= 1 and steps[ks[n - 1][0]][0] != steps[j][0]:
                for pc in sorted(steps[ks[n - 1][0]][0], key=lambda p: -p[1]):
                    pend += epilogue(pc)
                hold = True
            else:
                hold = False
            extra = []
            if pend and not hold:
                k = cfg.get("epi_rate", 12) * len(mf)
                extra, pend = pend[:k], pend[k:]
            fill = fill + extra
            k = (len(fill) + len(mf) - 1) // len(mf)
            for i, m in enumerate(mf):
                a(m)
                for x in fill[i * k:(i + 1) * k]:
                    a(x)
        assert not pend
        self.stamp(0, "c14")
        for pc in steps[-1][0]:
            for x in epilogue(pc):
                a(x)
        a("s_waitcnt lgkmcnt(0)")
        a("s_barrier")
        self.stamp(0, "T1")

    def p1b_plan(self):
        steps = [([1, 2], [c]) for c in range(7)] + [([0], cs) for cs in ([0, 1], [2, 3], [4, 5], [6])]
        u = 0
        units = []
        for pcs, cs in steps:
            m = {}
            for c in cs:
                for pc in pcs:
                    m[(pc, c)] = u % 6
                    u += 1
            units.append(m)
        size = [len(m) for m in units]
        sched = {i: [] for i in range(-1, len(steps))}
        nxt = 0
        for b in range(-1, len(steps)):
            live = sum(size[max(b, 0):nxt])
            lim = 6 if b >= 0 else self.cfg.get("inflight0b", 4)
            while nxt < len(steps) and live + size[nxt] <= lim:
                sched[b].append(nxt)
                live += size[nxt]
                nxt += 1
        assert nxt == len(steps)
        return steps, units, sched

    def compute_p1b(self):
        a, cfg = self.a, self.cfg
        FR = 16
        XA, WA = 4, 12
        XA2 = 236
        PK = 160
        ACCR = {(1, 0): 64, (1, 1): 80, (2, 0): 96, (2, 1): 112, (0, 0): 128, (0, 1): 144}
        a(f"""
        s_and_b32 s56, s{sW}, 1         ; rp
        s_lshr_b32 s57, s{sW}, 1        ; c
        v_and_b32 v2, 31, v0
        v_lshrrev_b32 v3, 5, v0
        v_bfe_u32 v10, v0, 1, 3
        v_xor_b32 v10, v10, v3
        s_lshl_b32 s50, s56, 13
        v_lshlrev_b32 v11, 7, v2
        v_add_u32 v11, s50, v11
        """)
        for sp in range(4):
            a(f"v_xor_b32 v13, {2*sp}, v10")
            a(f"v_lshl_add_u32 v{XA+sp}, v13, 4, v11")
            a(f"v_add_u32 v{XA2+sp}, 0x10000, v{XA+sp}")
        a(f"""
        v_and_b32 v11, 3, v0
        v_lshlrev_b32 v11, 3, v11
        v_bfe_u32 v13, v0, 4, 1
        v_lshl_add_u32 v11, v13, 5, v11
        s_lshl_b32 s50, s57, 6
        v_add_u32 v11, s50, v11
        v_bfe_u32 v13, v0, 3, 1
        v_lshlrev_b32 v13, 6, v13
        v_xor_b32 v11, v11, v13
        v_bfe_u32 v13, v0, 2, 2
        v_lshl_add_u32 v13, v3, 3, v13
        v_lshl_add_u32 v11, v13, 7, v11
        v_add_u32 v{WA}, {RW}, v11
        v_lshlrev_b32 v10, 3, v2
        v_lshl_add_u32 v10, v3, 8, v10
        v_lshlrev_b32 v11, 4, v2
        s_movk_i32 s50, 7168
        v_mad_u32_u24 v11, v3, s50, v11 ; hf*7168 + (l&31)*16
        s_lshl_b32 s58, s{sRB}, 2
        s_lshl_b32 s50, s56, 1
        s_add_u32 s58, s58, s50         ; t0
        s_mul_i32 s58, s58, {TS}
        s_mul_i32 s50, s{sBR}, {BR}
        s_add_u32 s58, s58, s50
        s_lshl_b32 s59, s{sCG}, 12
        s_lshl_b32 s50, s57, 11
        s_add_u32 s59, s59, s50
        s_add_u32 s59, s59, s58         ; Q/K soffset
        s_lshl_b32 s60, s{sCG}, 10
        s_lshl_b32 s50, s57, 9
        s_add_u32 s60, s60, s50
        s_add_u32 s60, s60, s58         ; V soffset
        s_mov_b32 s61, {QSCALE}
        """)
        steps, units, sched = self.p1b_plan()
        ks = []
        for j, (pcs, cs) in enumerate(steps):
            for c in cs:
                for sp in range(4):
                    ks.append((j, c, sp, c == cs[0] and sp == 0))
        NK = len(ks)

        def reads(n):
            j, c, sp, _ = ks[n]
            b = FR + 16 * (n % 2)
            xa, off = (XA + sp, c * 16384) if c < 4 else (XA2 + sp, (c - 4) * 16384)
            out = [f"ds_read_b128 {vr(b,4)}, v{xa} offset:{off}", f"ds_read_b128 {vr(b+4,4)}, v{xa} offset:{off+4096}"]
            for i, pc in enumerate(steps[j][0]):
                un = units[j][(pc, c)]
                for u in range(2):
                    out.append(f"ds_read_b64_tr_b16 {vr(b+8+4*i+2*u,2)}, v{WA} offset:{un*8192 + (16*sp+4*u)*128}")
            return out

        def mfmas(n):
            j, c, sp, _ = ks[n]
            b = FR + 16 * (n % 2)
            out = []
            for i, pc in enumerate(steps[j][0]):
                W = vr(b + 8 + 4 * i, 4)
                for rho in range(2):
                    X = vr(b + 4 * rho, 4)
                    d = vr(ACCR[(pc, rho)], 16)
                    cin = "0" if (c == 0 and sp == 0) else d
                    if pc < 2:
                        out.append(f"v_mfma_f32_32x32x16_bf16 {d}, {W}, {X}, {cin}")
                    else:
                        out.append(f"v_mfma_f32_32x32x16_bf16 {d}, {X}, {W}, {cin}")
            return out

        def epilogue(pc, rho):
            acc = ACCR[(pc, rho)]
            pk = PK + 8 * ((2 * pc + rho) % 3)
            out = []
            if pc == 0:
                for r in range(8):
                    out.append(f"v_cvt_pk_bf16_f32 v{pk+r}, v{acc+2*r}, v{acc+2*r+1}")
                for r in range(8):
                    out.append(f"v_lshlrev_b32 v{acc+2*r}, 16, v{pk+r}")
                    out.append(f"v_and_b32 v{acc+2*r+1}, 0xffff0000, v{pk+r}")
                for r in range(16):
                    out.append(f"v_mul_f32 v{acc+r}, s61, v{acc+r}")
            for r in range(8):
                out.append(f"v_cvt_pk_bf16_f32 v{pk+r}, v{acc+2*r}, v{acc+2*r+1}")
            if pc < 2:
                out.append(f"s_add_u32 s50, s59, {(WS_Q if pc == 0 else WS_K) + rho*TS}")
                for gi in range(4):
                    out.append(f"buffer_store_dwordx2 {vr(pk+2*gi,2)}, v10, {sr(S_WS)}, s50 offen offset:{512*gi} sc1")
            else:
                for f in range(2):
                    out.append(f"s_add_u32 s50, s60, {WS_V + f*14336 + rho*TS}")
                    out.append(f"buffer_store_dwordx4 {vr(pk+4*f,4)}, v11, {sr(S_WS)}, s50 offen sc1")
            return out

        pend = []
        a("s_barrier")
        self.stamp(0, "c0")
        for x in reads(0):
            a(x)
        for n in range(NK):
            j = ks[n][0]
            nxt = reads(n + 1) if n + 1 < NK else []
            first = n + 1 < NK and ks[n + 1][3]
            if first:
                jb = ks[n + 1][0]
                a("s_waitcnt lgkmcnt(0)")
                a("s_barrier")
                if jb == 4:
                    a("v_mov_b32 v188, 0")
                    a(f"buffer_load_dword v190, v188, {sr(S_DBG)}, 0 offen sc1")
                if jb == 7:
                    self.stamp(0, "b7")
                    a("s_waitcnt vmcnt(0)")
                    self.read_nonce(early=190, t0=188, t1=189)
                    self.publish(f"""
                    s_xor_b32 s51, s{sBR}, 1
                    s_lshl_b32 s51, s51, 14
                    s_lshl_b32 s50, s2, 6
                    s_add_u32 s50, s50, s51
                    s_add_u32 s50, s50, {WS_F}
                    """, only_wave=0, t0=188, t1=189)
                fill = list(nxt)
            else:
                for x in nxt:
                    a(x)
                a(f"s_waitcnt lgkmcnt({len(nxt)})")
                fill = []
            mf = mfmas(n)
            hold = False
            if n >= 1 and steps[ks[n - 1][0]][0] != steps[j][0]:
                for pc in (2, 1):
                    for rho in range(2):
                        pend += epilogue(pc, rho)
                hold = True
            extra = []
            if pend and not hold:
                k = cfg.get("epi_rate_b", 5) * len(mf)
                extra, pend = pend[:k], pend[k:]
            fill = fill + extra
            k = (len(fill) + len(mf) - 1) // len(mf)
            for i, m in enumerate(mf):
                a(m)
                for x in fill[i * k:(i + 1) * k]:
                    a(x)
        assert not pend
        self.stamp(0, "c14")
        for rho in range(2):
            for x in epilogue(0, rho):
                a(x)
        a("s_waitcnt vmcnt(0) lgkmcnt(0)")
        a("s_barrier")
        self.publish(f"""
        s_lshl_b32 s51, s{sBR}, 14
        s_lshl_b32 s50, s2, 6
        s_add_u32 s50, s50, s51
        s_add_u32 s50, s50, {WS_F}
        """, only_wave=0, t0=188, t1=189)
        self.stamp(0, "pub1")
        a("s_barrier")
        self.stamp(0, "T1")

    def helper_p1b(self):
        a, cfg = self.a, self.cfg
        a.label("HELPER")
        a(f"""
        s_setprio {cfg.get('hprio', 1)}
        s_sub_u32 s56, s{sW}, 4         ; j
        v_lshrrev_b32 v2, 3, v0
        v_and_b32 v3, 7, v0
        v_lshrrev_b32 v4, 4, v0
        v_xor_b32 v8, v3, v4
        v_lshlrev_b32 v8, 4, v8
        s_movk_i32 s50, 896
        v_mad_u32_u24 v5, v2, s50, v8
        v_xor_b32 v6, 64, v5
        v_and_b32 v4, 1, v4
        v_lshlrev_b32 v4, 2, v4
        v_xor_b32 v8, v3, v4
        v_lshlrev_b32 v8, 4, v8
        s_movk_i32 s50, 2688
        v_mad_u32_u24 v7, v2, s50, v8
        s_lshl_b32 s57, s{sRB}, 7
        s_lshl_b32 s50, s56, 5
        s_add_u32 s57, s57, s50
        s_mul_i32 s57, s57, 896
        s_lshl_b32 s58, s{sCG}, 7
        s_mul_i32 s50, s56, 43008
        s_add_u32 s58, s58, s50         ; W base
        s_lshl_b32 s59, s56, 11
        s_lshl_b32 s60, s56, 12
        """)
        self.srds_first()
        q = VmQ()
        self.hq = q
        steps, units, sched = self.p1b_plan()
        xdone = set()

        def issue(j):
            pcs, cs = steps[j]
            for c in cs:
                if c not in xdone:
                    xdone.add(c)
                    for i in range(4):
                        a(f"s_add_u32 s50, s57, {8*i*896 + 128*c}")
                        a(f"s_add_u32 m0, s60, {c*16384 + 8*i*128}")
                        a(f"buffer_load_dwordx4 v{5+(i&1)}, {sr(S_X)}, s50 offen lds")
                        q.push(("c", j))
                for part in pcs:
                    un = units[j][(part, c)]
                    for ii in range(2):
                        a(f"s_add_u32 s50, s58, {part*896 + (64*c + 8*ii)*2688}")
                        a(f"s_add_u32 m0, s59, {RW + un*8192 + 8*ii*128}")
                        a(f"buffer_load_dwordx4 v7, {sr(S_WA)}, s50 offen lds")
                        q.push(("c", j))

        for j in sched[-1]:
            issue(j)
        self.srds_rest()
        self.get_nonce()
        for b in range(len(steps)):
            n = q.wait_for(("c", b))
            if n is not None:
                a(f"s_waitcnt vmcnt({n})")
            a("s_barrier")
            for j in sched[b]:
                issue(j)
            if b == 6:
                a(f"v_mov_b32 v12, 0")
                a(f"buffer_load_dword v14, v12, {sr(S_DBG)}, 0 offen sc1")
                q.push("non")
        a("s_barrier")
        self.stamp(1, "poll1")
        a("s_waitcnt vmcnt(0)")
        self.read_nonce(early=14)
        self.poll_all(0)
        self.stamp(1, "got1")
        q.clear()
        a("s_barrier")

    def attn_setup_and_q(self):
        a = self.a
        Q = 192
        a(f"""
        v_and_b32 v224, 31, v0
        v_lshrrev_b32 v225, 5, v0
        v_lshlrev_b32 v224, 3, v224
        v_lshl_add_u32 v224, v225, 8, v224
        v_add_u32 v225, {QL}, v224
        """)

    def compute_attn(self):
        a, cfg = self.a, self.cfg
        Q, O, S, P, NM, T, KV = 192, 48, 112, 144, 152, 156, 16
        KA, VA = 226, 232
        self.regs = dict(Q=Q, O=O, S=S, P=P, NM=NM, T=T, KV=KV)
        a.label("ATT_C_ENTRY")
        self.attn_setup_and_q()
        a(f"s_lshl_b32 s50, s{sW}, 13")
        for sl in range(3):
            for kk in range(2):
                a(f"v_add_u32 v{KA+2*sl+kk}, s50, v224")
                a(f"v_add_u32 v{KA+2*sl+kk}, {R2 + (SLOT_TS[sl]+kk)*4096}, v{KA+2*sl+kk}")
        a(f"""
        v_add_u32 v{VA}, s50, v1
        v_add_u32 v{VA+1}, {R2 + 65536 + 2048}, v{VA}
        v_add_u32 v{VA}, {R2 + 2048}, v{VA}
        """)
        self.o_voff(2, 3)
        a(f"""
        s_lshl_b32 s56, s{sQB}, 2
        s_add_u32 s56, s56, s{sW}
        s_mul_i32 s56, s56, {TS}
        s_add_u32 s56, s56, {WS_OA}
        """)

        def kv_reads(t):
            k, kk = divmod(t, 2)
            sl = k % 3
            b = KV + 16 * (t % 2)
            ts = SLOT_TS[sl] + kk
            out = []
            for f in range(2):
                out.append(f"ds_read2_b64 {vr(b+4*f,4)}, v{KA+2*sl+kk} offset0:{128*f} offset1:{128*f+64}")
            for f in range(2):
                vb, off = (VA, ts * 4096) if ts < 16 else (VA + 1, (ts - 16) * 4096)
                out.append(f"ds_read_b128 {vr(b+8+4*f,4)}, v{vb} offset:{off + 1024*f}")
            return out

        def qk(u, buf):
            t, j = divmod(u, 4)
            b = KV + 16 * (t % 2)
            d = vr(S + 16 * buf, 16)
            return (f"v_mfma_f32_32x32x16_bf16 {d}, {vr(b,4)}, {vr(Q+8*j,4)}, 0",
                    f"v_mfma_f32_32x32x16_bf16 {d}, {vr(b+4,4)}, {vr(Q+8*j+4,4)}, {d}")

        def pv(u, half):
            t, j = divmod(u, 4)
            b = KV + 16 * (t % 2)
            d = vr(O + 16 * j, 16)
            c = "0" if (t == 0 and half == 0) else d
            return f"v_mfma_f32_32x32x16_bf16 {d}, {vr(b+8+4*half,4)}, {vr(P+4*half,4)}, {c}"

        def part_write(j):
            out = ["s_mov_b32 exec_lo, 0", f"v_mov_b32 v{O+16*j+13}, v{NM+j}", "s_mov_b32 exec_lo, -1"]
            for qd in range(4):
                out.append(f"ds_write_b128 v{PW}, {vr(O+16*j+4*qd,4)} offset:{j*4096 + qd*1024}")
            return out
        self.part_write = part_write
        PW = 234
        a(f"s_lshl_b32 s50, s{sW}, 14")
        a(f"v_add_u32 v{PW}, s50, v1")
        a(f"v_add_u32 v{PW}, {CB}, v{PW}")
        if cfg.get("p1v", 1) != 2:
            a("s_waitcnt vmcnt(0)")
        self.stamp(0, "preS0")
        a("s_barrier")
        self.stamp(0, "S0")
        if cfg.get("p1v", 1) != 2:
            self.publish(f"""
            s_lshl_b32 s50, s2, 6
            s_add_u32 s50, s50, {WS_F + 0x4000}
            """, only_wave=0, t0=188, t1=189)
        F2B = -1
        a(f"v_add_u32 v3, 4096, v225")
        for j in range(4):
            for f in range(2):
                o0 = (j & 1) * 256 + 128 * f
                if o0 + 64 > 255:
                    a(f"v_add_u32 v4, {j*2048}, v225")
                    a(f"ds_read2_b64 {vr(Q+8*j+4*f,4)}, v4 offset0:{128*f} offset1:{128*f+64}")
                else:
                    a(f"ds_read2_b64 {vr(Q+8*j+4*f,4)}, v{225 if j < 2 else 3} offset0:{o0} offset1:{o0+64}")
        for x in kv_reads(0):
            a(x)
        a("s_waitcnt lgkmcnt(0)")
        a("s_mov_b32 exec_lo, 0")
        for j in range(4):
            a(f"v_mov_b32 v{Q+8*j+6}, 0")
            a(f"v_mov_b32 v{Q+8*j+7}, 0")
        a("s_mov_b32 exec_lo, -1")
        scr = [S, S + 16, O, O + 16]
        for j in range(4):
            d = vr(scr[j], 16)
            a(f"v_mfma_f32_32x32x16_bf16 {d}, {vr(KV,4)}, {vr(Q+8*j,4)}, 0")
            a(f"v_mfma_f32_32x32x16_bf16 {d}, {vr(KV+4,4)}, {vr(Q+8*j+4,4)}, {d}")
        for j in range(4):
            self.max_tree([scr[j] + r for r in range(16)], T + 2 * j, T + 2 * j + 1)
        for j in range(4):
            a(f"v_add_f32 v{T+2*j}, {f32bits(40.0)}, v{T+2*j}")
        for j in range(4):
            a(f"v_cvt_pk_bf16_f32 v{T+2*j+1}, -v{T+2*j}, 0")
        a("s_mov_b32 exec_lo, 0")
        for j in range(4):
            a(f"v_mov_b32 v{Q+8*j+6}, v{T+2*j+1}")
        a("s_mov_b32 exec_lo, -1")
        for j in range(4):
            a(f"v_lshlrev_b32 v{NM+j}, 16, v{T+2*j+1}")
        self.stamp(0, "att0")
        m0, m1 = qk(0, 0)
        a(m0)
        a(m1)
        for u in range(64):
            t, j = divmod(u, 4)
            sb = S + 16 * (u & 1)
            slots = [None] * 4
            post = [[] for _ in range(4)]
            if u + 1 < 64:
                slots[0], slots[1] = qk(u + 1, (u + 1) & 1)
            if u >= 1:
                slots[2] = pv(u - 1, 1)
            slots[3] = pv(u, 0)
            if t + 1 < 16:
                rd = kv_reads(t + 1)
                if j == 0 and t % 2 == 1:
                    if t == 2 * F2B - 1:
                        post[2].append("s_waitcnt vmcnt(0)")
                    post[2].append("s_barrier")
                    if cfg.get("ststage"):
                        post[2].append(("ST", f"S{(t+1)//2}"))
                    if t == 2 * F2B - 1:
                        post[2].append("PUB2")
                if j == 0:
                    post[3].append(rd[0])
                if j == 1:
                    post[0].append(rd[1])
                    post[1].append(rd[2])
                    post[2].append(rd[3])
                if j == 2:
                    post[3].append("s_waitcnt lgkmcnt(0)")
            if u >= 62:
                pwl = part_write(u - 62)
                post[0] += pwl[:4]
                post[1] += pwl[4:5]
                post[2] += pwl[5:6]
                post[3] += pwl[6:7]
            for g in range(4):
                r = 4 * g
                a(f"v_exp_f32 v{sb+r}, v{sb+r}")
                a(f"v_exp_f32 v{sb+r+1}, v{sb+r+1}")
                if slots[g]:
                    a(slots[g])
                for x in post[g]:
                    if isinstance(x, tuple):
                        self.stamp(0, x[1])
                    elif x == "PUB2":
                        self.publish(f"""
                        s_lshl_b32 s50, s2, 6
                        s_add_u32 s50, s50, {WS_F + 0x4000}
                        """, only_wave=0, t0=188, t1=189)
                    else:
                        a(x)
                a(f"v_exp_f32 v{sb+r+2}, v{sb+r+2}")
                a(f"v_exp_f32 v{sb+r+3}, v{sb+r+3}")
                a(f"v_cvt_pk_bf16_f32 v{P+2*g}, v{sb+r}, v{sb+r+1}")
                a(f"v_cvt_pk_bf16_f32 v{P+2*g+1}, v{sb+r+2}, v{sb+r+3}")
        a(pv(63, 1))
        self.stamp(0, "attE")
        for x in part_write(2) + part_write(3):
            a(x)
        a(f"""
        s_mov_b32 s50, {f32bits(2.0**-60)}
        s_mov_b32 s51, {f32bits(2.0**64)}
        s_mov_b64 s[52:53], -1
        """)
        for j in range(4):
            a(f"v_cmp_lt_f32 vcc, s50, v{O+16*j+12}")
            a("s_and_b64 s[52:53], s[52:53], vcc")
            a(f"v_cmp_gt_f32 vcc, s51, v{O+16*j+12}")
            a("s_and_b64 s[52:53], s[52:53], vcc")
        a("""
        s_cmp_eq_u32 s53, -1
        s_cbranch_scc0 FALLBACK
        """)
        a.label("COMBINE")
        a(f"""
        s_lshl_b32 s50, s{sW}, 12
        v_add_u32 v5, s50, v1
        v_add_u32 v5, {CB}, v5
        s_waitcnt lgkmcnt(0)
        s_barrier
        """)
        self.stamp(0, "C1")
        for k in range(4):
            for qd in range(4):
                a(f"ds_read_b128 {vr(O+16*k+4*qd,4)}, v5 offset:{k*16384 + qd*1024}")
        a("s_waitcnt lgkmcnt(0)")
        for k in range(4):
            a(f"v_mov_b32 v{T+2*k}, v{O+16*k+13}")
            a(f"v_mov_b32 v{T+2*k+1}, v{O+16*k+13}")
        for k in range(4):
            a(f"v_permlane32_swap_b32 v{T+2*k}, v{T+2*k+1}")
        a(f"v_min3_f32 v{T}, v{T+1}, v{T+3}, v{T+5}")
        a(f"v_min_f32 v{T}, v{T}, v{T+7}")
        for k in range(4):
            a(f"v_sub_f32 v{T+2*k+1}, v{T}, v{T+2*k+1}")
        for k in range(4):
            a(f"v_exp_f32 v{T+2*k+1}, v{T+2*k+1}")
        for r in range(16):
            a(f"v_mul_f32 v{O+r}, v{T+1}, v{O+r}")
        for k in range(1, 4):
            for r in range(16):
                a(f"v_fmac_f32 v{O+r}, v{T+2*k+1}, v{O+16*k+r}")
        self.finalize_o(O, T + 8, 2, "s56")
        a(f"""
        v_mov_b32 v188, {QL + 1792}
        v_mov_b32 v189, 1
        s_mov_b64 exec, 1
        ds_add_u32 v188, v189
        s_mov_b64 exec, -1
        """)
        a(f"""
        s_lshl_b32 s50, s{sQB}, 2
        s_add_u32 s50, s50, s{sW}
        s_lshl_b32 s50, s50, 4
        s_add_u32 s50, s50, s{sH}
        s_lshl_b32 s50, s50, 6
        s_add_u32 s50, s50, {WS_F + 0x10000}
        v_mov_b32 v188, 0
        v_mov_b32 v189, s{sNONCE}
        s_waitcnt vmcnt(0)
        s_mov_b64 exec, 1
        buffer_store_dword v189, v188, {sr(S_WS)}, s50 offen sc1
        s_mov_b64 exec, -1
        """)
        self.stamp(0, "pub3")
        a(f"s_cmp_ge_u32 s{sIDX}, 28")
        a("s_cbranch_scc1 C_DONE")
        a("s_barrier")
        self.oa_dma()
        a("s_waitcnt vmcnt(0)")
        a("s_barrier")
        a.label("C_DONE")
        self.stamp(0, "end")
        self.stamp_flush(14, 0)
        a("s_endpgm")

    def oa_dma(self):
        a = self.a
        a(f"""
        s_lshl_b32 s50, s{sRB3}, 1
        s_mul_i32 s50, s50, {TS}
        s_mul_i32 s51, s{sW}, 7168
        s_add_u32 s50, s50, s51
        s_add_u32 s50, s50, {WS_OA}
        s_add_u32 s52, s50, 4096
        s_add_u32 m0, s51, {OAL}
        """)
        for i in range(7):
            if i == 4:
                a(f"s_add_u32 m0, s51, {OAL + 4096}")
            a(f"buffer_load_dwordx4 v1, {sr(S_WS)}, {'s50' if i < 4 else 's52'} offen offset:{(i%4)*1024}{LSC} lds")

    def fallback(self):
        a = self.a
        R = self.regs
        Q, O, S, P, NM, T, KV = R["Q"], R["O"], R["S"], R["P"], R["NM"], R["T"], R["KV"]
        a.label("FALLBACK")
        a("s_nop 15")
        a(f"""
        v_and_b32 v5, 31, v0
        v_lshrrev_b32 v6, 5, v0
        v_lshlrev_b32 v5, 4, v5
        s_movk_i32 s50, 7168
        v_mad_u32_u24 v5, v6, s50, v5          ; V voffset
        s_lshl_b32 s57, s{sW}, 4
        s_mul_i32 s57, s57, {TS}
        s_mul_i32 s50, s{sH}, 1792
        s_add_u32 s58, s57, s50
        s_add_u32 s58, s58, {WS_K}
        s_mul_i32 s50, s{sH}, 448
        s_add_u32 s59, s57, s50
        s_add_u32 s59, s59, {WS_V}
        s_mov_b32 exec_lo, 0
        """)
        for j in range(4):
            a(f"v_mov_b32 v{Q+8*j+6}, 0")
        a(f"v_mov_b32 v{KV+6}, 0")
        a(f"v_mov_b32 v{KV+7}, 0")
        a("s_mov_b32 exec_lo, -1")
        for r in range(8):
            a(f"v_mov_b32 v{KV+8+r}, 0")
        a("s_mov_b32 exec_lo, 0x10000000")
        a("s_mov_b32 exec_hi, 0x10000000")
        for r in range(8):
            a(f"v_mov_b32 v{KV+8+r}, 0x3f803f80")
        a("s_mov_b64 exec, -1")
        for j in range(4):
            a(f"v_mov_b32 v{NM+j}, {f32bits(3.0e38)}")
            for r in range(16):
                a(f"v_mov_b32 v{O+16*j+r}, 0")
        a("s_mov_b32 s57, 0")
        a.label("FB_LOOP")
        self.load_qk_frag(KV, 224, "s58")
        a(f"""
        s_add_u32 s50, s59, 14336
        s_mov_b32 exec_lo, 0x0fffffff
        s_mov_b32 exec_hi, 0x0fffffff
        buffer_load_dwordx4 {vr(KV+8,4)}, v5, {sr(S_WS)}, s59 offen{LSC}
        buffer_load_dwordx4 {vr(KV+12,4)}, v5, {sr(S_WS)}, s50 offen{LSC}
        s_mov_b64 exec, -1
        s_waitcnt vmcnt(0)
        """)
        for j in range(4):
            d = vr(S, 16)
            a(f"v_mfma_f32_32x32x16_bf16 {d}, {vr(KV,4)}, {vr(Q+8*j,4)}, 0")
            a(f"v_mfma_f32_32x32x16_bf16 {d}, {vr(KV+4,4)}, {vr(Q+8*j+4,4)}, {d}")
            self.max_tree([S + r for r in range(16)], T, T + 1)
            a(f"v_min_f32 v{T+1}, v{NM+j}, -v{T}")
            a(f"v_sub_f32 v{T+2}, v{T+1}, v{NM+j}")
            a(f"v_exp_f32 v{T+2}, v{T+2}")
            a(f"v_mov_b32 v{NM+j}, v{T+1}")
            for r in range(16):
                a(f"v_add_f32 v{S+r}, v{S+r}, v{T+1}")
            for r in range(16):
                a(f"v_exp_f32 v{S+r}, v{S+r}")
            for r in range(16):
                a(f"v_mul_f32 v{O+16*j+r}, v{T+2}, v{O+16*j+r}")
            for r in range(8):
                a(f"v_cvt_pk_bf16_f32 v{P+r}, v{S+2*r}, v{S+2*r+1}")
            o = vr(O + 16 * j, 16)
            a(f"v_mfma_f32_32x32x16_bf16 {o}, {vr(KV+8,4)}, {vr(P,4)}, {o}")
            a(f"v_mfma_f32_32x32x16_bf16 {o}, {vr(KV+12,4)}, {vr(P+4,4)}, {o}")
        a(f"""
        s_nop 15
        s_add_u32 s58, s58, {TS}
        s_add_u32 s59, s59, {TS}
        s_add_u32 s57, s57, 1
        s_cmp_lt_u32 s57, 16
        s_cbranch_scc1 FB_LOOP
        """)
        for j in range(4):
            for x in self.part_write(j):
                a(x)
        a("s_branch COMBINE")

    def helper_p1(self):
        a, cfg = self.a, self.cfg
        a.label("HELPER")
        a(f"s_setprio {cfg.get('hprio', 1)}")
        a(f"""
        s_sub_u32 s56, s{sW}, 4         ; j
        v_lshrrev_b32 v2, 3, v0
        v_and_b32 v3, 7, v0
        v_lshrrev_b32 v4, 4, v0
        v_xor_b32 v8, v3, v4
        v_lshlrev_b32 v8, 4, v8
        s_movk_i32 s50, 896
        v_mad_u32_u24 v5, v2, s50, v8
        v_xor_b32 v6, 64, v5
        v_and_b32 v4, 1, v4
        v_lshlrev_b32 v4, 2, v4
        v_xor_b32 v8, v3, v4
        v_lshlrev_b32 v8, 4, v8
        s_movk_i32 s50, 2688
        v_mad_u32_u24 v7, v2, s50, v8   ; W voff
        s_lshl_b32 s57, s{sRB}, 6
        s_lshl_b32 s50, s56, 4
        s_add_u32 s57, s57, s50
        s_mul_i32 s57, s57, 896
        s_lshl_b32 s58, s{sCG}, 7
        s_mul_i32 s50, s56, 43008
        s_add_u32 s58, s58, s50         ; W base
        s_lshl_b32 s59, s56, 11
        """)
        self.srds_first()
        q = VmQ()
        self.hq = q

        steps, units, sched = self.p1_plan()
        xdone = set()

        def issue(j):
            pcs, cs = steps[j]
            for c in cs:
                if c not in xdone:
                    xdone.add(c)
                    for i in range(2):
                        a(f"s_add_u32 s50, s57, {8*i*896 + 128*c}")
                        a(f"s_add_u32 m0, s59, {R1 + c*8192 + 8*i*128}")
                        a(f"buffer_load_dwordx4 v{5+i}, {sr(S_X)}, s50 offen lds")
                        q.push(("c", j))
                for (br, part) in pcs:
                    un = units[j][((br, part), c)]
                    for ii in range(2):
                        a(f"s_add_u32 s50, s58, {part*896 + (64*c + 8*ii)*2688}")
                        a(f"s_add_u32 m0, s59, {R2 + un*8192 + 8*ii*128}")
                        a(f"buffer_load_dwordx4 v7, {sr(S_WA if br == 0 else S_WB)}, s50 offen lds")
                        q.push(("c", j))

        for j in sched[-1]:
            issue(j)
        self.srds_rest()
        self.get_nonce()
        for b in range(len(steps)):
            n = q.wait_for(("c", b))
            if n is not None:
                a(f"s_waitcnt vmcnt({n})")
            a("s_barrier")
            for j in sched[b]:
                issue(j)
            if b == 9:
                a(f"v_mov_b32 v12, 0")
                a(f"buffer_load_dword v14, v12, {sr(S_DBG)}, 0 offen sc1")
                q.push("non")
        self.stamp(1, "poll1")
        a("s_waitcnt vmcnt(0)")
        self.read_nonce(early=14)
        self.poll_all(0)
        self.stamp(1, "got1")
        q.clear()
        a("s_barrier")

    def helper_attn(self):
        a, cfg = self.a, self.cfg
        q = self.hq
        a.label("ATT_H_ENTRY")
        VMASK = "s_mov_b32 exec_lo, 0x0fffffff\ns_mov_b32 exec_hi, 0x0fffffff"
        a(f"""
        s_sub_u32 s56, s{sW}, 4         ; j
        v_and_b32 v2, 31, v0
        v_lshrrev_b32 v3, 5, v0
        v_lshlrev_b32 v4, 4, v2
        s_movk_i32 s50, 7168
        v_mad_u32_u24 v4, v3, s50, v4   ; v4 = V voffset
        v_lshlrev_b32 v5, 3, v2
        v_lshl_add_u32 v5, v3, 8, v5
        s_lshl_b32 s57, s56, 4
        s_mul_i32 s57, s57, {TS}
        s_mul_i32 s50, s{sH}, 1792
        s_add_u32 s58, s57, s50
        s_add_u32 s58, s58, {WS_K}      ; K stream
        s_mul_i32 s50, s{sH}, 448
        s_add_u32 s59, s57, s50
        s_add_u32 s59, s59, {WS_V}      ; V stream
        s_lshl_b32 s60, s56, 13         ; j*8192 lds
        v_lshlrev_b32 v6, 3, v0
        v_add_u32 v6, s60, v6
        v_add_u32 v6, {R2 + 1792}, v6
        v_mov_b32 v8, 0x3f80
        v_mov_b32 v9, 0
        v_and_b32 v7, 3, v0
        v_cmp_eq_u32 vcc, 0, v7
        v_mov_b32 v16, 0
        v_mov_b32 v17, 0x3f803f80
        v_cndmask_b32 v16, v16, v17, vcc
        v_mov_b32 v17, v16
        v_mov_b32 v18, v16
        v_mov_b32 v19, v16
        v_bfe_u32 v10, v0, 2, 1         ; hf
        v_lshl_add_u32 v7, v10, 5, v7
        v_bfe_u32 v10, v0, 3, 1         ; f
        v_lshl_add_u32 v7, v10, 6, v7
        v_lshlrev_b32 v7, 4, v7
        v_add_u32 v7, s60, v7
        v_add_u32 v7, {R2 + 2048 + 448}, v7
        """)

        def consts(sl):
            for kk in range(2):
                off = (SLOT_TS[sl] + kk) * 4096
                vb6, vb7, o = 6, 7, off
                if off > 60000:
                    a(f"v_add_u32 v10, {off}, v6")
                    a(f"v_add_u32 v11, {off}, v7")
                    vb6, vb7, o = 10, 11, 0
                a("s_mov_b32 exec_hi, 0")
                a(f"ds_write_b64 v{vb6}, v[8:9] offset:{o}")
                a("s_mov_b32 exec_lo, 0xffff")
                a(f"ds_write_b128 v{vb7}, v[16:19] offset:{o}")
                a("s_mov_b64 exec, -1")

        def stage(k):
            sl = k % 3
            for kk in range(2):
                base = R2 + (SLOT_TS[sl] + kk) * 4096
                if kk == 0:
                    a(f"s_add_u32 s51, s{sQB}, {k}")
                    a("s_and_b32 s51, s51, 7")
                    a(f"s_mul_i32 s51, s51, {2*TS*cfg.get('rotkv', 0)}")
                    if not cfg.get('rotkv', 0):
                        a(f"s_mov_b32 s51, {2*k*TS}")
                    a("s_add_u32 s52, s51, s58")
                    a("s_add_u32 s53, s51, s59")
                a(f"s_add_u32 s50, s52, {kk*TS}")
                a(f"s_add_u32 m0, s60, {base}")
                a(f"buffer_load_dwordx4 v1, {sr(S_WS)}, s50 offen{LSC} lds")
                a("s_mov_b32 exec_hi, 0xffff")
                a(f"buffer_load_dwordx4 v1, {sr(S_WS)}, s50 offen offset:1024{LSC} lds")
                a(VMASK)
                for f in range(2):
                    a(f"s_add_u32 s50, s53, {kk*TS + f*14336}")
                    a(f"s_add_u32 m0, s60, {base + 2048 + 1024*f}")
                    a(f"buffer_load_dwordx4 v4, {sr(S_WS)}, s50 offen{LSC} lds")
                a("s_mov_b64 exec, -1")
                for _ in range(4):
                    q.push(("s", k))

        def q_dma():
            a(f"""
            s_lshl_b32 s50, s{sQB}, 2
            s_add_u32 s50, s50, s56
            s_mul_i32 s50, s50, {TS}
            s_mul_i32 s51, s{sH}, 1792
            s_add_u32 s50, s50, s51
            s_lshl_b32 s51, s56, 11
            s_add_u32 m0, s51, {QL}
            buffer_load_dwordx4 v1, {sr(S_WS)}, s50 offen{LSC} lds
            s_mov_b32 exec_hi, 0xffff
            buffer_load_dwordx4 v1, {sr(S_WS)}, s50 offen offset:1024{LSC} lds
            s_mov_b32 exec_hi, -1
            """)
            q.push(("s", 0))
            q.push(("s", 0))

        def bar(k):
            n = q.wait_for(("s", k))
            if n is not None:
                a(f"s_waitcnt vmcnt({n}) lgkmcnt(0)")
            else:
                a("s_waitcnt lgkmcnt(0)")
            a("s_barrier")

        def wo_dma(srd_, region, tag, lo=0, hi=14):
            a(f"""
            v_lshrrev_b32 v10, 3, v0
            v_and_b32 v11, 7, v0
            v_bfe_u32 v12, v0, 4, 1
            v_lshlrev_b32 v12, 2, v12
            v_xor_b32 v11, v11, v12
            v_lshlrev_b32 v11, 4, v11
            s_movk_i32 s50, 896
            v_mad_u32_u24 v10, v10, s50, v11
            s_mul_i32 s51, s56, 100352
            s_lshl_b32 s50, s{sCB3}, 7
            s_add_u32 s51, s51, s50
            s_mul_i32 s52, s56, 14336
            """)
            for i in range(lo, hi):
                a(f"s_add_u32 s50, s51, {8*i*896}")
                a(f"s_add_u32 m0, s52, {region + i*1024}")
                a(f"buffer_load_dwordx4 v10, {sr(srd_)}, s50 offen lds")
                q.push(tag)

        skip3 = lambda name: (f"s_cmp_ge_u32 s{sIDX}, 28\ns_cbranch_scc1 {name}")

        q_dma()
        stage(0)
        consts(0)
        consts(1)
        consts(2)
        a(f"""
        v_mov_b32 v10, {QL + 1792}
        v_mov_b32 v11, 0
        ds_write_b32 v10, v11
        """)
        if cfg.get("s1early", 1):
            stage(1)
        bar(0)
        self.stamp(1, "S0")
        if not cfg.get("s1early", 1):
            stage(1)
        stage(2)
        wo_dma(S_WOB, R1, "woB", 0, 7)
        bar(1)
        stage(3)
        wo_dma(S_WOB, R1, "woB", 7, 14)
        bar(2)
        self.poll_issue("all", 0x4000, q)
        stage(4)
        a(f"s_waitcnt vmcnt({q.wait_for('poll')})")
        self.poll_check("all", 0x4000)
        self.stamp(1, "got2")
        a("s_barrier")
        stage(5)
        self.local_attn_loads(q)
        bar(4)
        stage(6)
        self.local_attn(q)
        self.stamp(1, "Ldone")
        bar(5)
        stage(7)
        self.out_gemm_setup()
        q.push("g")
        a(f"s_waitcnt vmcnt({q.wait_for('ost')})")
        a("s_barrier")
        self.publish(f"""
        s_lshl_b32 s50, s{sQB}, 4
        s_add_u32 s50, s50, s{sH}
        s_lshl_b32 s50, s50, 6
        s_add_u32 s50, s50, {WS_F + 0xC000}
        """, balance=True)
        q.push("pub")
        bar(7)
        self.poll16(0xC000, everyone=True)
        q.clear()
        self.stamp(1, "got4")
        self.out_gemm_loads(1, q, 0, 28)
        a("s_setprio 0")
        self.stamp(1, "oBiss")
        a("s_barrier")
        a(skip3("H_DONE"))
        self.out_gemm(1, R1, q, loads=False)
        lp = self.lab("HS")
        a(f"""
        v_mov_b32 v10, {QL + 1792}
        v_mov_b32 v11, 1
        s_mov_b64 exec, 1
        ds_add_u32 v10, v11
        s_mov_b64 exec, -1
        s_mov_b32 s51, 0
        """)
        a.label(lp)
        a(f"""
        ds_read_b32 v11, v10
        s_add_u32 s51, s51, 1
        s_waitcnt lgkmcnt(0)
        v_readfirstlane_b32 s50, v11
        s_cmp_ge_u32 s51, {SPIN_MAX}
        s_cbranch_scc1 {lp}_X
        s_cmp_lt_u32 s50, 8
        s_cbranch_scc1 {lp}
        """)
        a.label(lp + "_X")
        self.stamp(1, "bdone")
        wo_dma(S_WOA, R1, "woA")
        self.out_epilogue_pre()
        self.poll32()
        q.clear()
        a("s_barrier")
        self.stamp(1, "got3")
        self.oa_dma()
        a(f"""
        s_mul_i32 s50, s62, {TS}
        v_add_u32 v21, s50, v1
        v_add_u32 v21, {OAL}, v21
        s_waitcnt vmcnt(0)
        s_barrier
        """)
        self.stamp(1, "C4")
        self.out_gemm_lds()
        self.out_epilogue()
        a.label("H_DONE")
        if cfg.get("stamps"):
            a("s_waitcnt vmcnt(0)")
        self.stamp(1, "end")
        self.stamp_flush(14, 1)
        a("s_endpgm")

    def poll32(self):
        a = self.a
        loop, done = self.lab("POLL"), self.lab("POLLD")
        a(f"""
        s_waitcnt vmcnt(0)
        s_cmp_lg_u32 s{sW}, 4
        s_cbranch_scc1 {done}
        s_lshl_b32 s50, s{sRB3}, 11
        s_add_u32 s50, s50, {WS_F + 0x10000}
        s_mov_b32 s51, 0
        v_and_b32 v13, 31, v0
        v_lshlrev_b32 v13, 6, v13
        """)
        if self.cfg.get("pipepoll", 2) == 2:
            a("s_mov_b32 s52, -1")
            a("s_mov_b32 s53, 0")
            a.label(loop)
            a(f"""
            s_mov_b64 exec, s[52:53]
            buffer_load_dword v12, v13, {sr(S_WS)}, s50 offen sc1
            s_waitcnt vmcnt(0)
            v_cmp_ne_u32 s[52:53], s{sNONCE}, v12
            s_mov_b64 exec, -1
            s_cmp_eq_u64 s[52:53], 0
            s_cbranch_scc1 {done}
            s_sleep {self.cfg.get("sleep3", 2)}
            s_add_u32 s51, s51, 1
            s_cmp_lt_u32 s51, {SPIN_MAX}
            s_cbranch_scc1 {loop}
            """)
        elif self.cfg.get("pipepoll", 2) == 1:
            regs = (140, 141, 142)
            for r in regs[:2]:
                a(f"buffer_load_dword v{r}, v13, {sr(S_WS)}, s50 offen sc1")
                a("s_sleep 3")
            a.label(loop)
            for i, r in enumerate(regs):
                a(f"""
                buffer_load_dword v{regs[(i+2) % 3]}, v13, {sr(S_WS)}, s50 offen sc1
                s_waitcnt vmcnt(2)
                v_cmp_eq_u32 s[52:53], s{sNONCE}, v{r}
                s_cmp_eq_u64 s[52:53], -1
                s_cbranch_scc1 {done}
                """)
            a(f"""
            s_add_u32 s51, s51, 1
            s_cmp_lt_u32 s51, {SPIN_MAX}
            s_cbranch_scc1 {loop}
            """)
        else:
            a.label(loop)
            a(f"""
            buffer_load_dword v12, v13, {sr(S_WS)}, s50 offen sc1
            s_waitcnt vmcnt(0)
            v_cmp_eq_u32 s[52:53], s{sNONCE}, v12
            s_cmp_eq_u64 s[52:53], -1
            s_cbranch_scc1 {done}
            s_add_u32 s51, s51, 1
            s_cmp_lt_u32 s51, {SPIN_MAX}
            s_cbranch_scc1 {loop}
            """)
        a.label(done)

    def out_gemm_lds(self):
        a = self.a
        ACC, NB = 64, 4
        WF, OFB = 32, 96

        def reads(s):
            b = WF + 4 * (s % NB)
            a(f"ds_read_b128 {vr(OFB+4*(s % NB),4)}, v21 offset:{s*1024}")
            for u in range(2):
                a(f"ds_read_b64_tr_b16 {vr(b+2*u,2)}, v20 offset:{(16*s+4*u)*128}")

        for s in range(NB - 1):
            reads(s)
        for s in range(28):
            if s + NB - 1 < 28:
                reads(s + NB - 1)
                lg = 3 * (NB - 1)
            else:
                lg = 3 * (27 - s)
            a(f"s_waitcnt lgkmcnt({lg})")
            d = vr(ACC, 16)
            c = "0" if s == 0 else d
            a(f"v_mfma_f32_32x32x16_bf16 {d}, {vr(WF+4*(s % NB),4)}, {vr(OFB+4*(s % NB),4)}, {c}")

    def local_attn_loads(self, q):
        a = self.a
        LQ, LK, LKP, LV, LVP = 20, 28, 36, 44, 52
        a(f"""
        s_lshl_b32 s61, s{sQB}, 2
        s_add_u32 s61, s61, s56         ; tB
        s_mul_i32 s62, s61, {TS}
        s_sub_u32 s63, s62, {TS}
        s_cmp_eq_u32 s61, 0
        s_cselect_b32 s63, s62, s63
        s_cselect_b32 s55, 0, -1
        s_mul_i32 s54, s{sH}, 1792
        s_add_u32 s50, s62, s54
        s_add_u32 s50, s50, {BR + WS_Q}
        """)
        for r in (LQ + 6, LQ + 7, LK + 6, LK + 7, LKP + 6, LKP + 7):
            a(f"v_mov_b32 v{r}, 0")
        for r in range(12):
            a(f"v_mov_b32 v{LV+r}, 0")
        a("s_mov_b32 exec_lo, 0x10000000")
        a("s_mov_b32 exec_hi, 0x10000000")
        for r in range(12):
            a(f"v_mov_b32 v{LV+r}, 0x3f803f80")
        a("s_mov_b64 exec, -1")
        self.load_qk_frag(LQ, 5, "s50", q, "L")
        a(f"s_add_u32 s50, s50, {WS_K - WS_Q}")
        self.load_qk_frag(LK, 5, "s50", q, "L")
        a(f"s_add_u32 s50, s63, s54")
        a(f"s_add_u32 s50, s50, {BR + WS_K}")
        self.load_qk_frag(LKP, 5, "s50", q, "L")
        a(f"""
        s_mul_i32 s54, s{sH}, 448
        s_add_u32 s50, s62, s54
        s_add_u32 s50, s50, {BR + WS_V}
        s_add_u32 s51, s50, 14336
        s_add_u32 s52, s63, s54
        s_add_u32 s52, s52, {BR + WS_V + 14336}
        s_mov_b32 exec_lo, 0x0fffffff
        s_mov_b32 exec_hi, 0x0fffffff
        buffer_load_dwordx4 {vr(LV,4)}, v4, {sr(S_WS)}, s50 offen{LSC}
        buffer_load_dwordx4 {vr(LV+4,4)}, v4, {sr(S_WS)}, s51 offen{LSC}
        buffer_load_dwordx4 {vr(LVP,4)}, v4, {sr(S_WS)}, s52 offen{LSC}
        s_mov_b64 exec, -1
        v_mov_b32 v15, {NEG_BIG}
        s_add_u32 s62, s62, {WS_OB}
        """)
        for _ in range(3):
            q.push("L")
        self.o_voff(14, 13)

    def local_attn(self, q):
        a = self.a
        LQ, LK, LKP, LV, LVP = 20, 28, 36, 44, 52
        Sd, Sp, P, T, O = 64, 80, 96, 104, 124
        n = q.wait_for("L")
        if n is not None:
            a(f"s_waitcnt vmcnt({n})")
        a(f"v_mfma_f32_32x32x16_bf16 {vr(Sd,16)}, {vr(LK,4)}, {vr(LQ,4)}, 0")
        a(f"v_mfma_f32_32x32x16_bf16 {vr(Sp,16)}, {vr(LKP,4)}, {vr(LQ,4)}, 0")
        a(f"v_mfma_f32_32x32x16_bf16 {vr(Sd,16)}, {vr(LK+4,4)}, {vr(LQ+4,4)}, {vr(Sd,16)}")
        a(f"v_mfma_f32_32x32x16_bf16 {vr(Sp,16)}, {vr(LKP+4,4)}, {vr(LQ+4,4)}, {vr(Sp,16)}")
        regs = []
        for r in range(16):
            m = lane_mask(lambda l: (((l & 31) - ((r & 3) + 8 * (r >> 2) + 4 * (l >> 5))) & ~14) == 0)
            sp = 50 + 2 * (r & 1)
            a(f"s_mov_b32 s{sp}, {m & 0xffffffff:#x}")
            a(f"s_mov_b32 s{sp+1}, {m >> 32:#x}")
            a(f"v_cndmask_b32 v{Sd+r}, v15, v{Sd+r}, s[{sp}:{sp+1}]")
            regs.append(Sd + r)
        for r in range(8, 16):
            m = lane_mask(lambda l: ((32 + (l & 31) - ((r & 3) + 8 * (r >> 2) + 4 * (l >> 5))) & ~14) == 0)
            sp = 50 + 2 * (r & 1)
            a(f"s_and_b32 s{sp}, s55, {m & 0xffffffff:#x}")
            a(f"s_and_b32 s{sp+1}, s55, {m >> 32:#x}")
            a(f"v_cndmask_b32 v{Sp+r}, v15, v{Sp+r}, s[{sp}:{sp+1}]")
            regs.append(Sp + r)
        self.max_tree(regs, T, T + 1)
        for r in regs:
            a(f"v_sub_f32 v{r}, v{r}, v{T}")
        for r in regs:
            a(f"v_exp_f32 v{r}, v{r}")
        for r in range(8):
            a(f"v_cvt_pk_bf16_f32 v{P+r}, v{Sd+2*r}, v{Sd+2*r+1}")
        for r in range(4):
            a(f"v_cvt_pk_bf16_f32 v{T+4+r}, v{Sp+8+2*r}, v{Sp+9+2*r}")
        a(f"v_mfma_f32_32x32x16_bf16 {vr(O,16)}, {vr(LV,4)}, {vr(P,4)}, 0")
        a(f"v_mfma_f32_32x32x16_bf16 {vr(O,16)}, {vr(LV+4,4)}, {vr(P+4,4)}, {vr(O,16)}")
        a(f"v_mfma_f32_32x32x16_bf16 {vr(O,16)}, {vr(LVP,4)}, {vr(T+4,4)}, {vr(O,16)}")
        self.finalize_o(O, T + 8, 14, "s62", q)

    def out_gemm_setup(self):
        a = self.a
        a(f"""
        s_and_b32 s62, s56, 1
        s_lshr_b32 s63, s56, 1
        v_and_b32 v20, 3, v0
        v_lshlrev_b32 v20, 3, v20
        v_bfe_u32 v21, v0, 4, 1
        v_lshl_add_u32 v20, v21, 5, v20
        s_lshl_b32 s50, s63, 6
        v_add_u32 v20, s50, v20
        v_bfe_u32 v21, v0, 3, 1
        v_lshlrev_b32 v21, 6, v21
        v_xor_b32 v20, v20, v21
        v_bfe_u32 v21, v0, 2, 2
        v_lshl_add_u32 v21, v3, 3, v21
        v_lshl_add_u32 v20, v21, 7, v20
        s_lshl_b32 s61, s{sRB3}, 1
        s_add_u32 s61, s61, s62         ; q tile
        s_lshl_b32 s50, s61, 7
        s_add_u32 s50, s50, {WS_G}
        v_lshlrev_b32 v22, 2, v2
        buffer_load_dword v23, v22, {sr(S_WS)}, s50 offen{LSC}
        s_mul_i32 s61, s61, {TS}
        """)

    def out_gemm_loads(self, br, q, lo=0, hi=28):
        a = self.a
        OF = 144
        for s in range(lo, hi):
            if s % 4 == 0:
                a(f"s_add_u32 s50, s61, {(WS_OA if br == 0 else WS_OB) + s*1024}")
            a(f"buffer_load_dwordx4 {vr(OF+4*s,4)}, v1, {sr(S_WS)}, s50 offen offset:{(s%4)*1024}{LSC}")
            q.push(("o", s))

    def out_gemm(self, br, region, q, loads=True):
        a = self.a
        ACC = 64 + 16 * br
        OF = 144
        WF, NB = 32, 4
        areg = 20 if region == R1 else 21
        if loads:
            self.out_gemm_loads(br, q)

        def reads(s):
            b = WF + 4 * (s % NB)
            for u in range(2):
                a(f"ds_read_b64_tr_b16 {vr(b+2*u,2)}, v{areg} offset:{(16*s+4*u)*128}")

        for s in range(NB - 1):
            reads(s)
        for s in range(28):
            if s + NB - 1 < 28:
                reads(s + NB - 1)
                lg = 2 * (NB - 1)
            else:
                lg = 2 * (27 - s)
            n = q.wait_for(('o', s))
            a(f"s_waitcnt lgkmcnt({lg})" if n is None else f"s_waitcnt vmcnt({n}) lgkmcnt({lg})")
            b = WF + 4 * (s % NB)
            d = vr(ACC, 16)
            c = "0" if s == 0 else d
            a(f"v_mfma_f32_32x32x16_bf16 {d}, {vr(b,4)}, {vr(OF+4*s,4)}, {c}")

    def out_epilogue_pre(self):
        a = self.a
        A, B, W = 64, 80, 32
        a(f"""
        v_sub_f32 v24, 1.0, v23
        v_cvt_pk_bf16_f32 v24, v24, v24
        v_lshlrev_b32 v24, 16, v24
        s_lshl_b32 s50, s{sRB3}, 6
        s_lshl_b32 s51, s62, 5
        s_add_u32 s50, s50, s51
        v_add_u32 v25, s50, v2
        s_movk_i32 s50, 896
        v_mul_lo_u32 v25, v25, s50
        v_lshl_add_u32 v25, v3, 4, v25
        s_lshl_b32 s50, s{sCB3}, 7
        s_lshl_b32 s51, s63, 6
        s_add_u32 s50, s50, s51
        """)
        a("s_mov_b32 s59, s50")
        for r in range(16):
            a(f"v_mul_f32 v{B+r}, v24, v{B+r}")

    def out_epilogue(self):
        a = self.a
        A, B, W = 64, 80, 32
        for r in range(16):
            a(f"v_fma_f32 v{A+r}, v23, v{A+r}, v{B+r}")
        for r in range(8):
            a(f"v_cvt_pk_bf16_f32 v{W+r}, v{A+2*r}, v{A+2*r+1}")
        for pr in range(2):
            b = W + 4 * pr
            a(f"v_permlane32_swap_b32 v{b}, v{b+2}")
            a(f"v_permlane32_swap_b32 v{b+1}, v{b+3}")
            a(f"buffer_store_dwordx4 {vr(b,4)}, v25, {sr(S_OUT)}, s59 offen offset:{32*pr}{('', ' sc1', ' nt', ' sc0 sc1')[self.cfg.get('outpol', 0)]}")

    def gate_wg(self):
        a = self.a
        a.label("GATE_WG")
        a(f"""
        s_lshl_b32 s56, s{sGI}, 6
        s_lshl_b32 s50, s{sW}, 4
        s_add_u32 s56, s56, s50
        s_mul_i32 s57, s56, 896
        """)
        NR = 16
        GW = 16 + 4 * NR
        for r in range(4 * NR + 4):
            a(f"v_mov_b32 v{16+r}, 0")
        a("s_mov_b32 exec_hi, 0x00ffffff")
        a(f"buffer_load_dwordx4 {vr(GW,4)}, v1, {sr(S_GATE)}, 0 offen")
        for i in range(NR):
            a(f"s_add_u32 s50, s57, {896*i}")
            a(f"buffer_load_dwordx4 {vr(16+4*i,4)}, v1, {sr(S_X)}, s50 offen")
        a("s_mov_b64 exec, -1")
        Z = GW + 4
        for i in range(NR):
            a(f"v_mov_b32 v{Z+i}, 0")
        a("s_waitcnt vmcnt(0)")
        for r in range(4):
            for i in range(NR):
                a(f"v_dot2_f32_bf16 v{Z+i}, v{16+4*i+r}, v{GW+r}, v{Z+i}")
        a("s_nop 2")
        for sh in (1, 2, 4, 8):
            for i in range(NR):
                a(f"v_add_f32_dpp v{Z+i}, v{Z+i}, v{Z+i} row_shr:{sh} row_mask:0xf bank_mask:0xf bound_ctrl:0")
        for i in range(NR):
            a(f"v_add_f32_dpp v{Z+i}, v{Z+i}, v{Z+i} row_bcast:15 row_mask:0xa bank_mask:0xf")
        for i in range(NR):
            a(f"v_add_f32_dpp v{Z+i}, v{Z+i}, v{Z+i} row_bcast:31 row_mask:0xc bank_mask:0xf")

        def round_pairs():
            for i in range(0, NR, 2):
                a(f"v_cvt_pk_bf16_f32 v16, v{Z+i}, v{Z+i+1}")
                a(f"v_lshlrev_b32 v{Z+i}, 16, v16")
                a(f"v_and_b32 v{Z+i+1}, 0xffff0000, v16")
        round_pairs()
        for i in range(NR):
            a(f"v_mul_f32 v{Z+i}, {NLOG2E}, v{Z+i}")
        for i in range(NR):
            a(f"v_exp_f32 v{Z+i}, v{Z+i}")
        for i in range(NR):
            a(f"v_add_f32 v{Z+i}, 1.0, v{Z+i}")
        for i in range(NR):
            a(f"v_rcp_f32 v{Z+i}, v{Z+i}")
        round_pairs()
        a(f"""
        s_lshl_b32 s50, s56, 2
        s_add_u32 s50, s50, {WS_G}
        v_mov_b32 v16, 0
        s_mov_b32 exec_lo, 0
        s_mov_b32 exec_hi, 0x80000000
        """)
        for i in range(NR // 4):
            a(f"buffer_store_dwordx4 {vr(Z+4*i,4)}, v16, {sr(S_WS)}, s50 offen offset:{16*i} sc1")
        a("""
        s_mov_b64 exec, -1
        s_waitcnt vmcnt(0)
        s_barrier
        """)
        self.read_nonce(t0=188, t1=189)
        self.publish(f"""
        s_lshl_b32 s50, s2, 6
        s_add_u32 s50, s50, {WS_F}
        """, only_wave=0, t0=188, t1=189)
        if self.cfg.get("p1v", 1) == 2:
            self.publish(f"""
            s_lshl_b32 s50, s2, 6
            s_add_u32 s50, s50, {WS_F + 0x4000}
            """, only_wave=0, t0=188, t1=189)
        a("""
        s_barrier
        s_branch ATT_C_ENTRY
        """)
        a.label("GATE_H")
        a(f"s_setprio {self.cfg.get('hprio', 1)}")
        self.srds_first()
        self.srds_rest()
        if not self.cfg.get("l2pf", 1):
            a("s_barrier")
        if self.cfg.get("l2pf", 1):
            a(f"""
            s_sub_u32 s56, s{sIDX}, 28
            s_lshl_b32 s56, s56, 2
            s_add_u32 s56, s56, s{sW}
            s_sub_u32 s56, s56, 4           ; pw 0..15
            s_lshr_b32 s50, s{sXCD}, 1
            s_mul_i32 s57, s50, {512*896}
            s_mul_i32 s50, s56, 28672
            s_add_u32 s57, s57, s50         ; x slice
            v_and_b32 v2, 31, v0
            v_lshlrev_b32 v2, 4, v2
            v_lshrrev_b32 v3, 5, v0
            s_movk_i32 s50, 896
            v_mad_u32_u24 v4, v3, s50, v2   ; (r0,p0),(r0,p1)
            v_add_u32 v5, 1792, v4          ; (r0,p2),(r1,p0)
            v_add_u32 v6, 3584, v4          ; (r1,p1),(r1,p2)
            s_and_b32 s50, s{sXCD}, 1
            s_mul_i32 s58, s50, 384
            s_mul_i32 s50, s56, 5376
            s_add_u32 s58, s58, s50
            s_lshl_b32 s59, s56, 10
            """)
            n = [0]

            def dst():
                n[0] += 1
                return vr(16 + 4 * (n[0] % 32), 4)
            if self.cfg.get("l2pf") == 3:
                a("""
                s_movk_i32 s50, 2688
                v_mad_u32_u24 v7, v3, s50, v2
                """)
                for i in range(14):
                    a(f"s_add_u32 s50, s58, {i*16*5376}")
                    a(f"buffer_load_dwordx4 {dst()}, v7, {sr(S_WA)}, s50 offen")
            for sw in (S_WB,):
                for i in range(14):
                    a(f"s_add_u32 s50, s58, {i*16*5376}")
                    for k in range(3):
                        a(f"buffer_load_dwordx4 {dst()}, v{4+k}, {sr(sw)}, s50 offen")
                    if i == self.cfg.get("gbar", 13):
                        a("s_barrier")
            for sw in ((S_WOB, S_WOA) if self.cfg.get("l2pf") == 2 else ()):
                for i in range(25):
                    a(f"s_add_u32 s50, s59, {i*16384}")
                    a(f"buffer_load_dwordx4 {dst()}, v1, {sr(sw)}, s50 offen")
        self.read_nonce()
        self.poll_all(0)
        a("""
        s_barrier
        s_branch ATT_H_ENTRY
        """)


def build(cfg):
    g = Gen(cfg)
    body = g.build()
    head = f"""; {NAME}: one persistent launch (projections -> attention -> output projection + gated mix)
; @launch grid=(256,1,1) block=(512,1,1) lds={LDS_BYTES}
.amdgcn_target "amdgcn-amd-amdhsa--gfx950"
.text
.globl {NAME}_kernel
"""
    tail = f""".section .rodata,"a"
.p2align 6
.amdhsa_kernel {NAME}_kernel
  .amdhsa_next_free_vgpr 256
  .amdhsa_next_free_sgpr 100
  .amdhsa_accum_offset {256}
  .amdhsa_group_segment_fixed_size 0
  .amdhsa_kernarg_size 80
  .amdhsa_user_sgpr_count 2
  .amdhsa_user_sgpr_kernarg_segment_ptr 1
  .amdhsa_system_sgpr_workgroup_id_x 1
.end_amdhsa_kernel
"""
    if cfg.get("stamps"):
        head = "; STAMPS " + repr(g.stnames) + "\n" + head
    return head + body + tail, g.a.n_pads


if __name__ == "__main__":
    cfg = {}
    out = f"cdna_kernels/{NAME}.s"
    for arg in sys.argv[1:]:
        if arg.startswith("-o="):
            out = arg[3:]
        else:
            k, v = arg.split("=")
            cfg[k] = int(v)
    s, n = build(cfg)
    open(out, "w").write(s)
    print("wrote", out, len(s), "bytes;", n, "hazard pads")
```

```python
import math
import struct
import sys
import os

sys.path.insert(0, os.path.dirname(os.path.abspath(__file__)))
from asmlib import Asm

NAME = "gated_mix__mha_block__sliding_local_dilated__prompt"

TS = 28672
WS_Q = 0x000000
WS_K = 0x200000
WS_V = 0x400000
BR = 0x600000
WS_OA = 0xC00000
WS_OB = 0xE00000
WS_G = 0x1000000
WS_F = 0x1010000
WS_USED = 0x1030000
WS_DIAG = 0x2000000

X_BYTES = 2048 * 448 * 2
W_BYTES = 448 * 1344 * 2
WO_BYTES = 448 * 448 * 2

R1 = 0
R2 = 57344
R3 = 106496
LDS_BYTES = 163840
CB = R2 + 32768
QL = 155648
OAL = R2
SLOT_TS = (8, 0, 16)
SPIN_MAX = 40000
LSC = ''


def f32bits(x):
    return struct.unpack("<I", struct.pack("<f", x))[0]


SCALE_F32 = struct.unpack("<f", struct.pack("<f", 28 ** -0.5))[0]
QSCALE = f32bits(SCALE_F32 * math.log2(math.e))
NEG_BIG = f32bits(-1.0e30)
NLOG2E = f32bits(-math.log2(math.e))

S_X, S_WA, S_WB, S_WS, S_WOA, S_WOB, S_OUT, S_DBG, S_GATE = 4, 8, 12, 16, 20, 24, 28, 32, 36
KA0 = 68
sW, sXCD, sIDX, sRB, sCG, sH, sQB, sRB3, sCB3, sNONCE = 40, 41, 42, 43, 44, 45, 46, 47, 48, 49
sGI = 3
sBR = 95
RW = 114688


def sr(b):
    return f"s[{b}:{b+3}]"


class VmQ:
    def __init__(self):
        self.q = []

    def push(self, tag):
        self.q.append(tag)

    def wait_for(self, tag):
        idx = max([i for i, t in enumerate(self.q) if t == tag], default=-1)
        if idx < 0:
            return None
        n = len(self.q) - 1 - idx
        self.q = self.q[idx + 1:]
        return min(n, 63)

    def clear(self):
        self.q = []


def vr(b, n):
    return f"v[{b}:{b+n-1}]"


def ar(b, n):
    return f"a[{b}:{b+n-1}]"


def lane_mask(fn):
    m = 0
    for l in range(64):
        if fn(l):
            m |= 1 << l
    return m


class Gen:
    def __init__(self, cfg):
        self.cfg = cfg
        self.a = Asm()
        self.nlab = 0
        self.stnames = {}

    def lab(self, p):
        self.nlab += 1
        return f"{p}_{self.nlab}"

    def stamp(self, idx, name=None):
        if not self.cfg.get("stamps"):
            return
        if name is not None and self.cfg.get("ststage") and idx == 0 and name in ("c0", "b7", "b11", "pub1", "c14", "preS0", "T1"):
            return
        if name is not None:
            role = idx
            lst = self.stnames.setdefault(role, ["start"])
            idx = len(lst)
            lst.append(name)
            assert idx < 14
        self.a(f"""
        s_memtime s[{64+2*idx}:{65+2*idx}]
        """)
        if idx == 0:
            self.a("s_memrealtime s[98:99]")

    def stamp_flush(self, n, role):
        if not self.cfg.get("stamps"):
            return
        a = self.a
        skip = self.lab("STSKIP")
        a(f"""
        s_memrealtime s[96:97]
        s_cmp_lg_u32 s{sW}, {4*role}
        s_cbranch_scc1 {skip}
        s_waitcnt lgkmcnt(0)
        s_mov_b32 s{S_WS+2}, 0x2100000
        s_lshl_b32 s50, s2, 8
        s_add_u32 s50, s50, {WS_DIAG + role*128}
        v_mov_b32 v3, 0
        """)
        for i in range(2 * n):
            a(f"v_mov_b32 v4, s{64+i}")
            a(f"buffer_store_dword v4, v3, {sr(S_WS)}, s50 offen offset:{4*i}")
        for i, s in enumerate((98, 99, 96, 97)):
            a(f"v_mov_b32 v4, s{s}")
            a(f"buffer_store_dword v4, v3, {sr(S_WS)}, s50 offen offset:{112+4*i}")
        a.label(skip)

    def publish(self, off_sgpr_expr_lines, only_wave=4, t0=12, t1=13, balance=False):
        a = self.a
        skip, end = self.lab("PUB"), self.lab("PUBE")
        a(off_sgpr_expr_lines)
        a(f"""
        v_mov_b32 v{t0}, 0
        v_mov_b32 v{t1}, s{sNONCE}
        s_mov_b64 exec, 1
        s_cmp_lg_u32 s{sW}, {only_wave}
        s_cbranch_scc1 {skip}
        buffer_store_dword v{t1}, v{t0}, {sr(S_WS)}, s50 offen sc1
        """)
        if balance:
            a(f"s_branch {end}")
        a.label(skip)
        if balance:
            a(f"buffer_load_dword v{t1}, v{t0}, {sr(S_GATE)}, 0 offen")
            a.label(end)
        a("s_mov_b64 exec, -1")

    def poll_all(self, foff):
        a = self.a
        loop, done = self.lab("POLL"), self.lab("POLLD")
        a(f"""
        s_waitcnt vmcnt(0)
        s_cmp_lg_u32 s{sW}, 4
        s_cbranch_scc1 {done}
        s_mov_b32 s50, {WS_F + foff}
        s_mov_b32 s92, {WS_F + foff + 4096}
        s_mov_b32 s93, {WS_F + foff + 8192}
        s_mov_b32 s94, {WS_F + foff + 12288}
        v_lshlrev_b32 v11, 6, v0
        s_mov_b32 s51, 0
        """)
        if self.cfg.get("mpoll", 1):
            pend = (52, 54, 88, 90)
            offs = ("s50", "s92", "s93", "s94")
            for p in pend:
                a(f"s_mov_b64 s[{p}:{p+1}], -1")
            a.label(loop)
            for i, p in enumerate(pend):
                sk = self.lab("PSK")
                a(f"""
                s_mov_b64 exec, s[{p}:{p+1}]
                s_cbranch_execz {sk}
                buffer_load_dword v{12+i}, v11, {sr(S_WS)}, {offs[i]} offen sc1
                """)
                a.label(sk)
            a("s_waitcnt vmcnt(0)")
            for i, p in enumerate(pend):
                a(f"s_mov_b64 exec, s[{p}:{p+1}]")
                a(f"v_cmp_ne_u32 s[{p}:{p+1}], s{sNONCE}, v{12+i}")
            a(f"""
            s_mov_b64 exec, -1
            s_or_b64 vcc, s[52:53], s[54:55]
            s_or_b64 vcc, vcc, s[88:89]
            s_or_b64 vcc, vcc, s[90:91]
            s_cmp_eq_u64 vcc, 0
            s_cbranch_scc1 {done}
            s_sleep {self.cfg.get("sleep", 4)}
            s_add_u32 s51, s51, 1
            s_cmp_lt_u32 s51, {SPIN_MAX}
            s_cbranch_scc1 {loop}
            """)
            a.label(done)
            return
        a.label(loop)
        a(f"""
        buffer_load_dword v12, v11, {sr(S_WS)}, s50 offen sc1
        buffer_load_dword v13, v11, {sr(S_WS)}, s92 offen sc1
        buffer_load_dword v14, v11, {sr(S_WS)}, s93 offen sc1
        buffer_load_dword v15, v11, {sr(S_WS)}, s94 offen sc1
        s_waitcnt vmcnt(0)
        v_cmp_eq_u32 s[52:53], s{sNONCE}, v12
        v_cmp_eq_u32 s[54:55], s{sNONCE}, v13
        s_and_b64 s[52:53], s[52:53], s[54:55]
        v_cmp_eq_u32 s[54:55], s{sNONCE}, v14
        s_and_b64 s[52:53], s[52:53], s[54:55]
        v_cmp_eq_u32 s[54:55], s{sNONCE}, v15
        s_and_b64 s[52:53], s[52:53], s[54:55]
        s_cmp_eq_u64 s[52:53], -1
        s_cbranch_scc1 {done}
        s_sleep {self.cfg.get("sleep", 4)}
        s_add_u32 s51, s51, 1
        s_cmp_lt_u32 s51, {SPIN_MAX}
        s_cbranch_scc1 {loop}
        """)
        a.label(done)

    def poll_issue(self, kind, foff, q):
        a = self.a
        if kind == "all":
            a("v_lshlrev_b32 v11, 6, v0")
            for i in range(4):
                a(f"s_mov_b32 s50, {WS_F + foff + 4096*i}")
                a(f"buffer_load_dword v{140+i}, v11, {sr(S_WS)}, s50 offen sc1")
                q.push("poll")
        else:
            a(f"""
            s_lshr_b32 s50, s{sRB3}, 1
            s_lshl_b32 s50, s50, 10
            s_add_u32 s50, s50, {WS_F + foff}
            v_and_b32 v11, 15, v0
            v_lshlrev_b32 v11, 6, v11
            buffer_load_dword v140, v11, {sr(S_WS)}, s50 offen sc1
            """)
            q.push("poll")

    def poll_check(self, kind, foff):
        a = self.a
        ok = self.lab("PCK")
        a(f"v_cmp_eq_u32 s[52:53], s{sNONCE}, v140")
        if kind == "all":
            for i in range(1, 4):
                a(f"v_cmp_eq_u32 s[54:55], s{sNONCE}, v{140+i}")
                a("s_and_b64 s[52:53], s[52:53], s[54:55]")
        a("s_cmp_eq_u64 s[52:53], -1")
        a(f"s_cbranch_scc1 {ok}")
        if kind == "all":
            self.poll_all(foff)
        else:
            self.poll16(foff)
        a.label(ok)

    def poll16(self, foff, everyone=False):
        a = self.a
        loop, done = self.lab("POLL"), self.lab("POLLD")
        a(f"""
        s_waitcnt vmcnt(0)
        s_cmp_lg_u32 s{sW}, {"s%d" % sW if everyone else 4}
        s_cbranch_scc1 {done}
        s_cmp_ge_u32 s{sIDX}, 28
        s_cbranch_scc1 {done}
        s_lshr_b32 s50, s{sRB3}, 1
        s_lshl_b32 s50, s50, 10
        s_add_u32 s50, s50, {WS_F + foff}
        s_mov_b32 s51, 0
        v_and_b32 v13, 15, v0
        v_lshlrev_b32 v13, 6, v13
        """)
        a.label(loop)
        a(f"""
        buffer_load_dword v12, v13, {sr(S_WS)}, s50 offen sc1
        s_waitcnt vmcnt(0)
        v_cmp_eq_u32 s[52:53], s{sNONCE}, v12
        s_cmp_eq_u64 s[52:53], -1
        s_cbranch_scc1 {done}
        s_sleep {self.cfg.get("sleep", 4)}
        s_add_u32 s51, s51, 1
        s_cmp_lt_u32 s51, {SPIN_MAX}
        s_cbranch_scc1 {loop}
        """)
        a.label(done)

    def get_nonce(self):
        a = self.a
        loop, done, skip = self.lab("NON"), self.lab("NOND"), self.lab("NONS")
        a(f"""
        v_mov_b32 v12, 0
        s_cmp_lg_u32 s2, 0
        s_cbranch_scc1 {skip}
        s_cmp_lg_u32 s{sW}, 4
        s_cbranch_scc1 {skip}
        s_memrealtime s[50:51]
        s_waitcnt lgkmcnt(0)
        s_or_b32 s50, s50, 1
        v_mov_b32 v13, s50
        s_mov_b64 exec, 1
        buffer_store_dword v13, v12, {sr(S_DBG)}, 0 offen sc1
        s_mov_b64 exec, -1
        """)
        a.label(skip)

    def read_nonce(self, early=None, t0=12, t1=13):
        a = self.a
        loop, done = self.lab("NON"), self.lab("NOND")
        if early is not None:
            a(f"""
            v_readfirstlane_b32 s{sNONCE}, v{early}
            s_cmp_lg_u32 s{sNONCE}, 0
            s_cbranch_scc1 {done}
            """)
        a(f"""
        v_mov_b32 v{t0}, 0
        s_mov_b32 s51, 0
        """)
        a.label(loop)
        a(f"""
        buffer_load_dword v{t1}, v{t0}, {sr(S_DBG)}, 0 offen sc1
        s_waitcnt vmcnt(0)
        v_readfirstlane_b32 s{sNONCE}, v{t1}
        s_cmp_lg_u32 s{sNONCE}, 0
        s_cbranch_scc1 {done}
        s_sleep {self.cfg.get("sleep", 4)}
        s_add_u32 s51, s51, 1
        s_cmp_lt_u32 s51, {SPIN_MAX}
        s_cbranch_scc1 {loop}
        """)
        a.label(done)

    def max_tree(self, regs, dst, tmp):
        a = self.a
        h = len(regs) // 2
        for (rs, d) in ((regs[:h], dst), (regs[h:], tmp)):
            a(f"v_max3_f32 v{d}, v{rs[0]}, v{rs[1]}, v{rs[2]}")
            i = 3
            while i + 1 < len(rs):
                a(f"v_max3_f32 v{d}, v{d}, v{rs[i]}, v{rs[i+1]}")
                i += 2
            if i < len(rs):
                a(f"v_max_f32 v{d}, v{d}, v{rs[i]}")
        a(f"v_max_f32 v{dst}, v{dst}, v{tmp}")
        a(f"v_mov_b32 v{tmp}, v{dst}")
        a(f"v_permlane32_swap_b32 v{dst}, v{tmp}")
        a(f"v_max_f32 v{dst}, v{dst}, v{tmp}")

    def o_voff(self, dst, tmp):
        self.a(f"""
        v_and_b32 v{dst}, 31, v0
        v_lshlrev_b32 v{dst}, 4, v{dst}
        v_lshrrev_b32 v{tmp}, 5, v0
        s_and_b32 s50, s{sH}, 1
        s_cmp_eq_u32 s50, 0
        s_cselect_b32 s51, 8, 504
        s_cselect_b32 s50, 0, 1544
        v_mad_u32_u24 v{dst}, v{tmp}, s51, v{dst}
        v_add_u32 v{dst}, s50, v{dst}
        s_lshr_b32 s50, s{sH}, 1
        s_mul_i32 s50, s50, 3584
        v_add_u32 v{dst}, s50, v{dst}
        """)

    def finalize_o(self, O, T, voff, soff, q=None):
        a = self.a
        a(f"""
        v_mov_b32 v{T}, v{O+12}
        v_mov_b32 v{T+1}, v{O+12}
        v_permlane32_swap_b32 v{T}, v{T+1}
        v_rcp_f32 v{T}, v{T+1}
        """)
        for r in range(16):
            a(f"v_mul_f32 v{O+r}, v{T}, v{O+r}")
        for r in range(8):
            a(f"v_cvt_pk_bf16_f32 v{T+2+r}, v{O+2*r}, v{O+2*r+1}")
        for i in range(4):
            if i == 3:
                a("s_mov_b32 exec_hi, 0")
            a(f"buffer_store_dwordx2 {vr(T+2+2*i,2)}, v{voff}, {sr(S_WS)}, {soff} offen offset:{512*i} sc1")
            if q is not None:
                q.push("ost")
        a("s_mov_b64 exec, -1")

    def load_qk_frag(self, dst, voff, soff, q=None, tag=None, pfx="v"):
        a = self.a
        for i in range(4):
            if i == 3:
                a("s_mov_b32 exec_hi, 0")
            a(f"buffer_load_dwordx2 {pfx}[{dst+2*i}:{dst+2*i+1}], v{voff}, {sr(S_WS)}, {soff} offen offset:{512*i}{LSC}")
            if q is not None:
                q.push(tag)
        a("s_mov_b32 exec_hi, -1")

    def srd(self, base, pair, nbytes):
        self.a(f"""
        s_mov_b32 s{base}, s{pair}
        s_and_b32 s{base+1}, s{pair+1}, 0xffff
        s_mov_b32 s{base+2}, {nbytes}
        s_mov_b32 s{base+3}, 0x20000
        """)

    def srds_first(self):
        self.a("s_waitcnt lgkmcnt(0)")
        self.srd(S_X, KA0, X_BYTES)
        if self.cfg.get("p1v", 1) == 2:
            self.a(f"""
            s_cmp_eq_u32 s{sBR}, 0
            s_cselect_b32 s{S_WA}, s{KA0+2}, s{KA0+8}
            s_cselect_b32 s{S_WA+1}, s{KA0+3}, s{KA0+9}
            s_and_b32 s{S_WA+1}, s{S_WA+1}, 0xffff
            s_mov_b32 s{S_WA+2}, {W_BYTES}
            s_mov_b32 s{S_WA+3}, 0x20000
            """)
        else:
            self.srd(S_WA, KA0 + 2, W_BYTES)

    def srds_rest(self):
        self.srd(S_WOA, KA0 + 4, WO_BYTES)
        self.srd(S_WB, KA0 + 8, W_BYTES)
        self.srd(S_WOB, KA0 + 10, WO_BYTES)
        self.srd(S_GATE, KA0 + 12, 896)
        self.srd(S_OUT, KA0 + 14, X_BYTES)
        self.srd(S_DBG, KA0 + 16, 256)
        self.srd(S_WS, KA0 + 18, WS_USED)
        self.a(f"""
        s_lshl_b32 s{sH}, s{sXCD}, 1
        s_and_b32 s50, s{sIDX}, 1
        s_add_u32 s{sH}, s{sH}, s50
        s_lshr_b32 s{sQB}, s2, 4
        s_lshl_b32 s{sRB3}, s{sXCD}, 2
        s_and_b32 s50, s{sIDX}, 3
        s_add_u32 s{sRB3}, s{sRB3}, s50
        s_lshr_b32 s{sCB3}, s{sIDX}, 2
        """)

    def build(self):
        a, cfg = self.a, self.cfg
        a.raw(".p2align 8")
        a.raw(f".type {NAME}_kernel,@function")
        a.label(f"{NAME}_kernel")
        a("""
        s_cmp_ge_u32 s2, 256
        s_cbranch_scc1 K_END
        """)
        self.stamp(0)
        a(f"""
        s_load_dwordx16 s[{KA0}:{KA0+15}], s[0:1], 0
        s_load_dwordx4 s[{KA0+16}:{KA0+19}], s[0:1], 64
        v_lshrrev_b32 v1, 6, v0
        v_and_b32 v0, 63, v0
        v_readfirstlane_b32 s{sW}, v1
        s_and_b32 s{sXCD}, s2, 7
        s_lshr_b32 s{sIDX}, s2, 3
        v_lshlrev_b32 v1, 4, v0
        """)
        if cfg.get("codepf", 1):
            a(f"""
            s_getpc_b64 s[52:53]
            """)
            a.label("PCREF")
            a(f"""
            s_sub_u32 s52, s52, PCREF-{NAME}_kernel
            s_subb_u32 s53, s53, 0
            s_and_b32 s53, s53, 0xffff
            s_mov_b32 s54, K_CODE_END-{NAME}_kernel
            s_mov_b32 s55, 0x20000
            s_lshl_b32 s50, s{sIDX}, 2
            s_add_u32 s50, s50, s{sW}
            s_lshl_b32 s50, s50, 10
            s_cmp_ge_u32 s{sW}, 4
            s_cbranch_scc1 NOPF
            buffer_load_dwordx4 v[240:243], v1, s[52:55], s50 offen
            """)
            a.label("NOPF")
        if cfg.get("p1v", 1) == 2:
            a(f"""
            s_cmp_ge_u32 s{sIDX}, 14
            s_cselect_b32 s{sBR}, 1, 0
            s_cselect_b32 s51, 14, 0
            s_sub_u32 s51, s{sIDX}, s51
            s_lshr_b32 s50, s{sXCD}, 1
            s_lshl_b32 s50, s50, 2          ; 4p
            s_and_b32 s61, s{sXCD}, 1       ; s
            s_and_b32 s{sRB}, s51, 3
            s_add_u32 s{sRB}, s{sRB}, s50
            s_lshr_b32 s{sCG}, s51, 2
            s_lshl_b32 s62, s61, 2
            s_add_u32 s{sCG}, s{sCG}, s62
            s_lshl_b32 s62, s61, 1
            s_add_u32 s62, s62, s51
            s_add_u32 s62, s62, s50
            s_sub_u32 s62, s62, 12
            s_cmp_ge_u32 s51, 12
            s_cselect_b32 s{sRB}, s62, s{sRB}
            s_cselect_b32 s{sCG}, 3, s{sCG}
            s_lshl_b32 s{sGI}, s{sXCD}, 2
            s_add_u32 s{sGI}, s{sGI}, s{sIDX}
            s_sub_u32 s{sGI}, s{sGI}, 28
            s_cmp_ge_u32 s{sIDX}, 28
            s_cselect_b32 s{sGI}, s{sGI}, -1
            """)
        elif cfg.get("p1map", 0) == 0:
            a(f"""
            s_lshr_b32 s50, s{sXCD}, 1
            s_lshl_b32 s50, s50, 3          ; 8p
            s_and_b32 s51, s{sXCD}, 1       ; s
            s_and_b32 s{sRB}, s{sIDX}, 7
            s_add_u32 s{sRB}, s{sRB}, s50
            s_lshr_b32 s{sCG}, s{sIDX}, 3
            s_lshl_b32 s61, s51, 2
            s_add_u32 s{sCG}, s{sCG}, s61
            s_sub_u32 s62, s{sIDX}, 24
            s_add_u32 s62, s62, s61
            s_add_u32 s62, s62, s50
            s_cmp_ge_u32 s{sIDX}, 24
            s_cselect_b32 s{sRB}, s62, s{sRB}
            s_cselect_b32 s{sCG}, 3, s{sCG}
            s_lshl_b32 s{sGI}, s{sXCD}, 2
            s_add_u32 s{sGI}, s{sGI}, s{sIDX}
            s_sub_u32 s{sGI}, s{sGI}, 28
            s_cmp_ge_u32 s{sIDX}, 28
            s_cselect_b32 s{sGI}, s{sGI}, -1
            """)
        else:
            a(f"""
            s_and_b32 s50, s{sXCD}, 1
            s_lshl_b32 s50, s50, 4
            s_lshr_b32 s{sRB}, s{sIDX}, 1
            s_and_b32 s{sCG}, s{sXCD}, 6
            s_and_b32 s51, s{sIDX}, 1
            s_add_u32 s{sCG}, s{sCG}, s51
            s_add_u32 s{sGI}, s50, s{sIDX}
            s_sub_u32 s{sGI}, s{sGI}, 16
            s_cmp_ge_u32 s{sXCD}, 6
            s_cselect_b32 s{sRB}, s{sIDX}, s{sRB}
            s_cselect_b32 s{sCG}, 6, s{sCG}
            s_cselect_b32 s51, s{sIDX}, 0
            s_add_u32 s{sRB}, s{sRB}, s50
            s_cmp_ge_u32 s51, 16
            s_cselect_b32 s{sGI}, s{sGI}, -1
            """)
        a(f"""
        s_cmp_lt_u32 s{sW}, 4
        s_cbranch_scc1 COMPUTE
        s_cmp_lg_u32 s{sGI}, -1
        s_cbranch_scc1 GATE_H
        """)
        if cfg.get("p1v", 1) == 2:
            self.helper_p1b()
        else:
            self.helper_p1()
        self.helper_attn()
        a.label("COMPUTE")
        self.srds_first()
        self.srds_rest()
        if cfg.get("tlb", 0):
            a(f"""
            v_and_b32 v2, 15, v0
            v_lshlrev_b32 v2, 21, v2
            v_add_u32 v2, 0x1f0000, v2
            s_mov_b32 exec_lo, 0xff
            s_mov_b32 exec_hi, 0
            buffer_load_dword v244, v2, {sr(S_WS)}, 0 offen
            s_mov_b32 exec_lo, 3
            v_mul_u32_u24 v2, {X_BYTES - 4}, v0
            buffer_load_dword v245, v2, {sr(S_OUT)}, 0 offen
            s_mov_b64 exec, -1
            """)
        if cfg.get("pfall"):
            a(f"""
            s_lshl_b32 s56, s{sIDX}, 2
            s_add_u32 s56, s56, s{sW}
            v_and_b32 v2, 31, v0
            v_lshlrev_b32 v2, 4, v2
            v_lshrrev_b32 v3, 5, v0
            s_movk_i32 s50, 896
            v_mad_u32_u24 v4, v3, s50, v2
            v_add_u32 v5, 1792, v4
            v_add_u32 v6, 3584, v4
            s_and_b32 s50, s{sXCD}, 1
            s_mul_i32 s58, s50, 384
            s_mul_i32 s50, s56, 5376
            s_add_u32 s58, s58, s50
            """)
            for i in range(cfg.get("pfall")):
                a(f"s_add_u32 s50, s58, {i*128*5376}")
                for k in range(3):
                    a(f"buffer_load_dwordx4 v[244:247], v{4+k}, {sr(S_WB)}, s50 offen")
        a(f"""
        s_cmp_lg_u32 s{sGI}, -1
        s_cbranch_scc1 GATE_WG
        """)
        if cfg.get("p1v", 1) == 2:
            self.compute_p1b()
        else:
            self.compute_p1()
        self.compute_attn()
        self.gate_wg()
        self.fallback()
        a.label("K_END")
        a("s_endpgm")
        a.label("K_CODE_END")
        return a.render()

    def p1_plan(self):
        order = self.cfg.get("order", 1)
        steps = []
        if order == 1:
            for c in range(7):
                steps.append(([(0, 1), (0, 2)], [c]))
            for cs in ([0, 1], [2, 3], [4, 5], [6]):
                steps.append(([(0, 0)], cs))
            for c in range(7):
                steps.append(([(1, 0), (1, 1), (1, 2)], [c]))
        else:
            for br in range(2):
                for c in range(7):
                    steps.append(([(br, 0), (br, 1), (br, 2)], [c]))
        u = 0
        units = []
        for pcs, cs in steps:
            m = {}
            for c in cs:
                for pc in pcs:
                    m[(pc, c)] = u % 12
                    u += 1
            units.append(m)
        LIM = self.cfg.get("inflight", 8)
        sched = {i: [] for i in range(-1, len(steps))}
        nxt, used = 0, 0
        size = [len(m) for m in units]
        for b in range(-1, len(steps)):
            live = sum(size[max(b - self.cfg.get("lag", 1), 0):nxt])
            ahead = sum(size[b + 1:nxt])
            lim = LIM if b >= self.cfg.get("ramp", 2) else self.cfg.get("inflight0", 8)
            while nxt < len(steps) and live + size[nxt] <= 12 and ahead + size[nxt] <= lim:
                sched[b].append(nxt)
                live += size[nxt]
                ahead += size[nxt]
                nxt += 1
        assert nxt == len(steps)
        return steps, units, sched

    def compute_p1(self):
        a, cfg = self.a, self.cfg
        ACC = [64, 112]
        FR = 16
        XA, WA = 4, 8
        PK = 160
        a(f"""
        s_and_b32 s56, s{sW}, 1         ; rho
        s_lshr_b32 s57, s{sW}, 1        ; c
        v_and_b32 v2, 31, v0            ; r
        v_lshrrev_b32 v3, 5, v0         ; hf
        v_bfe_u32 v10, v0, 1, 3
        v_xor_b32 v10, v10, v3
        s_lshl_b32 s50, s56, 12
        v_lshlrev_b32 v11, 7, v2
        v_add_u32 v11, s50, v11
        """)
        for sp in range(4):
            a(f"v_xor_b32 v12, {2*sp}, v10")
            a(f"v_lshl_add_u32 v{XA+sp}, v12, 4, v11")
        a(f"""
        v_and_b32 v11, 3, v0
        v_lshlrev_b32 v11, 3, v11
        v_bfe_u32 v12, v0, 4, 1
        v_lshl_add_u32 v11, v12, 5, v11
        s_lshl_b32 s50, s57, 6
        v_add_u32 v11, s50, v11
        v_bfe_u32 v12, v0, 3, 1
        v_lshlrev_b32 v12, 6, v12
        v_xor_b32 v11, v11, v12
        v_bfe_u32 v12, v0, 2, 2
        v_lshl_add_u32 v12, v3, 3, v12
        v_lshl_add_u32 v11, v12, 7, v11
        v_add_u32 v{WA}, {R2}, v11
        v_add_u32 v{WA+1}, {R2+49152}, v11
        v_lshlrev_b32 v10, 3, v2
        v_lshl_add_u32 v10, v3, 8, v10
        v_lshlrev_b32 v11, 4, v2
        s_movk_i32 s50, 7168
        v_mad_u32_u24 v11, v3, s50, v11 ; v11 = hf*7168 + (l&31)*16  (V)
        s_lshl_b32 s58, s{sRB}, 1
        s_add_u32 s58, s58, s56         ; t
        s_mul_i32 s58, s58, {TS}
        s_lshl_b32 s59, s{sCG}, 12
        s_lshl_b32 s50, s57, 11
        s_add_u32 s59, s59, s50
        s_add_u32 s59, s59, s58
        s_lshl_b32 s60, s{sCG}, 10
        s_lshl_b32 s50, s57, 9
        s_add_u32 s60, s60, s50
        s_add_u32 s60, s60, s58         ; V soffset
        s_mov_b32 s61, {QSCALE}
        """)

        steps, units, sched = self.p1_plan()
        NBUF = cfg.get("nbuf", 4)
        A0 = FR + 16 * NBUF
        ACCR = {(0, 0): A0, (0, 1): A0 + 16, (0, 2): A0 + 32, (1, 0): A0 + 48, (1, 1): A0 + 64, (1, 2): A0 + 80}
        PK = A0 + 96
        assert PK + 24 <= 208
        NT0, NT1, NE = 208, 209, 210
        ks = []
        for j, (pcs, cs) in enumerate(steps):
            for c in cs:
                for sp in range(4):
                    ks.append((j, c, sp, c == cs[0] and sp == 0))
        NK = len(ks)

        def reads(n):
            j, c, sp, _ = ks[n]
            b = FR + 16 * (n % NBUF)
            out = [f"ds_read_b128 {vr(b,4)}, v{XA+sp} offset:{c*8192}"]
            for i, pc in enumerate(steps[j][0]):
                un = units[j][(pc, c)]
                for u in range(2):
                    off = (un % 6) * 8192 + (16 * sp + 4 * u) * 128
                    out.append(f"ds_read_b64_tr_b16 {vr(b+4+4*i+2*u,2)}, v{WA + un // 6} offset:{off}")
            return out

        def mfmas(n):
            j, c, sp, _ = ks[n]
            b = FR + 16 * (n % NBUF)
            X = vr(b, 4)
            out = []
            for i, pc in enumerate(steps[j][0]):
                W = vr(b + 4 + 4 * i, 4)
                d = vr(ACCR[pc], 16)
                cin = "0" if (c == 0 and sp == 0) else d
                if pc[1] < 2:
                    out.append(f"v_mfma_f32_32x32x16_bf16 {d}, {W}, {X}, {cin}")
                else:
                    out.append(f"v_mfma_f32_32x32x16_bf16 {d}, {X}, {W}, {cin}")
            return out

        def epilogue(pc):
            br, tile = pc
            acc = ACCR[pc]
            out = []
            if tile == 0:
                for r in range(8):
                    out.append(f"v_cvt_pk_bf16_f32 v{PK+r}, v{acc+2*r}, v{acc+2*r+1}")
                for r in range(8):
                    out.append(f"v_lshlrev_b32 v{acc+2*r}, 16, v{PK+r}")
                    out.append(f"v_and_b32 v{acc+2*r+1}, 0xffff0000, v{PK+r}")
                for r in range(16):
                    out.append(f"v_mul_f32 v{acc+r}, s61, v{acc+r}")
            for r in range(8):
                out.append(f"v_cvt_pk_bf16_f32 v{PK+8*tile+r}, v{acc+2*r}, v{acc+2*r+1}")
            if tile < 2:
                out.append(f"s_add_u32 s50, s59, {br*BR + (WS_Q if tile == 0 else WS_K)}")
                for gi in range(4):
                    out.append(f"buffer_store_dwordx2 {vr(PK+8*tile+2*gi,2)}, v10, {sr(S_WS)}, s50 offen offset:{512*gi} sc1")
            else:
                for f in range(2):
                    out.append(f"s_add_u32 s50, s60, {br*BR + WS_V + f*14336}")
                    out.append(f"buffer_store_dwordx4 {vr(PK+16+4*f,4)}, v11, {sr(S_WS)}, s50 offen sc1")
            if cfg.get("exp_nost") == 1:
                out = [x for x in out if not x.startswith("buffer_store")]
            if cfg.get("exp_nost") == 2:
                out = [x.replace(" sc1", "") for x in out]
            return out

        FB = cfg.get("flag1_bar", 13)
        pend = []
        state = dict(ip=0)
        nreads = [len(reads(n)) for n in range(NK)]

        def step_barrier(jb):
            out = []
            if jb == FB:
                out.append("s_waitcnt vmcnt(0)")
            out.append("s_barrier")
            if jb == 0:
                out.append(("ST", "c0"))
            if jb == FB:
                out.append(("PUB1",))
            if jb == 6:
                out.append(f"v_mov_b32 v{NT0}, 0")
                out.append(f"buffer_load_dword v{NE}, v{NT0}, {sr(S_DBG)}, 0 offen sc1")
            if jb in (7, 11):
                out.append(("ST", f"b{jb}"))
            return out

        def advance(n):
            out = []
            while state["ip"] < NK and state["ip"] < n + NBUF and sum(nreads[max(n, 0):state["ip"] + 1]) <= 15:
                m = state["ip"]
                if ks[m][3]:
                    if ks[m][0] == FB and pend:
                        break
                    out += step_barrier(ks[m][0])
                out += reads(m)
                state["ip"] += 1
            return out

        def emit(x):
            if isinstance(x, tuple):
                if x[0] == "ST":
                    self.stamp(0, x[1])
                else:
                    self.read_nonce(early=NE, t0=NT0, t1=NT1)
                    self.publish(f"""
                    s_lshl_b32 s50, s2, 6
                    s_add_u32 s50, s50, {WS_F}
                    """, only_wave=0, t0=NT0, t1=NT1)
                    self.stamp(0, "pub1")
            else:
                a(x)

        for x in advance(-1) + advance(0):
            emit(x)
        for n in range(NK):
            j = ks[n][0]
            assert state["ip"] > n
            a(f"s_waitcnt lgkmcnt({min(15, sum(nreads[n + 1:state['ip']]))})")
            mf = mfmas(n)
            hold = False
            if n >= 1 and steps[ks[n - 1][0]][0] != steps[j][0]:
                for pc in sorted(steps[ks[n - 1][0]][0], key=lambda p: -p[1]):
                    pend += epilogue(pc)
                hold = True
            extra = []
            if pend and not hold:
                k = cfg.get("epi_rate", 12) * len(mf)
                extra, pend = pend[:k], pend[k:]
            k = (len(extra) + len(mf) - 1) // len(mf)
            early = advance(n) if False else []
            for i, m in enumerate(mf):
                if not cfg.get("exp_nomf"):
                    a(m)
                for x in extra[i * k:(i + 1) * k]:
                    a(x)
            for x in advance(n + 1):
                if cfg.get("exp_nomf") and isinstance(x, str) and x.startswith("ds_read"):
                    continue
                emit(x)
        assert not pend
        self.stamp(0, "c14")
        for pc in steps[-1][0]:
            for x in epilogue(pc):
                a(x)
        a("s_waitcnt lgkmcnt(0)")
        a("s_barrier")
        self.stamp(0, "T1")

    def p1b_plan(self):
        steps = [([1, 2], [c]) for c in range(7)] + [([0], cs) for cs in ([0, 1], [2, 3], [4, 5], [6])]
        u = 0
        units = []
        for pcs, cs in steps:
            m = {}
            for c in cs:
                for pc in pcs:
                    m[(pc, c)] = u % 6
                    u += 1
            units.append(m)
        size = [len(m) for m in units]
        sched = {i: [] for i in range(-1, len(steps))}
        nxt = 0
        for b in range(-1, len(steps)):
            live = sum(size[max(b, 0):nxt])
            lim = 6 if b >= 0 else self.cfg.get("inflight0b", 4)
            while nxt < len(steps) and live + size[nxt] <= lim:
                sched[b].append(nxt)
                live += size[nxt]
                nxt += 1
        assert nxt == len(steps)
        return steps, units, sched

    def compute_p1b(self):
        a, cfg = self.a, self.cfg
        FR = 16
        XA, WA = 4, 12
        XA2 = 236
        PK = 160
        ACCR = {(1, 0): 64, (1, 1): 80, (2, 0): 96, (2, 1): 112, (0, 0): 128, (0, 1): 144}
        a(f"""
        s_and_b32 s56, s{sW}, 1         ; rp
        s_lshr_b32 s57, s{sW}, 1        ; c
        v_and_b32 v2, 31, v0
        v_lshrrev_b32 v3, 5, v0
        v_bfe_u32 v10, v0, 1, 3
        v_xor_b32 v10, v10, v3
        s_lshl_b32 s50, s56, 13
        v_lshlrev_b32 v11, 7, v2
        v_add_u32 v11, s50, v11
        """)
        for sp in range(4):
            a(f"v_xor_b32 v13, {2*sp}, v10")
            a(f"v_lshl_add_u32 v{XA+sp}, v13, 4, v11")
            a(f"v_add_u32 v{XA2+sp}, 0x10000, v{XA+sp}")
        a(f"""
        v_and_b32 v11, 3, v0
        v_lshlrev_b32 v11, 3, v11
        v_bfe_u32 v13, v0, 4, 1
        v_lshl_add_u32 v11, v13, 5, v11
        s_lshl_b32 s50, s57, 6
        v_add_u32 v11, s50, v11
        v_bfe_u32 v13, v0, 3, 1
        v_lshlrev_b32 v13, 6, v13
        v_xor_b32 v11, v11, v13
        v_bfe_u32 v13, v0, 2, 2
        v_lshl_add_u32 v13, v3, 3, v13
        v_lshl_add_u32 v11, v13, 7, v11
        v_add_u32 v{WA}, {RW}, v11
        v_lshlrev_b32 v10, 3, v2
        v_lshl_add_u32 v10, v3, 8, v10
        v_lshlrev_b32 v11, 4, v2
        s_movk_i32 s50, 7168
        v_mad_u32_u24 v11, v3, s50, v11 ; hf*7168 + (l&31)*16
        s_lshl_b32 s58, s{sRB}, 2
        s_lshl_b32 s50, s56, 1
        s_add_u32 s58, s58, s50         ; t0
        s_mul_i32 s58, s58, {TS}
        s_mul_i32 s50, s{sBR}, {BR}
        s_add_u32 s58, s58, s50
        s_lshl_b32 s59, s{sCG}, 12
        s_lshl_b32 s50, s57, 11
        s_add_u32 s59, s59, s50
        s_add_u32 s59, s59, s58         ; Q/K soffset
        s_lshl_b32 s60, s{sCG}, 10
        s_lshl_b32 s50, s57, 9
        s_add_u32 s60, s60, s50
        s_add_u32 s60, s60, s58         ; V soffset
        s_mov_b32 s61, {QSCALE}
        """)
        steps, units, sched = self.p1b_plan()
        ks = []
        for j, (pcs, cs) in enumerate(steps):
            for c in cs:
                for sp in range(4):
                    ks.append((j, c, sp, c == cs[0] and sp == 0))
        NK = len(ks)

        def reads(n):
            j, c, sp, _ = ks[n]
            b = FR + 16 * (n % 2)
            xa, off = (XA + sp, c * 16384) if c < 4 else (XA2 + sp, (c - 4) * 16384)
            out = [f"ds_read_b128 {vr(b,4)}, v{xa} offset:{off}", f"ds_read_b128 {vr(b+4,4)}, v{xa} offset:{off+4096}"]
            for i, pc in enumerate(steps[j][0]):
                un = units[j][(pc, c)]
                for u in range(2):
                    out.append(f"ds_read_b64_tr_b16 {vr(b+8+4*i+2*u,2)}, v{WA} offset:{un*8192 + (16*sp+4*u)*128}")
            return out

        def mfmas(n):
            j, c, sp, _ = ks[n]
            b = FR + 16 * (n % 2)
            out = []
            for i, pc in enumerate(steps[j][0]):
                W = vr(b + 8 + 4 * i, 4)
                for rho in range(2):
                    X = vr(b + 4 * rho, 4)
                    d = vr(ACCR[(pc, rho)], 16)
                    cin = "0" if (c == 0 and sp == 0) else d
                    if pc < 2:
                        out.append(f"v_mfma_f32_32x32x16_bf16 {d}, {W}, {X}, {cin}")
                    else:
                        out.append(f"v_mfma_f32_32x32x16_bf16 {d}, {X}, {W}, {cin}")
            return out

        def epilogue(pc, rho):
            acc = ACCR[(pc, rho)]
            pk = PK + 8 * ((2 * pc + rho) % 3)
            out = []
            if pc == 0:
                for r in range(8):
                    out.append(f"v_cvt_pk_bf16_f32 v{pk+r}, v{acc+2*r}, v{acc+2*r+1}")
                for r in range(8):
                    out.append(f"v_lshlrev_b32 v{acc+2*r}, 16, v{pk+r}")
                    out.append(f"v_and_b32 v{acc+2*r+1}, 0xffff0000, v{pk+r}")
                for r in range(16):
                    out.append(f"v_mul_f32 v{acc+r}, s61, v{acc+r}")
            for r in range(8):
                out.append(f"v_cvt_pk_bf16_f32 v{pk+r}, v{acc+2*r}, v{acc+2*r+1}")
            if pc < 2:
                out.append(f"s_add_u32 s50, s59, {(WS_Q if pc == 0 else WS_K) + rho*TS}")
                for gi in range(4):
                    out.append(f"buffer_store_dwordx2 {vr(pk+2*gi,2)}, v10, {sr(S_WS)}, s50 offen offset:{512*gi} sc1")
            else:
                for f in range(2):
                    out.append(f"s_add_u32 s50, s60, {WS_V + f*14336 + rho*TS}")
                    out.append(f"buffer_store_dwordx4 {vr(pk+4*f,4)}, v11, {sr(S_WS)}, s50 offen sc1")
            return out

        pend = []
        a("s_barrier")
        self.stamp(0, "c0")
        for x in reads(0):
            a(x)
        for n in range(NK):
            j = ks[n][0]
            nxt = reads(n + 1) if n + 1 < NK else []
            first = n + 1 < NK and ks[n + 1][3]
            if first:
                jb = ks[n + 1][0]
                a("s_waitcnt lgkmcnt(0)")
                a("s_barrier")
                if jb == 4:
                    a("v_mov_b32 v188, 0")
                    a(f"buffer_load_dword v190, v188, {sr(S_DBG)}, 0 offen sc1")
                if jb == 7:
                    self.stamp(0, "b7")
                    a("s_waitcnt vmcnt(0)")
                    self.read_nonce(early=190, t0=188, t1=189)
                    self.publish(f"""
                    s_xor_b32 s51, s{sBR}, 1
                    s_lshl_b32 s51, s51, 14
                    s_lshl_b32 s50, s2, 6
                    s_add_u32 s50, s50, s51
                    s_add_u32 s50, s50, {WS_F}
                    """, only_wave=0, t0=188, t1=189)
                fill = list(nxt)
            else:
                for x in nxt:
                    a(x)
                a(f"s_waitcnt lgkmcnt({len(nxt)})")
                fill = []
            mf = mfmas(n)
            hold = False
            if n >= 1 and steps[ks[n - 1][0]][0] != steps[j][0]:
                for pc in (2, 1):
                    for rho in range(2):
                        pend += epilogue(pc, rho)
                hold = True
            extra = []
            if pend and not hold:
                k = cfg.get("epi_rate_b", 5) * len(mf)
                extra, pend = pend[:k], pend[k:]
            fill = fill + extra
            k = (len(fill) + len(mf) - 1) // len(mf)
            for i, m in enumerate(mf):
                a(m)
                for x in fill[i * k:(i + 1) * k]:
                    a(x)
        assert not pend
        self.stamp(0, "c14")
        for rho in range(2):
            for x in epilogue(0, rho):
                a(x)
        a("s_waitcnt vmcnt(0) lgkmcnt(0)")
        a("s_barrier")
        self.publish(f"""
        s_lshl_b32 s51, s{sBR}, 14
        s_lshl_b32 s50, s2, 6
        s_add_u32 s50, s50, s51
        s_add_u32 s50, s50, {WS_F}
        """, only_wave=0, t0=188, t1=189)
        self.stamp(0, "pub1")
        a("s_barrier")
        self.stamp(0, "T1")

    def helper_p1b(self):
        a, cfg = self.a, self.cfg
        a.label("HELPER")
        a(f"""
        s_setprio {cfg.get('hprio', 1)}
        s_sub_u32 s56, s{sW}, 4         ; j
        v_lshrrev_b32 v2, 3, v0
        v_and_b32 v3, 7, v0
        v_lshrrev_b32 v4, 4, v0
        v_xor_b32 v8, v3, v4
        v_lshlrev_b32 v8, 4, v8
        s_movk_i32 s50, 896
        v_mad_u32_u24 v5, v2, s50, v8
        v_xor_b32 v6, 64, v5
        v_and_b32 v4, 1, v4
        v_lshlrev_b32 v4, 2, v4
        v_xor_b32 v8, v3, v4
        v_lshlrev_b32 v8, 4, v8
        s_movk_i32 s50, 2688
        v_mad_u32_u24 v7, v2, s50, v8
        s_lshl_b32 s57, s{sRB}, 7
        s_lshl_b32 s50, s56, 5
        s_add_u32 s57, s57, s50
        s_mul_i32 s57, s57, 896
        s_lshl_b32 s58, s{sCG}, 7
        s_mul_i32 s50, s56, 43008
        s_add_u32 s58, s58, s50         ; W base
        s_lshl_b32 s59, s56, 11
        s_lshl_b32 s60, s56, 12
        """)
        self.srds_first()
        q = VmQ()
        self.hq = q
        steps, units, sched = self.p1b_plan()
        xdone = set()

        def issue(j):
            pcs, cs = steps[j]
            for c in cs:
                if c not in xdone:
                    xdone.add(c)
                    for i in range(4):
                        a(f"s_add_u32 s50, s57, {8*i*896 + 128*c}")
                        a(f"s_add_u32 m0, s60, {c*16384 + 8*i*128}")
                        a(f"buffer_load_dwordx4 v{5+(i&1)}, {sr(S_X)}, s50 offen lds")
                        q.push(("c", j))
                for part in pcs:
                    un = units[j][(part, c)]
                    for ii in range(2):
                        a(f"s_add_u32 s50, s58, {part*896 + (64*c + 8*ii)*2688}")
                        a(f"s_add_u32 m0, s59, {RW + un*8192 + 8*ii*128}")
                        a(f"buffer_load_dwordx4 v7, {sr(S_WA)}, s50 offen lds")
                        q.push(("c", j))

        for j in sched[-1]:
            issue(j)
        self.srds_rest()
        self.get_nonce()
        for b in range(len(steps)):
            n = q.wait_for(("c", b))
            if n is not None:
                a(f"s_waitcnt vmcnt({n})")
            a("s_barrier")
            for j in sched[b]:
                issue(j)
            if b == 6:
                a(f"v_mov_b32 v12, 0")
                a(f"buffer_load_dword v14, v12, {sr(S_DBG)}, 0 offen sc1")
                q.push("non")
        a("s_barrier")
        self.stamp(1, "poll1")
        a("s_waitcnt vmcnt(0)")
        self.read_nonce(early=14)
        self.poll_all(0)
        self.stamp(1, "got1")
        q.clear()
        a("s_barrier")

    def attn_setup_and_q(self):
        a = self.a
        Q = 192
        a(f"""
        v_and_b32 v224, 31, v0
        v_lshrrev_b32 v225, 5, v0
        v_lshlrev_b32 v224, 3, v224
        v_lshl_add_u32 v224, v225, 8, v224
        v_add_u32 v225, {QL}, v224
        """)

    def compute_attn(self):
        a, cfg = self.a, self.cfg
        Q, O, S, P, NM, T, KV = 192, 48, 112, 144, 152, 156, 16
        KA, VA = 226, 232
        self.regs = dict(Q=Q, O=O, S=S, P=P, NM=NM, T=T, KV=KV)
        a.label("ATT_C_ENTRY")
        self.attn_setup_and_q()
        a(f"s_lshl_b32 s50, s{sW}, 13")
        for sl in range(3):
            for kk in range(2):
                a(f"v_add_u32 v{KA+2*sl+kk}, s50, v224")
                a(f"v_add_u32 v{KA+2*sl+kk}, {R2 + (SLOT_TS[sl]+kk)*4096}, v{KA+2*sl+kk}")
        a(f"""
        v_add_u32 v{VA}, s50, v1
        v_add_u32 v{VA+1}, {R2 + 65536 + 2048}, v{VA}
        v_add_u32 v{VA}, {R2 + 2048}, v{VA}
        """)
        self.o_voff(2, 3)
        a(f"""
        s_lshl_b32 s56, s{sQB}, 2
        s_add_u32 s56, s56, s{sW}
        s_mul_i32 s56, s56, {TS}
        s_add_u32 s56, s56, {WS_OA}
        """)

        def kv_reads(t):
            k, kk = divmod(t, 2)
            sl = k % 3
            b = KV + 16 * (t % 2)
            ts = SLOT_TS[sl] + kk
            out = []
            for f in range(2):
                out.append(f"ds_read2_b64 {vr(b+4*f,4)}, v{KA+2*sl+kk} offset0:{128*f} offset1:{128*f+64}")
            for f in range(2):
                vb, off = (VA, ts * 4096) if ts < 16 else (VA + 1, (ts - 16) * 4096)
                out.append(f"ds_read_b128 {vr(b+8+4*f,4)}, v{vb} offset:{off + 1024*f}")
            return out

        def qk(u, buf):
            t, j = divmod(u, 4)
            b = KV + 16 * (t % 2)
            d = vr(S + 16 * buf, 16)
            return (f"v_mfma_f32_32x32x16_bf16 {d}, {vr(b,4)}, {vr(Q+8*j,4)}, 0",
                    f"v_mfma_f32_32x32x16_bf16 {d}, {vr(b+4,4)}, {vr(Q+8*j+4,4)}, {d}")

        def pv(u, half):
            t, j = divmod(u, 4)
            b = KV + 16 * (t % 2)
            d = vr(O + 16 * j, 16)
            c = "0" if (t == 0 and half == 0) else d
            return f"v_mfma_f32_32x32x16_bf16 {d}, {vr(b+8+4*half,4)}, {vr(P+4*half,4)}, {c}"

        def part_write(j):
            out = ["s_mov_b32 exec_lo, 0", f"v_mov_b32 v{O+16*j+13}, v{NM+j}", "s_mov_b32 exec_lo, -1"]
            for qd in range(4):
                out.append(f"ds_write_b128 v{PW}, {vr(O+16*j+4*qd,4)} offset:{j*4096 + qd*1024}")
            return out
        self.part_write = part_write
        PW = 234
        a(f"s_lshl_b32 s50, s{sW}, 14")
        a(f"v_add_u32 v{PW}, s50, v1")
        a(f"v_add_u32 v{PW}, {CB}, v{PW}")
        if cfg.get("p1v", 1) != 2:
            a("s_waitcnt vmcnt(0)")
        self.stamp(0, "preS0")
        a("s_barrier")
        self.stamp(0, "S0")
        if cfg.get("p1v", 1) != 2:
            self.publish(f"""
            s_lshl_b32 s50, s2, 6
            s_add_u32 s50, s50, {WS_F + 0x4000}
            """, only_wave=0, t0=188, t1=189)
        F2B = -1
        a(f"v_add_u32 v3, 4096, v225")
        for j in range(4):
            for f in range(2):
                o0 = (j & 1) * 256 + 128 * f
                if o0 + 64 > 255:
                    a(f"v_add_u32 v4, {j*2048}, v225")
                    a(f"ds_read2_b64 {vr(Q+8*j+4*f,4)}, v4 offset0:{128*f} offset1:{128*f+64}")
                else:
                    a(f"ds_read2_b64 {vr(Q+8*j+4*f,4)}, v{225 if j < 2 else 3} offset0:{o0} offset1:{o0+64}")
        for x in kv_reads(0):
            a(x)
        a("s_waitcnt lgkmcnt(0)")
        a("s_mov_b32 exec_lo, 0")
        for j in range(4):
            a(f"v_mov_b32 v{Q+8*j+6}, 0")
            a(f"v_mov_b32 v{Q+8*j+7}, 0")
        a("s_mov_b32 exec_lo, -1")
        scr = [S, S + 16, O, O + 16]
        for j in range(4):
            d = vr(scr[j], 16)
            a(f"v_mfma_f32_32x32x16_bf16 {d}, {vr(KV,4)}, {vr(Q+8*j,4)}, 0")
            a(f"v_mfma_f32_32x32x16_bf16 {d}, {vr(KV+4,4)}, {vr(Q+8*j+4,4)}, {d}")
        for j in range(4):
            self.max_tree([scr[j] + r for r in range(16)], T + 2 * j, T + 2 * j + 1)
        for j in range(4):
            a(f"v_add_f32 v{T+2*j}, {f32bits(40.0)}, v{T+2*j}")
        for j in range(4):
            a(f"v_cvt_pk_bf16_f32 v{T+2*j+1}, -v{T+2*j}, 0")
        a("s_mov_b32 exec_lo, 0")
        for j in range(4):
            a(f"v_mov_b32 v{Q+8*j+6}, v{T+2*j+1}")
        a("s_mov_b32 exec_lo, -1")
        for j in range(4):
            a(f"v_lshlrev_b32 v{NM+j}, 16, v{T+2*j+1}")
        self.stamp(0, "att0")
        m0, m1 = qk(0, 0)
        a(m0)
        a(m1)
        for u in range(64):
            t, j = divmod(u, 4)
            sb = S + 16 * (u & 1)
            slots = [None] * 4
            post = [[] for _ in range(4)]
            if u + 1 < 64:
                slots[0], slots[1] = qk(u + 1, (u + 1) & 1)
            if u >= 1:
                slots[2] = pv(u - 1, 1)
            slots[3] = pv(u, 0)
            if t + 1 < 16:
                rd = kv_reads(t + 1)
                if j == 0 and t % 2 == 1:
                    if t == 2 * F2B - 1:
                        post[2].append("s_waitcnt vmcnt(0)")
                    post[2].append("s_barrier")
                    if cfg.get("ststage"):
                        post[2].append(("ST", f"S{(t+1)//2}"))
                    if t == 2 * F2B - 1:
                        post[2].append("PUB2")
                if j == 0:
                    post[3].append(rd[0])
                if j == 1:
                    post[0].append(rd[1])
                    post[1].append(rd[2])
                    post[2].append(rd[3])
                if j == 2:
                    post[3].append("s_waitcnt lgkmcnt(0)")
            if u >= 62:
                pwl = part_write(u - 62)
                post[0] += pwl[:4]
                post[1] += pwl[4:5]
                post[2] += pwl[5:6]
                post[3] += pwl[6:7]
            for g in range(4):
                r = 4 * g
                a(f"v_exp_f32 v{sb+r}, v{sb+r}")
                a(f"v_exp_f32 v{sb+r+1}, v{sb+r+1}")
                if slots[g]:
                    a(slots[g])
                for x in post[g]:
                    if isinstance(x, tuple):
                        self.stamp(0, x[1])
                    elif x == "PUB2":
                        self.publish(f"""
                        s_lshl_b32 s50, s2, 6
                        s_add_u32 s50, s50, {WS_F + 0x4000}
                        """, only_wave=0, t0=188, t1=189)
                    else:
                        a(x)
                a(f"v_exp_f32 v{sb+r+2}, v{sb+r+2}")
                a(f"v_exp_f32 v{sb+r+3}, v{sb+r+3}")
                a(f"v_cvt_pk_bf16_f32 v{P+2*g}, v{sb+r}, v{sb+r+1}")
                a(f"v_cvt_pk_bf16_f32 v{P+2*g+1}, v{sb+r+2}, v{sb+r+3}")
        a(pv(63, 1))
        self.stamp(0, "attE")
        for x in part_write(2) + part_write(3):
            a(x)
        a(f"""
        s_mov_b32 s50, {f32bits(2.0**-60)}
        s_mov_b32 s51, {f32bits(2.0**64)}
        s_mov_b64 s[52:53], -1
        """)
        for j in range(4):
            a(f"v_cmp_lt_f32 vcc, s50, v{O+16*j+12}")
            a("s_and_b64 s[52:53], s[52:53], vcc")
            a(f"v_cmp_gt_f32 vcc, s51, v{O+16*j+12}")
            a("s_and_b64 s[52:53], s[52:53], vcc")
        a("""
        s_cmp_eq_u32 s53, -1
        s_cbranch_scc0 FALLBACK
        """)
        a.label("COMBINE")
        a(f"""
        s_lshl_b32 s50, s{sW}, 12
        v_add_u32 v5, s50, v1
        v_add_u32 v5, {CB}, v5
        s_waitcnt lgkmcnt(0)
        s_barrier
        """)
        self.stamp(0, "C1")
        for k in range(4):
            for qd in range(4):
                a(f"ds_read_b128 {vr(O+16*k+4*qd,4)}, v5 offset:{k*16384 + qd*1024}")
        a("s_waitcnt lgkmcnt(0)")
        for k in range(4):
            a(f"v_mov_b32 v{T+2*k}, v{O+16*k+13}")
            a(f"v_mov_b32 v{T+2*k+1}, v{O+16*k+13}")
        for k in range(4):
            a(f"v_permlane32_swap_b32 v{T+2*k}, v{T+2*k+1}")
        a(f"v_min3_f32 v{T}, v{T+1}, v{T+3}, v{T+5}")
        a(f"v_min_f32 v{T}, v{T}, v{T+7}")
        for k in range(4):
            a(f"v_sub_f32 v{T+2*k+1}, v{T}, v{T+2*k+1}")
        for k in range(4):
            a(f"v_exp_f32 v{T+2*k+1}, v{T+2*k+1}")
        for r in range(16):
            a(f"v_mul_f32 v{O+r}, v{T+1}, v{O+r}")
        for k in range(1, 4):
            for r in range(16):
                a(f"v_fmac_f32 v{O+r}, v{T+2*k+1}, v{O+16*k+r}")
        self.finalize_o(O, T + 8, 2, "s56")
        a(f"""
        v_mov_b32 v188, {QL + 1792}
        v_mov_b32 v189, 1
        s_mov_b64 exec, 1
        ds_add_u32 v188, v189
        s_mov_b64 exec, -1
        """)
        a(f"""
        s_lshl_b32 s50, s{sQB}, 2
        s_add_u32 s50, s50, s{sW}
        s_lshl_b32 s50, s50, 4
        s_add_u32 s50, s50, s{sH}
        s_lshl_b32 s50, s50, 6
        s_add_u32 s50, s50, {WS_F + 0x10000}
        v_mov_b32 v188, 0
        v_mov_b32 v189, s{sNONCE}
        s_waitcnt vmcnt(0)
        s_mov_b64 exec, 1
        buffer_store_dword v189, v188, {sr(S_WS)}, s50 offen sc1
        s_mov_b64 exec, -1
        """)
        self.stamp(0, "pub3")
        a(f"s_cmp_ge_u32 s{sIDX}, 28")
        a("s_cbranch_scc1 C_DONE")
        a("s_barrier")
        self.oa_dma()
        a("s_waitcnt vmcnt(0)")
        a("s_barrier")
        a.label("C_DONE")
        self.stamp(0, "end")
        self.stamp_flush(14, 0)
        a("s_endpgm")

    def oa_dma(self):
        a = self.a
        a(f"""
        s_lshl_b32 s50, s{sRB3}, 1
        s_mul_i32 s50, s50, {TS}
        s_mul_i32 s51, s{sW}, 7168
        s_add_u32 s50, s50, s51
        s_add_u32 s50, s50, {WS_OA}
        s_add_u32 s52, s50, 4096
        s_add_u32 m0, s51, {OAL}
        """)
        for i in range(7):
            if i == 4:
                a(f"s_add_u32 m0, s51, {OAL + 4096}")
            a(f"buffer_load_dwordx4 v1, {sr(S_WS)}, {'s50' if i < 4 else 's52'} offen offset:{(i%4)*1024}{LSC} lds")

    def fallback(self):
        a = self.a
        R = self.regs
        Q, O, S, P, NM, T, KV = R["Q"], R["O"], R["S"], R["P"], R["NM"], R["T"], R["KV"]
        a.label("FALLBACK")
        a("s_nop 15")
        a(f"""
        v_and_b32 v5, 31, v0
        v_lshrrev_b32 v6, 5, v0
        v_lshlrev_b32 v5, 4, v5
        s_movk_i32 s50, 7168
        v_mad_u32_u24 v5, v6, s50, v5          ; V voffset
        s_lshl_b32 s57, s{sW}, 4
        s_mul_i32 s57, s57, {TS}
        s_mul_i32 s50, s{sH}, 1792
        s_add_u32 s58, s57, s50
        s_add_u32 s58, s58, {WS_K}
        s_mul_i32 s50, s{sH}, 448
        s_add_u32 s59, s57, s50
        s_add_u32 s59, s59, {WS_V}
        s_mov_b32 exec_lo, 0
        """)
        for j in range(4):
            a(f"v_mov_b32 v{Q+8*j+6}, 0")
        a(f"v_mov_b32 v{KV+6}, 0")
        a(f"v_mov_b32 v{KV+7}, 0")
        a("s_mov_b32 exec_lo, -1")
        for r in range(8):
            a(f"v_mov_b32 v{KV+8+r}, 0")
        a("s_mov_b32 exec_lo, 0x10000000")
        a("s_mov_b32 exec_hi, 0x10000000")
        for r in range(8):
            a(f"v_mov_b32 v{KV+8+r}, 0x3f803f80")
        a("s_mov_b64 exec, -1")
        for j in range(4):
            a(f"v_mov_b32 v{NM+j}, {f32bits(3.0e38)}")
            for r in range(16):
                a(f"v_mov_b32 v{O+16*j+r}, 0")
        a("s_mov_b32 s57, 0")
        a.label("FB_LOOP")
        self.load_qk_frag(KV, 224, "s58")
        a(f"""
        s_add_u32 s50, s59, 14336
        s_mov_b32 exec_lo, 0x0fffffff
        s_mov_b32 exec_hi, 0x0fffffff
        buffer_load_dwordx4 {vr(KV+8,4)}, v5, {sr(S_WS)}, s59 offen{LSC}
        buffer_load_dwordx4 {vr(KV+12,4)}, v5, {sr(S_WS)}, s50 offen{LSC}
        s_mov_b64 exec, -1
        s_waitcnt vmcnt(0)
        """)
        for j in range(4):
            d = vr(S, 16)
            a(f"v_mfma_f32_32x32x16_bf16 {d}, {vr(KV,4)}, {vr(Q+8*j,4)}, 0")
            a(f"v_mfma_f32_32x32x16_bf16 {d}, {vr(KV+4,4)}, {vr(Q+8*j+4,4)}, {d}")
            self.max_tree([S + r for r in range(16)], T, T + 1)
            a(f"v_min_f32 v{T+1}, v{NM+j}, -v{T}")
            a(f"v_sub_f32 v{T+2}, v{T+1}, v{NM+j}")
            a(f"v_exp_f32 v{T+2}, v{T+2}")
            a(f"v_mov_b32 v{NM+j}, v{T+1}")
            for r in range(16):
                a(f"v_add_f32 v{S+r}, v{S+r}, v{T+1}")
            for r in range(16):
                a(f"v_exp_f32 v{S+r}, v{S+r}")
            for r in range(16):
                a(f"v_mul_f32 v{O+16*j+r}, v{T+2}, v{O+16*j+r}")
            for r in range(8):
                a(f"v_cvt_pk_bf16_f32 v{P+r}, v{S+2*r}, v{S+2*r+1}")
            o = vr(O + 16 * j, 16)
            a(f"v_mfma_f32_32x32x16_bf16 {o}, {vr(KV+8,4)}, {vr(P,4)}, {o}")
            a(f"v_mfma_f32_32x32x16_bf16 {o}, {vr(KV+12,4)}, {vr(P+4,4)}, {o}")
        a(f"""
        s_nop 15
        s_add_u32 s58, s58, {TS}
        s_add_u32 s59, s59, {TS}
        s_add_u32 s57, s57, 1
        s_cmp_lt_u32 s57, 16
        s_cbranch_scc1 FB_LOOP
        """)
        for j in range(4):
            for x in self.part_write(j):
                a(x)
        a("s_branch COMBINE")

    def helper_p1(self):
        a, cfg = self.a, self.cfg
        a.label("HELPER")
        a(f"s_setprio {cfg.get('hprio', 1)}")
        a(f"""
        s_sub_u32 s56, s{sW}, 4         ; j
        v_lshrrev_b32 v2, 3, v0
        v_and_b32 v3, 7, v0
        v_lshrrev_b32 v4, 4, v0
        v_xor_b32 v8, v3, v4
        v_lshlrev_b32 v8, 4, v8
        s_movk_i32 s50, 896
        v_mad_u32_u24 v5, v2, s50, v8
        v_xor_b32 v6, 64, v5
        v_and_b32 v4, 1, v4
        v_lshlrev_b32 v4, 2, v4
        v_xor_b32 v8, v3, v4
        v_lshlrev_b32 v8, 4, v8
        s_movk_i32 s50, 2688
        v_mad_u32_u24 v7, v2, s50, v8   ; W voff
        s_lshl_b32 s57, s{sRB}, 6
        s_lshl_b32 s50, s56, 4
        s_add_u32 s57, s57, s50
        s_mul_i32 s57, s57, 896
        s_lshl_b32 s58, s{sCG}, 7
        s_mul_i32 s50, s56, 43008
        s_add_u32 s58, s58, s50         ; W base
        s_lshl_b32 s59, s56, 11
        """)
        self.srds_first()
        q = VmQ()
        self.hq = q

        steps, units, sched = self.p1_plan()
        xdone = set()

        def issue(j):
            pcs, cs = steps[j]
            for c in cs:
                if c not in xdone:
                    xdone.add(c)
                    for i in range(2):
                        a(f"s_add_u32 s50, s57, {8*i*896 + 128*c}")
                        a(f"s_add_u32 m0, s59, {R1 + c*8192 + 8*i*128}")
                        a(f"buffer_load_dwordx4 v{5+i}, {sr(S_X)}, s50 offen lds")
                        q.push(("c", j))
                for (br, part) in pcs:
                    un = units[j][((br, part), c)]
                    for ii in range(2):
                        a(f"s_add_u32 s50, s58, {part*896 + (64*c + 8*ii)*2688}")
                        a(f"s_add_u32 m0, s59, {R2 + un*8192 + 8*ii*128}")
                        a(f"buffer_load_dwordx4 v7, {sr(S_WA if (br == 0 or cfg.get('exp_wa')) else S_WB)}, s50 offen lds")
                        q.push(("c", j))

        for j in sched[-1]:
            issue(j)
        self.srds_rest()
        self.get_nonce()
        for b in range(len(steps)):
            n = q.wait_for(("c", b))
            if n is not None:
                a(f"s_waitcnt vmcnt({n})")
            a("s_barrier")
            for j in sched[b]:
                issue(j)
            if b == 9:
                a(f"v_mov_b32 v12, 0")
                a(f"buffer_load_dword v14, v12, {sr(S_DBG)}, 0 offen sc1")
                q.push("non")
        self.stamp(1, "poll1")
        a("s_waitcnt vmcnt(0)")
        self.read_nonce(early=14)
        self.poll_all(0)
        self.stamp(1, "got1")
        q.clear()
        a("s_barrier")

    def helper_attn(self):
        a, cfg = self.a, self.cfg
        q = self.hq
        a.label("ATT_H_ENTRY")
        VMASK = "s_mov_b32 exec_lo, 0x0fffffff\ns_mov_b32 exec_hi, 0x0fffffff"
        a(f"""
        s_sub_u32 s56, s{sW}, 4         ; j
        v_and_b32 v2, 31, v0
        v_lshrrev_b32 v3, 5, v0
        v_lshlrev_b32 v4, 4, v2
        s_movk_i32 s50, 7168
        v_mad_u32_u24 v4, v3, s50, v4   ; v4 = V voffset
        v_lshlrev_b32 v5, 3, v2
        v_lshl_add_u32 v5, v3, 8, v5
        s_lshl_b32 s57, s56, 4
        s_mul_i32 s57, s57, {TS}
        s_mul_i32 s50, s{sH}, 1792
        s_add_u32 s58, s57, s50
        s_add_u32 s58, s58, {WS_K}      ; K stream
        s_mul_i32 s50, s{sH}, 448
        s_add_u32 s59, s57, s50
        s_add_u32 s59, s59, {WS_V}      ; V stream
        s_lshl_b32 s60, s56, 13         ; j*8192 lds
        v_lshlrev_b32 v6, 3, v0
        v_add_u32 v6, s60, v6
        v_add_u32 v6, {R2 + 1792}, v6
        v_mov_b32 v8, 0x3f80
        v_mov_b32 v9, 0
        v_and_b32 v7, 3, v0
        v_cmp_eq_u32 vcc, 0, v7
        v_mov_b32 v16, 0
        v_mov_b32 v17, 0x3f803f80
        v_cndmask_b32 v16, v16, v17, vcc
        v_mov_b32 v17, v16
        v_mov_b32 v18, v16
        v_mov_b32 v19, v16
        v_bfe_u32 v10, v0, 2, 1         ; hf
        v_lshl_add_u32 v7, v10, 5, v7
        v_bfe_u32 v10, v0, 3, 1         ; f
        v_lshl_add_u32 v7, v10, 6, v7
        v_lshlrev_b32 v7, 4, v7
        v_add_u32 v7, s60, v7
        v_add_u32 v7, {R2 + 2048 + 448}, v7
        """)

        def consts(sl):
            for kk in range(2):
                off = (SLOT_TS[sl] + kk) * 4096
                vb6, vb7, o = 6, 7, off
                if off > 60000:
                    a(f"v_add_u32 v10, {off}, v6")
                    a(f"v_add_u32 v11, {off}, v7")
                    vb6, vb7, o = 10, 11, 0
                a("s_mov_b32 exec_hi, 0")
                a(f"ds_write_b64 v{vb6}, v[8:9] offset:{o}")
                a("s_mov_b32 exec_lo, 0xffff")
                a(f"ds_write_b128 v{vb7}, v[16:19] offset:{o}")
                a("s_mov_b64 exec, -1")

        def stage(k):
            sl = k % 3
            for kk in range(2):
                base = R2 + (SLOT_TS[sl] + kk) * 4096
                if kk == 0:
                    a(f"s_add_u32 s51, s{sQB}, {k}")
                    a("s_and_b32 s51, s51, 7")
                    a(f"s_mul_i32 s51, s51, {2*TS*cfg.get('rotkv', 0)}")
                    if not cfg.get('rotkv', 0):
                        a(f"s_mov_b32 s51, {2*k*TS}")
                    a("s_add_u32 s52, s51, s58")
                    a("s_add_u32 s53, s51, s59")
                a(f"s_add_u32 s50, s52, {kk*TS}")
                a(f"s_add_u32 m0, s60, {base}")
                a(f"buffer_load_dwordx4 v1, {sr(S_WS)}, s50 offen{LSC} lds")
                a("s_mov_b32 exec_hi, 0xffff")
                a(f"buffer_load_dwordx4 v1, {sr(S_WS)}, s50 offen offset:1024{LSC} lds")
                a(VMASK)
                for f in range(2):
                    a(f"s_add_u32 s50, s53, {kk*TS + f*14336}")
                    a(f"s_add_u32 m0, s60, {base + 2048 + 1024*f}")
                    a(f"buffer_load_dwordx4 v4, {sr(S_WS)}, s50 offen{LSC} lds")
                a("s_mov_b64 exec, -1")
                for _ in range(4):
                    q.push(("s", k))

        def q_dma():
            a(f"""
            s_lshl_b32 s50, s{sQB}, 2
            s_add_u32 s50, s50, s56
            s_mul_i32 s50, s50, {TS}
            s_mul_i32 s51, s{sH}, 1792
            s_add_u32 s50, s50, s51
            s_lshl_b32 s51, s56, 11
            s_add_u32 m0, s51, {QL}
            buffer_load_dwordx4 v1, {sr(S_WS)}, s50 offen{LSC} lds
            s_mov_b32 exec_hi, 0xffff
            buffer_load_dwordx4 v1, {sr(S_WS)}, s50 offen offset:1024{LSC} lds
            s_mov_b32 exec_hi, -1
            """)
            q.push(("s", 0))
            q.push(("s", 0))

        def bar(k):
            n = q.wait_for(("s", k))
            if n is not None:
                a(f"s_waitcnt vmcnt({n}) lgkmcnt(0)")
            else:
                a("s_waitcnt lgkmcnt(0)")
            a("s_barrier")

        def wo_dma(srd_, region, tag, lo=0, hi=14):
            a(f"""
            v_lshrrev_b32 v10, 3, v0
            v_and_b32 v11, 7, v0
            v_bfe_u32 v12, v0, 4, 1
            v_lshlrev_b32 v12, 2, v12
            v_xor_b32 v11, v11, v12
            v_lshlrev_b32 v11, 4, v11
            s_movk_i32 s50, 896
            v_mad_u32_u24 v10, v10, s50, v11
            s_mul_i32 s51, s56, 100352
            s_lshl_b32 s50, s{sCB3}, 7
            s_add_u32 s51, s51, s50
            s_mul_i32 s52, s56, 14336
            """)
            for i in range(lo, hi):
                a(f"s_add_u32 s50, s51, {8*i*896}")
                a(f"s_add_u32 m0, s52, {region + i*1024}")
                a(f"buffer_load_dwordx4 v10, {sr(srd_)}, s50 offen lds")
                q.push(tag)

        skip3 = lambda name: (f"s_cmp_ge_u32 s{sIDX}, 28\ns_cbranch_scc1 {name}")

        q_dma()
        stage(0)
        consts(0)
        consts(1)
        consts(2)
        a(f"""
        v_mov_b32 v10, {QL + 1792}
        v_mov_b32 v11, 0
        ds_write_b32 v10, v11
        """)
        if cfg.get("s1early", 1):
            stage(1)
        bar(0)
        self.stamp(1, "S0")
        if not cfg.get("s1early", 1):
            stage(1)
        stage(2)
        wo_dma(S_WOB, R1, "woB", 0, 7)
        bar(1)
        stage(3)
        wo_dma(S_WOB, R1, "woB", 7, 14)
        bar(2)
        self.poll_issue("all", 0x4000, q)
        stage(4)
        a(f"s_waitcnt vmcnt({q.wait_for('poll')})")
        self.poll_check("all", 0x4000)
        self.stamp(1, "got2")
        a("s_barrier")
        stage(5)
        self.local_attn_loads(q)
        bar(4)
        stage(6)
        self.local_attn(q)
        self.stamp(1, "Ldone")
        bar(5)
        stage(7)
        self.out_gemm_setup()
        q.push("g")
        a(f"s_waitcnt vmcnt({q.wait_for('ost')})")
        a("s_barrier")
        self.publish(f"""
        s_lshl_b32 s50, s{sQB}, 4
        s_add_u32 s50, s50, s{sH}
        s_lshl_b32 s50, s50, 6
        s_add_u32 s50, s50, {WS_F + 0xC000}
        """, balance=True)
        q.push("pub")
        bar(7)
        self.poll16(0xC000, everyone=True)
        q.clear()
        self.stamp(1, "got4")
        self.out_gemm_loads(1, q, 0, 28)
        a("s_setprio 0")
        self.stamp(1, "oBiss")
        a("s_barrier")
        a(skip3("H_DONE"))
        self.out_gemm(1, R1, q, loads=False)
        lp = self.lab("HS")
        a(f"""
        v_mov_b32 v10, {QL + 1792}
        v_mov_b32 v11, 1
        s_mov_b64 exec, 1
        ds_add_u32 v10, v11
        s_mov_b64 exec, -1
        s_mov_b32 s51, 0
        """)
        a.label(lp)
        a(f"""
        ds_read_b32 v11, v10
        s_add_u32 s51, s51, 1
        s_waitcnt lgkmcnt(0)
        v_readfirstlane_b32 s50, v11
        s_cmp_ge_u32 s51, {SPIN_MAX}
        s_cbranch_scc1 {lp}_X
        s_cmp_lt_u32 s50, 8
        s_cbranch_scc1 {lp}
        """)
        a.label(lp + "_X")
        self.stamp(1, "bdone")
        wo_dma(S_WOA, R1, "woA")
        self.out_epilogue_pre()
        self.poll32()
        q.clear()
        a("s_barrier")
        self.stamp(1, "got3")
        self.oa_dma()
        a(f"""
        s_mul_i32 s50, s62, {TS}
        v_add_u32 v21, s50, v1
        v_add_u32 v21, {OAL}, v21
        s_waitcnt vmcnt(0)
        s_barrier
        """)
        self.stamp(1, "C4")
        self.out_gemm_lds()
        self.out_epilogue()
        a.label("H_DONE")
        if cfg.get("stamps"):
            a("s_waitcnt vmcnt(0)")
        self.stamp(1, "end")
        self.stamp_flush(14, 1)
        a("s_endpgm")

    def poll32(self):
        a = self.a
        loop, done = self.lab("POLL"), self.lab("POLLD")
        a(f"""
        s_waitcnt vmcnt(0)
        s_cmp_lg_u32 s{sW}, 4
        s_cbranch_scc1 {done}
        s_lshl_b32 s50, s{sRB3}, 11
        s_add_u32 s50, s50, {WS_F + 0x10000}
        s_mov_b32 s51, 0
        v_and_b32 v13, 31, v0
        v_lshlrev_b32 v13, 6, v13
        """)
        if self.cfg.get("pipepoll", 2) == 2:
            a("s_mov_b32 s52, -1")
            a("s_mov_b32 s53, 0")
            a.label(loop)
            a(f"""
            s_mov_b64 exec, s[52:53]
            buffer_load_dword v12, v13, {sr(S_WS)}, s50 offen sc1
            s_waitcnt vmcnt(0)
            v_cmp_ne_u32 s[52:53], s{sNONCE}, v12
            s_mov_b64 exec, -1
            s_cmp_eq_u64 s[52:53], 0
            s_cbranch_scc1 {done}
            s_sleep {self.cfg.get("sleep3", 2)}
            s_add_u32 s51, s51, 1
            s_cmp_lt_u32 s51, {SPIN_MAX}
            s_cbranch_scc1 {loop}
            """)
        elif self.cfg.get("pipepoll", 2) == 1:
            regs = (140, 141, 142)
            for r in regs[:2]:
                a(f"buffer_load_dword v{r}, v13, {sr(S_WS)}, s50 offen sc1")
                a("s_sleep 3")
            a.label(loop)
            for i, r in enumerate(regs):
                a(f"""
                buffer_load_dword v{regs[(i+2) % 3]}, v13, {sr(S_WS)}, s50 offen sc1
                s_waitcnt vmcnt(2)
                v_cmp_eq_u32 s[52:53], s{sNONCE}, v{r}
                s_cmp_eq_u64 s[52:53], -1
                s_cbranch_scc1 {done}
                """)
            a(f"""
            s_add_u32 s51, s51, 1
            s_cmp_lt_u32 s51, {SPIN_MAX}
            s_cbranch_scc1 {loop}
            """)
        else:
            a.label(loop)
            a(f"""
            buffer_load_dword v12, v13, {sr(S_WS)}, s50 offen sc1
            s_waitcnt vmcnt(0)
            v_cmp_eq_u32 s[52:53], s{sNONCE}, v12
            s_cmp_eq_u64 s[52:53], -1
            s_cbranch_scc1 {done}
            s_add_u32 s51, s51, 1
            s_cmp_lt_u32 s51, {SPIN_MAX}
            s_cbranch_scc1 {loop}
            """)
        a.label(done)

    def out_gemm_lds(self):
        a = self.a
        ACC, NB = 64, 4
        WF, OFB = 32, 96

        def reads(s):
            b = WF + 4 * (s % NB)
            a(f"ds_read_b128 {vr(OFB+4*(s % NB),4)}, v21 offset:{s*1024}")
            for u in range(2):
                a(f"ds_read_b64_tr_b16 {vr(b+2*u,2)}, v20 offset:{(16*s+4*u)*128}")

        for s in range(NB - 1):
            reads(s)
        for s in range(28):
            if s + NB - 1 < 28:
                reads(s + NB - 1)
                lg = 3 * (NB - 1)
            else:
                lg = 3 * (27 - s)
            a(f"s_waitcnt lgkmcnt({lg})")
            d = vr(ACC, 16)
            c = "0" if s == 0 else d
            a(f"v_mfma_f32_32x32x16_bf16 {d}, {vr(WF+4*(s % NB),4)}, {vr(OFB+4*(s % NB),4)}, {c}")

    def local_attn_loads(self, q):
        a = self.a
        LQ, LK, LKP, LV, LVP = 20, 28, 36, 44, 52
        a(f"""
        s_lshl_b32 s61, s{sQB}, 2
        s_add_u32 s61, s61, s56         ; tB
        s_mul_i32 s62, s61, {TS}
        s_sub_u32 s63, s62, {TS}
        s_cmp_eq_u32 s61, 0
        s_cselect_b32 s63, s62, s63
        s_cselect_b32 s55, 0, -1
        s_mul_i32 s54, s{sH}, 1792
        s_add_u32 s50, s62, s54
        s_add_u32 s50, s50, {BR + WS_Q}
        """)
        for r in (LQ + 6, LQ + 7, LK + 6, LK + 7, LKP + 6, LKP + 7):
            a(f"v_mov_b32 v{r}, 0")
        for r in range(12):
            a(f"v_mov_b32 v{LV+r}, 0")
        a("s_mov_b32 exec_lo, 0x10000000")
        a("s_mov_b32 exec_hi, 0x10000000")
        for r in range(12):
            a(f"v_mov_b32 v{LV+r}, 0x3f803f80")
        a("s_mov_b64 exec, -1")
        self.load_qk_frag(LQ, 5, "s50", q, "L")
        a(f"s_add_u32 s50, s50, {WS_K - WS_Q}")
        self.load_qk_frag(LK, 5, "s50", q, "L")
        a(f"s_add_u32 s50, s63, s54")
        a(f"s_add_u32 s50, s50, {BR + WS_K}")
        self.load_qk_frag(LKP, 5, "s50", q, "L")
        a(f"""
        s_mul_i32 s54, s{sH}, 448
        s_add_u32 s50, s62, s54
        s_add_u32 s50, s50, {BR + WS_V}
        s_add_u32 s51, s50, 14336
        s_add_u32 s52, s63, s54
        s_add_u32 s52, s52, {BR + WS_V + 14336}
        s_mov_b32 exec_lo, 0x0fffffff
        s_mov_b32 exec_hi, 0x0fffffff
        buffer_load_dwordx4 {vr(LV,4)}, v4, {sr(S_WS)}, s50 offen{LSC}
        buffer_load_dwordx4 {vr(LV+4,4)}, v4, {sr(S_WS)}, s51 offen{LSC}
        buffer_load_dwordx4 {vr(LVP,4)}, v4, {sr(S_WS)}, s52 offen{LSC}
        s_mov_b64 exec, -1
        v_mov_b32 v15, {NEG_BIG}
        s_add_u32 s62, s62, {WS_OB}
        """)
        for _ in range(3):
            q.push("L")
        self.o_voff(14, 13)

    def local_attn(self, q):
        a = self.a
        LQ, LK, LKP, LV, LVP = 20, 28, 36, 44, 52
        Sd, Sp, P, T, O = 64, 80, 96, 104, 124
        n = q.wait_for("L")
        if n is not None:
            a(f"s_waitcnt vmcnt({n})")
        a(f"v_mfma_f32_32x32x16_bf16 {vr(Sd,16)}, {vr(LK,4)}, {vr(LQ,4)}, 0")
        a(f"v_mfma_f32_32x32x16_bf16 {vr(Sp,16)}, {vr(LKP,4)}, {vr(LQ,4)}, 0")
        a(f"v_mfma_f32_32x32x16_bf16 {vr(Sd,16)}, {vr(LK+4,4)}, {vr(LQ+4,4)}, {vr(Sd,16)}")
        a(f"v_mfma_f32_32x32x16_bf16 {vr(Sp,16)}, {vr(LKP+4,4)}, {vr(LQ+4,4)}, {vr(Sp,16)}")
        regs = []
        for r in range(16):
            m = lane_mask(lambda l: (((l & 31) - ((r & 3) + 8 * (r >> 2) + 4 * (l >> 5))) & ~14) == 0)
            sp = 50 + 2 * (r & 1)
            a(f"s_mov_b32 s{sp}, {m & 0xffffffff:#x}")
            a(f"s_mov_b32 s{sp+1}, {m >> 32:#x}")
            a(f"v_cndmask_b32 v{Sd+r}, v15, v{Sd+r}, s[{sp}:{sp+1}]")
            regs.append(Sd + r)
        for r in range(8, 16):
            m = lane_mask(lambda l: ((32 + (l & 31) - ((r & 3) + 8 * (r >> 2) + 4 * (l >> 5))) & ~14) == 0)
            sp = 50 + 2 * (r & 1)
            a(f"s_and_b32 s{sp}, s55, {m & 0xffffffff:#x}")
            a(f"s_and_b32 s{sp+1}, s55, {m >> 32:#x}")
            a(f"v_cndmask_b32 v{Sp+r}, v15, v{Sp+r}, s[{sp}:{sp+1}]")
            regs.append(Sp + r)
        self.max_tree(regs, T, T + 1)
        for r in regs:
            a(f"v_sub_f32 v{r}, v{r}, v{T}")
        for r in regs:
            a(f"v_exp_f32 v{r}, v{r}")
        for r in range(8):
            a(f"v_cvt_pk_bf16_f32 v{P+r}, v{Sd+2*r}, v{Sd+2*r+1}")
        for r in range(4):
            a(f"v_cvt_pk_bf16_f32 v{T+4+r}, v{Sp+8+2*r}, v{Sp+9+2*r}")
        a(f"v_mfma_f32_32x32x16_bf16 {vr(O,16)}, {vr(LV,4)}, {vr(P,4)}, 0")
        a(f"v_mfma_f32_32x32x16_bf16 {vr(O,16)}, {vr(LV+4,4)}, {vr(P+4,4)}, {vr(O,16)}")
        a(f"v_mfma_f32_32x32x16_bf16 {vr(O,16)}, {vr(LVP,4)}, {vr(T+4,4)}, {vr(O,16)}")
        self.finalize_o(O, T + 8, 14, "s62", q)

    def out_gemm_setup(self):
        a = self.a
        a(f"""
        s_and_b32 s62, s56, 1
        s_lshr_b32 s63, s56, 1
        v_and_b32 v20, 3, v0
        v_lshlrev_b32 v20, 3, v20
        v_bfe_u32 v21, v0, 4, 1
        v_lshl_add_u32 v20, v21, 5, v20
        s_lshl_b32 s50, s63, 6
        v_add_u32 v20, s50, v20
        v_bfe_u32 v21, v0, 3, 1
        v_lshlrev_b32 v21, 6, v21
        v_xor_b32 v20, v20, v21
        v_bfe_u32 v21, v0, 2, 2
        v_lshl_add_u32 v21, v3, 3, v21
        v_lshl_add_u32 v20, v21, 7, v20
        s_lshl_b32 s61, s{sRB3}, 1
        s_add_u32 s61, s61, s62         ; q tile
        s_lshl_b32 s50, s61, 7
        s_add_u32 s50, s50, {WS_G}
        v_lshlrev_b32 v22, 2, v2
        buffer_load_dword v23, v22, {sr(S_WS)}, s50 offen{LSC}
        s_mul_i32 s61, s61, {TS}
        """)

    def out_gemm_loads(self, br, q, lo=0, hi=28):
        a = self.a
        OF = 144
        for s in range(lo, hi):
            if s % 4 == 0:
                a(f"s_add_u32 s50, s61, {(WS_OA if br == 0 else WS_OB) + s*1024}")
            a(f"buffer_load_dwordx4 {vr(OF+4*s,4)}, v1, {sr(S_WS)}, s50 offen offset:{(s%4)*1024}{LSC}")
            q.push(("o", s))

    def out_gemm(self, br, region, q, loads=True):
        a = self.a
        ACC = 64 + 16 * br
        OF = 144
        WF, NB = 32, 4
        areg = 20 if region == R1 else 21
        if loads:
            self.out_gemm_loads(br, q)

        def reads(s):
            b = WF + 4 * (s % NB)
            for u in range(2):
                a(f"ds_read_b64_tr_b16 {vr(b+2*u,2)}, v{areg} offset:{(16*s+4*u)*128}")

        for s in range(NB - 1):
            reads(s)
        for s in range(28):
            if s + NB - 1 < 28:
                reads(s + NB - 1)
                lg = 2 * (NB - 1)
            else:
                lg = 2 * (27 - s)
            n = q.wait_for(('o', s))
            a(f"s_waitcnt lgkmcnt({lg})" if n is None else f"s_waitcnt vmcnt({n}) lgkmcnt({lg})")
            b = WF + 4 * (s % NB)
            d = vr(ACC, 16)
            c = "0" if s == 0 else d
            a(f"v_mfma_f32_32x32x16_bf16 {d}, {vr(b,4)}, {vr(OF+4*s,4)}, {c}")

    def out_epilogue_pre(self):
        a = self.a
        A, B, W = 64, 80, 32
        a(f"""
        v_sub_f32 v24, 1.0, v23
        v_cvt_pk_bf16_f32 v24, v24, v24
        v_lshlrev_b32 v24, 16, v24
        s_lshl_b32 s50, s{sRB3}, 6
        s_lshl_b32 s51, s62, 5
        s_add_u32 s50, s50, s51
        v_add_u32 v25, s50, v2
        s_movk_i32 s50, 896
        v_mul_lo_u32 v25, v25, s50
        v_lshl_add_u32 v25, v3, 4, v25
        s_lshl_b32 s50, s{sCB3}, 7
        s_lshl_b32 s51, s63, 6
        s_add_u32 s50, s50, s51
        """)
        a("s_mov_b32 s59, s50")
        for r in range(16):
            a(f"v_mul_f32 v{B+r}, v24, v{B+r}")

    def out_epilogue(self):
        a = self.a
        A, B, W = 64, 80, 32
        for r in range(16):
            a(f"v_fma_f32 v{A+r}, v23, v{A+r}, v{B+r}")
        for r in range(8):
            a(f"v_cvt_pk_bf16_f32 v{W+r}, v{A+2*r}, v{A+2*r+1}")
        for pr in range(2):
            b = W + 4 * pr
            a(f"v_permlane32_swap_b32 v{b}, v{b+2}")
            a(f"v_permlane32_swap_b32 v{b+1}, v{b+3}")
            a(f"buffer_store_dwordx4 {vr(b,4)}, v25, {sr(S_OUT)}, s59 offen offset:{32*pr}{('', ' sc1', ' nt', ' sc0 sc1')[self.cfg.get('outpol', 0)]}")

    def gate_wg(self):
        a = self.a
        a.label("GATE_WG")
        a(f"""
        s_lshl_b32 s56, s{sGI}, 6
        s_lshl_b32 s50, s{sW}, 4
        s_add_u32 s56, s56, s50
        s_mul_i32 s57, s56, 896
        """)
        NR = 16
        GW = 16 + 4 * NR
        for r in range(4 * NR + 4):
            a(f"v_mov_b32 v{16+r}, 0")
        a("s_mov_b32 exec_hi, 0x00ffffff")
        a(f"buffer_load_dwordx4 {vr(GW,4)}, v1, {sr(S_GATE)}, 0 offen")
        for i in range(NR):
            a(f"s_add_u32 s50, s57, {896*i}")
            a(f"buffer_load_dwordx4 {vr(16+4*i,4)}, v1, {sr(S_X)}, s50 offen")
        a("s_mov_b64 exec, -1")
        Z = GW + 4
        for i in range(NR):
            a(f"v_mov_b32 v{Z+i}, 0")
        a("s_waitcnt vmcnt(0)")
        for r in range(4):
            for i in range(NR):
                a(f"v_dot2_f32_bf16 v{Z+i}, v{16+4*i+r}, v{GW+r}, v{Z+i}")
        a("s_nop 2")
        for sh in (1, 2, 4, 8):
            for i in range(NR):
                a(f"v_add_f32_dpp v{Z+i}, v{Z+i}, v{Z+i} row_shr:{sh} row_mask:0xf bank_mask:0xf bound_ctrl:0")
        for i in range(NR):
            a(f"v_add_f32_dpp v{Z+i}, v{Z+i}, v{Z+i} row_bcast:15 row_mask:0xa bank_mask:0xf")
        for i in range(NR):
            a(f"v_add_f32_dpp v{Z+i}, v{Z+i}, v{Z+i} row_bcast:31 row_mask:0xc bank_mask:0xf")

        def round_pairs():
            for i in range(0, NR, 2):
                a(f"v_cvt_pk_bf16_f32 v16, v{Z+i}, v{Z+i+1}")
                a(f"v_lshlrev_b32 v{Z+i}, 16, v16")
                a(f"v_and_b32 v{Z+i+1}, 0xffff0000, v16")
        round_pairs()
        for i in range(NR):
            a(f"v_mul_f32 v{Z+i}, {NLOG2E}, v{Z+i}")
        for i in range(NR):
            a(f"v_exp_f32 v{Z+i}, v{Z+i}")
        for i in range(NR):
            a(f"v_add_f32 v{Z+i}, 1.0, v{Z+i}")
        for i in range(NR):
            a(f"v_rcp_f32 v{Z+i}, v{Z+i}")
        round_pairs()
        a(f"""
        s_lshl_b32 s50, s56, 2
        s_add_u32 s50, s50, {WS_G}
        v_mov_b32 v16, 0
        s_mov_b32 exec_lo, 0
        s_mov_b32 exec_hi, 0x80000000
        """)
        for i in range(NR // 4):
            a(f"buffer_store_dwordx4 {vr(Z+4*i,4)}, v16, {sr(S_WS)}, s50 offen offset:{16*i} sc1")
        a("""
        s_mov_b64 exec, -1
        s_waitcnt vmcnt(0)
        s_barrier
        """)
        self.read_nonce(t0=188, t1=189)
        self.publish(f"""
        s_lshl_b32 s50, s2, 6
        s_add_u32 s50, s50, {WS_F}
        """, only_wave=0, t0=188, t1=189)
        if self.cfg.get("p1v", 1) == 2:
            self.publish(f"""
            s_lshl_b32 s50, s2, 6
            s_add_u32 s50, s50, {WS_F + 0x4000}
            """, only_wave=0, t0=188, t1=189)
        a("""
        s_barrier
        s_branch ATT_C_ENTRY
        """)
        a.label("GATE_H")
        a(f"s_setprio {self.cfg.get('hprio', 1)}")
        self.srds_first()
        self.srds_rest()
        if not self.cfg.get("l2pf", 1):
            a("s_barrier")
        if self.cfg.get("l2pf", 1):
            a(f"""
            s_sub_u32 s56, s{sIDX}, 28
            s_lshl_b32 s56, s56, 2
            s_add_u32 s56, s56, s{sW}
            s_sub_u32 s56, s56, 4           ; pw 0..15
            s_lshr_b32 s50, s{sXCD}, 1
            s_mul_i32 s57, s50, {512*896}
            s_mul_i32 s50, s56, 28672
            s_add_u32 s57, s57, s50         ; x slice
            v_and_b32 v2, 31, v0
            v_lshlrev_b32 v2, 4, v2
            v_lshrrev_b32 v3, 5, v0
            s_movk_i32 s50, 896
            v_mad_u32_u24 v4, v3, s50, v2   ; (r0,p0),(r0,p1)
            v_add_u32 v5, 1792, v4          ; (r0,p2),(r1,p0)
            v_add_u32 v6, 3584, v4          ; (r1,p1),(r1,p2)
            s_and_b32 s50, s{sXCD}, 1
            s_mul_i32 s58, s50, 384
            s_mul_i32 s50, s56, 5376
            s_add_u32 s58, s58, s50
            s_lshl_b32 s59, s56, 10
            """)
            n = [0]

            def dst():
                n[0] += 1
                return vr(16 + 4 * (n[0] % 32), 4)
            if self.cfg.get("l2pf") == 3:
                a("""
                s_movk_i32 s50, 2688
                v_mad_u32_u24 v7, v3, s50, v2
                """)
                for i in range(14):
                    a(f"s_add_u32 s50, s58, {i*16*5376}")
                    a(f"buffer_load_dwordx4 {dst()}, v7, {sr(S_WA)}, s50 offen")
            for sw in (S_WB,):
                for i in range(14):
                    a(f"s_add_u32 s50, s58, {i*16*5376}")
                    for k in range(3):
                        a(f"buffer_load_dwordx4 {dst()}, v{4+k}, {sr(sw)}, s50 offen")
                    if i == self.cfg.get("gbar", 13):
                        a("s_barrier")
            for sw in ((S_WOB, S_WOA) if self.cfg.get("l2pf") == 2 else ()):
                for i in range(25):
                    a(f"s_add_u32 s50, s59, {i*16384}")
                    a(f"buffer_load_dwordx4 {dst()}, v1, {sr(sw)}, s50 offen")
        self.read_nonce()
        self.poll_all(0)
        a("""
        s_barrier
        s_branch ATT_H_ENTRY
        """)


def build(cfg):
    g = Gen(cfg)
    body = g.build()
    head = f"""; {NAME}: one persistent launch (projections -> attention -> output projection + gated mix)
; @launch grid=(256,1,1) block=(512,1,1) lds={LDS_BYTES}
.amdgcn_target "amdgcn-amd-amdhsa--gfx950"
.text
.globl {NAME}_kernel
"""
    tail = f""".section .rodata,"a"
.p2align 6
.amdhsa_kernel {NAME}_kernel
  .amdhsa_next_free_vgpr 256
  .amdhsa_next_free_sgpr 100
  .amdhsa_accum_offset {256}
  .amdhsa_group_segment_fixed_size 0
  .amdhsa_kernarg_size 80
  .amdhsa_user_sgpr_count 2
  .amdhsa_user_sgpr_kernarg_segment_ptr 1
  .amdhsa_system_sgpr_workgroup_id_x 1
.end_amdhsa_kernel
"""
    if cfg.get("stamps"):
        head = "; STAMPS " + repr(g.stnames) + "\n" + head
    return head + body + tail, g.a.n_pads


if __name__ == "__main__":
    cfg = {}
    out = f"cdna_kernels/{NAME}.s"
    for arg in sys.argv[1:]:
        if arg.startswith("-o="):
            out = arg[3:]
        else:
            k, v = arg.split("=")
            cfg[k] = int(v)
    s, n = build(cfg)
    open(out, "w").write(s)
    print("wrote", out, len(s), "bytes;", n, "hazard pads")
```

```python
import math
import struct
import sys
import os

sys.path.insert(0, os.path.dirname(os.path.abspath(__file__)))
from asmlib import Asm

NAME = "gated_mix__mha_block__sliding_local_dilated__prompt"

TS = 28672
WS_Q = 0x000000
WS_K = 0x200000
WS_V = 0x400000
BR = 0x600000
WS_OA = 0xC00000
WS_OB = 0xE00000
WS_G = 0x1000000
WS_F = 0x1010000
WS_USED = 0x1030000
WS_DIAG = 0x2000000

X_BYTES = 2048 * 448 * 2
W_BYTES = 448 * 1344 * 2
WO_BYTES = 448 * 448 * 2

R1 = 0
R2 = 57344
R3 = 106496
LDS_BYTES = 163840
CB = R2 + 32768
QL = 155648
OAL = R2
SLOT_TS = (8, 0, 16)
SPIN_MAX = 40000
LSC = ''


def f32bits(x):
    return struct.unpack("<I", struct.pack("<f", x))[0]


SCALE_F32 = struct.unpack("<f", struct.pack("<f", 28 ** -0.5))[0]
QSCALE = f32bits(SCALE_F32 * math.log2(math.e))
NEG_BIG = f32bits(-1.0e30)
NLOG2E = f32bits(-math.log2(math.e))

S_X, S_WA, S_WB, S_WS, S_WOA, S_WOB, S_OUT, S_DBG, S_GATE = 4, 8, 12, 16, 20, 24, 28, 32, 36
KA0 = 68
sW, sXCD, sIDX, sRB, sCG, sH, sQB, sRB3, sCB3, sNONCE = 40, 41, 42, 43, 44, 45, 46, 47, 48, 49
sGI = 3
sQE = 63
sBR = 95
RW = 114688


def sr(b):
    return f"s[{b}:{b+3}]"


class VmQ:
    def __init__(self):
        self.q = []

    def push(self, tag):
        self.q.append(tag)

    def wait_for(self, tag):
        idx = max([i for i, t in enumerate(self.q) if t == tag], default=-1)
        if idx < 0:
            return None
        n = len(self.q) - 1 - idx
        self.q = self.q[idx + 1:]
        return min(n, 63)

    def clear(self):
        self.q = []


def vr(b, n):
    return f"v[{b}:{b+n-1}]"


def ar(b, n):
    return f"a[{b}:{b+n-1}]"


def lane_mask(fn):
    m = 0
    for l in range(64):
        if fn(l):
            m |= 1 << l
    return m


class Gen:
    def __init__(self, cfg):
        self.cfg = cfg
        self.a = Asm()
        self.nlab = 0
        self.stnames = {}

    def lab(self, p):
        self.nlab += 1
        return f"{p}_{self.nlab}"

    def stamp(self, idx, name=None):
        if not self.cfg.get("stamps"):
            return
        if name is not None and self.cfg.get("ststage") and idx == 0 and name in ("c0", "b7", "b11", "pub1", "c14", "preS0", "T1"):
            return
        if name is not None:
            role = idx
            lst = self.stnames.setdefault(role, ["start"])
            idx = len(lst)
            lst.append(name)
            assert idx < 14
        self.a(f"""
        s_memtime s[{64+2*idx}:{65+2*idx}]
        """)
        if idx == 0:
            self.a("s_memrealtime s[98:99]")

    def stamp_flush(self, n, role):
        if not self.cfg.get("stamps"):
            return
        a = self.a
        skip = self.lab("STSKIP")
        a(f"""
        s_memrealtime s[96:97]
        s_cmp_lg_u32 s{sW}, {4*role}
        s_cbranch_scc1 {skip}
        s_waitcnt lgkmcnt(0)
        s_mov_b32 s{S_WS+2}, 0x2100000
        s_lshl_b32 s50, s2, 8
        s_add_u32 s50, s50, {WS_DIAG + role*128}
        v_mov_b32 v3, 0
        """)
        for i in range(2 * n):
            a(f"v_mov_b32 v4, s{64+i}")
            a(f"buffer_store_dword v4, v3, {sr(S_WS)}, s50 offen offset:{4*i}")
        for i, s in enumerate((98, 99, 96, 97)):
            a(f"v_mov_b32 v4, s{s}")
            a(f"buffer_store_dword v4, v3, {sr(S_WS)}, s50 offen offset:{112+4*i}")
        a.label(skip)

    def publish(self, off_sgpr_expr_lines, only_wave=4, t0=12, t1=13, balance=False):
        a = self.a
        skip, end = self.lab("PUB"), self.lab("PUBE")
        a(off_sgpr_expr_lines)
        a(f"""
        v_mov_b32 v{t0}, 0
        v_mov_b32 v{t1}, s{sNONCE}
        s_mov_b64 exec, 1
        s_cmp_lg_u32 s{sW}, {only_wave}
        s_cbranch_scc1 {skip}
        buffer_store_dword v{t1}, v{t0}, {sr(S_WS)}, s50 offen sc1
        """)
        if balance:
            a(f"s_branch {end}")
        a.label(skip)
        if balance:
            a(f"buffer_load_dword v{t1}, v{t0}, {sr(S_GATE)}, 0 offen")
            a.label(end)
        a("s_mov_b64 exec, -1")

    def poll_all(self, foff, drain=True):
        a = self.a
        loop, done = self.lab("POLL"), self.lab("POLLD")
        if drain:
            a("s_waitcnt vmcnt(0)")
        a(f"""
        s_cmp_lg_u32 s{sW}, 4
        s_cbranch_scc1 {done}
        s_mov_b32 s50, {WS_F + foff}
        s_mov_b32 s92, {WS_F + foff + 4096}
        s_mov_b32 s93, {WS_F + foff + 8192}
        s_mov_b32 s94, {WS_F + foff + 12288}
        v_lshlrev_b32 v11, 6, v0
        s_mov_b32 s51, 0
        """)
        if self.cfg.get("mpoll", 1):
            pend = (52, 54, 88, 90)
            offs = ("s50", "s92", "s93", "s94")
            for p in pend:
                a(f"s_mov_b64 s[{p}:{p+1}], -1")
            a.label(loop)
            for i, p in enumerate(pend):
                sk = self.lab("PSK")
                a(f"""
                s_mov_b64 exec, s[{p}:{p+1}]
                s_cbranch_execz {sk}
                buffer_load_dword v{12+i}, v11, {sr(S_WS)}, {offs[i]} offen sc1
                """)
                a.label(sk)
            a("s_waitcnt vmcnt(0)")
            for i, p in enumerate(pend):
                a(f"s_mov_b64 exec, s[{p}:{p+1}]")
                a(f"v_cmp_ne_u32 s[{p}:{p+1}], s{sNONCE}, v{12+i}")
            a(f"""
            s_mov_b64 exec, -1
            s_or_b64 vcc, s[52:53], s[54:55]
            s_or_b64 vcc, vcc, s[88:89]
            s_or_b64 vcc, vcc, s[90:91]
            s_cmp_eq_u64 vcc, 0
            s_cbranch_scc1 {done}
            s_sleep {self.cfg.get("sleep", 4)}
            s_add_u32 s51, s51, 1
            s_cmp_lt_u32 s51, {SPIN_MAX}
            s_cbranch_scc1 {loop}
            """)
            a.label(done)
            return
        a.label(loop)
        a(f"""
        buffer_load_dword v12, v11, {sr(S_WS)}, s50 offen sc1
        buffer_load_dword v13, v11, {sr(S_WS)}, s92 offen sc1
        buffer_load_dword v14, v11, {sr(S_WS)}, s93 offen sc1
        buffer_load_dword v15, v11, {sr(S_WS)}, s94 offen sc1
        s_waitcnt vmcnt(0)
        v_cmp_eq_u32 s[52:53], s{sNONCE}, v12
        v_cmp_eq_u32 s[54:55], s{sNONCE}, v13
        s_and_b64 s[52:53], s[52:53], s[54:55]
        v_cmp_eq_u32 s[54:55], s{sNONCE}, v14
        s_and_b64 s[52:53], s[52:53], s[54:55]
        v_cmp_eq_u32 s[54:55], s{sNONCE}, v15
        s_and_b64 s[52:53], s[52:53], s[54:55]
        s_cmp_eq_u64 s[52:53], -1
        s_cbranch_scc1 {done}
        s_sleep {self.cfg.get("sleep", 4)}
        s_add_u32 s51, s51, 1
        s_cmp_lt_u32 s51, {SPIN_MAX}
        s_cbranch_scc1 {loop}
        """)
        a.label(done)

    def poll_issue(self, kind, foff, q):
        a = self.a
        if kind == "all":
            a("v_lshlrev_b32 v11, 6, v0")
            for i in range(4):
                a(f"s_mov_b32 s50, {WS_F + foff + 4096*i}")
                a(f"buffer_load_dword v{140+i}, v11, {sr(S_WS)}, s50 offen sc1")
                q.push("poll")
        else:
            a(f"""
            s_lshr_b32 s50, s{sRB3}, 1
            s_lshl_b32 s50, s50, 10
            s_add_u32 s50, s50, {WS_F + foff}
            v_and_b32 v11, 15, v0
            v_lshlrev_b32 v11, 6, v11
            buffer_load_dword v140, v11, {sr(S_WS)}, s50 offen sc1
            """)
            q.push("poll")

    def poll_check(self, kind, foff):
        a = self.a
        ok = self.lab("PCK")
        a(f"v_cmp_eq_u32 s[52:53], s{sNONCE}, v140")
        if kind == "all":
            for i in range(1, 4):
                a(f"v_cmp_eq_u32 s[54:55], s{sNONCE}, v{140+i}")
                a("s_and_b64 s[52:53], s[52:53], s[54:55]")
        a("s_cmp_eq_u64 s[52:53], -1")
        a(f"s_cbranch_scc1 {ok}")
        if kind == "all":
            self.poll_all(foff)
        else:
            self.poll16(foff)
        a.label(ok)

    def poll16(self, foff, everyone=False):
        a = self.a
        loop, done = self.lab("POLL"), self.lab("POLLD")
        a(f"""
        s_waitcnt vmcnt(0)
        s_cmp_lg_u32 s{sW}, {"s%d" % sW if everyone else 4}
        s_cbranch_scc1 {done}
        s_cmp_ge_u32 s{sIDX}, 28
        s_cbranch_scc1 {done}
        s_lshr_b32 s50, s{sRB3}, 1
        s_lshl_b32 s50, s50, 10
        s_add_u32 s50, s50, {WS_F + foff}
        s_mov_b32 s51, 0
        v_and_b32 v13, 15, v0
        v_lshlrev_b32 v13, 6, v13
        """)
        a.label(loop)
        a(f"""
        buffer_load_dword v12, v13, {sr(S_WS)}, s50 offen sc1
        s_waitcnt vmcnt(0)
        v_cmp_eq_u32 s[52:53], s{sNONCE}, v12
        s_cmp_eq_u64 s[52:53], -1
        s_cbranch_scc1 {done}
        s_sleep {self.cfg.get("sleep", 4)}
        s_add_u32 s51, s51, 1
        s_cmp_lt_u32 s51, {SPIN_MAX}
        s_cbranch_scc1 {loop}
        """)
        a.label(done)

    def get_nonce(self):
        a = self.a
        loop, done, skip = self.lab("NON"), self.lab("NOND"), self.lab("NONS")
        a(f"""
        v_mov_b32 v12, 0
        s_cmp_lg_u32 s2, 0
        s_cbranch_scc1 {skip}
        s_cmp_lg_u32 s{sW}, 4
        s_cbranch_scc1 {skip}
        s_memrealtime s[50:51]
        s_waitcnt lgkmcnt(0)
        s_or_b32 s50, s50, 1
        v_mov_b32 v13, s50
        s_mov_b64 exec, 1
        buffer_store_dword v13, v12, {sr(S_DBG)}, 0 offen sc1
        s_mov_b64 exec, -1
        """)
        a.label(skip)

    def read_nonce(self, early=None, t0=12, t1=13):
        a = self.a
        loop, done = self.lab("NON"), self.lab("NOND")
        if early is not None:
            a(f"""
            v_readfirstlane_b32 s{sNONCE}, v{early}
            s_cmp_lg_u32 s{sNONCE}, 0
            s_cbranch_scc1 {done}
            """)
        a(f"""
        v_mov_b32 v{t0}, 0
        s_mov_b32 s51, 0
        """)
        a.label(loop)
        a(f"""
        buffer_load_dword v{t1}, v{t0}, {sr(S_DBG)}, 0 offen sc1
        s_waitcnt vmcnt(0)
        v_readfirstlane_b32 s{sNONCE}, v{t1}
        s_cmp_lg_u32 s{sNONCE}, 0
        s_cbranch_scc1 {done}
        s_sleep {self.cfg.get("sleep", 4)}
        s_add_u32 s51, s51, 1
        s_cmp_lt_u32 s51, {SPIN_MAX}
        s_cbranch_scc1 {loop}
        """)
        a.label(done)

    def max_tree(self, regs, dst, tmp):
        a = self.a
        h = len(regs) // 2
        for (rs, d) in ((regs[:h], dst), (regs[h:], tmp)):
            a(f"v_max3_f32 v{d}, v{rs[0]}, v{rs[1]}, v{rs[2]}")
            i = 3
            while i + 1 < len(rs):
                a(f"v_max3_f32 v{d}, v{d}, v{rs[i]}, v{rs[i+1]}")
                i += 2
            if i < len(rs):
                a(f"v_max_f32 v{d}, v{d}, v{rs[i]}")
        a(f"v_max_f32 v{dst}, v{dst}, v{tmp}")
        a(f"v_mov_b32 v{tmp}, v{dst}")
        a(f"v_permlane32_swap_b32 v{dst}, v{tmp}")
        a(f"v_max_f32 v{dst}, v{dst}, v{tmp}")

    def o_voff(self, dst, tmp):
        self.a(f"""
        v_and_b32 v{dst}, 31, v0
        v_lshlrev_b32 v{dst}, 4, v{dst}
        v_lshrrev_b32 v{tmp}, 5, v0
        s_and_b32 s50, s{sH}, 1
        s_cmp_eq_u32 s50, 0
        s_cselect_b32 s51, 8, 504
        s_cselect_b32 s50, 0, 1544
        v_mad_u32_u24 v{dst}, v{tmp}, s51, v{dst}
        v_add_u32 v{dst}, s50, v{dst}
        s_lshr_b32 s50, s{sH}, 1
        s_mul_i32 s50, s50, 3584
        v_add_u32 v{dst}, s50, v{dst}
        """)

    def finalize_o(self, O, T, voff, soff, q=None):
        a = self.a
        a(f"""
        v_mov_b32 v{T}, v{O+12}
        v_mov_b32 v{T+1}, v{O+12}
        v_permlane32_swap_b32 v{T}, v{T+1}
        v_rcp_f32 v{T}, v{T+1}
        """)
        for r in range(16):
            a(f"v_mul_f32 v{O+r}, v{T}, v{O+r}")
        for r in range(8):
            a(f"v_cvt_pk_bf16_f32 v{T+2+r}, v{O+2*r}, v{O+2*r+1}")
        for i in range(4):
            if i == 3:
                a("s_mov_b32 exec_hi, 0")
            a(f"buffer_store_dwordx2 {vr(T+2+2*i,2)}, v{voff}, {sr(S_WS)}, {soff} offen offset:{512*i} sc1")
            if q is not None:
                q.push("ost")
        a("s_mov_b64 exec, -1")

    def load_qk_frag(self, dst, voff, soff, q=None, tag=None, pfx="v"):
        a = self.a
        for i in range(4):
            if i == 3:
                a("s_mov_b32 exec_hi, 0")
            a(f"buffer_load_dwordx2 {pfx}[{dst+2*i}:{dst+2*i+1}], v{voff}, {sr(S_WS)}, {soff} offen offset:{512*i}{LSC}")
            if q is not None:
                q.push(tag)
        a("s_mov_b32 exec_hi, -1")

    def srd(self, base, pair, nbytes):
        self.a(f"""
        s_mov_b32 s{base}, s{pair}
        s_and_b32 s{base+1}, s{pair+1}, 0xffff
        s_mov_b32 s{base+2}, {nbytes}
        s_mov_b32 s{base+3}, 0x20000
        """)

    def srds_first(self):
        self.a("s_waitcnt lgkmcnt(0)")
        self.srd(S_X, KA0, X_BYTES)
        if self.cfg.get("p1v", 1) == 2:
            self.a(f"""
            s_cmp_eq_u32 s{sBR}, 0
            s_cselect_b32 s{S_WA}, s{KA0+2}, s{KA0+8}
            s_cselect_b32 s{S_WA+1}, s{KA0+3}, s{KA0+9}
            s_and_b32 s{S_WA+1}, s{S_WA+1}, 0xffff
            s_mov_b32 s{S_WA+2}, {W_BYTES}
            s_mov_b32 s{S_WA+3}, 0x20000
            """)
        else:
            self.srd(S_WA, KA0 + 2, W_BYTES)

    def srds_rest(self):
        self.srd(S_WOA, KA0 + 4, WO_BYTES)
        self.srd(S_WB, KA0 + 8, W_BYTES)
        self.srd(S_WOB, KA0 + 10, WO_BYTES)
        self.srd(S_GATE, KA0 + 12, 896)
        self.srd(S_OUT, KA0 + 14, X_BYTES)
        self.srd(S_DBG, KA0 + 16, 256)
        self.srd(S_WS, KA0 + 18, WS_USED)
        self.a(f"""
        s_lshl_b32 s{sH}, s{sXCD}, 1
        s_and_b32 s50, s{sIDX}, 1
        s_add_u32 s{sH}, s{sH}, s50
        s_lshr_b32 s{sQB}, s2, 4
        s_lshl_b32 s{sRB3}, s{sXCD}, 2
        s_and_b32 s50, s{sIDX}, 3
        s_add_u32 s{sRB3}, s{sRB3}, s50
        s_lshr_b32 s{sCB3}, s{sIDX}, 2
        """)

    def build(self):
        a, cfg = self.a, self.cfg
        a.raw(".p2align 8")
        a.raw(f".type {NAME}_kernel,@function")
        a.label(f"{NAME}_kernel")
        a("""
        s_cmp_ge_u32 s2, 256
        s_cbranch_scc1 K_END
        """)
        self.stamp(0)
        a(f"""
        s_load_dwordx16 s[{KA0}:{KA0+15}], s[0:1], 0
        s_load_dwordx4 s[{KA0+16}:{KA0+19}], s[0:1], 64
        v_lshrrev_b32 v1, 6, v0
        v_and_b32 v0, 63, v0
        v_readfirstlane_b32 s{sW}, v1
        s_and_b32 s{sXCD}, s2, 7
        s_lshr_b32 s{sIDX}, s2, 3
        v_lshlrev_b32 v1, 4, v0
        """)
        if cfg.get("codepf", 1):
            a(f"""
            s_getpc_b64 s[52:53]
            """)
            a.label("PCREF")
            a(f"""
            s_sub_u32 s52, s52, PCREF-{NAME}_kernel
            s_subb_u32 s53, s53, 0
            s_and_b32 s53, s53, 0xffff
            s_mov_b32 s54, K_CODE_END-{NAME}_kernel
            s_mov_b32 s55, 0x20000
            s_lshl_b32 s50, s{sIDX}, 2
            s_add_u32 s50, s50, s{sW}
            s_lshl_b32 s50, s50, 10
            s_cmp_ge_u32 s{sW}, 4
            s_cbranch_scc1 NOPF
            buffer_load_dwordx4 v[240:243], v1, s[52:55], s50 offen
            """)
            a.label("NOPF")
        if cfg.get("p1v", 1) == 2:
            a(f"""
            s_cmp_ge_u32 s{sIDX}, 14
            s_cselect_b32 s{sBR}, 1, 0
            s_cselect_b32 s51, 14, 0
            s_sub_u32 s51, s{sIDX}, s51
            s_lshr_b32 s50, s{sXCD}, 1
            s_lshl_b32 s50, s50, 2          ; 4p
            s_and_b32 s61, s{sXCD}, 1       ; s
            s_and_b32 s{sRB}, s51, 3
            s_add_u32 s{sRB}, s{sRB}, s50
            s_lshr_b32 s{sCG}, s51, 2
            s_lshl_b32 s62, s61, 2
            s_add_u32 s{sCG}, s{sCG}, s62
            s_lshl_b32 s62, s61, 1
            s_add_u32 s62, s62, s51
            s_add_u32 s62, s62, s50
            s_sub_u32 s62, s62, 12
            s_cmp_ge_u32 s51, 12
            s_cselect_b32 s{sRB}, s62, s{sRB}
            s_cselect_b32 s{sCG}, 3, s{sCG}
            s_lshl_b32 s{sGI}, s{sXCD}, 2
            s_add_u32 s{sGI}, s{sGI}, s{sIDX}
            s_sub_u32 s{sGI}, s{sGI}, 28
            s_cmp_ge_u32 s{sIDX}, 28
            s_cselect_b32 s{sGI}, s{sGI}, -1
            """)
        elif cfg.get("p1map", 0) == 0:
            a(f"""
            s_lshr_b32 s50, s{sXCD}, 1
            s_lshl_b32 s50, s50, 3          ; 8p
            s_and_b32 s51, s{sXCD}, 1       ; s
            s_and_b32 s{sRB}, s{sIDX}, 7
            s_add_u32 s{sRB}, s{sRB}, s50
            s_lshr_b32 s{sCG}, s{sIDX}, 3
            s_lshl_b32 s61, s51, 2
            s_add_u32 s{sCG}, s{sCG}, s61
            s_sub_u32 s62, s{sIDX}, 24
            s_add_u32 s62, s62, s61
            s_add_u32 s62, s62, s50
            s_cmp_ge_u32 s{sIDX}, 24
            s_cselect_b32 s{sRB}, s62, s{sRB}
            s_cselect_b32 s{sCG}, 3, s{sCG}
            s_lshl_b32 s{sGI}, s{sXCD}, 2
            s_add_u32 s{sGI}, s{sGI}, s{sIDX}
            s_sub_u32 s{sGI}, s{sGI}, 28
            s_cmp_ge_u32 s{sIDX}, 28
            s_cselect_b32 s{sGI}, s{sGI}, -1
            """)
        else:
            a(f"""
            s_and_b32 s50, s{sXCD}, 1
            s_lshl_b32 s50, s50, 4
            s_lshr_b32 s{sRB}, s{sIDX}, 1
            s_and_b32 s{sCG}, s{sXCD}, 6
            s_and_b32 s51, s{sIDX}, 1
            s_add_u32 s{sCG}, s{sCG}, s51
            s_add_u32 s{sGI}, s50, s{sIDX}
            s_sub_u32 s{sGI}, s{sGI}, 16
            s_cmp_ge_u32 s{sXCD}, 6
            s_cselect_b32 s{sRB}, s{sIDX}, s{sRB}
            s_cselect_b32 s{sCG}, 6, s{sCG}
            s_cselect_b32 s51, s{sIDX}, 0
            s_add_u32 s{sRB}, s{sRB}, s50
            s_cmp_ge_u32 s51, 16
            s_cselect_b32 s{sGI}, s{sGI}, -1
            """)
        a(f"""
        s_cmp_lt_u32 s{sW}, 4
        s_cbranch_scc1 COMPUTE
        s_cmp_lg_u32 s{sGI}, -1
        s_cbranch_scc1 GATE_H
        """)
        if cfg.get("p1v", 1) == 2:
            self.helper_p1b()
        else:
            self.helper_p1()
        self.helper_attn()
        a.label("COMPUTE")
        self.srds_first()
        self.srds_rest()
        if cfg.get("tlb", 0):
            a(f"""
            v_and_b32 v2, 15, v0
            v_lshlrev_b32 v2, 21, v2
            v_add_u32 v2, 0x1f0000, v2
            s_mov_b32 exec_lo, 0xff
            s_mov_b32 exec_hi, 0
            buffer_load_dword v244, v2, {sr(S_WS)}, 0 offen
            s_mov_b32 exec_lo, 3
            v_mul_u32_u24 v2, {X_BYTES - 4}, v0
            buffer_load_dword v245, v2, {sr(S_OUT)}, 0 offen
            s_mov_b64 exec, -1
            """)
        if cfg.get("pfall"):
            a(f"""
            s_lshl_b32 s56, s{sIDX}, 2
            s_add_u32 s56, s56, s{sW}
            v_and_b32 v2, 31, v0
            v_lshlrev_b32 v2, 4, v2
            v_lshrrev_b32 v3, 5, v0
            s_movk_i32 s50, 896
            v_mad_u32_u24 v4, v3, s50, v2
            v_add_u32 v5, 1792, v4
            v_add_u32 v6, 3584, v4
            s_and_b32 s50, s{sXCD}, 1
            s_mul_i32 s58, s50, 384
            s_mul_i32 s50, s56, 5376
            s_add_u32 s58, s58, s50
            """)
            for i in range(cfg.get("pfall")):
                a(f"s_add_u32 s50, s58, {i*128*5376}")
                for k in range(3):
                    a(f"buffer_load_dwordx4 v[244:247], v{4+k}, {sr(S_WB)}, s50 offen")
        a(f"""
        s_cmp_lg_u32 s{sGI}, -1
        s_cbranch_scc1 GATE_WG
        """)
        if cfg.get("p1v", 1) == 2:
            self.compute_p1b()
        else:
            self.compute_p1()
        self.compute_attn()
        self.gate_wg()
        self.fallback()
        a.label("K_END")
        a("s_endpgm")
        a.label("K_CODE_END")
        return a.render()

    def p1_plan(self):
        order = self.cfg.get("order", 1)
        steps = []
        if order == 1:
            for c in range(7):
                steps.append(([(0, 1), (0, 2)], [c]))
            for cs in ([0, 1], [2, 3], [4, 5], [6]):
                steps.append(([(0, 0)], cs))
            for c in range(7):
                steps.append(([(1, 0), (1, 1), (1, 2)], [c]))
        else:
            for br in range(2):
                for c in range(7):
                    steps.append(([(br, 0), (br, 1), (br, 2)], [c]))
        u = 0
        units = []
        for pcs, cs in steps:
            m = {}
            for c in cs:
                for pc in pcs:
                    m[(pc, c)] = u % 12
                    u += 1
            units.append(m)
        LIM = self.cfg.get("inflight", 8)
        sched = {i: [] for i in range(-1, len(steps))}
        nxt, used = 0, 0
        size = [len(m) for m in units]
        for b in range(-1, len(steps)):
            live = sum(size[max(b - self.cfg.get("lag", 1), 0):nxt])
            ahead = sum(size[b + 1:nxt])
            lim = LIM if b >= self.cfg.get("ramp", 2) else self.cfg.get("inflight0", 8)
            while nxt < len(steps) and live + size[nxt] <= 12 and ahead + size[nxt] <= lim:
                sched[b].append(nxt)
                live += size[nxt]
                ahead += size[nxt]
                nxt += 1
        assert nxt == len(steps)
        return steps, units, sched

    def compute_p1(self):
        a, cfg = self.a, self.cfg
        ACC = [64, 112]
        FR = 16
        XA, WA = 4, 8
        PK = 160
        a(f"""
        s_and_b32 s56, s{sW}, 1         ; rho
        s_lshr_b32 s57, s{sW}, 1        ; c
        v_and_b32 v2, 31, v0            ; r
        v_lshrrev_b32 v3, 5, v0         ; hf
        v_bfe_u32 v10, v0, 1, 3
        v_xor_b32 v10, v10, v3
        s_lshl_b32 s50, s56, 12
        v_lshlrev_b32 v11, 7, v2
        v_add_u32 v11, s50, v11
        """)
        for sp in range(4):
            a(f"v_xor_b32 v12, {2*sp}, v10")
            a(f"v_lshl_add_u32 v{XA+sp}, v12, 4, v11")
        a(f"""
        v_and_b32 v11, 3, v0
        v_lshlrev_b32 v11, 3, v11
        v_bfe_u32 v12, v0, 4, 1
        v_lshl_add_u32 v11, v12, 5, v11
        s_lshl_b32 s50, s57, 6
        v_add_u32 v11, s50, v11
        v_bfe_u32 v12, v0, 3, 1
        v_lshlrev_b32 v12, 6, v12
        v_xor_b32 v11, v11, v12
        v_bfe_u32 v12, v0, 2, 2
        v_lshl_add_u32 v12, v3, 3, v12
        v_lshl_add_u32 v11, v12, 7, v11
        v_add_u32 v{WA}, {R2}, v11
        v_add_u32 v{WA+1}, {R2+49152}, v11
        v_lshlrev_b32 v10, 3, v2
        v_lshl_add_u32 v10, v3, 8, v10
        v_lshlrev_b32 v11, 4, v2
        s_movk_i32 s50, 7168
        v_mad_u32_u24 v11, v3, s50, v11 ; v11 = hf*7168 + (l&31)*16  (V)
        s_lshl_b32 s58, s{sRB}, 1
        s_add_u32 s58, s58, s56         ; t
        s_mul_i32 s58, s58, {TS}
        s_lshl_b32 s59, s{sCG}, 12
        s_lshl_b32 s50, s57, 11
        s_add_u32 s59, s59, s50
        s_add_u32 s59, s59, s58
        s_lshl_b32 s60, s{sCG}, 10
        s_lshl_b32 s50, s57, 9
        s_add_u32 s60, s60, s50
        s_add_u32 s60, s60, s58         ; V soffset
        s_mov_b32 s61, {QSCALE}
        """)

        steps, units, sched = self.p1_plan()
        NBUF = cfg.get("nbuf", 4)
        A0 = FR + 16 * NBUF
        ACCR = {(0, 0): A0, (0, 1): A0 + 16, (0, 2): A0 + 32, (1, 0): A0 + 48, (1, 1): A0 + 64, (1, 2): A0 + 80}
        PK = A0 + 96
        assert PK + 24 <= 208
        NT0, NT1, NE = 208, 209, 210
        ks = []
        for j, (pcs, cs) in enumerate(steps):
            for c in cs:
                for sp in range(4):
                    ks.append((j, c, sp, c == cs[0] and sp == 0))
        NK = len(ks)

        def reads(n):
            j, c, sp, _ = ks[n]
            b = FR + 16 * (n % NBUF)
            out = [f"ds_read_b128 {vr(b,4)}, v{XA+sp} offset:{c*8192}"]
            for i, pc in enumerate(steps[j][0]):
                un = units[j][(pc, c)]
                for u in range(2):
                    off = (un % 6) * 8192 + (16 * sp + 4 * u) * 128
                    out.append(f"ds_read_b64_tr_b16 {vr(b+4+4*i+2*u,2)}, v{WA + un // 6} offset:{off}")
            return out

        def mfmas(n):
            j, c, sp, _ = ks[n]
            b = FR + 16 * (n % NBUF)
            X = vr(b, 4)
            out = []
            for i, pc in enumerate(steps[j][0]):
                W = vr(b + 4 + 4 * i, 4)
                d = vr(ACCR[pc], 16)
                cin = "0" if (c == 0 and sp == 0) else d
                if pc[1] < 2:
                    out.append(f"v_mfma_f32_32x32x16_bf16 {d}, {W}, {X}, {cin}")
                else:
                    out.append(f"v_mfma_f32_32x32x16_bf16 {d}, {X}, {W}, {cin}")
            return out

        def epilogue(pc):
            br, tile = pc
            acc = ACCR[pc]
            out = []
            if tile == 0:
                for r in range(8):
                    out.append(f"v_cvt_pk_bf16_f32 v{PK+r}, v{acc+2*r}, v{acc+2*r+1}")
                for r in range(8):
                    out.append(f"v_lshlrev_b32 v{acc+2*r}, 16, v{PK+r}")
                    out.append(f"v_and_b32 v{acc+2*r+1}, 0xffff0000, v{PK+r}")
                for r in range(16):
                    out.append(f"v_mul_f32 v{acc+r}, s61, v{acc+r}")
            for r in range(8):
                out.append(f"v_cvt_pk_bf16_f32 v{PK+8*tile+r}, v{acc+2*r}, v{acc+2*r+1}")
            if tile < 2:
                out.append(f"s_add_u32 s50, s59, {br*BR + (WS_Q if tile == 0 else WS_K)}")
                for gi in range(4):
                    out.append(f"buffer_store_dwordx2 {vr(PK+8*tile+2*gi,2)}, v10, {sr(S_WS)}, s50 offen offset:{512*gi} sc1")
            else:
                for f in range(2):
                    out.append(f"s_add_u32 s50, s60, {br*BR + WS_V + f*14336}")
                    out.append(f"buffer_store_dwordx4 {vr(PK+16+4*f,4)}, v11, {sr(S_WS)}, s50 offen sc1")
            if cfg.get("exp_nost") == 1:
                out = [x for x in out if not x.startswith("buffer_store")]
            if cfg.get("exp_nost") == 2:
                out = [x.replace(" sc1", "") for x in out]
            return out

        FB = cfg.get("flag1_bar", 14)
        pend = []
        state = dict(ip=0)
        nreads = [len(reads(n)) for n in range(NK)]

        def step_barrier(jb):
            out = []
            if jb == FB:
                out.append("s_waitcnt vmcnt(0)")
            out.append("s_barrier")
            if jb == 0:
                out.append(("ST", "c0"))
            if jb == FB:
                out.append(("PUB1",))
            if jb == 6:
                out.append(f"v_mov_b32 v{NT0}, 0")
                out.append(f"buffer_load_dword v{NE}, v{NT0}, {sr(S_DBG)}, 0 offen sc1")
            if jb in (7, 11):
                out.append(("ST", f"b{jb}"))
            return out

        def advance(n):
            out = []
            while state["ip"] < NK and state["ip"] < n + NBUF and sum(nreads[max(n, 0):state["ip"] + 1]) <= 15:
                m = state["ip"]
                if ks[m][3]:
                    if ks[m][0] == FB and pend:
                        break
                    out += step_barrier(ks[m][0])
                out += reads(m)
                state["ip"] += 1
            return out

        def emit(x):
            if isinstance(x, tuple):
                if x[0] == "ST":
                    self.stamp(0, x[1])
                else:
                    self.read_nonce(early=NE, t0=NT0, t1=NT1)
                    self.publish(f"""
                    s_lshl_b32 s50, s2, 6
                    s_add_u32 s50, s50, {WS_F}
                    """, only_wave=0, t0=NT0, t1=NT1)
                    self.stamp(0, "pub1")
            else:
                a(x)

        for x in advance(-1) + advance(0):
            emit(x)
        for n in range(NK):
            j = ks[n][0]
            assert state["ip"] > n
            a(f"s_waitcnt lgkmcnt({min(15, sum(nreads[n + 1:state['ip']]))})")
            mf = mfmas(n)
            hold = False
            if n >= 1 and steps[ks[n - 1][0]][0] != steps[j][0]:
                for pc in sorted(steps[ks[n - 1][0]][0], key=lambda p: -p[1]):
                    pend += epilogue(pc)
                hold = True
            extra = []
            if pend and not hold:
                k = cfg.get("epi_rate", 12) * len(mf)
                extra, pend = pend[:k], pend[k:]
            k = (len(extra) + len(mf) - 1) // len(mf)
            early = advance(n) if False else []
            for i, m in enumerate(mf):
                if not cfg.get("exp_nomf"):
                    a(m)
                for x in extra[i * k:(i + 1) * k]:
                    a(x)
            for x in advance(n + 1):
                if cfg.get("exp_nomf") and isinstance(x, str) and x.startswith("ds_read"):
                    continue
                emit(x)
        assert not pend
        self.stamp(0, "c14")
        for pc in steps[-1][0]:
            for x in epilogue(pc):
                a(x)
        a("s_waitcnt lgkmcnt(0)")
        a("s_barrier")
        self.stamp(0, "T1")

    def p1b_plan(self):
        steps = [([1, 2], [c]) for c in range(7)] + [([0], cs) for cs in ([0, 1], [2, 3], [4, 5], [6])]
        u = 0
        units = []
        for pcs, cs in steps:
            m = {}
            for c in cs:
                for pc in pcs:
                    m[(pc, c)] = u % 6
                    u += 1
            units.append(m)
        size = [len(m) for m in units]
        sched = {i: [] for i in range(-1, len(steps))}
        nxt = 0
        for b in range(-1, len(steps)):
            live = sum(size[max(b, 0):nxt])
            lim = 6 if b >= 0 else self.cfg.get("inflight0b", 4)
            while nxt < len(steps) and live + size[nxt] <= lim:
                sched[b].append(nxt)
                live += size[nxt]
                nxt += 1
        assert nxt == len(steps)
        return steps, units, sched

    def compute_p1b(self):
        a, cfg = self.a, self.cfg
        FR = 16
        XA, WA = 4, 12
        XA2 = 236
        PK = 160
        ACCR = {(1, 0): 64, (1, 1): 80, (2, 0): 96, (2, 1): 112, (0, 0): 128, (0, 1): 144}
        a(f"""
        s_and_b32 s56, s{sW}, 1         ; rp
        s_lshr_b32 s57, s{sW}, 1        ; c
        v_and_b32 v2, 31, v0
        v_lshrrev_b32 v3, 5, v0
        v_bfe_u32 v10, v0, 1, 3
        v_xor_b32 v10, v10, v3
        s_lshl_b32 s50, s56, 13
        v_lshlrev_b32 v11, 7, v2
        v_add_u32 v11, s50, v11
        """)
        for sp in range(4):
            a(f"v_xor_b32 v13, {2*sp}, v10")
            a(f"v_lshl_add_u32 v{XA+sp}, v13, 4, v11")
            a(f"v_add_u32 v{XA2+sp}, 0x10000, v{XA+sp}")
        a(f"""
        v_and_b32 v11, 3, v0
        v_lshlrev_b32 v11, 3, v11
        v_bfe_u32 v13, v0, 4, 1
        v_lshl_add_u32 v11, v13, 5, v11
        s_lshl_b32 s50, s57, 6
        v_add_u32 v11, s50, v11
        v_bfe_u32 v13, v0, 3, 1
        v_lshlrev_b32 v13, 6, v13
        v_xor_b32 v11, v11, v13
        v_bfe_u32 v13, v0, 2, 2
        v_lshl_add_u32 v13, v3, 3, v13
        v_lshl_add_u32 v11, v13, 7, v11
        v_add_u32 v{WA}, {RW}, v11
        v_lshlrev_b32 v10, 3, v2
        v_lshl_add_u32 v10, v3, 8, v10
        v_lshlrev_b32 v11, 4, v2
        s_movk_i32 s50, 7168
        v_mad_u32_u24 v11, v3, s50, v11 ; hf*7168 + (l&31)*16
        s_lshl_b32 s58, s{sRB}, 2
        s_lshl_b32 s50, s56, 1
        s_add_u32 s58, s58, s50         ; t0
        s_mul_i32 s58, s58, {TS}
        s_mul_i32 s50, s{sBR}, {BR}
        s_add_u32 s58, s58, s50
        s_lshl_b32 s59, s{sCG}, 12
        s_lshl_b32 s50, s57, 11
        s_add_u32 s59, s59, s50
        s_add_u32 s59, s59, s58         ; Q/K soffset
        s_lshl_b32 s60, s{sCG}, 10
        s_lshl_b32 s50, s57, 9
        s_add_u32 s60, s60, s50
        s_add_u32 s60, s60, s58         ; V soffset
        s_mov_b32 s61, {QSCALE}
        """)
        steps, units, sched = self.p1b_plan()
        ks = []
        for j, (pcs, cs) in enumerate(steps):
            for c in cs:
                for sp in range(4):
                    ks.append((j, c, sp, c == cs[0] and sp == 0))
        NK = len(ks)

        def reads(n):
            j, c, sp, _ = ks[n]
            b = FR + 16 * (n % 2)
            xa, off = (XA + sp, c * 16384) if c < 4 else (XA2 + sp, (c - 4) * 16384)
            out = [f"ds_read_b128 {vr(b,4)}, v{xa} offset:{off}", f"ds_read_b128 {vr(b+4,4)}, v{xa} offset:{off+4096}"]
            for i, pc in enumerate(steps[j][0]):
                un = units[j][(pc, c)]
                for u in range(2):
                    out.append(f"ds_read_b64_tr_b16 {vr(b+8+4*i+2*u,2)}, v{WA} offset:{un*8192 + (16*sp+4*u)*128}")
            return out

        def mfmas(n):
            j, c, sp, _ = ks[n]
            b = FR + 16 * (n % 2)
            out = []
            for i, pc in enumerate(steps[j][0]):
                W = vr(b + 8 + 4 * i, 4)
                for rho in range(2):
                    X = vr(b + 4 * rho, 4)
                    d = vr(ACCR[(pc, rho)], 16)
                    cin = "0" if (c == 0 and sp == 0) else d
                    if pc < 2:
                        out.append(f"v_mfma_f32_32x32x16_bf16 {d}, {W}, {X}, {cin}")
                    else:
                        out.append(f"v_mfma_f32_32x32x16_bf16 {d}, {X}, {W}, {cin}")
            return out

        def epilogue(pc, rho):
            acc = ACCR[(pc, rho)]
            pk = PK + 8 * ((2 * pc + rho) % 3)
            out = []
            if pc == 0:
                for r in range(8):
                    out.append(f"v_cvt_pk_bf16_f32 v{pk+r}, v{acc+2*r}, v{acc+2*r+1}")
                for r in range(8):
                    out.append(f"v_lshlrev_b32 v{acc+2*r}, 16, v{pk+r}")
                    out.append(f"v_and_b32 v{acc+2*r+1}, 0xffff0000, v{pk+r}")
                for r in range(16):
                    out.append(f"v_mul_f32 v{acc+r}, s61, v{acc+r}")
            for r in range(8):
                out.append(f"v_cvt_pk_bf16_f32 v{pk+r}, v{acc+2*r}, v{acc+2*r+1}")
            if pc < 2:
                out.append(f"s_add_u32 s50, s59, {(WS_Q if pc == 0 else WS_K) + rho*TS}")
                for gi in range(4):
                    out.append(f"buffer_store_dwordx2 {vr(pk+2*gi,2)}, v10, {sr(S_WS)}, s50 offen offset:{512*gi} sc1")
            else:
                for f in range(2):
                    out.append(f"s_add_u32 s50, s60, {WS_V + f*14336 + rho*TS}")
                    out.append(f"buffer_store_dwordx4 {vr(pk+4*f,4)}, v11, {sr(S_WS)}, s50 offen sc1")
            return out

        pend = []
        a("s_barrier")
        self.stamp(0, "c0")
        for x in reads(0):
            a(x)
        for n in range(NK):
            j = ks[n][0]
            nxt = reads(n + 1) if n + 1 < NK else []
            first = n + 1 < NK and ks[n + 1][3]
            if first:
                jb = ks[n + 1][0]
                a("s_waitcnt lgkmcnt(0)")
                a("s_barrier")
                if jb == 4:
                    a("v_mov_b32 v188, 0")
                    a(f"buffer_load_dword v190, v188, {sr(S_DBG)}, 0 offen sc1")
                if jb == 7:
                    self.stamp(0, "b7")
                    a("s_waitcnt vmcnt(0)")
                    self.read_nonce(early=190, t0=188, t1=189)
                    self.publish(f"""
                    s_xor_b32 s51, s{sBR}, 1
                    s_lshl_b32 s51, s51, 14
                    s_lshl_b32 s50, s2, 6
                    s_add_u32 s50, s50, s51
                    s_add_u32 s50, s50, {WS_F}
                    """, only_wave=0, t0=188, t1=189)
                fill = list(nxt)
            else:
                for x in nxt:
                    a(x)
                a(f"s_waitcnt lgkmcnt({len(nxt)})")
                fill = []
            mf = mfmas(n)
            hold = False
            if n >= 1 and steps[ks[n - 1][0]][0] != steps[j][0]:
                for pc in (2, 1):
                    for rho in range(2):
                        pend += epilogue(pc, rho)
                hold = True
            extra = []
            if pend and not hold:
                k = cfg.get("epi_rate_b", 5) * len(mf)
                extra, pend = pend[:k], pend[k:]
            fill = fill + extra
            k = (len(fill) + len(mf) - 1) // len(mf)
            for i, m in enumerate(mf):
                a(m)
                for x in fill[i * k:(i + 1) * k]:
                    a(x)
        assert not pend
        self.stamp(0, "c14")
        for rho in range(2):
            for x in epilogue(0, rho):
                a(x)
        a("s_waitcnt vmcnt(0) lgkmcnt(0)")
        a("s_barrier")
        self.publish(f"""
        s_lshl_b32 s51, s{sBR}, 14
        s_lshl_b32 s50, s2, 6
        s_add_u32 s50, s50, s51
        s_add_u32 s50, s50, {WS_F}
        """, only_wave=0, t0=188, t1=189)
        self.stamp(0, "pub1")
        a("s_barrier")
        self.stamp(0, "T1")

    def helper_p1b(self):
        a, cfg = self.a, self.cfg
        a.label("HELPER")
        a(f"""
        s_setprio {cfg.get('hprio', 1)}
        s_sub_u32 s56, s{sW}, 4         ; j
        v_lshrrev_b32 v2, 3, v0
        v_and_b32 v3, 7, v0
        v_lshrrev_b32 v4, 4, v0
        v_xor_b32 v8, v3, v4
        v_lshlrev_b32 v8, 4, v8
        s_movk_i32 s50, 896
        v_mad_u32_u24 v5, v2, s50, v8
        v_xor_b32 v6, 64, v5
        v_and_b32 v4, 1, v4
        v_lshlrev_b32 v4, 2, v4
        v_xor_b32 v8, v3, v4
        v_lshlrev_b32 v8, 4, v8
        s_movk_i32 s50, 2688
        v_mad_u32_u24 v7, v2, s50, v8
        s_lshl_b32 s57, s{sRB}, 7
        s_lshl_b32 s50, s56, 5
        s_add_u32 s57, s57, s50
        s_mul_i32 s57, s57, 896
        s_lshl_b32 s58, s{sCG}, 7
        s_mul_i32 s50, s56, 43008
        s_add_u32 s58, s58, s50         ; W base
        s_lshl_b32 s59, s56, 11
        s_lshl_b32 s60, s56, 12
        """)
        self.srds_first()
        q = VmQ()
        self.hq = q
        steps, units, sched = self.p1b_plan()
        xdone = set()

        def issue(j):
            pcs, cs = steps[j]
            for c in cs:
                if c not in xdone:
                    xdone.add(c)
                    for i in range(4):
                        a(f"s_add_u32 s50, s57, {8*i*896 + 128*c}")
                        a(f"s_add_u32 m0, s60, {c*16384 + 8*i*128}")
                        a(f"buffer_load_dwordx4 v{5+(i&1)}, {sr(S_X)}, s50 offen lds")
                        q.push(("c", j))
                for part in pcs:
                    un = units[j][(part, c)]
                    for ii in range(2):
                        a(f"s_add_u32 s50, s58, {part*896 + (64*c + 8*ii)*2688}")
                        a(f"s_add_u32 m0, s59, {RW + un*8192 + 8*ii*128}")
                        a(f"buffer_load_dwordx4 v7, {sr(S_WA)}, s50 offen lds")
                        q.push(("c", j))

        for j in sched[-1]:
            issue(j)
        self.srds_rest()
        self.get_nonce()
        for b in range(len(steps)):
            n = q.wait_for(("c", b))
            if n is not None:
                a(f"s_waitcnt vmcnt({n})")
            a("s_barrier")
            for j in sched[b]:
                issue(j)
            if b == 6:
                a(f"v_mov_b32 v12, 0")
                a(f"buffer_load_dword v14, v12, {sr(S_DBG)}, 0 offen sc1")
                q.push("non")
        a("s_barrier")
        self.stamp(1, "poll1")
        a("s_waitcnt vmcnt(0)")
        self.read_nonce(early=14)
        self.poll_all(0)
        self.stamp(1, "got1")
        q.clear()
        a("s_barrier")

    def attn_setup_and_q(self):
        a = self.a
        Q = 192
        a(f"""
        v_and_b32 v224, 31, v0
        v_lshrrev_b32 v225, 5, v0
        v_lshlrev_b32 v224, 3, v224
        v_lshl_add_u32 v224, v225, 8, v224
        v_add_u32 v225, {QL}, v224
        """)

    def compute_attn(self):
        a, cfg = self.a, self.cfg
        Q, O, S, P, NM, T, KV = 192, 48, 112, 144, 152, 156, 16
        KA, VA = 226, 232
        self.regs = dict(Q=Q, O=O, S=S, P=P, NM=NM, T=T, KV=KV)
        a.label("ATT_C_ENTRY")
        self.attn_setup_and_q()
        a(f"s_lshl_b32 s50, s{sW}, 13")
        for sl in range(3):
            for kk in range(2):
                a(f"v_add_u32 v{KA+2*sl+kk}, s50, v224")
                a(f"v_add_u32 v{KA+2*sl+kk}, {R2 + (SLOT_TS[sl]+kk)*4096}, v{KA+2*sl+kk}")
        a(f"""
        v_add_u32 v{VA}, s50, v1
        v_add_u32 v{VA+1}, {R2 + 65536 + 2048}, v{VA}
        v_add_u32 v{VA}, {R2 + 2048}, v{VA}
        """)
        self.o_voff(2, 3)
        a(f"""
        s_lshl_b32 s56, s{sQB}, 2
        s_add_u32 s56, s56, s{sW}
        s_mul_i32 s56, s56, {TS}
        s_add_u32 s56, s56, {WS_OA}
        """)

        def kv_reads(t):
            k, kk = divmod(t, 2)
            sl = k % 3
            b = KV + 16 * (t % 2)
            ts = SLOT_TS[sl] + kk
            out = []
            for f in range(2):
                out.append(f"ds_read2_b64 {vr(b+4*f,4)}, v{KA+2*sl+kk} offset0:{128*f} offset1:{128*f+64}")
            for f in range(2):
                vb, off = (VA, ts * 4096) if ts < 16 else (VA + 1, (ts - 16) * 4096)
                out.append(f"ds_read_b128 {vr(b+8+4*f,4)}, v{vb} offset:{off + 1024*f}")
            return out

        def qk(u, buf):
            t, j = divmod(u, 4)
            b = KV + 16 * (t % 2)
            d = vr(S + 16 * buf, 16)
            return (f"v_mfma_f32_32x32x16_bf16 {d}, {vr(b,4)}, {vr(Q+8*j,4)}, 0",
                    f"v_mfma_f32_32x32x16_bf16 {d}, {vr(b+4,4)}, {vr(Q+8*j+4,4)}, {d}")

        def pv(u, half):
            t, j = divmod(u, 4)
            b = KV + 16 * (t % 2)
            d = vr(O + 16 * j, 16)
            c = "0" if (t == 0 and half == 0) else d
            return f"v_mfma_f32_32x32x16_bf16 {d}, {vr(b+8+4*half,4)}, {vr(P+4*half,4)}, {c}"

        def part_write(j):
            out = ["s_mov_b32 exec_lo, 0", f"v_mov_b32 v{O+16*j+13}, v{NM+j}", "s_mov_b32 exec_lo, -1"]
            for qd in range(4):
                out.append(f"ds_write_b128 v{PW}, {vr(O+16*j+4*qd,4)} offset:{j*4096 + qd*1024}")
            return out
        self.part_write = part_write
        PW = 234
        a(f"s_lshl_b32 s50, s{sW}, 14")
        a(f"v_add_u32 v{PW}, s50, v1")
        a(f"v_add_u32 v{PW}, {CB}, v{PW}")
        if cfg.get("p1v", 1) != 2:
            a("s_waitcnt vmcnt(0)")
        self.stamp(0, "preS0")
        a("s_barrier")
        self.stamp(0, "S0")
        if cfg.get("p1v", 1) != 2:
            self.publish(f"""
            s_lshl_b32 s50, s2, 6
            s_add_u32 s50, s50, {WS_F + 0x4000}
            """, only_wave=0, t0=188, t1=189)
        F2B = -1
        a(f"v_add_u32 v3, 4096, v225")
        for j in range(4):
            for f in range(2):
                o0 = (j & 1) * 256 + 128 * f
                if o0 + 64 > 255:
                    a(f"v_add_u32 v4, {j*2048}, v225")
                    a(f"ds_read2_b64 {vr(Q+8*j+4*f,4)}, v4 offset0:{128*f} offset1:{128*f+64}")
                else:
                    a(f"ds_read2_b64 {vr(Q+8*j+4*f,4)}, v{225 if j < 2 else 3} offset0:{o0} offset1:{o0+64}")
        for x in kv_reads(0):
            a(x)
        a("s_waitcnt lgkmcnt(0)")
        a("s_mov_b32 exec_lo, 0")
        for j in range(4):
            a(f"v_mov_b32 v{Q+8*j+6}, 0")
            a(f"v_mov_b32 v{Q+8*j+7}, 0")
        a("s_mov_b32 exec_lo, -1")
        scr = [S, S + 16, O, O + 16]
        for j in range(4):
            d = vr(scr[j], 16)
            a(f"v_mfma_f32_32x32x16_bf16 {d}, {vr(KV,4)}, {vr(Q+8*j,4)}, 0")
            a(f"v_mfma_f32_32x32x16_bf16 {d}, {vr(KV+4,4)}, {vr(Q+8*j+4,4)}, {d}")
        for j in range(4):
            self.max_tree([scr[j] + r for r in range(16)], T + 2 * j, T + 2 * j + 1)
        for j in range(4):
            a(f"v_add_f32 v{T+2*j}, {f32bits(40.0)}, v{T+2*j}")
        for j in range(4):
            a(f"v_cvt_pk_bf16_f32 v{T+2*j+1}, -v{T+2*j}, 0")
        a("s_mov_b32 exec_lo, 0")
        for j in range(4):
            a(f"v_mov_b32 v{Q+8*j+6}, v{T+2*j+1}")
        a("s_mov_b32 exec_lo, -1")
        for j in range(4):
            a(f"v_lshlrev_b32 v{NM+j}, 16, v{T+2*j+1}")
        self.stamp(0, "att0")
        m0, m1 = qk(0, 0)
        a(m0)
        a(m1)
        for u in range(64):
            t, j = divmod(u, 4)
            sb = S + 16 * (u & 1)
            slots = [None] * 4
            post = [[] for _ in range(4)]
            if u + 1 < 64:
                slots[0], slots[1] = qk(u + 1, (u + 1) & 1)
            if u >= 1:
                slots[2] = pv(u - 1, 1)
            slots[3] = pv(u, 0)
            if t + 1 < 16:
                rd = kv_reads(t + 1)
                if j == 0 and t % 2 == 1:
                    if t == 2 * F2B - 1:
                        post[2].append("s_waitcnt vmcnt(0)")
                    post[2].append("s_barrier")
                    if cfg.get("ststage"):
                        post[2].append(("ST", f"S{(t+1)//2}"))
                    if t == 2 * F2B - 1:
                        post[2].append("PUB2")
                if j == 0:
                    post[3].append(rd[0])
                if j == 1:
                    post[0].append(rd[1])
                    post[1].append(rd[2])
                    post[2].append(rd[3])
                if j == 2:
                    post[3].append("s_waitcnt lgkmcnt(0)")
            if u >= 62:
                pwl = part_write(u - 62)
                post[0] += pwl[:4]
                post[1] += pwl[4:5]
                post[2] += pwl[5:6]
                post[3] += pwl[6:7]
            for g in range(4):
                r = 4 * g
                a(f"v_exp_f32 v{sb+r}, v{sb+r}")
                a(f"v_exp_f32 v{sb+r+1}, v{sb+r+1}")
                if slots[g]:
                    a(slots[g])
                for x in post[g]:
                    if isinstance(x, tuple):
                        self.stamp(0, x[1])
                    elif x == "PUB2":
                        self.publish(f"""
                        s_lshl_b32 s50, s2, 6
                        s_add_u32 s50, s50, {WS_F + 0x4000}
                        """, only_wave=0, t0=188, t1=189)
                    else:
                        a(x)
                a(f"v_exp_f32 v{sb+r+2}, v{sb+r+2}")
                a(f"v_exp_f32 v{sb+r+3}, v{sb+r+3}")
                a(f"v_cvt_pk_bf16_f32 v{P+2*g}, v{sb+r}, v{sb+r+1}")
                a(f"v_cvt_pk_bf16_f32 v{P+2*g+1}, v{sb+r+2}, v{sb+r+3}")
        a(pv(63, 1))
        self.stamp(0, "attE")
        for x in part_write(2) + part_write(3):
            a(x)
        a(f"""
        s_mov_b32 s50, {f32bits(2.0**-60)}
        s_mov_b32 s51, {f32bits(2.0**64)}
        s_mov_b64 s[52:53], -1
        """)
        for j in range(4):
            a(f"v_cmp_lt_f32 vcc, s50, v{O+16*j+12}")
            a("s_and_b64 s[52:53], s[52:53], vcc")
            a(f"v_cmp_gt_f32 vcc, s51, v{O+16*j+12}")
            a("s_and_b64 s[52:53], s[52:53], vcc")
        a("""
        s_cmp_eq_u32 s53, -1
        s_cbranch_scc0 FALLBACK
        """)
        a.label("COMBINE")
        a(f"""
        s_lshl_b32 s50, s{sW}, 12
        v_add_u32 v5, s50, v1
        v_add_u32 v5, {CB}, v5
        s_waitcnt lgkmcnt(0)
        s_barrier
        """)
        self.stamp(0, "C1")
        for k in range(4):
            for qd in range(4):
                a(f"ds_read_b128 {vr(O+16*k+4*qd,4)}, v5 offset:{k*16384 + qd*1024}")
        a("s_waitcnt lgkmcnt(0)")
        for k in range(4):
            a(f"v_mov_b32 v{T+2*k}, v{O+16*k+13}")
            a(f"v_mov_b32 v{T+2*k+1}, v{O+16*k+13}")
        for k in range(4):
            a(f"v_permlane32_swap_b32 v{T+2*k}, v{T+2*k+1}")
        a(f"v_min3_f32 v{T}, v{T+1}, v{T+3}, v{T+5}")
        a(f"v_min_f32 v{T}, v{T}, v{T+7}")
        for k in range(4):
            a(f"v_sub_f32 v{T+2*k+1}, v{T}, v{T+2*k+1}")
        for k in range(4):
            a(f"v_exp_f32 v{T+2*k+1}, v{T+2*k+1}")
        for r in range(16):
            a(f"v_mul_f32 v{O+r}, v{T+1}, v{O+r}")
        for k in range(1, 4):
            for r in range(16):
                a(f"v_fmac_f32 v{O+r}, v{T+2*k+1}, v{O+16*k+r}")
        self.finalize_o(O, T + 8, 2, "s56")
        a(f"""
        v_mov_b32 v188, {QL + 1792}
        v_mov_b32 v189, 1
        s_mov_b64 exec, 1
        ds_add_u32 v188, v189
        s_mov_b64 exec, -1
        """)
        a(f"""
        s_lshl_b32 s50, s{sQB}, 2
        s_add_u32 s50, s50, s{sW}
        s_lshl_b32 s50, s50, 4
        s_add_u32 s50, s50, s{sH}
        s_lshl_b32 s50, s50, 6
        s_add_u32 s50, s50, {WS_F + 0x10000}
        v_mov_b32 v188, 0
        v_mov_b32 v189, s{sNONCE}
        s_waitcnt vmcnt(0)
        s_mov_b64 exec, 1
        buffer_store_dword v189, v188, {sr(S_WS)}, s50 offen sc1
        s_mov_b64 exec, -1
        """)
        self.stamp(0, "pub3")
        a(f"s_cmp_ge_u32 s{sIDX}, 28")
        a("s_cbranch_scc1 C_DONE")
        a("s_barrier")
        self.oa_dma()
        a("s_waitcnt vmcnt(0)")
        a("s_barrier")
        a.label("C_DONE")
        self.stamp(0, "end")
        self.stamp_flush(14, 0)
        a("s_endpgm")

    def oa_dma(self):
        a = self.a
        a(f"""
        s_lshl_b32 s50, s{sRB3}, 1
        s_mul_i32 s50, s50, {TS}
        s_mul_i32 s51, s{sW}, 7168
        s_add_u32 s50, s50, s51
        s_add_u32 s50, s50, {WS_OA}
        s_add_u32 s52, s50, 4096
        s_add_u32 m0, s51, {OAL}
        """)
        for i in range(7):
            if i == 4:
                a(f"s_add_u32 m0, s51, {OAL + 4096}")
            a(f"buffer_load_dwordx4 v1, {sr(S_WS)}, {'s50' if i < 4 else 's52'} offen offset:{(i%4)*1024}{LSC} lds")

    def fallback(self):
        a = self.a
        R = self.regs
        Q, O, S, P, NM, T, KV = R["Q"], R["O"], R["S"], R["P"], R["NM"], R["T"], R["KV"]
        a.label("FALLBACK")
        a("s_nop 15")
        a(f"""
        v_and_b32 v5, 31, v0
        v_lshrrev_b32 v6, 5, v0
        v_lshlrev_b32 v5, 4, v5
        s_movk_i32 s50, 7168
        v_mad_u32_u24 v5, v6, s50, v5          ; V voffset
        s_lshl_b32 s57, s{sW}, 4
        s_mul_i32 s57, s57, {TS}
        s_mul_i32 s50, s{sH}, 1792
        s_add_u32 s58, s57, s50
        s_add_u32 s58, s58, {WS_K}
        s_mul_i32 s50, s{sH}, 448
        s_add_u32 s59, s57, s50
        s_add_u32 s59, s59, {WS_V}
        s_mov_b32 exec_lo, 0
        """)
        for j in range(4):
            a(f"v_mov_b32 v{Q+8*j+6}, 0")
        a(f"v_mov_b32 v{KV+6}, 0")
        a(f"v_mov_b32 v{KV+7}, 0")
        a("s_mov_b32 exec_lo, -1")
        for r in range(8):
            a(f"v_mov_b32 v{KV+8+r}, 0")
        a("s_mov_b32 exec_lo, 0x10000000")
        a("s_mov_b32 exec_hi, 0x10000000")
        for r in range(8):
            a(f"v_mov_b32 v{KV+8+r}, 0x3f803f80")
        a("s_mov_b64 exec, -1")
        for j in range(4):
            a(f"v_mov_b32 v{NM+j}, {f32bits(3.0e38)}")
            for r in range(16):
                a(f"v_mov_b32 v{O+16*j+r}, 0")
        a("s_mov_b32 s57, 0")
        a.label("FB_LOOP")
        self.load_qk_frag(KV, 224, "s58")
        a(f"""
        s_add_u32 s50, s59, 14336
        s_mov_b32 exec_lo, 0x0fffffff
        s_mov_b32 exec_hi, 0x0fffffff
        buffer_load_dwordx4 {vr(KV+8,4)}, v5, {sr(S_WS)}, s59 offen{LSC}
        buffer_load_dwordx4 {vr(KV+12,4)}, v5, {sr(S_WS)}, s50 offen{LSC}
        s_mov_b64 exec, -1
        s_waitcnt vmcnt(0)
        """)
        for j in range(4):
            d = vr(S, 16)
            a(f"v_mfma_f32_32x32x16_bf16 {d}, {vr(KV,4)}, {vr(Q+8*j,4)}, 0")
            a(f"v_mfma_f32_32x32x16_bf16 {d}, {vr(KV+4,4)}, {vr(Q+8*j+4,4)}, {d}")
            self.max_tree([S + r for r in range(16)], T, T + 1)
            a(f"v_min_f32 v{T+1}, v{NM+j}, -v{T}")
            a(f"v_sub_f32 v{T+2}, v{T+1}, v{NM+j}")
            a(f"v_exp_f32 v{T+2}, v{T+2}")
            a(f"v_mov_b32 v{NM+j}, v{T+1}")
            for r in range(16):
                a(f"v_add_f32 v{S+r}, v{S+r}, v{T+1}")
            for r in range(16):
                a(f"v_exp_f32 v{S+r}, v{S+r}")
            for r in range(16):
                a(f"v_mul_f32 v{O+16*j+r}, v{T+2}, v{O+16*j+r}")
            for r in range(8):
                a(f"v_cvt_pk_bf16_f32 v{P+r}, v{S+2*r}, v{S+2*r+1}")
            o = vr(O + 16 * j, 16)
            a(f"v_mfma_f32_32x32x16_bf16 {o}, {vr(KV+8,4)}, {vr(P,4)}, {o}")
            a(f"v_mfma_f32_32x32x16_bf16 {o}, {vr(KV+12,4)}, {vr(P+4,4)}, {o}")
        a(f"""
        s_nop 15
        s_add_u32 s58, s58, {TS}
        s_add_u32 s59, s59, {TS}
        s_add_u32 s57, s57, 1
        s_cmp_lt_u32 s57, 16
        s_cbranch_scc1 FB_LOOP
        """)
        for j in range(4):
            for x in self.part_write(j):
                a(x)
        a("s_branch COMBINE")

    def helper_p1(self):
        a, cfg = self.a, self.cfg
        a.label("HELPER")
        a(f"s_setprio {cfg.get('hprio', 1)}")
        a(f"""
        s_sub_u32 s56, s{sW}, 4         ; j
        v_lshrrev_b32 v2, 3, v0
        v_and_b32 v3, 7, v0
        v_lshrrev_b32 v4, 4, v0
        v_xor_b32 v8, v3, v4
        v_lshlrev_b32 v8, 4, v8
        s_movk_i32 s50, 896
        v_mad_u32_u24 v5, v2, s50, v8
        v_xor_b32 v6, 64, v5
        v_and_b32 v4, 1, v4
        v_lshlrev_b32 v4, 2, v4
        v_xor_b32 v8, v3, v4
        v_lshlrev_b32 v8, 4, v8
        s_movk_i32 s50, 2688
        v_mad_u32_u24 v7, v2, s50, v8   ; W voff
        s_lshl_b32 s57, s{sRB}, 6
        s_lshl_b32 s50, s56, 4
        s_add_u32 s57, s57, s50
        s_mul_i32 s57, s57, 896
        s_lshl_b32 s58, s{sCG}, 7
        s_mul_i32 s50, s56, 43008
        s_add_u32 s58, s58, s50         ; W base
        s_lshl_b32 s59, s56, 11
        """)
        self.srds_first()
        q = VmQ()
        self.hq = q

        steps, units, sched = self.p1_plan()
        xdone = set()

        def issue(j):
            pcs, cs = steps[j]
            for c in cs:
                if c not in xdone:
                    xdone.add(c)
                    for i in range(2):
                        a(f"s_add_u32 s50, s57, {8*i*896 + 128*c}")
                        a(f"s_add_u32 m0, s59, {R1 + c*8192 + 8*i*128}")
                        a(f"buffer_load_dwordx4 v{5+i}, {sr(S_X)}, s50 offen lds")
                        q.push(("c", j))
                for (br, part) in pcs:
                    un = units[j][((br, part), c)]
                    for ii in range(2):
                        a(f"s_add_u32 s50, s58, {part*896 + (64*c + 8*ii)*2688}")
                        a(f"s_add_u32 m0, s59, {R2 + un*8192 + 8*ii*128}")
                        a(f"buffer_load_dwordx4 v7, {sr(S_WA if (br == 0 or cfg.get('exp_wa')) else S_WB)}, s50 offen lds")
                        q.push(("c", j))

        for j in sched[-1]:
            issue(j)
        self.srds_rest()
        self.get_nonce()
        for b in range(len(steps)):
            n = q.wait_for(("c", b))
            if n is not None:
                a(f"s_waitcnt vmcnt({n})")
            a("s_barrier")
            for j in sched[b]:
                issue(j)
            if b == 9:
                a(f"v_mov_b32 v12, 0")
                a(f"buffer_load_dword v14, v12, {sr(S_DBG)}, 0 offen sc1")
                q.push("non")
            if b == len(steps) - 2 and cfg.get("qearly", 1):
                self.read_nonce(early=14)
                a(f"""
                s_lshl_b32 s60, s{sQB}, 1
                s_lshr_b32 s50, s56, 1
                s_add_u32 s60, s60, s50
                s_mul_i32 s61, s{sH}, 28
                v_mov_b32 v12, 0
                s_mov_b64 exec, 1
                """)
                for i, add in enumerate((0, 27)):
                    a(f"""
                    s_add_u32 s50, s61, {add}
                    s_lshr_b32 s50, s50, 6          ; cg
                    s_and_b32 s51, s50, 3
                    s_lshl_b32 s51, s51, 3
                    s_and_b32 s52, s60, 7
                    s_add_u32 s51, s51, s52
                    s_lshr_b32 s52, s50, 2          ; s
                    s_and_b32 s53, s60, 3
                    s_add_u32 s53, s53, 24
                    s_bfe_u32 s54, s60, 0x10002
                    s_cmp_eq_u32 s50, 3
                    s_cselect_b32 s51, s53, s51
                    s_cselect_b32 s52, s54, s52
                    s_lshl_b32 s51, s51, 3
                    s_add_u32 s51, s51, s52
                    s_lshr_b32 s52, s60, 3
                    s_lshl_b32 s52, s52, 1
                    s_add_u32 s51, s51, s52
                    s_lshl_b32 s51, s51, 6
                    s_add_u32 s51, s51, {WS_F}
                    buffer_load_dword v{140+i}, v12, {sr(S_WS)}, s51 offen sc1
                    """)
                    q.push("qp")
                a("s_mov_b64 exec, -1")
        self.stamp(1, "poll1")
        a("s_waitcnt vmcnt(0)")
        a(f"s_mov_b32 s{sQE}, 0")
        if cfg.get("qearly", 1):
            noq = self.lab("NOQ")
            a(f"""
            v_readfirstlane_b32 s50, v140
            v_readfirstlane_b32 s51, v141
            s_cmp_lg_u32 s50, s{sNONCE}
            s_cbranch_scc1 {noq}
            s_cmp_lg_u32 s51, s{sNONCE}
            s_cbranch_scc1 {noq}
            s_mov_b32 s{sQE}, 1
            """)
            self.q_dma_code()
            a.label(noq)
        else:
            self.read_nonce(early=14)
        self.poll_all(0, drain=False)
        self.stamp(1, "got1")
        q.clear()
        a("s_barrier")

    def q_dma_code(self):
        a = self.a
        skip, one = self.lab("QSK"), self.lab("QONE")
        a(f"""
        s_cmp_eq_u32 s{sW}, 4
        s_cbranch_scc1 {skip}
        s_sub_u32 s52, s{sW}, 4
        """)
        for rep in range(2):
            a(f"""
            s_lshl_b32 s50, s{sQB}, 2
            s_add_u32 s50, s50, s52
            s_mul_i32 s50, s50, {TS}
            s_mul_i32 s51, s{sH}, 1792
            s_add_u32 s50, s50, s51
            s_lshl_b32 s51, s52, 11
            s_add_u32 m0, s51, {QL}
            buffer_load_dwordx4 v1, {sr(S_WS)}, s50 offen{LSC} lds
            s_mov_b32 exec_hi, 0xffff
            buffer_load_dwordx4 v1, {sr(S_WS)}, s50 offen offset:1024{LSC} lds
            s_mov_b32 exec_hi, -1
            """)
            if rep == 0:
                a(f"""
                s_cmp_lg_u32 s{sW}, 5
                s_cbranch_scc1 {skip}
                s_mov_b32 s52, 0
                """)
        a.label(skip)

    def helper_attn(self):
        a, cfg = self.a, self.cfg
        q = self.hq
        a.label("ATT_H_ENTRY")
        VMASK = "s_mov_b32 exec_lo, 0x0fffffff\ns_mov_b32 exec_hi, 0x0fffffff"
        a(f"""
        s_sub_u32 s56, s{sW}, 4         ; j
        v_and_b32 v2, 31, v0
        v_lshrrev_b32 v3, 5, v0
        v_lshlrev_b32 v4, 4, v2
        s_movk_i32 s50, 7168
        v_mad_u32_u24 v4, v3, s50, v4   ; v4 = V voffset
        v_lshlrev_b32 v5, 3, v2
        v_lshl_add_u32 v5, v3, 8, v5
        s_lshl_b32 s57, s56, 4
        s_mul_i32 s57, s57, {TS}
        s_mul_i32 s50, s{sH}, 1792
        s_add_u32 s58, s57, s50
        s_add_u32 s58, s58, {WS_K}      ; K stream
        s_mul_i32 s50, s{sH}, 448
        s_add_u32 s59, s57, s50
        s_add_u32 s59, s59, {WS_V}      ; V stream
        s_lshl_b32 s60, s56, 13         ; j*8192 lds
        v_lshlrev_b32 v6, 3, v0
        v_add_u32 v6, s60, v6
        v_add_u32 v6, {R2 + 1792}, v6
        v_mov_b32 v8, 0x3f80
        v_mov_b32 v9, 0
        v_and_b32 v7, 3, v0
        v_cmp_eq_u32 vcc, 0, v7
        v_mov_b32 v16, 0
        v_mov_b32 v17, 0x3f803f80
        v_cndmask_b32 v16, v16, v17, vcc
        v_mov_b32 v17, v16
        v_mov_b32 v18, v16
        v_mov_b32 v19, v16
        v_bfe_u32 v10, v0, 2, 1         ; hf
        v_lshl_add_u32 v7, v10, 5, v7
        v_bfe_u32 v10, v0, 3, 1         ; f
        v_lshl_add_u32 v7, v10, 6, v7
        v_lshlrev_b32 v7, 4, v7
        v_add_u32 v7, s60, v7
        v_add_u32 v7, {R2 + 2048 + 448}, v7
        """)

        def consts(sl):
            for kk in range(2):
                off = (SLOT_TS[sl] + kk) * 4096
                vb6, vb7, o = 6, 7, off
                if off > 60000:
                    a(f"v_add_u32 v10, {off}, v6")
                    a(f"v_add_u32 v11, {off}, v7")
                    vb6, vb7, o = 10, 11, 0
                a("s_mov_b32 exec_hi, 0")
                a(f"ds_write_b64 v{vb6}, v[8:9] offset:{o}")
                a("s_mov_b32 exec_lo, 0xffff")
                a(f"ds_write_b128 v{vb7}, v[16:19] offset:{o}")
                a("s_mov_b64 exec, -1")

        def stage(k):
            sl = k % 3
            for kk in range(2):
                base = R2 + (SLOT_TS[sl] + kk) * 4096
                if kk == 0:
                    a(f"s_add_u32 s51, s{sQB}, {k}")
                    a("s_and_b32 s51, s51, 7")
                    a(f"s_mul_i32 s51, s51, {2*TS*cfg.get('rotkv', 0)}")
                    if not cfg.get('rotkv', 0):
                        a(f"s_mov_b32 s51, {2*k*TS}")
                    a("s_add_u32 s52, s51, s58")
                    a("s_add_u32 s53, s51, s59")
                a(f"s_add_u32 s50, s52, {kk*TS}")
                a(f"s_add_u32 m0, s60, {base}")
                a(f"buffer_load_dwordx4 v1, {sr(S_WS)}, s50 offen{LSC} lds")
                a("s_mov_b32 exec_hi, 0xffff")
                a(f"buffer_load_dwordx4 v1, {sr(S_WS)}, s50 offen offset:1024{LSC} lds")
                a(VMASK)
                for f in range(2):
                    a(f"s_add_u32 s50, s53, {kk*TS + f*14336}")
                    a(f"s_add_u32 m0, s60, {base + 2048 + 1024*f}")
                    a(f"buffer_load_dwordx4 v4, {sr(S_WS)}, s50 offen{LSC} lds")
                a("s_mov_b64 exec, -1")
                for _ in range(4):
                    q.push(("s", k))

        def q_dma():
            a(f"""
            s_lshl_b32 s50, s{sQB}, 2
            s_add_u32 s50, s50, s56
            s_mul_i32 s50, s50, {TS}
            s_mul_i32 s51, s{sH}, 1792
            s_add_u32 s50, s50, s51
            s_lshl_b32 s51, s56, 11
            s_add_u32 m0, s51, {QL}
            buffer_load_dwordx4 v1, {sr(S_WS)}, s50 offen{LSC} lds
            s_mov_b32 exec_hi, 0xffff
            buffer_load_dwordx4 v1, {sr(S_WS)}, s50 offen offset:1024{LSC} lds
            s_mov_b32 exec_hi, -1
            """)
            q.push(("s", 0))
            q.push(("s", 0))

        def bar(k):
            n = q.wait_for(("s", k))
            if n is not None:
                a(f"s_waitcnt vmcnt({n}) lgkmcnt(0)")
            else:
                a("s_waitcnt lgkmcnt(0)")
            a("s_barrier")

        def wo_dma(srd_, region, tag, lo=0, hi=14):
            a(f"""
            v_lshrrev_b32 v10, 3, v0
            v_and_b32 v11, 7, v0
            v_bfe_u32 v12, v0, 4, 1
            v_lshlrev_b32 v12, 2, v12
            v_xor_b32 v11, v11, v12
            v_lshlrev_b32 v11, 4, v11
            s_movk_i32 s50, 896
            v_mad_u32_u24 v10, v10, s50, v11
            s_mul_i32 s51, s56, 100352
            s_lshl_b32 s50, s{sCB3}, 7
            s_add_u32 s51, s51, s50
            s_mul_i32 s52, s56, 14336
            """)
            for i in range(lo, hi):
                a(f"s_add_u32 s50, s51, {8*i*896}")
                a(f"s_add_u32 m0, s52, {region + i*1024}")
                a(f"buffer_load_dwordx4 v10, {sr(srd_)}, s50 offen lds")
                q.push(tag)

        skip3 = lambda name: (f"s_cmp_ge_u32 s{sIDX}, 28\ns_cbranch_scc1 {name}")

        a(f"s_cmp_lg_u32 s{sQE}, 0")
        a("s_cbranch_scc1 HAVE_Q")
        self.q_dma_code()
        a.label("HAVE_Q")
        stage(0)
        consts(0)
        consts(1)
        consts(2)
        a(f"""
        v_mov_b32 v10, {QL + 1792}
        v_mov_b32 v11, 0
        ds_write_b32 v10, v11
        """)
        if cfg.get("s1early", 1):
            stage(1)
        bar(0)
        self.stamp(1, "S0")
        if not cfg.get("s1early", 1):
            stage(1)
        stage(2)
        wo_dma(S_WOB, R1, "woB", 0, 7)
        bar(1)
        stage(3)
        wo_dma(S_WOB, R1, "woB", 7, 14)
        bar(2)
        self.poll_issue("all", 0x4000, q)
        stage(4)
        a(f"s_waitcnt vmcnt({q.wait_for('poll')})")
        self.poll_check("all", 0x4000)
        self.stamp(1, "got2")
        a("s_barrier")
        stage(5)
        self.local_attn_loads(q)
        bar(4)
        stage(6)
        self.local_attn(q)
        self.stamp(1, "Ldone")
        bar(5)
        stage(7)
        self.out_gemm_setup()
        q.push("g")
        a(f"s_waitcnt vmcnt({q.wait_for('ost')})")
        a("s_barrier")
        self.publish(f"""
        s_lshl_b32 s50, s{sQB}, 4
        s_add_u32 s50, s50, s{sH}
        s_lshl_b32 s50, s50, 6
        s_add_u32 s50, s50, {WS_F + 0xC000}
        """, balance=True)
        q.push("pub")
        bar(7)
        self.poll16(0xC000, everyone=True)
        q.clear()
        self.stamp(1, "got4")
        self.out_gemm_loads(1, q, 0, 28)
        a("s_setprio 0")
        self.stamp(1, "oBiss")
        a("s_barrier")
        a(skip3("H_DONE"))
        self.out_gemm(1, R1, q, loads=False)
        lp = self.lab("HS")
        a(f"""
        v_mov_b32 v10, {QL + 1792}
        v_mov_b32 v11, 1
        s_mov_b64 exec, 1
        ds_add_u32 v10, v11
        s_mov_b64 exec, -1
        s_mov_b32 s51, 0
        """)
        a.label(lp)
        a(f"""
        ds_read_b32 v11, v10
        s_add_u32 s51, s51, 1
        s_waitcnt lgkmcnt(0)
        v_readfirstlane_b32 s50, v11
        s_cmp_ge_u32 s51, {SPIN_MAX}
        s_cbranch_scc1 {lp}_X
        s_cmp_lt_u32 s50, 8
        s_cbranch_scc1 {lp}
        """)
        a.label(lp + "_X")
        self.stamp(1, "bdone")
        wo_dma(S_WOA, R1, "woA")
        self.out_epilogue_pre()
        self.poll32()
        q.clear()
        a("s_barrier")
        self.stamp(1, "got3")
        self.oa_dma()
        a(f"""
        s_mul_i32 s50, s62, {TS}
        v_add_u32 v21, s50, v1
        v_add_u32 v21, {OAL}, v21
        s_waitcnt vmcnt(0)
        s_barrier
        """)
        self.stamp(1, "C4")
        self.out_gemm_lds()
        self.out_epilogue()
        a.label("H_DONE")
        if cfg.get("stamps"):
            a("s_waitcnt vmcnt(0)")
        self.stamp(1, "end")
        self.stamp_flush(14, 1)
        a("s_endpgm")

    def poll32(self):
        a = self.a
        loop, done = self.lab("POLL"), self.lab("POLLD")
        a(f"""
        s_waitcnt vmcnt(0)
        s_cmp_lg_u32 s{sW}, 4
        s_cbranch_scc1 {done}
        s_lshl_b32 s50, s{sRB3}, 11
        s_add_u32 s50, s50, {WS_F + 0x10000}
        s_mov_b32 s51, 0
        v_and_b32 v13, 31, v0
        v_lshlrev_b32 v13, 6, v13
        """)
        if self.cfg.get("pipepoll", 2) == 2:
            a("s_mov_b32 s52, -1")
            a("s_mov_b32 s53, 0")
            a.label(loop)
            a(f"""
            s_mov_b64 exec, s[52:53]
            buffer_load_dword v12, v13, {sr(S_WS)}, s50 offen sc1
            s_waitcnt vmcnt(0)
            v_cmp_ne_u32 s[52:53], s{sNONCE}, v12
            s_mov_b64 exec, -1
            s_cmp_eq_u64 s[52:53], 0
            s_cbranch_scc1 {done}
            s_sleep {self.cfg.get("sleep3", 2)}
            s_add_u32 s51, s51, 1
            s_cmp_lt_u32 s51, {SPIN_MAX}
            s_cbranch_scc1 {loop}
            """)
        elif self.cfg.get("pipepoll", 2) == 1:
            regs = (140, 141, 142)
            for r in regs[:2]:
                a(f"buffer_load_dword v{r}, v13, {sr(S_WS)}, s50 offen sc1")
                a("s_sleep 3")
            a.label(loop)
            for i, r in enumerate(regs):
                a(f"""
                buffer_load_dword v{regs[(i+2) % 3]}, v13, {sr(S_WS)}, s50 offen sc1
                s_waitcnt vmcnt(2)
                v_cmp_eq_u32 s[52:53], s{sNONCE}, v{r}
                s_cmp_eq_u64 s[52:53], -1
                s_cbranch_scc1 {done}
                """)
            a(f"""
            s_add_u32 s51, s51, 1
            s_cmp_lt_u32 s51, {SPIN_MAX}
            s_cbranch_scc1 {loop}
            """)
        else:
            a.label(loop)
            a(f"""
            buffer_load_dword v12, v13, {sr(S_WS)}, s50 offen sc1
            s_waitcnt vmcnt(0)
            v_cmp_eq_u32 s[52:53], s{sNONCE}, v12
            s_cmp_eq_u64 s[52:53], -1
            s_cbranch_scc1 {done}
            s_add_u32 s51, s51, 1
            s_cmp_lt_u32 s51, {SPIN_MAX}
            s_cbranch_scc1 {loop}
            """)
        a.label(done)

    def out_gemm_lds(self):
        a = self.a
        ACC, NB = 64, 4
        WF, OFB = 32, 96

        def reads(s):
            b = WF + 4 * (s % NB)
            a(f"ds_read_b128 {vr(OFB+4*(s % NB),4)}, v21 offset:{s*1024}")
            for u in range(2):
                a(f"ds_read_b64_tr_b16 {vr(b+2*u,2)}, v20 offset:{(16*s+4*u)*128}")

        for s in range(NB - 1):
            reads(s)
        for s in range(28):
            if s + NB - 1 < 28:
                reads(s + NB - 1)
                lg = 3 * (NB - 1)
            else:
                lg = 3 * (27 - s)
            a(f"s_waitcnt lgkmcnt({lg})")
            d = vr(ACC, 16)
            c = "0" if s == 0 else d
            a(f"v_mfma_f32_32x32x16_bf16 {d}, {vr(WF+4*(s % NB),4)}, {vr(OFB+4*(s % NB),4)}, {c}")

    def local_attn_loads(self, q):
        a = self.a
        LQ, LK, LKP, LV, LVP = 20, 28, 36, 44, 52
        a(f"""
        s_lshl_b32 s61, s{sQB}, 2
        s_add_u32 s61, s61, s56         ; tB
        s_mul_i32 s62, s61, {TS}
        s_sub_u32 s63, s62, {TS}
        s_cmp_eq_u32 s61, 0
        s_cselect_b32 s63, s62, s63
        s_cselect_b32 s55, 0, -1
        s_mul_i32 s54, s{sH}, 1792
        s_add_u32 s50, s62, s54
        s_add_u32 s50, s50, {BR + WS_Q}
        """)
        for r in (LQ + 6, LQ + 7, LK + 6, LK + 7, LKP + 6, LKP + 7):
            a(f"v_mov_b32 v{r}, 0")
        for r in range(12):
            a(f"v_mov_b32 v{LV+r}, 0")
        a("s_mov_b32 exec_lo, 0x10000000")
        a("s_mov_b32 exec_hi, 0x10000000")
        for r in range(12):
            a(f"v_mov_b32 v{LV+r}, 0x3f803f80")
        a("s_mov_b64 exec, -1")
        self.load_qk_frag(LQ, 5, "s50", q, "L")
        a(f"s_add_u32 s50, s50, {WS_K - WS_Q}")
        self.load_qk_frag(LK, 5, "s50", q, "L")
        a(f"s_add_u32 s50, s63, s54")
        a(f"s_add_u32 s50, s50, {BR + WS_K}")
        self.load_qk_frag(LKP, 5, "s50", q, "L")
        a(f"""
        s_mul_i32 s54, s{sH}, 448
        s_add_u32 s50, s62, s54
        s_add_u32 s50, s50, {BR + WS_V}
        s_add_u32 s51, s50, 14336
        s_add_u32 s52, s63, s54
        s_add_u32 s52, s52, {BR + WS_V + 14336}
        s_mov_b32 exec_lo, 0x0fffffff
        s_mov_b32 exec_hi, 0x0fffffff
        buffer_load_dwordx4 {vr(LV,4)}, v4, {sr(S_WS)}, s50 offen{LSC}
        buffer_load_dwordx4 {vr(LV+4,4)}, v4, {sr(S_WS)}, s51 offen{LSC}
        buffer_load_dwordx4 {vr(LVP,4)}, v4, {sr(S_WS)}, s52 offen{LSC}
        s_mov_b64 exec, -1
        v_mov_b32 v15, {NEG_BIG}
        s_add_u32 s62, s62, {WS_OB}
        """)
        for _ in range(3):
            q.push("L")
        self.o_voff(14, 13)

    def local_attn(self, q):
        a = self.a
        LQ, LK, LKP, LV, LVP = 20, 28, 36, 44, 52
        Sd, Sp, P, T, O = 64, 80, 96, 104, 124
        n = q.wait_for("L")
        if n is not None:
            a(f"s_waitcnt vmcnt({n})")
        a(f"v_mfma_f32_32x32x16_bf16 {vr(Sd,16)}, {vr(LK,4)}, {vr(LQ,4)}, 0")
        a(f"v_mfma_f32_32x32x16_bf16 {vr(Sp,16)}, {vr(LKP,4)}, {vr(LQ,4)}, 0")
        a(f"v_mfma_f32_32x32x16_bf16 {vr(Sd,16)}, {vr(LK+4,4)}, {vr(LQ+4,4)}, {vr(Sd,16)}")
        a(f"v_mfma_f32_32x32x16_bf16 {vr(Sp,16)}, {vr(LKP+4,4)}, {vr(LQ+4,4)}, {vr(Sp,16)}")
        regs = []
        for r in range(16):
            m = lane_mask(lambda l: (((l & 31) - ((r & 3) + 8 * (r >> 2) + 4 * (l >> 5))) & ~14) == 0)
            sp = 50 + 2 * (r & 1)
            a(f"s_mov_b32 s{sp}, {m & 0xffffffff:#x}")
            a(f"s_mov_b32 s{sp+1}, {m >> 32:#x}")
            a(f"v_cndmask_b32 v{Sd+r}, v15, v{Sd+r}, s[{sp}:{sp+1}]")
            regs.append(Sd + r)
        for r in range(8, 16):
            m = lane_mask(lambda l: ((32 + (l & 31) - ((r & 3) + 8 * (r >> 2) + 4 * (l >> 5))) & ~14) == 0)
            sp = 50 + 2 * (r & 1)
            a(f"s_and_b32 s{sp}, s55, {m & 0xffffffff:#x}")
            a(f"s_and_b32 s{sp+1}, s55, {m >> 32:#x}")
            a(f"v_cndmask_b32 v{Sp+r}, v15, v{Sp+r}, s[{sp}:{sp+1}]")
            regs.append(Sp + r)
        self.max_tree(regs, T, T + 1)
        for r in regs:
            a(f"v_sub_f32 v{r}, v{r}, v{T}")
        for r in regs:
            a(f"v_exp_f32 v{r}, v{r}")
        for r in range(8):
            a(f"v_cvt_pk_bf16_f32 v{P+r}, v{Sd+2*r}, v{Sd+2*r+1}")
        for r in range(4):
            a(f"v_cvt_pk_bf16_f32 v{T+4+r}, v{Sp+8+2*r}, v{Sp+9+2*r}")
        a(f"v_mfma_f32_32x32x16_bf16 {vr(O,16)}, {vr(LV,4)}, {vr(P,4)}, 0")
        a(f"v_mfma_f32_32x32x16_bf16 {vr(O,16)}, {vr(LV+4,4)}, {vr(P+4,4)}, {vr(O,16)}")
        a(f"v_mfma_f32_32x32x16_bf16 {vr(O,16)}, {vr(LVP,4)}, {vr(T+4,4)}, {vr(O,16)}")
        self.finalize_o(O, T + 8, 14, "s62", q)

    def out_gemm_setup(self):
        a = self.a
        a(f"""
        s_and_b32 s62, s56, 1
        s_lshr_b32 s63, s56, 1
        v_and_b32 v20, 3, v0
        v_lshlrev_b32 v20, 3, v20
        v_bfe_u32 v21, v0, 4, 1
        v_lshl_add_u32 v20, v21, 5, v20
        s_lshl_b32 s50, s63, 6
        v_add_u32 v20, s50, v20
        v_bfe_u32 v21, v0, 3, 1
        v_lshlrev_b32 v21, 6, v21
        v_xor_b32 v20, v20, v21
        v_bfe_u32 v21, v0, 2, 2
        v_lshl_add_u32 v21, v3, 3, v21
        v_lshl_add_u32 v20, v21, 7, v20
        s_lshl_b32 s61, s{sRB3}, 1
        s_add_u32 s61, s61, s62         ; q tile
        s_lshl_b32 s50, s61, 7
        s_add_u32 s50, s50, {WS_G}
        v_lshlrev_b32 v22, 2, v2
        buffer_load_dword v23, v22, {sr(S_WS)}, s50 offen{LSC}
        s_mul_i32 s61, s61, {TS}
        """)

    def out_gemm_loads(self, br, q, lo=0, hi=28):
        a = self.a
        OF = 144
        for s in range(lo, hi):
            if s % 4 == 0:
                a(f"s_add_u32 s50, s61, {(WS_OA if br == 0 else WS_OB) + s*1024}")
            a(f"buffer_load_dwordx4 {vr(OF+4*s,4)}, v1, {sr(S_WS)}, s50 offen offset:{(s%4)*1024}{LSC}")
            q.push(("o", s))

    def out_gemm(self, br, region, q, loads=True):
        a = self.a
        ACC = 64 + 16 * br
        OF = 144
        WF, NB = 32, 4
        areg = 20 if region == R1 else 21
        if loads:
            self.out_gemm_loads(br, q)

        def reads(s):
            b = WF + 4 * (s % NB)
            for u in range(2):
                a(f"ds_read_b64_tr_b16 {vr(b+2*u,2)}, v{areg} offset:{(16*s+4*u)*128}")

        for s in range(NB - 1):
            reads(s)
        for s in range(28):
            if s + NB - 1 < 28:
                reads(s + NB - 1)
                lg = 2 * (NB - 1)
            else:
                lg = 2 * (27 - s)
            n = q.wait_for(('o', s))
            a(f"s_waitcnt lgkmcnt({lg})" if n is None else f"s_waitcnt vmcnt({n}) lgkmcnt({lg})")
            b = WF + 4 * (s % NB)
            d = vr(ACC, 16)
            c = "0" if s == 0 else d
            a(f"v_mfma_f32_32x32x16_bf16 {d}, {vr(b,4)}, {vr(OF+4*s,4)}, {c}")

    def out_epilogue_pre(self):
        a = self.a
        A, B, W = 64, 80, 32
        a(f"""
        v_sub_f32 v24, 1.0, v23
        v_cvt_pk_bf16_f32 v24, v24, v24
        v_lshlrev_b32 v24, 16, v24
        s_lshl_b32 s50, s{sRB3}, 6
        s_lshl_b32 s51, s62, 5
        s_add_u32 s50, s50, s51
        v_add_u32 v25, s50, v2
        s_movk_i32 s50, 896
        v_mul_lo_u32 v25, v25, s50
        v_lshl_add_u32 v25, v3, 4, v25
        s_lshl_b32 s50, s{sCB3}, 7
        s_lshl_b32 s51, s63, 6
        s_add_u32 s50, s50, s51
        """)
        a("s_mov_b32 s59, s50")
        for r in range(16):
            a(f"v_mul_f32 v{B+r}, v24, v{B+r}")

    def out_epilogue(self):
        a = self.a
        A, B, W = 64, 80, 32
        for r in range(16):
            a(f"v_fma_f32 v{A+r}, v23, v{A+r}, v{B+r}")
        for r in range(8):
            a(f"v_cvt_pk_bf16_f32 v{W+r}, v{A+2*r}, v{A+2*r+1}")
        for pr in range(2):
            b = W + 4 * pr
            a(f"v_permlane32_swap_b32 v{b}, v{b+2}")
            a(f"v_permlane32_swap_b32 v{b+1}, v{b+3}")
            a(f"buffer_store_dwordx4 {vr(b,4)}, v25, {sr(S_OUT)}, s59 offen offset:{32*pr}{('', ' sc1', ' nt', ' sc0 sc1')[self.cfg.get('outpol', 0)]}")

    def gate_wg(self):
        a = self.a
        a.label("GATE_WG")
        a(f"""
        s_lshl_b32 s56, s{sGI}, 6
        s_lshl_b32 s50, s{sW}, 4
        s_add_u32 s56, s56, s50
        s_mul_i32 s57, s56, 896
        """)
        NR = 16
        GW = 16 + 4 * NR
        for r in range(4 * NR + 4):
            a(f"v_mov_b32 v{16+r}, 0")
        a("s_mov_b32 exec_hi, 0x00ffffff")
        a(f"buffer_load_dwordx4 {vr(GW,4)}, v1, {sr(S_GATE)}, 0 offen")
        for i in range(NR):
            a(f"s_add_u32 s50, s57, {896*i}")
            a(f"buffer_load_dwordx4 {vr(16+4*i,4)}, v1, {sr(S_X)}, s50 offen")
        a("s_mov_b64 exec, -1")
        Z = GW + 4
        for i in range(NR):
            a(f"v_mov_b32 v{Z+i}, 0")
        a("s_waitcnt vmcnt(0)")
        for r in range(4):
            for i in range(NR):
                a(f"v_dot2_f32_bf16 v{Z+i}, v{16+4*i+r}, v{GW+r}, v{Z+i}")
        a("s_nop 2")
        for sh in (1, 2, 4, 8):
            for i in range(NR):
                a(f"v_add_f32_dpp v{Z+i}, v{Z+i}, v{Z+i} row_shr:{sh} row_mask:0xf bank_mask:0xf bound_ctrl:0")
        for i in range(NR):
            a(f"v_add_f32_dpp v{Z+i}, v{Z+i}, v{Z+i} row_bcast:15 row_mask:0xa bank_mask:0xf")
        for i in range(NR):
            a(f"v_add_f32_dpp v{Z+i}, v{Z+i}, v{Z+i} row_bcast:31 row_mask:0xc bank_mask:0xf")

        def round_pairs():
            for i in range(0, NR, 2):
                a(f"v_cvt_pk_bf16_f32 v16, v{Z+i}, v{Z+i+1}")
                a(f"v_lshlrev_b32 v{Z+i}, 16, v16")
                a(f"v_and_b32 v{Z+i+1}, 0xffff0000, v16")
        round_pairs()
        for i in range(NR):
            a(f"v_mul_f32 v{Z+i}, {NLOG2E}, v{Z+i}")
        for i in range(NR):
            a(f"v_exp_f32 v{Z+i}, v{Z+i}")
        for i in range(NR):
            a(f"v_add_f32 v{Z+i}, 1.0, v{Z+i}")
        for i in range(NR):
            a(f"v_rcp_f32 v{Z+i}, v{Z+i}")
        round_pairs()
        a(f"""
        s_lshl_b32 s50, s56, 2
        s_add_u32 s50, s50, {WS_G}
        v_mov_b32 v16, 0
        s_mov_b32 exec_lo, 0
        s_mov_b32 exec_hi, 0x80000000
        """)
        for i in range(NR // 4):
            a(f"buffer_store_dwordx4 {vr(Z+4*i,4)}, v16, {sr(S_WS)}, s50 offen offset:{16*i} sc1")
        a("""
        s_mov_b64 exec, -1
        s_waitcnt vmcnt(0)
        s_barrier
        """)
        self.read_nonce(t0=188, t1=189)
        self.publish(f"""
        s_lshl_b32 s50, s2, 6
        s_add_u32 s50, s50, {WS_F}
        """, only_wave=0, t0=188, t1=189)
        if self.cfg.get("p1v", 1) == 2:
            self.publish(f"""
            s_lshl_b32 s50, s2, 6
            s_add_u32 s50, s50, {WS_F + 0x4000}
            """, only_wave=0, t0=188, t1=189)
        a("""
        s_barrier
        s_branch ATT_C_ENTRY
        """)
        a.label("GATE_H")
        a(f"s_setprio {self.cfg.get('hprio', 1)}")
        self.srds_first()
        self.srds_rest()
        if not self.cfg.get("l2pf", 1):
            a("s_barrier")
        if self.cfg.get("l2pf", 1):
            a(f"""
            s_sub_u32 s56, s{sIDX}, 28
            s_lshl_b32 s56, s56, 2
            s_add_u32 s56, s56, s{sW}
            s_sub_u32 s56, s56, 4           ; pw 0..15
            s_lshr_b32 s50, s{sXCD}, 1
            s_mul_i32 s57, s50, {512*896}
            s_mul_i32 s50, s56, 28672
            s_add_u32 s57, s57, s50         ; x slice
            v_and_b32 v2, 31, v0
            v_lshlrev_b32 v2, 4, v2
            v_lshrrev_b32 v3, 5, v0
            s_movk_i32 s50, 896
            v_mad_u32_u24 v4, v3, s50, v2   ; (r0,p0),(r0,p1)
            v_add_u32 v5, 1792, v4          ; (r0,p2),(r1,p0)
            v_add_u32 v6, 3584, v4          ; (r1,p1),(r1,p2)
            s_and_b32 s50, s{sXCD}, 1
            s_mul_i32 s58, s50, 384
            s_mul_i32 s50, s56, 5376
            s_add_u32 s58, s58, s50
            s_lshl_b32 s59, s56, 10
            """)
            n = [0]

            def dst():
                n[0] += 1
                return vr(16 + 4 * (n[0] % 32), 4)
            if self.cfg.get("l2pf") == 3:
                a("""
                s_movk_i32 s50, 2688
                v_mad_u32_u24 v7, v3, s50, v2
                """)
                for i in range(14):
                    a(f"s_add_u32 s50, s58, {i*16*5376}")
                    a(f"buffer_load_dwordx4 {dst()}, v7, {sr(S_WA)}, s50 offen")
            for sw in (S_WB,):
                for i in range(14):
                    a(f"s_add_u32 s50, s58, {i*16*5376}")
                    for k in range(3):
                        a(f"buffer_load_dwordx4 {dst()}, v{4+k}, {sr(sw)}, s50 offen")
                    if i == self.cfg.get("gbar", 13):
                        a("s_barrier")
            for sw in ((S_WOB, S_WOA) if self.cfg.get("l2pf") == 2 else ()):
                for i in range(25):
                    a(f"s_add_u32 s50, s59, {i*16384}")
                    a(f"buffer_load_dwordx4 {dst()}, v1, {sr(sw)}, s50 offen")
        self.read_nonce()
        a(f"s_mov_b32 s{sQE}, 0")
        self.poll_all(0)
        a("""
        s_barrier
        s_branch ATT_H_ENTRY
        """)


def build(cfg):
    g = Gen(cfg)
    body = g.build()
    head = f"""; {NAME}: one persistent launch (projections -> attention -> output projection + gated mix)
; @launch grid=(256,1,1) block=(512,1,1) lds={LDS_BYTES}
.amdgcn_target "amdgcn-amd-amdhsa--gfx950"
.text
.globl {NAME}_kernel
"""
    tail = f""".section .rodata,"a"
.p2align 6
.amdhsa_kernel {NAME}_kernel
  .amdhsa_next_free_vgpr 256
  .amdhsa_next_free_sgpr 100
  .amdhsa_accum_offset {256}
  .amdhsa_group_segment_fixed_size 0
  .amdhsa_kernarg_size 80
  .amdhsa_user_sgpr_count 2
  .amdhsa_user_sgpr_kernarg_segment_ptr 1
  .amdhsa_system_sgpr_workgroup_id_x 1
.end_amdhsa_kernel
"""
    if cfg.get("stamps"):
        head = "; STAMPS " + repr(g.stnames) + "\n" + head
    return head + body + tail, g.a.n_pads


if __name__ == "__main__":
    cfg = {}
    out = f"cdna_kernels/{NAME}.s"
    for arg in sys.argv[1:]:
        if arg.startswith("-o="):
            out = arg[3:]
        else:
            k, v = arg.split("=")
            cfg[k] = int(v)
    s, n = build(cfg)
    open(out, "w").write(s)
    print("wrote", out, len(s), "bytes;", n, "hazard pads")
```

```python
import math
import struct
import sys
import os

sys.path.insert(0, os.path.dirname(os.path.abspath(__file__)))
from asmlib import Asm

NAME = "gated_mix__mha_block__sliding_local_dilated__prompt"

TS = 28672
WS_Q = 0x000000
WS_K = 0x200000
WS_V = 0x400000
BR = 0x600000
WS_OA = 0xC00000
WS_OB = 0xE00000
WS_G = 0x1000000
WS_F = 0x1010000
WS_USED = 0x1030000
WS_DIAG = 0x2000000

X_BYTES = 2048 * 448 * 2
W_BYTES = 448 * 1344 * 2
WO_BYTES = 448 * 448 * 2

R1 = 0
R2 = 57344
R3 = 106496
LDS_BYTES = 163840
CB = R2 + 32768
QL = 155648
OAL = R2
SLOT_TS = (8, 0, 16)
SPIN_MAX = 40000
LSC = ''


def f32bits(x):
    return struct.unpack("<I", struct.pack("<f", x))[0]


SCALE_F32 = struct.unpack("<f", struct.pack("<f", 28 ** -0.5))[0]
QSCALE = f32bits(SCALE_F32 * math.log2(math.e))
NEG_BIG = f32bits(-1.0e30)
NLOG2E = f32bits(-math.log2(math.e))

S_X, S_WA, S_WB, S_WS, S_WOA, S_WOB, S_OUT, S_DBG, S_GATE = 4, 8, 12, 16, 20, 24, 28, 32, 36
KA0 = 68
sW, sXCD, sIDX, sRB, sCG, sH, sQB, sRB3, sCB3, sNONCE = 40, 41, 42, 43, 44, 45, 46, 47, 48, 49
sGI = 3
sQE = 63
sBR = 95
RW = 114688


def sr(b):
    return f"s[{b}:{b+3}]"


class VmQ:
    def __init__(self):
        self.q = []

    def push(self, tag):
        self.q.append(tag)

    def wait_for(self, tag):
        idx = max([i for i, t in enumerate(self.q) if t == tag], default=-1)
        if idx < 0:
            return None
        n = len(self.q) - 1 - idx
        self.q = self.q[idx + 1:]
        return min(n, 63)

    def clear(self):
        self.q = []


def vr(b, n):
    return f"v[{b}:{b+n-1}]"


def ar(b, n):
    return f"a[{b}:{b+n-1}]"


def lane_mask(fn):
    m = 0
    for l in range(64):
        if fn(l):
            m |= 1 << l
    return m


class Gen:
    def __init__(self, cfg):
        self.cfg = cfg
        self.a = Asm()
        self.nlab = 0
        self.stnames = {}

    def lab(self, p):
        self.nlab += 1
        return f"{p}_{self.nlab}"

    def stamp(self, idx, name=None):
        if not self.cfg.get("stamps"):
            return
        if name is not None and self.cfg.get("ststage") and idx == 0 and name in ("c0", "b7", "b11", "pub1", "c14", "preS0", "T1"):
            return
        if name is not None:
            role = idx
            lst = self.stnames.setdefault(role, ["start"])
            idx = len(lst)
            lst.append(name)
            assert idx < 14
        self.a(f"""
        s_memtime s[{64+2*idx}:{65+2*idx}]
        """)
        if idx == 0:
            self.a("s_memrealtime s[98:99]")

    def stamp_flush(self, n, role):
        if not self.cfg.get("stamps"):
            return
        a = self.a
        skip = self.lab("STSKIP")
        a(f"""
        s_memrealtime s[96:97]
        s_cmp_lg_u32 s{sW}, {4*role}
        s_cbranch_scc1 {skip}
        s_waitcnt lgkmcnt(0)
        s_mov_b32 s{S_WS+2}, 0x2100000
        s_lshl_b32 s50, s2, 8
        s_add_u32 s50, s50, {WS_DIAG + role*128}
        v_mov_b32 v3, 0
        """)
        for i in range(2 * n):
            a(f"v_mov_b32 v4, s{64+i}")
            a(f"buffer_store_dword v4, v3, {sr(S_WS)}, s50 offen offset:{4*i}")
        for i, s in enumerate((98, 99, 96, 97)):
            a(f"v_mov_b32 v4, s{s}")
            a(f"buffer_store_dword v4, v3, {sr(S_WS)}, s50 offen offset:{112+4*i}")
        a.label(skip)

    def publish(self, off_sgpr_expr_lines, only_wave=4, t0=12, t1=13, balance=False):
        a = self.a
        skip, end = self.lab("PUB"), self.lab("PUBE")
        a(off_sgpr_expr_lines)
        a(f"""
        v_mov_b32 v{t0}, 0
        v_mov_b32 v{t1}, s{sNONCE}
        s_mov_b64 exec, 1
        s_cmp_lg_u32 s{sW}, {only_wave}
        s_cbranch_scc1 {skip}
        buffer_store_dword v{t1}, v{t0}, {sr(S_WS)}, s50 offen sc1
        """)
        if balance:
            a(f"s_branch {end}")
        a.label(skip)
        if balance:
            a(f"buffer_load_dword v{t1}, v{t0}, {sr(S_GATE)}, 0 offen")
            a.label(end)
        a("s_mov_b64 exec, -1")

    def poll_all(self, foff, drain=True):
        a = self.a
        loop, done = self.lab("POLL"), self.lab("POLLD")
        if drain:
            a("s_waitcnt vmcnt(0)")
        a(f"""
        s_cmp_lg_u32 s{sW}, 4
        s_cbranch_scc1 {done}
        s_mov_b32 s50, {WS_F + foff}
        s_mov_b32 s92, {WS_F + foff + 4096}
        s_mov_b32 s93, {WS_F + foff + 8192}
        s_mov_b32 s94, {WS_F + foff + 12288}
        v_lshlrev_b32 v11, 6, v0
        s_mov_b32 s51, 0
        """)
        if self.cfg.get("mpoll", 1):
            pend = (52, 54, 88, 90)
            offs = ("s50", "s92", "s93", "s94")
            for p in pend:
                a(f"s_mov_b64 s[{p}:{p+1}], -1")
            a.label(loop)
            for i, p in enumerate(pend):
                sk = self.lab("PSK")
                a(f"""
                s_mov_b64 exec, s[{p}:{p+1}]
                s_cbranch_execz {sk}
                buffer_load_dword v{12+i}, v11, {sr(S_WS)}, {offs[i]} offen sc1
                """)
                a.label(sk)
            a("s_waitcnt vmcnt(0)")
            for i, p in enumerate(pend):
                a(f"s_mov_b64 exec, s[{p}:{p+1}]")
                a(f"v_cmp_ne_u32 s[{p}:{p+1}], s{sNONCE}, v{12+i}")
            a(f"""
            s_mov_b64 exec, -1
            s_or_b64 vcc, s[52:53], s[54:55]
            s_or_b64 vcc, vcc, s[88:89]
            s_or_b64 vcc, vcc, s[90:91]
            s_cmp_eq_u64 vcc, 0
            s_cbranch_scc1 {done}
            s_sleep {self.cfg.get("sleep", 4)}
            s_add_u32 s51, s51, 1
            s_cmp_lt_u32 s51, {SPIN_MAX}
            s_cbranch_scc1 {loop}
            """)
            a.label(done)
            return
        a.label(loop)
        a(f"""
        buffer_load_dword v12, v11, {sr(S_WS)}, s50 offen sc1
        buffer_load_dword v13, v11, {sr(S_WS)}, s92 offen sc1
        buffer_load_dword v14, v11, {sr(S_WS)}, s93 offen sc1
        buffer_load_dword v15, v11, {sr(S_WS)}, s94 offen sc1
        s_waitcnt vmcnt(0)
        v_cmp_eq_u32 s[52:53], s{sNONCE}, v12
        v_cmp_eq_u32 s[54:55], s{sNONCE}, v13
        s_and_b64 s[52:53], s[52:53], s[54:55]
        v_cmp_eq_u32 s[54:55], s{sNONCE}, v14
        s_and_b64 s[52:53], s[52:53], s[54:55]
        v_cmp_eq_u32 s[54:55], s{sNONCE}, v15
        s_and_b64 s[52:53], s[52:53], s[54:55]
        s_cmp_eq_u64 s[52:53], -1
        s_cbranch_scc1 {done}
        s_sleep {self.cfg.get("sleep", 4)}
        s_add_u32 s51, s51, 1
        s_cmp_lt_u32 s51, {SPIN_MAX}
        s_cbranch_scc1 {loop}
        """)
        a.label(done)

    def poll_issue(self, kind, foff, q):
        a = self.a
        if kind == "all":
            a("v_lshlrev_b32 v11, 6, v0")
            for i in range(4):
                a(f"s_mov_b32 s50, {WS_F + foff + 4096*i}")
                a(f"buffer_load_dword v{140+i}, v11, {sr(S_WS)}, s50 offen sc1")
                q.push("poll")
        else:
            a(f"""
            s_lshr_b32 s50, s{sRB3}, 1
            s_lshl_b32 s50, s50, 10
            s_add_u32 s50, s50, {WS_F + foff}
            v_and_b32 v11, 15, v0
            v_lshlrev_b32 v11, 6, v11
            buffer_load_dword v140, v11, {sr(S_WS)}, s50 offen sc1
            """)
            q.push("poll")

    def poll_check(self, kind, foff):
        a = self.a
        ok = self.lab("PCK")
        a(f"v_cmp_eq_u32 s[52:53], s{sNONCE}, v140")
        if kind == "all":
            for i in range(1, 4):
                a(f"v_cmp_eq_u32 s[54:55], s{sNONCE}, v{140+i}")
                a("s_and_b64 s[52:53], s[52:53], s[54:55]")
        a("s_cmp_eq_u64 s[52:53], -1")
        a(f"s_cbranch_scc1 {ok}")
        if kind == "all":
            self.poll_all(foff)
        else:
            self.poll16(foff)
        a.label(ok)

    def poll16(self, foff, everyone=False):
        a = self.a
        loop, done = self.lab("POLL"), self.lab("POLLD")
        a(f"""
        s_waitcnt vmcnt(0)
        s_cmp_lg_u32 s{sW}, {"s%d" % sW if everyone else 4}
        s_cbranch_scc1 {done}
        s_cmp_ge_u32 s{sIDX}, 28
        s_cbranch_scc1 {done}
        s_lshr_b32 s50, s{sRB3}, 1
        s_lshl_b32 s50, s50, 10
        s_add_u32 s50, s50, {WS_F + foff}
        s_mov_b32 s51, 0
        v_and_b32 v13, 15, v0
        v_lshlrev_b32 v13, 6, v13
        """)
        a.label(loop)
        a(f"""
        buffer_load_dword v12, v13, {sr(S_WS)}, s50 offen sc1
        s_waitcnt vmcnt(0)
        v_cmp_eq_u32 s[52:53], s{sNONCE}, v12
        s_cmp_eq_u64 s[52:53], -1
        s_cbranch_scc1 {done}
        s_sleep {self.cfg.get("sleep", 4)}
        s_add_u32 s51, s51, 1
        s_cmp_lt_u32 s51, {SPIN_MAX}
        s_cbranch_scc1 {loop}
        """)
        a.label(done)

    def get_nonce(self):
        a = self.a
        loop, done, skip = self.lab("NON"), self.lab("NOND"), self.lab("NONS")
        a(f"""
        v_mov_b32 v12, 0
        s_cmp_lg_u32 s2, 0
        s_cbranch_scc1 {skip}
        s_cmp_lg_u32 s{sW}, 4
        s_cbranch_scc1 {skip}
        s_memrealtime s[50:51]
        s_waitcnt lgkmcnt(0)
        s_or_b32 s50, s50, 1
        v_mov_b32 v13, s50
        s_mov_b64 exec, 1
        buffer_store_dword v13, v12, {sr(S_DBG)}, 0 offen sc1
        s_mov_b64 exec, -1
        """)
        a.label(skip)

    def read_nonce(self, early=None, t0=12, t1=13):
        a = self.a
        loop, done = self.lab("NON"), self.lab("NOND")
        if early is not None:
            a(f"""
            v_readfirstlane_b32 s{sNONCE}, v{early}
            s_cmp_lg_u32 s{sNONCE}, 0
            s_cbranch_scc1 {done}
            """)
        a(f"""
        v_mov_b32 v{t0}, 0
        s_mov_b32 s51, 0
        """)
        a.label(loop)
        a(f"""
        buffer_load_dword v{t1}, v{t0}, {sr(S_DBG)}, 0 offen sc1
        s_waitcnt vmcnt(0)
        v_readfirstlane_b32 s{sNONCE}, v{t1}
        s_cmp_lg_u32 s{sNONCE}, 0
        s_cbranch_scc1 {done}
        s_sleep {self.cfg.get("sleep", 4)}
        s_add_u32 s51, s51, 1
        s_cmp_lt_u32 s51, {SPIN_MAX}
        s_cbranch_scc1 {loop}
        """)
        a.label(done)

    def max_tree(self, regs, dst, tmp):
        a = self.a
        h = len(regs) // 2
        for (rs, d) in ((regs[:h], dst), (regs[h:], tmp)):
            a(f"v_max3_f32 v{d}, v{rs[0]}, v{rs[1]}, v{rs[2]}")
            i = 3
            while i + 1 < len(rs):
                a(f"v_max3_f32 v{d}, v{d}, v{rs[i]}, v{rs[i+1]}")
                i += 2
            if i < len(rs):
                a(f"v_max_f32 v{d}, v{d}, v{rs[i]}")
        a(f"v_max_f32 v{dst}, v{dst}, v{tmp}")
        a(f"v_mov_b32 v{tmp}, v{dst}")
        a(f"v_permlane32_swap_b32 v{dst}, v{tmp}")
        a(f"v_max_f32 v{dst}, v{dst}, v{tmp}")

    def o_voff(self, dst, tmp):
        self.a(f"""
        v_and_b32 v{dst}, 31, v0
        v_lshlrev_b32 v{dst}, 4, v{dst}
        v_lshrrev_b32 v{tmp}, 5, v0
        s_and_b32 s50, s{sH}, 1
        s_cmp_eq_u32 s50, 0
        s_cselect_b32 s51, 8, 504
        s_cselect_b32 s50, 0, 1544
        v_mad_u32_u24 v{dst}, v{tmp}, s51, v{dst}
        v_add_u32 v{dst}, s50, v{dst}
        s_lshr_b32 s50, s{sH}, 1
        s_mul_i32 s50, s50, 3584
        v_add_u32 v{dst}, s50, v{dst}
        """)

    def finalize_o(self, O, T, voff, soff, q=None):
        a = self.a
        a(f"""
        v_mov_b32 v{T}, v{O+12}
        v_mov_b32 v{T+1}, v{O+12}
        v_permlane32_swap_b32 v{T}, v{T+1}
        v_rcp_f32 v{T}, v{T+1}
        """)
        for r in range(16):
            a(f"v_mul_f32 v{O+r}, v{T}, v{O+r}")
        for r in range(8):
            a(f"v_cvt_pk_bf16_f32 v{T+2+r}, v{O+2*r}, v{O+2*r+1}")
        for i in range(4):
            if i == 3:
                a("s_mov_b32 exec_hi, 0")
            a(f"buffer_store_dwordx2 {vr(T+2+2*i,2)}, v{voff}, {sr(S_WS)}, {soff} offen offset:{512*i} sc1")
            if q is not None:
                q.push("ost")
        a("s_mov_b64 exec, -1")

    def load_qk_frag(self, dst, voff, soff, q=None, tag=None, pfx="v"):
        a = self.a
        for i in range(4):
            if i == 3:
                a("s_mov_b32 exec_hi, 0")
            a(f"buffer_load_dwordx2 {pfx}[{dst+2*i}:{dst+2*i+1}], v{voff}, {sr(S_WS)}, {soff} offen offset:{512*i}{LSC}")
            if q is not None:
                q.push(tag)
        a("s_mov_b32 exec_hi, -1")

    def srd(self, base, pair, nbytes):
        self.a(f"""
        s_mov_b32 s{base}, s{pair}
        s_and_b32 s{base+1}, s{pair+1}, 0xffff
        s_mov_b32 s{base+2}, {nbytes}
        s_mov_b32 s{base+3}, 0x20000
        """)

    def srds_first(self):
        self.a("s_waitcnt lgkmcnt(0)")
        self.srd(S_X, KA0, X_BYTES)
        if self.cfg.get("p1v", 1) == 2:
            self.a(f"""
            s_cmp_eq_u32 s{sBR}, 0
            s_cselect_b32 s{S_WA}, s{KA0+2}, s{KA0+8}
            s_cselect_b32 s{S_WA+1}, s{KA0+3}, s{KA0+9}
            s_and_b32 s{S_WA+1}, s{S_WA+1}, 0xffff
            s_mov_b32 s{S_WA+2}, {W_BYTES}
            s_mov_b32 s{S_WA+3}, 0x20000
            """)
        else:
            self.srd(S_WA, KA0 + 2, W_BYTES)

    def srds_rest(self):
        self.srd(S_WOA, KA0 + 4, WO_BYTES)
        self.srd(S_WB, KA0 + 8, W_BYTES)
        self.srd(S_WOB, KA0 + 10, WO_BYTES)
        self.srd(S_GATE, KA0 + 12, 896)
        self.srd(S_OUT, KA0 + 14, X_BYTES)
        self.srd(S_DBG, KA0 + 16, 256)
        self.srd(S_WS, KA0 + 18, WS_USED)
        self.a(f"""
        s_lshl_b32 s{sH}, s{sXCD}, 1
        s_and_b32 s50, s{sIDX}, 1
        s_add_u32 s{sH}, s{sH}, s50
        s_lshr_b32 s{sQB}, s2, 4
        s_lshl_b32 s{sRB3}, s{sXCD}, 2
        s_and_b32 s50, s{sIDX}, 3
        s_add_u32 s{sRB3}, s{sRB3}, s50
        s_lshr_b32 s{sCB3}, s{sIDX}, 2
        """)

    def build(self):
        a, cfg = self.a, self.cfg
        a.raw(".p2align 8")
        a.raw(f".type {NAME}_kernel,@function")
        a.label(f"{NAME}_kernel")
        a("""
        s_cmp_ge_u32 s2, 256
        s_cbranch_scc1 K_END
        """)
        self.stamp(0)
        a(f"""
        s_load_dwordx16 s[{KA0}:{KA0+15}], s[0:1], 0
        s_load_dwordx4 s[{KA0+16}:{KA0+19}], s[0:1], 64
        v_lshrrev_b32 v1, 6, v0
        v_and_b32 v0, 63, v0
        v_readfirstlane_b32 s{sW}, v1
        s_and_b32 s{sXCD}, s2, 7
        s_lshr_b32 s{sIDX}, s2, 3
        v_lshlrev_b32 v1, 4, v0
        """)
        if cfg.get("codepf", 1):
            a(f"""
            s_getpc_b64 s[52:53]
            """)
            a.label("PCREF")
            a(f"""
            s_sub_u32 s52, s52, PCREF-{NAME}_kernel
            s_subb_u32 s53, s53, 0
            s_and_b32 s53, s53, 0xffff
            s_mov_b32 s54, K_CODE_END-{NAME}_kernel
            s_mov_b32 s55, 0x20000
            s_lshl_b32 s50, s{sIDX}, 2
            s_add_u32 s50, s50, s{sW}
            s_lshl_b32 s50, s50, 10
            s_cmp_ge_u32 s{sW}, 4
            s_cbranch_scc1 NOPF
            buffer_load_dwordx4 v[240:243], v1, s[52:55], s50 offen
            """)
            a.label("NOPF")
        if cfg.get("p1v", 1) == 2:
            a(f"""
            s_cmp_ge_u32 s{sIDX}, 14
            s_cselect_b32 s{sBR}, 1, 0
            s_cselect_b32 s51, 14, 0
            s_sub_u32 s51, s{sIDX}, s51
            s_lshr_b32 s50, s{sXCD}, 1
            s_lshl_b32 s50, s50, 2          ; 4p
            s_and_b32 s61, s{sXCD}, 1       ; s
            s_and_b32 s{sRB}, s51, 3
            s_add_u32 s{sRB}, s{sRB}, s50
            s_lshr_b32 s{sCG}, s51, 2
            s_lshl_b32 s62, s61, 2
            s_add_u32 s{sCG}, s{sCG}, s62
            s_lshl_b32 s62, s61, 1
            s_add_u32 s62, s62, s51
            s_add_u32 s62, s62, s50
            s_sub_u32 s62, s62, 12
            s_cmp_ge_u32 s51, 12
            s_cselect_b32 s{sRB}, s62, s{sRB}
            s_cselect_b32 s{sCG}, 3, s{sCG}
            s_lshl_b32 s{sGI}, s{sXCD}, 2
            s_add_u32 s{sGI}, s{sGI}, s{sIDX}
            s_sub_u32 s{sGI}, s{sGI}, 28
            s_cmp_ge_u32 s{sIDX}, 28
            s_cselect_b32 s{sGI}, s{sGI}, -1
            """)
        elif cfg.get("p1map", 0) == 0:
            a(f"""
            s_lshr_b32 s50, s{sXCD}, 1
            s_lshl_b32 s50, s50, 3          ; 8p
            s_and_b32 s51, s{sXCD}, 1       ; s
            s_and_b32 s{sRB}, s{sIDX}, 7
            s_add_u32 s{sRB}, s{sRB}, s50
            s_lshr_b32 s{sCG}, s{sIDX}, 3
            s_lshl_b32 s61, s51, 2
            s_add_u32 s{sCG}, s{sCG}, s61
            s_sub_u32 s62, s{sIDX}, 24
            s_add_u32 s62, s62, s61
            s_add_u32 s62, s62, s50
            s_cmp_ge_u32 s{sIDX}, 24
            s_cselect_b32 s{sRB}, s62, s{sRB}
            s_cselect_b32 s{sCG}, 3, s{sCG}
            s_lshl_b32 s{sGI}, s{sXCD}, 2
            s_add_u32 s{sGI}, s{sGI}, s{sIDX}
            s_sub_u32 s{sGI}, s{sGI}, 28
            s_cmp_ge_u32 s{sIDX}, 28
            s_cselect_b32 s{sGI}, s{sGI}, -1
            """)
        else:
            a(f"""
            s_and_b32 s50, s{sXCD}, 1
            s_lshl_b32 s50, s50, 4
            s_lshr_b32 s{sRB}, s{sIDX}, 1
            s_and_b32 s{sCG}, s{sXCD}, 6
            s_and_b32 s51, s{sIDX}, 1
            s_add_u32 s{sCG}, s{sCG}, s51
            s_add_u32 s{sGI}, s50, s{sIDX}
            s_sub_u32 s{sGI}, s{sGI}, 16
            s_cmp_ge_u32 s{sXCD}, 6
            s_cselect_b32 s{sRB}, s{sIDX}, s{sRB}
            s_cselect_b32 s{sCG}, 6, s{sCG}
            s_cselect_b32 s51, s{sIDX}, 0
            s_add_u32 s{sRB}, s{sRB}, s50
            s_cmp_ge_u32 s51, 16
            s_cselect_b32 s{sGI}, s{sGI}, -1
            """)
        a(f"""
        s_cmp_lt_u32 s{sW}, 4
        s_cbranch_scc1 COMPUTE
        s_cmp_lg_u32 s{sGI}, -1
        s_cbranch_scc1 GATE_H
        """)
        if cfg.get("p1v", 1) == 2:
            self.helper_p1b()
        else:
            self.helper_p1()
        self.helper_attn()
        a.label("COMPUTE")
        self.srds_first()
        self.srds_rest()
        if cfg.get("tlb", 0):
            a(f"""
            v_and_b32 v2, 15, v0
            v_lshlrev_b32 v2, 21, v2
            v_add_u32 v2, 0x1f0000, v2
            s_mov_b32 exec_lo, 0xff
            s_mov_b32 exec_hi, 0
            buffer_load_dword v244, v2, {sr(S_WS)}, 0 offen
            s_mov_b32 exec_lo, 3
            v_mul_u32_u24 v2, {X_BYTES - 4}, v0
            buffer_load_dword v245, v2, {sr(S_OUT)}, 0 offen
            s_mov_b64 exec, -1
            """)
        if cfg.get("pfall"):
            a(f"""
            s_lshl_b32 s56, s{sIDX}, 2
            s_add_u32 s56, s56, s{sW}
            v_and_b32 v2, 31, v0
            v_lshlrev_b32 v2, 4, v2
            v_lshrrev_b32 v3, 5, v0
            s_movk_i32 s50, 896
            v_mad_u32_u24 v4, v3, s50, v2
            v_add_u32 v5, 1792, v4
            v_add_u32 v6, 3584, v4
            s_and_b32 s50, s{sXCD}, 1
            s_mul_i32 s58, s50, 384
            s_mul_i32 s50, s56, 5376
            s_add_u32 s58, s58, s50
            """)
            for i in range(cfg.get("pfall")):
                a(f"s_add_u32 s50, s58, {i*128*5376}")
                for k in range(3):
                    a(f"buffer_load_dwordx4 v[244:247], v{4+k}, {sr(S_WB)}, s50 offen")
        a(f"""
        s_cmp_lg_u32 s{sGI}, -1
        s_cbranch_scc1 GATE_WG
        """)
        if cfg.get("p1v", 1) == 2:
            self.compute_p1b()
        else:
            self.compute_p1()
        self.compute_attn()
        self.gate_wg()
        self.fallback()
        a.label("K_END")
        a("s_endpgm")
        a.label("K_CODE_END")
        return a.render()

    def p1_plan(self):
        order = self.cfg.get("order", 1)
        steps = []
        if order == 1:
            for c in range(7):
                steps.append(([(0, 1), (0, 2)], [c]))
            for cs in ([0, 1], [2, 3], [4, 5], [6]):
                steps.append(([(0, 0)], cs))
            for c in range(7):
                steps.append(([(1, 0), (1, 1), (1, 2)], [c]))
        else:
            for br in range(2):
                for c in range(7):
                    steps.append(([(br, 0), (br, 1), (br, 2)], [c]))
        u = 0
        units = []
        for pcs, cs in steps:
            m = {}
            for c in cs:
                for pc in pcs:
                    m[(pc, c)] = u % 12
                    u += 1
            units.append(m)
        LIM = self.cfg.get("inflight", 8)
        sched = {i: [] for i in range(-1, len(steps))}
        nxt, used = 0, 0
        size = [len(m) for m in units]
        for b in range(-1, len(steps)):
            live = sum(size[max(b - self.cfg.get("lag", 1), 0):nxt])
            ahead = sum(size[b + 1:nxt])
            lim = LIM if b >= self.cfg.get("ramp", 2) else self.cfg.get("inflight0", 8)
            while nxt < len(steps) and live + size[nxt] <= 12 and ahead + size[nxt] <= lim:
                sched[b].append(nxt)
                live += size[nxt]
                ahead += size[nxt]
                nxt += 1
        assert nxt == len(steps)
        return steps, units, sched

    def compute_p1(self):
        a, cfg = self.a, self.cfg
        ACC = [64, 112]
        FR = 16
        XA, WA = 4, 8
        PK = 160
        a(f"""
        s_and_b32 s56, s{sW}, 1         ; rho
        s_lshr_b32 s57, s{sW}, 1        ; c
        v_and_b32 v2, 31, v0            ; r
        v_lshrrev_b32 v3, 5, v0         ; hf
        v_bfe_u32 v10, v0, 1, 3
        v_xor_b32 v10, v10, v3
        s_lshl_b32 s50, s56, 12
        v_lshlrev_b32 v11, 7, v2
        v_add_u32 v11, s50, v11
        """)
        for sp in range(4):
            a(f"v_xor_b32 v12, {2*sp}, v10")
            a(f"v_lshl_add_u32 v{XA+sp}, v12, 4, v11")
        a(f"""
        v_and_b32 v11, 3, v0
        v_lshlrev_b32 v11, 3, v11
        v_bfe_u32 v12, v0, 4, 1
        v_lshl_add_u32 v11, v12, 5, v11
        s_lshl_b32 s50, s57, 6
        v_add_u32 v11, s50, v11
        v_bfe_u32 v12, v0, 3, 1
        v_lshlrev_b32 v12, 6, v12
        v_xor_b32 v11, v11, v12
        v_bfe_u32 v12, v0, 2, 2
        v_lshl_add_u32 v12, v3, 3, v12
        v_lshl_add_u32 v11, v12, 7, v11
        v_add_u32 v{WA}, {R2}, v11
        v_add_u32 v{WA+1}, {R2+49152}, v11
        v_lshlrev_b32 v10, 3, v2
        v_lshl_add_u32 v10, v3, 8, v10
        v_lshlrev_b32 v11, 4, v2
        s_movk_i32 s50, 7168
        v_mad_u32_u24 v11, v3, s50, v11 ; v11 = hf*7168 + (l&31)*16  (V)
        s_lshl_b32 s58, s{sRB}, 1
        s_add_u32 s58, s58, s56         ; t
        s_mul_i32 s58, s58, {TS}
        s_lshl_b32 s59, s{sCG}, 12
        s_lshl_b32 s50, s57, 11
        s_add_u32 s59, s59, s50
        s_add_u32 s59, s59, s58
        s_lshl_b32 s60, s{sCG}, 10
        s_lshl_b32 s50, s57, 9
        s_add_u32 s60, s60, s50
        s_add_u32 s60, s60, s58         ; V soffset
        s_mov_b32 s61, {QSCALE}
        """)

        steps, units, sched = self.p1_plan()
        NBUF = cfg.get("nbuf", 4)
        A0 = FR + 16 * NBUF
        ACCR = {(0, 0): A0, (0, 1): A0 + 16, (0, 2): A0 + 32, (1, 0): A0 + 48, (1, 1): A0 + 64, (1, 2): A0 + 80}
        PK = A0 + 96
        assert PK + 24 <= 208
        NT0, NT1, NE = 208, 209, 210
        ks = []
        for j, (pcs, cs) in enumerate(steps):
            for c in cs:
                for sp in range(4):
                    ks.append((j, c, sp, c == cs[0] and sp == 0))
        NK = len(ks)

        def reads(n):
            j, c, sp, _ = ks[n]
            b = FR + 16 * (n % NBUF)
            out = [f"ds_read_b128 {vr(b,4)}, v{XA+sp} offset:{c*8192}"]
            for i, pc in enumerate(steps[j][0]):
                un = units[j][(pc, c)]
                for u in range(2):
                    off = (un % 6) * 8192 + (16 * sp + 4 * u) * 128
                    out.append(f"ds_read_b64_tr_b16 {vr(b+4+4*i+2*u,2)}, v{WA + un // 6} offset:{off}")
            return out

        def mfmas(n):
            j, c, sp, _ = ks[n]
            b = FR + 16 * (n % NBUF)
            X = vr(b, 4)
            out = []
            for i, pc in enumerate(steps[j][0]):
                W = vr(b + 4 + 4 * i, 4)
                d = vr(ACCR[pc], 16)
                cin = "0" if (c == 0 and sp == 0) else d
                if pc[1] < 2:
                    out.append(f"v_mfma_f32_32x32x16_bf16 {d}, {W}, {X}, {cin}")
                else:
                    out.append(f"v_mfma_f32_32x32x16_bf16 {d}, {X}, {W}, {cin}")
            return out

        def epilogue(pc):
            br, tile = pc
            acc = ACCR[pc]
            out = []
            if tile == 0:
                for r in range(8):
                    out.append(f"v_cvt_pk_bf16_f32 v{PK+r}, v{acc+2*r}, v{acc+2*r+1}")
                for r in range(8):
                    out.append(f"v_lshlrev_b32 v{acc+2*r}, 16, v{PK+r}")
                    out.append(f"v_and_b32 v{acc+2*r+1}, 0xffff0000, v{PK+r}")
                for r in range(16):
                    out.append(f"v_mul_f32 v{acc+r}, s61, v{acc+r}")
            for r in range(8):
                out.append(f"v_cvt_pk_bf16_f32 v{PK+8*tile+r}, v{acc+2*r}, v{acc+2*r+1}")
            if tile < 2:
                out.append(f"s_add_u32 s50, s59, {br*BR + (WS_Q if tile == 0 else WS_K)}")
                for gi in range(4):
                    out.append(f"buffer_store_dwordx2 {vr(PK+8*tile+2*gi,2)}, v10, {sr(S_WS)}, s50 offen offset:{512*gi} sc1")
            else:
                for f in range(2):
                    out.append(f"s_add_u32 s50, s60, {br*BR + WS_V + f*14336}")
                    out.append(f"buffer_store_dwordx4 {vr(PK+16+4*f,4)}, v11, {sr(S_WS)}, s50 offen sc1")
            if cfg.get("exp_nost") == 1:
                out = [x for x in out if not x.startswith("buffer_store")]
            if cfg.get("exp_nost") == 2:
                out = [x.replace(" sc1", "") for x in out]
            return out

        FB = cfg.get("flag1_bar", 14)
        pend = []
        state = dict(ip=0)
        nreads = [len(reads(n)) for n in range(NK)]

        def step_barrier(jb):
            out = []
            if jb == FB:
                out.append("s_waitcnt vmcnt(0)")
            out.append("s_barrier")
            if jb == 0:
                out.append(("ST", "c0"))
            if jb == FB:
                out.append(("PUB1",))
            if jb == 6:
                out.append(f"v_mov_b32 v{NT0}, 0")
                out.append(f"buffer_load_dword v{NE}, v{NT0}, {sr(S_DBG)}, 0 offen sc1")
            if jb in (7, 11):
                out.append(("ST", f"b{jb}"))
            return out

        def advance(n):
            out = []
            while state["ip"] < NK and state["ip"] < n + NBUF and sum(nreads[max(n, 0):state["ip"] + 1]) <= 15:
                m = state["ip"]
                if ks[m][3]:
                    if ks[m][0] == FB and pend:
                        break
                    out += step_barrier(ks[m][0])
                out += reads(m)
                state["ip"] += 1
            return out

        def emit(x):
            if isinstance(x, tuple):
                if x[0] == "ST":
                    self.stamp(0, x[1])
                else:
                    self.read_nonce(early=NE, t0=NT0, t1=NT1)
                    self.publish(f"""
                    s_lshl_b32 s50, s2, 6
                    s_add_u32 s50, s50, {WS_F}
                    """, only_wave=0, t0=NT0, t1=NT1)
                    self.stamp(0, "pub1")
            else:
                a(x)

        for x in advance(-1) + advance(0):
            emit(x)
        for n in range(NK):
            j = ks[n][0]
            assert state["ip"] > n
            a(f"s_waitcnt lgkmcnt({min(15, sum(nreads[n + 1:state['ip']]))})")
            mf = mfmas(n)
            hold = False
            if n >= 1 and steps[ks[n - 1][0]][0] != steps[j][0]:
                for pc in sorted(steps[ks[n - 1][0]][0], key=lambda p: -p[1]):
                    pend += epilogue(pc)
                hold = True
            extra = []
            if pend and not hold:
                k = cfg.get("epi_rate", 12) * len(mf)
                extra, pend = pend[:k], pend[k:]
            k = (len(extra) + len(mf) - 1) // len(mf)
            early = advance(n) if False else []
            for i, m in enumerate(mf):
                if not cfg.get("exp_nomf"):
                    a(m)
                for x in extra[i * k:(i + 1) * k]:
                    a(x)
            for x in advance(n + 1):
                if cfg.get("exp_nomf") and isinstance(x, str) and x.startswith("ds_read"):
                    continue
                emit(x)
        assert not pend
        self.stamp(0, "c14")
        for pc in steps[-1][0]:
            for x in epilogue(pc):
                a(x)
        a("s_waitcnt lgkmcnt(0)")
        a("s_barrier")
        self.stamp(0, "T1")

    def p1b_plan(self):
        steps = [([1, 2], [c]) for c in range(7)] + [([0], cs) for cs in ([0, 1], [2, 3], [4, 5], [6])]
        u = 0
        units = []
        for pcs, cs in steps:
            m = {}
            for c in cs:
                for pc in pcs:
                    m[(pc, c)] = u % 6
                    u += 1
            units.append(m)
        size = [len(m) for m in units]
        sched = {i: [] for i in range(-1, len(steps))}
        nxt = 0
        for b in range(-1, len(steps)):
            live = sum(size[max(b, 0):nxt])
            lim = 6 if b >= 0 else self.cfg.get("inflight0b", 4)
            while nxt < len(steps) and live + size[nxt] <= lim:
                sched[b].append(nxt)
                live += size[nxt]
                nxt += 1
        assert nxt == len(steps)
        return steps, units, sched

    def compute_p1b(self):
        a, cfg = self.a, self.cfg
        FR = 16
        XA, WA = 4, 12
        XA2 = 236
        PK = 160
        ACCR = {(1, 0): 64, (1, 1): 80, (2, 0): 96, (2, 1): 112, (0, 0): 128, (0, 1): 144}
        a(f"""
        s_and_b32 s56, s{sW}, 1         ; rp
        s_lshr_b32 s57, s{sW}, 1        ; c
        v_and_b32 v2, 31, v0
        v_lshrrev_b32 v3, 5, v0
        v_bfe_u32 v10, v0, 1, 3
        v_xor_b32 v10, v10, v3
        s_lshl_b32 s50, s56, 13
        v_lshlrev_b32 v11, 7, v2
        v_add_u32 v11, s50, v11
        """)
        for sp in range(4):
            a(f"v_xor_b32 v13, {2*sp}, v10")
            a(f"v_lshl_add_u32 v{XA+sp}, v13, 4, v11")
            a(f"v_add_u32 v{XA2+sp}, 0x10000, v{XA+sp}")
        a(f"""
        v_and_b32 v11, 3, v0
        v_lshlrev_b32 v11, 3, v11
        v_bfe_u32 v13, v0, 4, 1
        v_lshl_add_u32 v11, v13, 5, v11
        s_lshl_b32 s50, s57, 6
        v_add_u32 v11, s50, v11
        v_bfe_u32 v13, v0, 3, 1
        v_lshlrev_b32 v13, 6, v13
        v_xor_b32 v11, v11, v13
        v_bfe_u32 v13, v0, 2, 2
        v_lshl_add_u32 v13, v3, 3, v13
        v_lshl_add_u32 v11, v13, 7, v11
        v_add_u32 v{WA}, {RW}, v11
        v_lshlrev_b32 v10, 3, v2
        v_lshl_add_u32 v10, v3, 8, v10
        v_lshlrev_b32 v11, 4, v2
        s_movk_i32 s50, 7168
        v_mad_u32_u24 v11, v3, s50, v11 ; hf*7168 + (l&31)*16
        s_lshl_b32 s58, s{sRB}, 2
        s_lshl_b32 s50, s56, 1
        s_add_u32 s58, s58, s50         ; t0
        s_mul_i32 s58, s58, {TS}
        s_mul_i32 s50, s{sBR}, {BR}
        s_add_u32 s58, s58, s50
        s_lshl_b32 s59, s{sCG}, 12
        s_lshl_b32 s50, s57, 11
        s_add_u32 s59, s59, s50
        s_add_u32 s59, s59, s58         ; Q/K soffset
        s_lshl_b32 s60, s{sCG}, 10
        s_lshl_b32 s50, s57, 9
        s_add_u32 s60, s60, s50
        s_add_u32 s60, s60, s58         ; V soffset
        s_mov_b32 s61, {QSCALE}
        """)
        steps, units, sched = self.p1b_plan()
        ks = []
        for j, (pcs, cs) in enumerate(steps):
            for c in cs:
                for sp in range(4):
                    ks.append((j, c, sp, c == cs[0] and sp == 0))
        NK = len(ks)

        def reads(n):
            j, c, sp, _ = ks[n]
            b = FR + 16 * (n % 2)
            xa, off = (XA + sp, c * 16384) if c < 4 else (XA2 + sp, (c - 4) * 16384)
            out = [f"ds_read_b128 {vr(b,4)}, v{xa} offset:{off}", f"ds_read_b128 {vr(b+4,4)}, v{xa} offset:{off+4096}"]
            for i, pc in enumerate(steps[j][0]):
                un = units[j][(pc, c)]
                for u in range(2):
                    out.append(f"ds_read_b64_tr_b16 {vr(b+8+4*i+2*u,2)}, v{WA} offset:{un*8192 + (16*sp+4*u)*128}")
            return out

        def mfmas(n):
            j, c, sp, _ = ks[n]
            b = FR + 16 * (n % 2)
            out = []
            for i, pc in enumerate(steps[j][0]):
                W = vr(b + 8 + 4 * i, 4)
                for rho in range(2):
                    X = vr(b + 4 * rho, 4)
                    d = vr(ACCR[(pc, rho)], 16)
                    cin = "0" if (c == 0 and sp == 0) else d
                    if pc < 2:
                        out.append(f"v_mfma_f32_32x32x16_bf16 {d}, {W}, {X}, {cin}")
                    else:
                        out.append(f"v_mfma_f32_32x32x16_bf16 {d}, {X}, {W}, {cin}")
            return out

        def epilogue(pc, rho):
            acc = ACCR[(pc, rho)]
            pk = PK + 8 * ((2 * pc + rho) % 3)
            out = []
            if pc == 0:
                for r in range(8):
                    out.append(f"v_cvt_pk_bf16_f32 v{pk+r}, v{acc+2*r}, v{acc+2*r+1}")
                for r in range(8):
                    out.append(f"v_lshlrev_b32 v{acc+2*r}, 16, v{pk+r}")
                    out.append(f"v_and_b32 v{acc+2*r+1}, 0xffff0000, v{pk+r}")
                for r in range(16):
                    out.append(f"v_mul_f32 v{acc+r}, s61, v{acc+r}")
            for r in range(8):
                out.append(f"v_cvt_pk_bf16_f32 v{pk+r}, v{acc+2*r}, v{acc+2*r+1}")
            if pc < 2:
                out.append(f"s_add_u32 s50, s59, {(WS_Q if pc == 0 else WS_K) + rho*TS}")
                for gi in range(4):
                    out.append(f"buffer_store_dwordx2 {vr(pk+2*gi,2)}, v10, {sr(S_WS)}, s50 offen offset:{512*gi} sc1")
            else:
                for f in range(2):
                    out.append(f"s_add_u32 s50, s60, {WS_V + f*14336 + rho*TS}")
                    out.append(f"buffer_store_dwordx4 {vr(pk+4*f,4)}, v11, {sr(S_WS)}, s50 offen sc1")
            return out

        pend = []
        a("s_barrier")
        self.stamp(0, "c0")
        for x in reads(0):
            a(x)
        for n in range(NK):
            j = ks[n][0]
            nxt = reads(n + 1) if n + 1 < NK else []
            first = n + 1 < NK and ks[n + 1][3]
            if first:
                jb = ks[n + 1][0]
                a("s_waitcnt lgkmcnt(0)")
                a("s_barrier")
                if jb == 4:
                    a("v_mov_b32 v188, 0")
                    a(f"buffer_load_dword v190, v188, {sr(S_DBG)}, 0 offen sc1")
                if jb == 7:
                    self.stamp(0, "b7")
                    a("s_waitcnt vmcnt(0)")
                    self.read_nonce(early=190, t0=188, t1=189)
                    self.publish(f"""
                    s_xor_b32 s51, s{sBR}, 1
                    s_lshl_b32 s51, s51, 14
                    s_lshl_b32 s50, s2, 6
                    s_add_u32 s50, s50, s51
                    s_add_u32 s50, s50, {WS_F}
                    """, only_wave=0, t0=188, t1=189)
                fill = list(nxt)
            else:
                for x in nxt:
                    a(x)
                a(f"s_waitcnt lgkmcnt({len(nxt)})")
                fill = []
            mf = mfmas(n)
            hold = False
            if n >= 1 and steps[ks[n - 1][0]][0] != steps[j][0]:
                for pc in (2, 1):
                    for rho in range(2):
                        pend += epilogue(pc, rho)
                hold = True
            extra = []
            if pend and not hold:
                k = cfg.get("epi_rate_b", 5) * len(mf)
                extra, pend = pend[:k], pend[k:]
            fill = fill + extra
            k = (len(fill) + len(mf) - 1) // len(mf)
            for i, m in enumerate(mf):
                a(m)
                for x in fill[i * k:(i + 1) * k]:
                    a(x)
        assert not pend
        self.stamp(0, "c14")
        for rho in range(2):
            for x in epilogue(0, rho):
                a(x)
        a("s_waitcnt vmcnt(0) lgkmcnt(0)")
        a("s_barrier")
        self.publish(f"""
        s_lshl_b32 s51, s{sBR}, 14
        s_lshl_b32 s50, s2, 6
        s_add_u32 s50, s50, s51
        s_add_u32 s50, s50, {WS_F}
        """, only_wave=0, t0=188, t1=189)
        self.stamp(0, "pub1")
        a("s_barrier")
        self.stamp(0, "T1")

    def helper_p1b(self):
        a, cfg = self.a, self.cfg
        a.label("HELPER")
        a(f"""
        s_setprio {cfg.get('hprio', 1)}
        s_sub_u32 s56, s{sW}, 4         ; j
        v_lshrrev_b32 v2, 3, v0
        v_and_b32 v3, 7, v0
        v_lshrrev_b32 v4, 4, v0
        v_xor_b32 v8, v3, v4
        v_lshlrev_b32 v8, 4, v8
        s_movk_i32 s50, 896
        v_mad_u32_u24 v5, v2, s50, v8
        v_xor_b32 v6, 64, v5
        v_and_b32 v4, 1, v4
        v_lshlrev_b32 v4, 2, v4
        v_xor_b32 v8, v3, v4
        v_lshlrev_b32 v8, 4, v8
        s_movk_i32 s50, 2688
        v_mad_u32_u24 v7, v2, s50, v8
        s_lshl_b32 s57, s{sRB}, 7
        s_lshl_b32 s50, s56, 5
        s_add_u32 s57, s57, s50
        s_mul_i32 s57, s57, 896
        s_lshl_b32 s58, s{sCG}, 7
        s_mul_i32 s50, s56, 43008
        s_add_u32 s58, s58, s50         ; W base
        s_lshl_b32 s59, s56, 11
        s_lshl_b32 s60, s56, 12
        """)
        self.srds_first()
        q = VmQ()
        self.hq = q
        steps, units, sched = self.p1b_plan()
        xdone = set()

        def issue(j):
            pcs, cs = steps[j]
            for c in cs:
                if c not in xdone:
                    xdone.add(c)
                    for i in range(4):
                        a(f"s_add_u32 s50, s57, {8*i*896 + 128*c}")
                        a(f"s_add_u32 m0, s60, {c*16384 + 8*i*128}")
                        a(f"buffer_load_dwordx4 v{5+(i&1)}, {sr(S_X)}, s50 offen lds")
                        q.push(("c", j))
                for part in pcs:
                    un = units[j][(part, c)]
                    for ii in range(2):
                        a(f"s_add_u32 s50, s58, {part*896 + (64*c + 8*ii)*2688}")
                        a(f"s_add_u32 m0, s59, {RW + un*8192 + 8*ii*128}")
                        a(f"buffer_load_dwordx4 v7, {sr(S_WA)}, s50 offen lds")
                        q.push(("c", j))

        for j in sched[-1]:
            issue(j)
            if j == cfg.get("xall", -1):
                for c in range(7):
                    issue_x(c, c)
        self.srds_rest()
        self.get_nonce()
        for b in range(len(steps)):
            n = q.wait_for(("c", b))
            if n is not None:
                a(f"s_waitcnt vmcnt({n})")
            a("s_barrier")
            for j in sched[b]:
                issue(j)
            if b == 6:
                a(f"v_mov_b32 v12, 0")
                a(f"buffer_load_dword v14, v12, {sr(S_DBG)}, 0 offen sc1")
                q.push("non")
        a("s_barrier")
        self.stamp(1, "poll1")
        a("s_waitcnt vmcnt(0)")
        self.read_nonce(early=14)
        self.poll_all(0)
        self.stamp(1, "got1")
        q.clear()
        a("s_barrier")

    def attn_setup_and_q(self):
        a = self.a
        Q = 192
        a(f"""
        v_and_b32 v224, 31, v0
        v_lshrrev_b32 v225, 5, v0
        v_lshlrev_b32 v224, 3, v224
        v_lshl_add_u32 v224, v225, 8, v224
        v_add_u32 v225, {QL}, v224
        """)

    def compute_attn(self):
        a, cfg = self.a, self.cfg
        Q, O, S, P, NM, T, KV = 192, 48, 112, 144, 152, 156, 16
        KA, VA = 226, 232
        self.regs = dict(Q=Q, O=O, S=S, P=P, NM=NM, T=T, KV=KV)
        a.label("ATT_C_ENTRY")
        self.attn_setup_and_q()
        a(f"s_lshl_b32 s50, s{sW}, 13")
        for sl in range(3):
            for kk in range(2):
                a(f"v_add_u32 v{KA+2*sl+kk}, s50, v224")
                a(f"v_add_u32 v{KA+2*sl+kk}, {R2 + (SLOT_TS[sl]+kk)*4096}, v{KA+2*sl+kk}")
        a(f"""
        v_add_u32 v{VA}, s50, v1
        v_add_u32 v{VA+1}, {R2 + 65536 + 2048}, v{VA}
        v_add_u32 v{VA}, {R2 + 2048}, v{VA}
        """)
        self.o_voff(2, 3)
        a(f"""
        s_lshl_b32 s56, s{sQB}, 2
        s_add_u32 s56, s56, s{sW}
        s_mul_i32 s56, s56, {TS}
        s_add_u32 s56, s56, {WS_OA}
        """)

        def kv_reads(t):
            k, kk = divmod(t, 2)
            sl = k % 3
            b = KV + 16 * (t % 2)
            ts = SLOT_TS[sl] + kk
            out = []
            for f in range(2):
                out.append(f"ds_read2_b64 {vr(b+4*f,4)}, v{KA+2*sl+kk} offset0:{128*f} offset1:{128*f+64}")
            for f in range(2):
                vb, off = (VA, ts * 4096) if ts < 16 else (VA + 1, (ts - 16) * 4096)
                out.append(f"ds_read_b128 {vr(b+8+4*f,4)}, v{vb} offset:{off + 1024*f}")
            return out

        def qk(u, buf):
            t, j = divmod(u, 4)
            b = KV + 16 * (t % 2)
            d = vr(S + 16 * buf, 16)
            return (f"v_mfma_f32_32x32x16_bf16 {d}, {vr(b,4)}, {vr(Q+8*j,4)}, 0",
                    f"v_mfma_f32_32x32x16_bf16 {d}, {vr(b+4,4)}, {vr(Q+8*j+4,4)}, {d}")

        def pv(u, half):
            t, j = divmod(u, 4)
            b = KV + 16 * (t % 2)
            d = vr(O + 16 * j, 16)
            c = "0" if (t == 0 and half == 0) else d
            return f"v_mfma_f32_32x32x16_bf16 {d}, {vr(b+8+4*half,4)}, {vr(P+4*half,4)}, {c}"

        def part_write(j):
            out = ["s_mov_b32 exec_lo, 0", f"v_mov_b32 v{O+16*j+13}, v{NM+j}", "s_mov_b32 exec_lo, -1"]
            for qd in range(4):
                out.append(f"ds_write_b128 v{PW}, {vr(O+16*j+4*qd,4)} offset:{j*4096 + qd*1024}")
            return out
        self.part_write = part_write
        PW = 234
        a(f"s_lshl_b32 s50, s{sW}, 14")
        a(f"v_add_u32 v{PW}, s50, v1")
        a(f"v_add_u32 v{PW}, {CB}, v{PW}")
        if cfg.get("p1v", 1) != 2:
            a("s_waitcnt vmcnt(0)")
        self.stamp(0, "preS0")
        a("s_barrier")
        self.stamp(0, "S0")
        if cfg.get("p1v", 1) != 2:
            self.publish(f"""
            s_lshl_b32 s50, s2, 6
            s_add_u32 s50, s50, {WS_F + 0x4000}
            """, only_wave=0, t0=188, t1=189)
        F2B = -1
        a(f"v_add_u32 v3, 4096, v225")
        for j in range(4):
            for f in range(2):
                o0 = (j & 1) * 256 + 128 * f
                if o0 + 64 > 255:
                    a(f"v_add_u32 v4, {j*2048}, v225")
                    a(f"ds_read2_b64 {vr(Q+8*j+4*f,4)}, v4 offset0:{128*f} offset1:{128*f+64}")
                else:
                    a(f"ds_read2_b64 {vr(Q+8*j+4*f,4)}, v{225 if j < 2 else 3} offset0:{o0} offset1:{o0+64}")
        for x in kv_reads(0):
            a(x)
        a("s_waitcnt lgkmcnt(0)")
        a("s_mov_b32 exec_lo, 0")
        for j in range(4):
            a(f"v_mov_b32 v{Q+8*j+6}, 0")
            a(f"v_mov_b32 v{Q+8*j+7}, 0")
        a("s_mov_b32 exec_lo, -1")
        scr = [S, S + 16, O, O + 16]
        for j in range(4):
            d = vr(scr[j], 16)
            a(f"v_mfma_f32_32x32x16_bf16 {d}, {vr(KV,4)}, {vr(Q+8*j,4)}, 0")
            a(f"v_mfma_f32_32x32x16_bf16 {d}, {vr(KV+4,4)}, {vr(Q+8*j+4,4)}, {d}")
        for j in range(4):
            self.max_tree([scr[j] + r for r in range(16)], T + 2 * j, T + 2 * j + 1)
        for j in range(4):
            a(f"v_add_f32 v{T+2*j}, {f32bits(40.0)}, v{T+2*j}")
        for j in range(4):
            a(f"v_cvt_pk_bf16_f32 v{T+2*j+1}, -v{T+2*j}, 0")
        a("s_mov_b32 exec_lo, 0")
        for j in range(4):
            a(f"v_mov_b32 v{Q+8*j+6}, v{T+2*j+1}")
        a("s_mov_b32 exec_lo, -1")
        for j in range(4):
            a(f"v_lshlrev_b32 v{NM+j}, 16, v{T+2*j+1}")
        self.stamp(0, "att0")
        m0, m1 = qk(0, 0)
        a(m0)
        a(m1)
        for u in range(64):
            t, j = divmod(u, 4)
            sb = S + 16 * (u & 1)
            slots = [None] * 4
            post = [[] for _ in range(4)]
            if u + 1 < 64:
                slots[0], slots[1] = qk(u + 1, (u + 1) & 1)
            if u >= 1:
                slots[2] = pv(u - 1, 1)
            slots[3] = pv(u, 0)
            if t + 1 < 16:
                rd = kv_reads(t + 1)
                if j == 0 and t % 2 == 1:
                    if t == 2 * F2B - 1:
                        post[2].append("s_waitcnt vmcnt(0)")
                    post[2].append("s_barrier")
                    if cfg.get("ststage"):
                        post[2].append(("ST", f"S{(t+1)//2}"))
                    if t == 2 * F2B - 1:
                        post[2].append("PUB2")
                if j == 0:
                    post[3].append(rd[0])
                if j == 1:
                    post[0].append(rd[1])
                    post[1].append(rd[2])
                    post[2].append(rd[3])
                if j == 2:
                    post[3].append("s_waitcnt lgkmcnt(0)")
            if u >= 62:
                pwl = part_write(u - 62)
                post[0] += pwl[:4]
                post[1] += pwl[4:5]
                post[2] += pwl[5:6]
                post[3] += pwl[6:7]
            for g in range(4):
                r = 4 * g
                a(f"v_exp_f32 v{sb+r}, v{sb+r}")
                a(f"v_exp_f32 v{sb+r+1}, v{sb+r+1}")
                if slots[g]:
                    a(slots[g])
                for x in post[g]:
                    if isinstance(x, tuple):
                        self.stamp(0, x[1])
                    elif x == "PUB2":
                        self.publish(f"""
                        s_lshl_b32 s50, s2, 6
                        s_add_u32 s50, s50, {WS_F + 0x4000}
                        """, only_wave=0, t0=188, t1=189)
                    else:
                        a(x)
                a(f"v_exp_f32 v{sb+r+2}, v{sb+r+2}")
                a(f"v_exp_f32 v{sb+r+3}, v{sb+r+3}")
                a(f"v_cvt_pk_bf16_f32 v{P+2*g}, v{sb+r}, v{sb+r+1}")
                a(f"v_cvt_pk_bf16_f32 v{P+2*g+1}, v{sb+r+2}, v{sb+r+3}")
        a(pv(63, 1))
        self.stamp(0, "attE")
        for x in part_write(2) + part_write(3):
            a(x)
        a(f"""
        s_mov_b32 s50, {f32bits(2.0**-60)}
        s_mov_b32 s51, {f32bits(2.0**64)}
        s_mov_b64 s[52:53], -1
        """)
        for j in range(4):
            a(f"v_cmp_lt_f32 vcc, s50, v{O+16*j+12}")
            a("s_and_b64 s[52:53], s[52:53], vcc")
            a(f"v_cmp_gt_f32 vcc, s51, v{O+16*j+12}")
            a("s_and_b64 s[52:53], s[52:53], vcc")
        a("""
        s_cmp_eq_u32 s53, -1
        s_cbranch_scc0 FALLBACK
        """)
        a.label("COMBINE")
        a(f"""
        s_lshl_b32 s50, s{sW}, 12
        v_add_u32 v5, s50, v1
        v_add_u32 v5, {CB}, v5
        s_waitcnt lgkmcnt(0)
        s_barrier
        """)
        self.stamp(0, "C1")
        for k in range(4):
            for qd in range(4):
                a(f"ds_read_b128 {vr(O+16*k+4*qd,4)}, v5 offset:{k*16384 + qd*1024}")
        a("s_waitcnt lgkmcnt(0)")
        for k in range(4):
            a(f"v_mov_b32 v{T+2*k}, v{O+16*k+13}")
            a(f"v_mov_b32 v{T+2*k+1}, v{O+16*k+13}")
        for k in range(4):
            a(f"v_permlane32_swap_b32 v{T+2*k}, v{T+2*k+1}")
        a(f"v_min3_f32 v{T}, v{T+1}, v{T+3}, v{T+5}")
        a(f"v_min_f32 v{T}, v{T}, v{T+7}")
        for k in range(4):
            a(f"v_sub_f32 v{T+2*k+1}, v{T}, v{T+2*k+1}")
        for k in range(4):
            a(f"v_exp_f32 v{T+2*k+1}, v{T+2*k+1}")
        for r in range(16):
            a(f"v_mul_f32 v{O+r}, v{T+1}, v{O+r}")
        for k in range(1, 4):
            for r in range(16):
                a(f"v_fmac_f32 v{O+r}, v{T+2*k+1}, v{O+16*k+r}")
        self.finalize_o(O, T + 8, 2, "s56")
        a(f"""
        v_mov_b32 v188, {QL + 1792}
        v_mov_b32 v189, 1
        s_mov_b64 exec, 1
        ds_add_u32 v188, v189
        s_mov_b64 exec, -1
        """)
        a(f"""
        s_lshl_b32 s50, s{sQB}, 2
        s_add_u32 s50, s50, s{sW}
        s_lshl_b32 s50, s50, 4
        s_add_u32 s50, s50, s{sH}
        s_lshl_b32 s50, s50, 6
        s_add_u32 s50, s50, {WS_F + 0x10000}
        v_mov_b32 v188, 0
        v_mov_b32 v189, s{sNONCE}
        s_waitcnt vmcnt(0)
        s_mov_b64 exec, 1
        buffer_store_dword v189, v188, {sr(S_WS)}, s50 offen sc1
        s_mov_b64 exec, -1
        """)
        self.stamp(0, "pub3")
        a(f"s_cmp_ge_u32 s{sIDX}, 28")
        a("s_cbranch_scc1 C_DONE")
        a("s_barrier")
        self.oa_dma()
        a("s_waitcnt vmcnt(0)")
        a("s_barrier")
        a.label("C_DONE")
        self.stamp(0, "end")
        self.stamp_flush(14, 0)
        a("s_endpgm")

    def oa_dma(self):
        a = self.a
        a(f"""
        s_lshl_b32 s50, s{sRB3}, 1
        s_mul_i32 s50, s50, {TS}
        s_mul_i32 s51, s{sW}, 7168
        s_add_u32 s50, s50, s51
        s_add_u32 s50, s50, {WS_OA}
        s_add_u32 s52, s50, 4096
        s_add_u32 m0, s51, {OAL}
        """)
        for i in range(7):
            if i == 4:
                a(f"s_add_u32 m0, s51, {OAL + 4096}")
            a(f"buffer_load_dwordx4 v1, {sr(S_WS)}, {'s50' if i < 4 else 's52'} offen offset:{(i%4)*1024}{LSC} lds")

    def fallback(self):
        a = self.a
        R = self.regs
        Q, O, S, P, NM, T, KV = R["Q"], R["O"], R["S"], R["P"], R["NM"], R["T"], R["KV"]
        a.label("FALLBACK")
        a("s_nop 15")
        a(f"""
        v_and_b32 v5, 31, v0
        v_lshrrev_b32 v6, 5, v0
        v_lshlrev_b32 v5, 4, v5
        s_movk_i32 s50, 7168
        v_mad_u32_u24 v5, v6, s50, v5          ; V voffset
        s_lshl_b32 s57, s{sW}, 4
        s_mul_i32 s57, s57, {TS}
        s_mul_i32 s50, s{sH}, 1792
        s_add_u32 s58, s57, s50
        s_add_u32 s58, s58, {WS_K}
        s_mul_i32 s50, s{sH}, 448
        s_add_u32 s59, s57, s50
        s_add_u32 s59, s59, {WS_V}
        s_mov_b32 exec_lo, 0
        """)
        for j in range(4):
            a(f"v_mov_b32 v{Q+8*j+6}, 0")
        a(f"v_mov_b32 v{KV+6}, 0")
        a(f"v_mov_b32 v{KV+7}, 0")
        a("s_mov_b32 exec_lo, -1")
        for r in range(8):
            a(f"v_mov_b32 v{KV+8+r}, 0")
        a("s_mov_b32 exec_lo, 0x10000000")
        a("s_mov_b32 exec_hi, 0x10000000")
        for r in range(8):
            a(f"v_mov_b32 v{KV+8+r}, 0x3f803f80")
        a("s_mov_b64 exec, -1")
        for j in range(4):
            a(f"v_mov_b32 v{NM+j}, {f32bits(3.0e38)}")
            for r in range(16):
                a(f"v_mov_b32 v{O+16*j+r}, 0")
        a("s_mov_b32 s57, 0")
        a.label("FB_LOOP")
        self.load_qk_frag(KV, 224, "s58")
        a(f"""
        s_add_u32 s50, s59, 14336
        s_mov_b32 exec_lo, 0x0fffffff
        s_mov_b32 exec_hi, 0x0fffffff
        buffer_load_dwordx4 {vr(KV+8,4)}, v5, {sr(S_WS)}, s59 offen{LSC}
        buffer_load_dwordx4 {vr(KV+12,4)}, v5, {sr(S_WS)}, s50 offen{LSC}
        s_mov_b64 exec, -1
        s_waitcnt vmcnt(0)
        """)
        for j in range(4):
            d = vr(S, 16)
            a(f"v_mfma_f32_32x32x16_bf16 {d}, {vr(KV,4)}, {vr(Q+8*j,4)}, 0")
            a(f"v_mfma_f32_32x32x16_bf16 {d}, {vr(KV+4,4)}, {vr(Q+8*j+4,4)}, {d}")
            self.max_tree([S + r for r in range(16)], T, T + 1)
            a(f"v_min_f32 v{T+1}, v{NM+j}, -v{T}")
            a(f"v_sub_f32 v{T+2}, v{T+1}, v{NM+j}")
            a(f"v_exp_f32 v{T+2}, v{T+2}")
            a(f"v_mov_b32 v{NM+j}, v{T+1}")
            for r in range(16):
                a(f"v_add_f32 v{S+r}, v{S+r}, v{T+1}")
            for r in range(16):
                a(f"v_exp_f32 v{S+r}, v{S+r}")
            for r in range(16):
                a(f"v_mul_f32 v{O+16*j+r}, v{T+2}, v{O+16*j+r}")
            for r in range(8):
                a(f"v_cvt_pk_bf16_f32 v{P+r}, v{S+2*r}, v{S+2*r+1}")
            o = vr(O + 16 * j, 16)
            a(f"v_mfma_f32_32x32x16_bf16 {o}, {vr(KV+8,4)}, {vr(P,4)}, {o}")
            a(f"v_mfma_f32_32x32x16_bf16 {o}, {vr(KV+12,4)}, {vr(P+4,4)}, {o}")
        a(f"""
        s_nop 15
        s_add_u32 s58, s58, {TS}
        s_add_u32 s59, s59, {TS}
        s_add_u32 s57, s57, 1
        s_cmp_lt_u32 s57, 16
        s_cbranch_scc1 FB_LOOP
        """)
        for j in range(4):
            for x in self.part_write(j):
                a(x)
        a("s_branch COMBINE")

    def helper_p1(self):
        a, cfg = self.a, self.cfg
        a.label("HELPER")
        a(f"s_setprio {cfg.get('hprio', 1)}")
        a(f"""
        s_sub_u32 s56, s{sW}, 4         ; j
        v_lshrrev_b32 v2, 3, v0
        v_and_b32 v3, 7, v0
        v_lshrrev_b32 v4, 4, v0
        v_xor_b32 v8, v3, v4
        v_lshlrev_b32 v8, 4, v8
        s_movk_i32 s50, 896
        v_mad_u32_u24 v5, v2, s50, v8
        v_xor_b32 v6, 64, v5
        v_and_b32 v4, 1, v4
        v_lshlrev_b32 v4, 2, v4
        v_xor_b32 v8, v3, v4
        v_lshlrev_b32 v8, 4, v8
        s_movk_i32 s50, 2688
        v_mad_u32_u24 v7, v2, s50, v8   ; W voff
        s_lshl_b32 s57, s{sRB}, 6
        s_lshl_b32 s50, s56, 4
        s_add_u32 s57, s57, s50
        s_mul_i32 s57, s57, 896
        s_lshl_b32 s58, s{sCG}, 7
        s_mul_i32 s50, s56, 43008
        s_add_u32 s58, s58, s50         ; W base
        s_lshl_b32 s59, s56, 11
        """)
        self.srds_first()
        q = VmQ()
        self.hq = q

        steps, units, sched = self.p1_plan()
        xdone = set()

        def issue_x(c, j):
            if c not in xdone:
                xdone.add(c)
                for i in range(2):
                    a(f"s_add_u32 s50, s57, {8*i*896 + 128*c}")
                    a(f"s_add_u32 m0, s59, {R1 + c*8192 + 8*i*128}")
                    a(f"buffer_load_dwordx4 v{5+i}, {sr(S_X)}, s50 offen lds")
                    q.push(("c", j))

        def issue(j):
            pcs, cs = steps[j]
            for c in cs:
                issue_x(c, j)
                for (br, part) in pcs:
                    un = units[j][((br, part), c)]
                    for ii in range(2):
                        a(f"s_add_u32 s50, s58, {part*896 + (64*c + 8*ii)*2688}")
                        a(f"s_add_u32 m0, s59, {R2 + un*8192 + 8*ii*128}")
                        a(f"buffer_load_dwordx4 v7, {sr(S_WA if (br == 0 or cfg.get('exp_wa')) else S_WB)}, s50 offen lds")
                        q.push(("c", j))

        for j in sched[-1]:
            issue(j)
        self.srds_rest()
        self.get_nonce()
        for b in range(len(steps)):
            n = q.wait_for(("c", b))
            if n is not None:
                a(f"s_waitcnt vmcnt({n})")
            a("s_barrier")
            for j in sched[b]:
                issue(j)
            if b == 9:
                a(f"v_mov_b32 v12, 0")
                a(f"buffer_load_dword v14, v12, {sr(S_DBG)}, 0 offen sc1")
                q.push("non")
            if b == len(steps) - 2 and cfg.get("qearly", 1):
                self.read_nonce(early=14)
                a(f"""
                s_lshl_b32 s60, s{sQB}, 1
                s_lshr_b32 s50, s56, 1
                s_add_u32 s60, s60, s50
                s_mul_i32 s61, s{sH}, 28
                v_mov_b32 v12, 0
                s_mov_b64 exec, 1
                """)
                for i, add in enumerate((0, 27)):
                    a(f"""
                    s_add_u32 s50, s61, {add}
                    s_lshr_b32 s50, s50, 6          ; cg
                    s_and_b32 s51, s50, 3
                    s_lshl_b32 s51, s51, 3
                    s_and_b32 s52, s60, 7
                    s_add_u32 s51, s51, s52
                    s_lshr_b32 s52, s50, 2          ; s
                    s_and_b32 s53, s60, 3
                    s_add_u32 s53, s53, 24
                    s_bfe_u32 s54, s60, 0x10002
                    s_cmp_eq_u32 s50, 3
                    s_cselect_b32 s51, s53, s51
                    s_cselect_b32 s52, s54, s52
                    s_lshl_b32 s51, s51, 3
                    s_add_u32 s51, s51, s52
                    s_lshr_b32 s52, s60, 3
                    s_lshl_b32 s52, s52, 1
                    s_add_u32 s51, s51, s52
                    s_lshl_b32 s51, s51, 6
                    s_add_u32 s51, s51, {WS_F}
                    buffer_load_dword v{140+i}, v12, {sr(S_WS)}, s51 offen sc1
                    """)
                    q.push("qp")
                a("s_mov_b64 exec, -1")
        self.stamp(1, "poll1")
        a("s_waitcnt vmcnt(0)")
        a(f"s_mov_b32 s{sQE}, 0")
        if cfg.get("qearly", 1):
            noq = self.lab("NOQ")
            a(f"""
            v_readfirstlane_b32 s50, v140
            v_readfirstlane_b32 s51, v141
            s_cmp_lg_u32 s50, s{sNONCE}
            s_cbranch_scc1 {noq}
            s_cmp_lg_u32 s51, s{sNONCE}
            s_cbranch_scc1 {noq}
            s_mov_b32 s{sQE}, 1
            """)
            self.q_dma_code()
            a.label(noq)
        else:
            self.read_nonce(early=14)
        self.poll_all(0, drain=False)
        self.stamp(1, "got1")
        q.clear()
        a("s_barrier")

    def q_dma_code(self):
        a = self.a
        skip, one = self.lab("QSK"), self.lab("QONE")
        a(f"""
        s_cmp_eq_u32 s{sW}, 4
        s_cbranch_scc1 {skip}
        s_sub_u32 s52, s{sW}, 4
        """)
        for rep in range(2):
            a(f"""
            s_lshl_b32 s50, s{sQB}, 2
            s_add_u32 s50, s50, s52
            s_mul_i32 s50, s50, {TS}
            s_mul_i32 s51, s{sH}, 1792
            s_add_u32 s50, s50, s51
            s_lshl_b32 s51, s52, 11
            s_add_u32 m0, s51, {QL}
            buffer_load_dwordx4 v1, {sr(S_WS)}, s50 offen{LSC} lds
            s_mov_b32 exec_hi, 0xffff
            buffer_load_dwordx4 v1, {sr(S_WS)}, s50 offen offset:1024{LSC} lds
            s_mov_b32 exec_hi, -1
            """)
            if rep == 0:
                a(f"""
                s_cmp_lg_u32 s{sW}, 5
                s_cbranch_scc1 {skip}
                s_mov_b32 s52, 0
                """)
        a.label(skip)

    def helper_attn(self):
        a, cfg = self.a, self.cfg
        q = self.hq
        a.label("ATT_H_ENTRY")
        VMASK = "s_mov_b32 exec_lo, 0x0fffffff\ns_mov_b32 exec_hi, 0x0fffffff"
        a(f"""
        s_sub_u32 s56, s{sW}, 4         ; j
        v_and_b32 v2, 31, v0
        v_lshrrev_b32 v3, 5, v0
        v_lshlrev_b32 v4, 4, v2
        s_movk_i32 s50, 7168
        v_mad_u32_u24 v4, v3, s50, v4   ; v4 = V voffset
        v_lshlrev_b32 v5, 3, v2
        v_lshl_add_u32 v5, v3, 8, v5
        s_lshl_b32 s57, s56, 4
        s_mul_i32 s57, s57, {TS}
        s_mul_i32 s50, s{sH}, 1792
        s_add_u32 s58, s57, s50
        s_add_u32 s58, s58, {WS_K}      ; K stream
        s_mul_i32 s50, s{sH}, 448
        s_add_u32 s59, s57, s50
        s_add_u32 s59, s59, {WS_V}      ; V stream
        s_lshl_b32 s60, s56, 13         ; j*8192 lds
        v_lshlrev_b32 v6, 3, v0
        v_add_u32 v6, s60, v6
        v_add_u32 v6, {R2 + 1792}, v6
        v_mov_b32 v8, 0x3f80
        v_mov_b32 v9, 0
        v_and_b32 v7, 3, v0
        v_cmp_eq_u32 vcc, 0, v7
        v_mov_b32 v16, 0
        v_mov_b32 v17, 0x3f803f80
        v_cndmask_b32 v16, v16, v17, vcc
        v_mov_b32 v17, v16
        v_mov_b32 v18, v16
        v_mov_b32 v19, v16
        v_bfe_u32 v10, v0, 2, 1         ; hf
        v_lshl_add_u32 v7, v10, 5, v7
        v_bfe_u32 v10, v0, 3, 1         ; f
        v_lshl_add_u32 v7, v10, 6, v7
        v_lshlrev_b32 v7, 4, v7
        v_add_u32 v7, s60, v7
        v_add_u32 v7, {R2 + 2048 + 448}, v7
        """)

        def consts(sl):
            for kk in range(2):
                off = (SLOT_TS[sl] + kk) * 4096
                vb6, vb7, o = 6, 7, off
                if off > 60000:
                    a(f"v_add_u32 v10, {off}, v6")
                    a(f"v_add_u32 v11, {off}, v7")
                    vb6, vb7, o = 10, 11, 0
                a("s_mov_b32 exec_hi, 0")
                a(f"ds_write_b64 v{vb6}, v[8:9] offset:{o}")
                a("s_mov_b32 exec_lo, 0xffff")
                a(f"ds_write_b128 v{vb7}, v[16:19] offset:{o}")
                a("s_mov_b64 exec, -1")

        def stage(k):
            sl = k % 3
            for kk in range(2):
                base = R2 + (SLOT_TS[sl] + kk) * 4096
                if kk == 0:
                    a(f"s_add_u32 s51, s{sQB}, {k}")
                    a("s_and_b32 s51, s51, 7")
                    a(f"s_mul_i32 s51, s51, {2*TS*cfg.get('rotkv', 0)}")
                    if not cfg.get('rotkv', 0):
                        a(f"s_mov_b32 s51, {2*k*TS}")
                    a("s_add_u32 s52, s51, s58")
                    a("s_add_u32 s53, s51, s59")
                a(f"s_add_u32 s50, s52, {kk*TS}")
                a(f"s_add_u32 m0, s60, {base}")
                a(f"buffer_load_dwordx4 v1, {sr(S_WS)}, s50 offen{LSC} lds")
                a("s_mov_b32 exec_hi, 0xffff")
                a(f"buffer_load_dwordx4 v1, {sr(S_WS)}, s50 offen offset:1024{LSC} lds")
                a(VMASK)
                for f in range(2):
                    a(f"s_add_u32 s50, s53, {kk*TS + f*14336}")
                    a(f"s_add_u32 m0, s60, {base + 2048 + 1024*f}")
                    a(f"buffer_load_dwordx4 v4, {sr(S_WS)}, s50 offen{LSC} lds")
                a("s_mov_b64 exec, -1")
                for _ in range(4):
                    q.push(("s", k))

        def q_dma():
            a(f"""
            s_lshl_b32 s50, s{sQB}, 2
            s_add_u32 s50, s50, s56
            s_mul_i32 s50, s50, {TS}
            s_mul_i32 s51, s{sH}, 1792
            s_add_u32 s50, s50, s51
            s_lshl_b32 s51, s56, 11
            s_add_u32 m0, s51, {QL}
            buffer_load_dwordx4 v1, {sr(S_WS)}, s50 offen{LSC} lds
            s_mov_b32 exec_hi, 0xffff
            buffer_load_dwordx4 v1, {sr(S_WS)}, s50 offen offset:1024{LSC} lds
            s_mov_b32 exec_hi, -1
            """)
            q.push(("s", 0))
            q.push(("s", 0))

        def bar(k):
            n = q.wait_for(("s", k))
            if n is not None:
                a(f"s_waitcnt vmcnt({n}) lgkmcnt(0)")
            else:
                a("s_waitcnt lgkmcnt(0)")
            a("s_barrier")

        def wo_dma(srd_, region, tag, lo=0, hi=14):
            a(f"""
            v_lshrrev_b32 v10, 3, v0
            v_and_b32 v11, 7, v0
            v_bfe_u32 v12, v0, 4, 1
            v_lshlrev_b32 v12, 2, v12
            v_xor_b32 v11, v11, v12
            v_lshlrev_b32 v11, 4, v11
            s_movk_i32 s50, 896
            v_mad_u32_u24 v10, v10, s50, v11
            s_mul_i32 s51, s56, 100352
            s_lshl_b32 s50, s{sCB3}, 7
            s_add_u32 s51, s51, s50
            s_mul_i32 s52, s56, 14336
            """)
            for i in range(lo, hi):
                a(f"s_add_u32 s50, s51, {8*i*896}")
                a(f"s_add_u32 m0, s52, {region + i*1024}")
                a(f"buffer_load_dwordx4 v10, {sr(srd_)}, s50 offen lds")
                q.push(tag)

        skip3 = lambda name: (f"s_cmp_ge_u32 s{sIDX}, 28\ns_cbranch_scc1 {name}")

        a(f"s_cmp_lg_u32 s{sQE}, 0")
        a("s_cbranch_scc1 HAVE_Q")
        self.q_dma_code()
        a.label("HAVE_Q")
        stage(0)
        consts(0)
        consts(1)
        consts(2)
        a(f"""
        v_mov_b32 v10, {QL + 1792}
        v_mov_b32 v11, 0
        ds_write_b32 v10, v11
        """)
        if cfg.get("s1early", 1):
            stage(1)
        bar(0)
        self.stamp(1, "S0")
        if not cfg.get("s1early", 1):
            stage(1)
        stage(2)
        wo_dma(S_WOB, R1, "woB", 0, 7)
        bar(1)
        stage(3)
        wo_dma(S_WOB, R1, "woB", 7, 14)
        bar(2)
        self.poll_issue("all", 0x4000, q)
        stage(4)
        a(f"s_waitcnt vmcnt({q.wait_for('poll')})")
        self.poll_check("all", 0x4000)
        self.stamp(1, "got2")
        a("s_barrier")
        stage(5)
        self.local_attn_loads(q)
        bar(4)
        stage(6)
        self.local_attn(q)
        self.stamp(1, "Ldone")
        bar(5)
        stage(7)
        self.out_gemm_setup()
        q.push("g")
        a(f"s_waitcnt vmcnt({q.wait_for('ost')})")
        a("s_barrier")
        self.publish(f"""
        s_lshl_b32 s50, s{sQB}, 4
        s_add_u32 s50, s50, s{sH}
        s_lshl_b32 s50, s50, 6
        s_add_u32 s50, s50, {WS_F + 0xC000}
        """, balance=True)
        q.push("pub")
        bar(7)
        self.poll16(0xC000, everyone=True)
        q.clear()
        self.stamp(1, "got4")
        self.out_gemm_loads(1, q, 0, 28)
        a("s_setprio 0")
        self.stamp(1, "oBiss")
        a("s_barrier")
        a(skip3("H_DONE"))
        self.out_gemm(1, R1, q, loads=False)
        lp = self.lab("HS")
        a(f"""
        v_mov_b32 v10, {QL + 1792}
        v_mov_b32 v11, 1
        s_mov_b64 exec, 1
        ds_add_u32 v10, v11
        s_mov_b64 exec, -1
        s_mov_b32 s51, 0
        """)
        a.label(lp)
        a(f"""
        ds_read_b32 v11, v10
        s_add_u32 s51, s51, 1
        s_waitcnt lgkmcnt(0)
        v_readfirstlane_b32 s50, v11
        s_cmp_ge_u32 s51, {SPIN_MAX}
        s_cbranch_scc1 {lp}_X
        s_cmp_lt_u32 s50, 8
        s_cbranch_scc1 {lp}
        """)
        a.label(lp + "_X")
        self.stamp(1, "bdone")
        wo_dma(S_WOA, R1, "woA")
        self.out_epilogue_pre()
        self.poll32()
        q.clear()
        a("s_barrier")
        self.stamp(1, "got3")
        self.oa_dma()
        a(f"""
        s_mul_i32 s50, s62, {TS}
        v_add_u32 v21, s50, v1
        v_add_u32 v21, {OAL}, v21
        s_waitcnt vmcnt(0)
        s_barrier
        """)
        self.stamp(1, "C4")
        self.out_gemm_lds()
        self.out_epilogue()
        a.label("H_DONE")
        if cfg.get("stamps"):
            a("s_waitcnt vmcnt(0)")
        self.stamp(1, "end")
        self.stamp_flush(14, 1)
        a("s_endpgm")

    def poll32(self):
        a = self.a
        loop, done = self.lab("POLL"), self.lab("POLLD")
        a(f"""
        s_waitcnt vmcnt(0)
        s_cmp_lg_u32 s{sW}, 4
        s_cbranch_scc1 {done}
        s_lshl_b32 s50, s{sRB3}, 11
        s_add_u32 s50, s50, {WS_F + 0x10000}
        s_mov_b32 s51, 0
        v_and_b32 v13, 31, v0
        v_lshlrev_b32 v13, 6, v13
        """)
        if self.cfg.get("pipepoll", 2) == 2:
            a("s_mov_b32 s52, -1")
            a("s_mov_b32 s53, 0")
            a.label(loop)
            a(f"""
            s_mov_b64 exec, s[52:53]
            buffer_load_dword v12, v13, {sr(S_WS)}, s50 offen sc1
            s_waitcnt vmcnt(0)
            v_cmp_ne_u32 s[52:53], s{sNONCE}, v12
            s_mov_b64 exec, -1
            s_cmp_eq_u64 s[52:53], 0
            s_cbranch_scc1 {done}
            s_sleep {self.cfg.get("sleep3", 2)}
            s_add_u32 s51, s51, 1
            s_cmp_lt_u32 s51, {SPIN_MAX}
            s_cbranch_scc1 {loop}
            """)
        elif self.cfg.get("pipepoll", 2) == 1:
            regs = (140, 141, 142)
            for r in regs[:2]:
                a(f"buffer_load_dword v{r}, v13, {sr(S_WS)}, s50 offen sc1")
                a("s_sleep 3")
            a.label(loop)
            for i, r in enumerate(regs):
                a(f"""
                buffer_load_dword v{regs[(i+2) % 3]}, v13, {sr(S_WS)}, s50 offen sc1
                s_waitcnt vmcnt(2)
                v_cmp_eq_u32 s[52:53], s{sNONCE}, v{r}
                s_cmp_eq_u64 s[52:53], -1
                s_cbranch_scc1 {done}
                """)
            a(f"""
            s_add_u32 s51, s51, 1
            s_cmp_lt_u32 s51, {SPIN_MAX}
            s_cbranch_scc1 {loop}
            """)
        else:
            a.label(loop)
            a(f"""
            buffer_load_dword v12, v13, {sr(S_WS)}, s50 offen sc1
            s_waitcnt vmcnt(0)
            v_cmp_eq_u32 s[52:53], s{sNONCE}, v12
            s_cmp_eq_u64 s[52:53], -1
            s_cbranch_scc1 {done}
            s_add_u32 s51, s51, 1
            s_cmp_lt_u32 s51, {SPIN_MAX}
            s_cbranch_scc1 {loop}
            """)
        a.label(done)

    def out_gemm_lds(self):
        a = self.a
        ACC, NB = 64, 4
        WF, OFB = 32, 96

        def reads(s):
            b = WF + 4 * (s % NB)
            a(f"ds_read_b128 {vr(OFB+4*(s % NB),4)}, v21 offset:{s*1024}")
            for u in range(2):
                a(f"ds_read_b64_tr_b16 {vr(b+2*u,2)}, v20 offset:{(16*s+4*u)*128}")

        for s in range(NB - 1):
            reads(s)
        for s in range(28):
            if s + NB - 1 < 28:
                reads(s + NB - 1)
                lg = 3 * (NB - 1)
            else:
                lg = 3 * (27 - s)
            a(f"s_waitcnt lgkmcnt({lg})")
            d = vr(ACC, 16)
            c = "0" if s == 0 else d
            a(f"v_mfma_f32_32x32x16_bf16 {d}, {vr(WF+4*(s % NB),4)}, {vr(OFB+4*(s % NB),4)}, {c}")

    def local_attn_loads(self, q):
        a = self.a
        LQ, LK, LKP, LV, LVP = 20, 28, 36, 44, 52
        a(f"""
        s_lshl_b32 s61, s{sQB}, 2
        s_add_u32 s61, s61, s56         ; tB
        s_mul_i32 s62, s61, {TS}
        s_sub_u32 s63, s62, {TS}
        s_cmp_eq_u32 s61, 0
        s_cselect_b32 s63, s62, s63
        s_cselect_b32 s55, 0, -1
        s_mul_i32 s54, s{sH}, 1792
        s_add_u32 s50, s62, s54
        s_add_u32 s50, s50, {BR + WS_Q}
        """)
        for r in (LQ + 6, LQ + 7, LK + 6, LK + 7, LKP + 6, LKP + 7):
            a(f"v_mov_b32 v{r}, 0")
        for r in range(12):
            a(f"v_mov_b32 v{LV+r}, 0")
        a("s_mov_b32 exec_lo, 0x10000000")
        a("s_mov_b32 exec_hi, 0x10000000")
        for r in range(12):
            a(f"v_mov_b32 v{LV+r}, 0x3f803f80")
        a("s_mov_b64 exec, -1")
        self.load_qk_frag(LQ, 5, "s50", q, "L")
        a(f"s_add_u32 s50, s50, {WS_K - WS_Q}")
        self.load_qk_frag(LK, 5, "s50", q, "L")
        a(f"s_add_u32 s50, s63, s54")
        a(f"s_add_u32 s50, s50, {BR + WS_K}")
        self.load_qk_frag(LKP, 5, "s50", q, "L")
        a(f"""
        s_mul_i32 s54, s{sH}, 448
        s_add_u32 s50, s62, s54
        s_add_u32 s50, s50, {BR + WS_V}
        s_add_u32 s51, s50, 14336
        s_add_u32 s52, s63, s54
        s_add_u32 s52, s52, {BR + WS_V + 14336}
        s_mov_b32 exec_lo, 0x0fffffff
        s_mov_b32 exec_hi, 0x0fffffff
        buffer_load_dwordx4 {vr(LV,4)}, v4, {sr(S_WS)}, s50 offen{LSC}
        buffer_load_dwordx4 {vr(LV+4,4)}, v4, {sr(S_WS)}, s51 offen{LSC}
        buffer_load_dwordx4 {vr(LVP,4)}, v4, {sr(S_WS)}, s52 offen{LSC}
        s_mov_b64 exec, -1
        v_mov_b32 v15, {NEG_BIG}
        s_add_u32 s62, s62, {WS_OB}
        """)
        for _ in range(3):
            q.push("L")
        self.o_voff(14, 13)

    def local_attn(self, q):
        a = self.a
        LQ, LK, LKP, LV, LVP = 20, 28, 36, 44, 52
        Sd, Sp, P, T, O = 64, 80, 96, 104, 124
        n = q.wait_for("L")
        if n is not None:
            a(f"s_waitcnt vmcnt({n})")
        a(f"v_mfma_f32_32x32x16_bf16 {vr(Sd,16)}, {vr(LK,4)}, {vr(LQ,4)}, 0")
        a(f"v_mfma_f32_32x32x16_bf16 {vr(Sp,16)}, {vr(LKP,4)}, {vr(LQ,4)}, 0")
        a(f"v_mfma_f32_32x32x16_bf16 {vr(Sd,16)}, {vr(LK+4,4)}, {vr(LQ+4,4)}, {vr(Sd,16)}")
        a(f"v_mfma_f32_32x32x16_bf16 {vr(Sp,16)}, {vr(LKP+4,4)}, {vr(LQ+4,4)}, {vr(Sp,16)}")
        regs = []
        for r in range(16):
            m = lane_mask(lambda l: (((l & 31) - ((r & 3) + 8 * (r >> 2) + 4 * (l >> 5))) & ~14) == 0)
            sp = 50 + 2 * (r & 1)
            a(f"s_mov_b32 s{sp}, {m & 0xffffffff:#x}")
            a(f"s_mov_b32 s{sp+1}, {m >> 32:#x}")
            a(f"v_cndmask_b32 v{Sd+r}, v15, v{Sd+r}, s[{sp}:{sp+1}]")
            regs.append(Sd + r)
        for r in range(8, 16):
            m = lane_mask(lambda l: ((32 + (l & 31) - ((r & 3) + 8 * (r >> 2) + 4 * (l >> 5))) & ~14) == 0)
            sp = 50 + 2 * (r & 1)
            a(f"s_and_b32 s{sp}, s55, {m & 0xffffffff:#x}")
            a(f"s_and_b32 s{sp+1}, s55, {m >> 32:#x}")
            a(f"v_cndmask_b32 v{Sp+r}, v15, v{Sp+r}, s[{sp}:{sp+1}]")
            regs.append(Sp + r)
        self.max_tree(regs, T, T + 1)
        for r in regs:
            a(f"v_sub_f32 v{r}, v{r}, v{T}")
        for r in regs:
            a(f"v_exp_f32 v{r}, v{r}")
        for r in range(8):
            a(f"v_cvt_pk_bf16_f32 v{P+r}, v{Sd+2*r}, v{Sd+2*r+1}")
        for r in range(4):
            a(f"v_cvt_pk_bf16_f32 v{T+4+r}, v{Sp+8+2*r}, v{Sp+9+2*r}")
        a(f"v_mfma_f32_32x32x16_bf16 {vr(O,16)}, {vr(LV,4)}, {vr(P,4)}, 0")
        a(f"v_mfma_f32_32x32x16_bf16 {vr(O,16)}, {vr(LV+4,4)}, {vr(P+4,4)}, {vr(O,16)}")
        a(f"v_mfma_f32_32x32x16_bf16 {vr(O,16)}, {vr(LVP,4)}, {vr(T+4,4)}, {vr(O,16)}")
        self.finalize_o(O, T + 8, 14, "s62", q)

    def out_gemm_setup(self):
        a = self.a
        a(f"""
        s_and_b32 s62, s56, 1
        s_lshr_b32 s63, s56, 1
        v_and_b32 v20, 3, v0
        v_lshlrev_b32 v20, 3, v20
        v_bfe_u32 v21, v0, 4, 1
        v_lshl_add_u32 v20, v21, 5, v20
        s_lshl_b32 s50, s63, 6
        v_add_u32 v20, s50, v20
        v_bfe_u32 v21, v0, 3, 1
        v_lshlrev_b32 v21, 6, v21
        v_xor_b32 v20, v20, v21
        v_bfe_u32 v21, v0, 2, 2
        v_lshl_add_u32 v21, v3, 3, v21
        v_lshl_add_u32 v20, v21, 7, v20
        s_lshl_b32 s61, s{sRB3}, 1
        s_add_u32 s61, s61, s62         ; q tile
        s_lshl_b32 s50, s61, 7
        s_add_u32 s50, s50, {WS_G}
        v_lshlrev_b32 v22, 2, v2
        buffer_load_dword v23, v22, {sr(S_WS)}, s50 offen{LSC}
        s_mul_i32 s61, s61, {TS}
        """)

    def out_gemm_loads(self, br, q, lo=0, hi=28):
        a = self.a
        OF = 144
        for s in range(lo, hi):
            if s % 4 == 0:
                a(f"s_add_u32 s50, s61, {(WS_OA if br == 0 else WS_OB) + s*1024}")
            a(f"buffer_load_dwordx4 {vr(OF+4*s,4)}, v1, {sr(S_WS)}, s50 offen offset:{(s%4)*1024}{LSC}")
            q.push(("o", s))

    def out_gemm(self, br, region, q, loads=True):
        a = self.a
        ACC = 64 + 16 * br
        OF = 144
        WF, NB = 32, 4
        areg = 20 if region == R1 else 21
        if loads:
            self.out_gemm_loads(br, q)

        def reads(s):
            b = WF + 4 * (s % NB)
            for u in range(2):
                a(f"ds_read_b64_tr_b16 {vr(b+2*u,2)}, v{areg} offset:{(16*s+4*u)*128}")

        for s in range(NB - 1):
            reads(s)
        for s in range(28):
            if s + NB - 1 < 28:
                reads(s + NB - 1)
                lg = 2 * (NB - 1)
            else:
                lg = 2 * (27 - s)
            n = q.wait_for(('o', s))
            a(f"s_waitcnt lgkmcnt({lg})" if n is None else f"s_waitcnt vmcnt({n}) lgkmcnt({lg})")
            b = WF + 4 * (s % NB)
            d = vr(ACC, 16)
            c = "0" if s == 0 else d
            a(f"v_mfma_f32_32x32x16_bf16 {d}, {vr(b,4)}, {vr(OF+4*s,4)}, {c}")

    def out_epilogue_pre(self):
        a = self.a
        A, B, W = 64, 80, 32
        a(f"""
        v_sub_f32 v24, 1.0, v23
        v_cvt_pk_bf16_f32 v24, v24, v24
        v_lshlrev_b32 v24, 16, v24
        s_lshl_b32 s50, s{sRB3}, 6
        s_lshl_b32 s51, s62, 5
        s_add_u32 s50, s50, s51
        v_add_u32 v25, s50, v2
        s_movk_i32 s50, 896
        v_mul_lo_u32 v25, v25, s50
        v_lshl_add_u32 v25, v3, 4, v25
        s_lshl_b32 s50, s{sCB3}, 7
        s_lshl_b32 s51, s63, 6
        s_add_u32 s50, s50, s51
        """)
        a("s_mov_b32 s59, s50")
        for r in range(16):
            a(f"v_mul_f32 v{B+r}, v24, v{B+r}")

    def out_epilogue(self):
        a = self.a
        A, B, W = 64, 80, 32
        for r in range(16):
            a(f"v_fma_f32 v{A+r}, v23, v{A+r}, v{B+r}")
        for r in range(8):
            a(f"v_cvt_pk_bf16_f32 v{W+r}, v{A+2*r}, v{A+2*r+1}")
        for pr in range(2):
            b = W + 4 * pr
            a(f"v_permlane32_swap_b32 v{b}, v{b+2}")
            a(f"v_permlane32_swap_b32 v{b+1}, v{b+3}")
            a(f"buffer_store_dwordx4 {vr(b,4)}, v25, {sr(S_OUT)}, s59 offen offset:{32*pr}{('', ' sc1', ' nt', ' sc0 sc1')[self.cfg.get('outpol', 0)]}")

    def gate_wg(self):
        a = self.a
        a.label("GATE_WG")
        a(f"""
        s_lshl_b32 s56, s{sGI}, 6
        s_lshl_b32 s50, s{sW}, 4
        s_add_u32 s56, s56, s50
        s_mul_i32 s57, s56, 896
        """)
        NR = 16
        GW = 16 + 4 * NR
        for r in range(4 * NR + 4):
            a(f"v_mov_b32 v{16+r}, 0")
        a("s_mov_b32 exec_hi, 0x00ffffff")
        a(f"buffer_load_dwordx4 {vr(GW,4)}, v1, {sr(S_GATE)}, 0 offen")
        for i in range(NR):
            a(f"s_add_u32 s50, s57, {896*i}")
            a(f"buffer_load_dwordx4 {vr(16+4*i,4)}, v1, {sr(S_X)}, s50 offen")
        a("s_mov_b64 exec, -1")
        Z = GW + 4
        for i in range(NR):
            a(f"v_mov_b32 v{Z+i}, 0")
        a("s_waitcnt vmcnt(0)")
        for r in range(4):
            for i in range(NR):
                a(f"v_dot2_f32_bf16 v{Z+i}, v{16+4*i+r}, v{GW+r}, v{Z+i}")
        a("s_nop 2")
        for sh in (1, 2, 4, 8):
            for i in range(NR):
                a(f"v_add_f32_dpp v{Z+i}, v{Z+i}, v{Z+i} row_shr:{sh} row_mask:0xf bank_mask:0xf bound_ctrl:0")
        for i in range(NR):
            a(f"v_add_f32_dpp v{Z+i}, v{Z+i}, v{Z+i} row_bcast:15 row_mask:0xa bank_mask:0xf")
        for i in range(NR):
            a(f"v_add_f32_dpp v{Z+i}, v{Z+i}, v{Z+i} row_bcast:31 row_mask:0xc bank_mask:0xf")

        def round_pairs():
            for i in range(0, NR, 2):
                a(f"v_cvt_pk_bf16_f32 v16, v{Z+i}, v{Z+i+1}")
                a(f"v_lshlrev_b32 v{Z+i}, 16, v16")
                a(f"v_and_b32 v{Z+i+1}, 0xffff0000, v16")
        round_pairs()
        for i in range(NR):
            a(f"v_mul_f32 v{Z+i}, {NLOG2E}, v{Z+i}")
        for i in range(NR):
            a(f"v_exp_f32 v{Z+i}, v{Z+i}")
        for i in range(NR):
            a(f"v_add_f32 v{Z+i}, 1.0, v{Z+i}")
        for i in range(NR):
            a(f"v_rcp_f32 v{Z+i}, v{Z+i}")
        round_pairs()
        a(f"""
        s_lshl_b32 s50, s56, 2
        s_add_u32 s50, s50, {WS_G}
        v_mov_b32 v16, 0
        s_mov_b32 exec_lo, 0
        s_mov_b32 exec_hi, 0x80000000
        """)
        for i in range(NR // 4):
            a(f"buffer_store_dwordx4 {vr(Z+4*i,4)}, v16, {sr(S_WS)}, s50 offen offset:{16*i} sc1")
        a("""
        s_mov_b64 exec, -1
        s_waitcnt vmcnt(0)
        s_barrier
        """)
        self.read_nonce(t0=188, t1=189)
        self.publish(f"""
        s_lshl_b32 s50, s2, 6
        s_add_u32 s50, s50, {WS_F}
        """, only_wave=0, t0=188, t1=189)
        if self.cfg.get("p1v", 1) == 2:
            self.publish(f"""
            s_lshl_b32 s50, s2, 6
            s_add_u32 s50, s50, {WS_F + 0x4000}
            """, only_wave=0, t0=188, t1=189)
        a("""
        s_barrier
        s_branch ATT_C_ENTRY
        """)
        a.label("GATE_H")
        a(f"s_setprio {self.cfg.get('hprio', 1)}")
        self.srds_first()
        self.srds_rest()
        if not self.cfg.get("l2pf", 1):
            a("s_barrier")
        if self.cfg.get("l2pf", 1):
            a(f"""
            s_sub_u32 s56, s{sIDX}, 28
            s_lshl_b32 s56, s56, 2
            s_add_u32 s56, s56, s{sW}
            s_sub_u32 s56, s56, 4           ; pw 0..15
            s_lshr_b32 s50, s{sXCD}, 1
            s_mul_i32 s57, s50, {512*896}
            s_mul_i32 s50, s56, 28672
            s_add_u32 s57, s57, s50         ; x slice
            v_and_b32 v2, 31, v0
            v_lshlrev_b32 v2, 4, v2
            v_lshrrev_b32 v3, 5, v0
            s_movk_i32 s50, 896
            v_mad_u32_u24 v4, v3, s50, v2   ; (r0,p0),(r0,p1)
            v_add_u32 v5, 1792, v4          ; (r0,p2),(r1,p0)
            v_add_u32 v6, 3584, v4          ; (r1,p1),(r1,p2)
            s_and_b32 s50, s{sXCD}, 1
            s_mul_i32 s58, s50, 384
            s_mul_i32 s50, s56, 5376
            s_add_u32 s58, s58, s50
            s_lshl_b32 s59, s56, 10
            """)
            n = [0]

            def dst():
                n[0] += 1
                return vr(16 + 4 * (n[0] % 32), 4)
            if self.cfg.get("l2pf") == 3:
                a("""
                s_movk_i32 s50, 2688
                v_mad_u32_u24 v7, v3, s50, v2
                """)
                for i in range(14):
                    a(f"s_add_u32 s50, s58, {i*16*5376}")
                    a(f"buffer_load_dwordx4 {dst()}, v7, {sr(S_WA)}, s50 offen")
            for sw in (S_WB,):
                for i in range(14):
                    a(f"s_add_u32 s50, s58, {i*16*5376}")
                    for k in range(3):
                        a(f"buffer_load_dwordx4 {dst()}, v{4+k}, {sr(sw)}, s50 offen")
                    if i == self.cfg.get("gbar", 13):
                        a("s_barrier")
            for sw in ((S_WOB, S_WOA) if self.cfg.get("l2pf") == 2 else ()):
                for i in range(25):
                    a(f"s_add_u32 s50, s59, {i*16384}")
                    a(f"buffer_load_dwordx4 {dst()}, v1, {sr(sw)}, s50 offen")
        self.read_nonce()
        a(f"s_mov_b32 s{sQE}, 0")
        self.poll_all(0)
        a("""
        s_barrier
        s_branch ATT_H_ENTRY
        """)


def build(cfg):
    g = Gen(cfg)
    body = g.build()
    head = f"""; {NAME}: one persistent launch (projections -> attention -> output projection + gated mix)
; @launch grid=(256,1,1) block=(512,1,1) lds={LDS_BYTES}
.amdgcn_target "amdgcn-amd-amdhsa--gfx950"
.text
.globl {NAME}_kernel
"""
    tail = f""".section .rodata,"a"
.p2align 6
.amdhsa_kernel {NAME}_kernel
  .amdhsa_next_free_vgpr 256
  .amdhsa_next_free_sgpr 100
  .amdhsa_accum_offset {256}
  .amdhsa_group_segment_fixed_size 0
  .amdhsa_kernarg_size 80
  .amdhsa_user_sgpr_count 2
  .amdhsa_user_sgpr_kernarg_segment_ptr 1
  .amdhsa_system_sgpr_workgroup_id_x 1
.end_amdhsa_kernel
"""
    if cfg.get("stamps"):
        head = "; STAMPS " + repr(g.stnames) + "\n" + head
    return head + body + tail, g.a.n_pads


if __name__ == "__main__":
    cfg = {}
    out = f"cdna_kernels/{NAME}.s"
    for arg in sys.argv[1:]:
        if arg.startswith("-o="):
            out = arg[3:]
        else:
            k, v = arg.split("=")
            cfg[k] = int(v)
    s, n = build(cfg)
    open(out, "w").write(s)
    print("wrote", out, len(s), "bytes;", n, "hazard pads")
```
